```python
import torch

def _softmax(x, axis=-1):
    return torch.softmax(x, dim=axis)

def _gelu(x):
    return torch.nn.functional.gelu(x, approximate='tanh')

def _silu(x):
    return torch.nn.functional.silu(x)

def _sigmoid(x):
    return torch.sigmoid(x)

def _layernorm(x, axis=-1, eps=1e-05):
    m = x.mean(dim=axis, keepdim=True)
    v = x.var(dim=axis, keepdim=True, unbiased=False)
    return (x - m) / torch.sqrt(v + eps)

def _scatter_add(tgt, idx, src, axis=0):
    return tgt.clone().index_add_(axis, idx, src)

def _segment_sum(src, seg, n):
    out = torch.zeros((n,) + src.shape[1:], dtype=src.dtype)
    return out.index_add_(0, seg, src)

def _pad(x, pw):
    flat = tuple((v for pair in reversed(pw) for v in pair))
    return torch.nn.functional.pad(x, flat)
kernel_name = 'sequential_preLN__grouped_kv_mqa__mixer_gmlp__prompt'

def setup_inputs():

    _w = lambda a: (lambda t: t.to(torch.bfloat16) if t.is_floating_point() else t)(torch.as_tensor(a))

    def _A_setup():
        B, S, D, H = (1, 2048, 512, 32)
        Dh = D // H
        return {'x': _w((lambda *s: torch.randn(*s, dtype=torch.bfloat16) * 0.05)(B, S, D)), 'wq': _w((lambda *s: torch.randn(*s, dtype=torch.bfloat16) * 0.05)(D, H * Dh)), 'wk': _w((lambda *s: torch.randn(*s, dtype=torch.bfloat16) * 0.05)(D, Dh)), 'wv': _w((lambda *s: torch.randn(*s, dtype=torch.bfloat16) * 0.05)(D, Dh)), 'wo': _w((lambda *s: torch.randn(*s, dtype=torch.bfloat16) * 0.05)(H * Dh, D))}
    _A_in = _A_setup()

    def _B_setup():
        B, S, D, F = (1, 2048, 512, 1376)
        Fh = F // 2
        return {'x': _w((lambda *s: torch.randn(*s, dtype=torch.bfloat16) * 0.05)(B, S, D)), 'w_in': _w((lambda *s: torch.randn(*s, dtype=torch.bfloat16) * 0.4)(D, 2 * Fh)), 'w_sp': _w(0.01 * (lambda *s: torch.randn(*s, dtype=torch.bfloat16) * 0.4)(S, S)), 'b_sp': _w(1.0 + 0.01 * (lambda *s: torch.randn(*s, dtype=torch.bfloat16) * 0.05)(S)), 'w_out': _w((lambda *s: torch.randn(*s, dtype=torch.bfloat16) * 0.05)(Fh, D))}
    _B_in = _B_setup()
    return {'A_x': _A_in['x'], 'A_wq': _A_in['wq'], 'A_wk': _A_in['wk'], 'A_wv': _A_in['wv'], 'A_wo': _A_in['wo'], 'B_x': _B_in['x'], 'B_w_in': _B_in['w_in'], 'B_w_sp': _B_in['w_sp'], 'B_b_sp': _B_in['b_sp'], 'B_w_out': _B_in['w_out']}

def reference(A_x, A_wq, A_wk, A_wv, A_wo, B_x, B_w_in, B_w_sp, B_b_sp, B_w_out):

    def _A_ref(x, wq, wk, wv, wo):
        B, S, D = x.shape
        H = 32
        Dh = D // H
        q = (lambda x, *d: x.permute(*d))((x @ wq).reshape(B, S, H, Dh), 0, 2, 1, 3)
        k = x @ wk
        v = x @ wv
        scores = torch.einsum('bhqd,bkd->bhqk', q, k) * Dh ** (-0.5)
        p = _softmax(scores, axis=-1)
        o = torch.einsum('bhqk,bkd->bhqd', p, v)
        return (lambda x, *d: x.permute(*d))(o, 0, 2, 1, 3).reshape(B, S, H * Dh) @ wo

    def _B_ref(x, w_in, w_sp, b_sp, w_out):
        B, S, D = x.shape
        F = w_in.shape[-1]
        Fh = F // 2
        z = _gelu(torch.einsum('bsd,df->bsf', x, w_in))
        z1 = z[..., :Fh].clone()
        z2 = _layernorm(z[..., Fh:], axis=-1)
        g = torch.einsum('ts,bsf->btf', w_sp, z2) + b_sp[None, :, None]
        return torch.einsum('bsf,fd->bsd', z1 * g, w_out)
    x = A_x
    h = x + _A_ref(_layernorm(x, axis=-1), A_wq, A_wk, A_wv, A_wo)
    h2 = h + _B_ref(_layernorm(h, axis=-1), B_w_in, B_w_sp, B_b_sp, B_w_out)
    return h2
```

```python
import re

TRANS = ("v_exp_f32", "v_log_f32", "v_rcp_f32", "v_rsq_f32", "v_sqrt_f32", "v_sin_f32", "v_cos_f32",
         "v_exp_f16", "v_rcp_f16", "v_rcp_iflag_f32")

def regs_of(tok):
    tok = tok.strip()
    tok = tok.lstrip("-")
    if tok.startswith("abs(") or tok.startswith("neg("):
        tok = tok[4:-1]
    tok = tok.strip("|")
    m = re.fullmatch(r"([vsa])(\d+)", tok)
    if m:
        return {(m.group(1), int(m.group(2)))}
    m = re.fullmatch(r"([vsa])\[(\d+):(\d+)\]", tok)
    if m:
        return {(m.group(1), i) for i in range(int(m.group(2)), int(m.group(3)) + 1)}
    if tok in ("vcc", "vcc_lo", "vcc_hi"):
        return {("vcc", 0)}
    if tok in ("exec", "exec_lo", "exec_hi"):
        return {("exec", 0)}
    if tok == "m0":
        return {("m0", 0)}
    return set()

class Ins:
    def __init__(self, text):
        self.text = text
        t = text.split(";")[0].strip()
        self.label = None
        self.op = None
        self.dst = set(); self.src = set()
        self.kind = "other"
        self.srcc = set(); self.srcab = set()
        self.states = 1
        self.target = None
        if not t:
            self.kind = "none"; self.states = 0; return
        if t.endswith(":"):
            self.label = t[:-1]; self.kind = "label"; self.states = 0; return
        if t.startswith("."):
            self.kind = "none"; self.states = 0; return
        parts = t.split(None, 1)
        op = parts[0]; self.op = op
        rest = parts[1] if len(parts) > 1 else ""
        ops = []
        main = re.split(r"\s+(?=(?:offen|idxen|offset|offset0|offset1|lds|sc0|sc1|nt|op_sel|op_sel_hi|neg_lo|neg_hi|clamp|mul:|div:|row_|quad_perm|bank_mask|bound_ctrl|off\b|cbsz|abid|blgp|dst_sel|src0_sel|src1_sel|dst_unused|wave_))", rest, 1)[0]
        ops = [o.strip() for o in main.split(",") if o.strip()]
        self.mods = rest[len(main):]
        base = re.sub(r"_(e32|e64|dpp|sdwa)$", "", op)
        self.base = base
        self.dpp = ("row_" in self.mods or "quad_perm" in self.mods or "wave_" in self.mods or op.endswith("_dpp"))
        R = [regs_of(o) for o in ops]
        if op == "s_nop":
            self.kind = "nop"; self.states = int(ops[0], 0) + 1; return
        if op.startswith("s_cbranch") or op == "s_branch":
            self.kind = "branch"; self.target = ops[0]; return
        if op.startswith("v_mfma") or op.startswith("v_smfmac"):
            self.kind = "mfma"
            self.dst = R[0]; self.srcab = R[1] | R[2]; self.srcc = R[3] if len(R) > 3 else set()
            self.src = self.srcab | self.srcc
            self.passes = 8 if "32x32" in op else 4
            return
        if op.startswith("buffer_") or op.startswith("global_"):
            self.kind = "vmem"
            islds = " lds" in (" " + self.mods) or "_lds_" in op
            if "store" in op or ("atomic" in op and "sc0" not in self.mods):
                self.src = set().union(*R) if R else set()
                self.wide_store = ("x3" in op or "x4" in op)
                self.sdata = R[0] if op.startswith("buffer_") else R[1]
            elif islds:
                self.src = set().union(*R) | {("m0", 0)}
                self.ldsdma = True
            else:
                self.dst = R[0]; self.src = set().union(*R[1:])
                if "atomic" in op: self.src |= R[0]
            return
        if op.startswith("ds_"):
            self.kind = "ds"
            if op.startswith("ds_write") or (op.startswith("ds_add") and "rtn" not in op) or (op.startswith("ds_max") and "rtn" not in op):
                self.src = set().union(*R)
            else:
                self.dst = R[0]; self.src = set().union(*R[1:])
            return
        if op.startswith("v_"):
            self.kind = "valu"
            if base.startswith("v_cmpx"):
                self.dst = R[0] | {("exec", 0)}; self.src = set().union(*R[1:])
            elif base.startswith("v_cmp"):
                self.dst = R[0]; self.src = set().union(*R[1:])
            elif base.startswith("v_permlane") and "swap" in base:
                self.dst = R[0] | R[1]; self.src = R[0] | R[1]
            elif base in ("v_add_co_u32", "v_sub_co_u32", "v_addc_co_u32", "v_subb_co_u32", "v_div_scale_f32", "v_mad_u64_u32"):
                self.dst = R[0] | R[1]; self.src = set().union(*R[2:])
            else:
                self.dst = R[0]; self.src = set().union(*R[1:]) if len(R) > 1 else set()
                if base in ("v_fmac_f32", "v_pk_fmac_f16", "v_dot2c_f32_bf16", "v_writelane_b32") or self.dpp:
                    self.src |= R[0]
                if base.startswith("v_dot"):
                    self.srcab_dot = R[1] | R[2]
                if base == "v_cndmask_b32" and len(R) == 3:
                    self.src |= {("vcc", 0)}
            return
        if op.startswith("s_"):
            self.kind = "salu"
            if op.startswith("s_cmp") or op in ("s_waitcnt", "s_barrier", "s_endpgm", "s_setprio", "s_sleep"):
                self.src = set().union(*R) if R else set()
            elif op.startswith("s_load") or op.startswith("s_buffer_load") or op.startswith("s_memtime") or op.startswith("s_memrealtime"):
                self.kind = "smem"
                self.dst = R[0]; self.src = set().union(*R[1:]) if len(R) > 1 else set()
            else:
                self.dst = R[0]; self.src = set().union(*R[1:]) if len(R) > 1 else set()
                if "saveexec" in op:
                    self.dst |= {("exec", 0)}
            return

def isv(r): return r[0] in ("v", "a")
def V(s): return {r for r in s if isv(r)}
def S(s): return {r for r in s if r[0] in ("s", "vcc")}

def need(p, c):
    n = 0
    if p.kind == "valu":
        pv = V(p.dst); ps = S(p.dst)
        if c.kind == "mfma" and pv & c.src: n = max(n, 2)
        if c.kind == "valu":
            if c.dpp and pv & c.src: n = max(n, 2)
            if c.base.startswith("v_permlane") and pv & c.src: n = max(n, 2)
            if c.base in ("v_readlane_b32", "v_readfirstlane_b32") and pv & c.src: n = max(n, 1)
            if p.base in TRANS and c.base not in TRANS and pv & c.src: n = max(n, 1)
            if ps & c.src:
                n = max(n, 4 if c.base in ("v_readlane_b32", "v_writelane_b32", "v_div_fmas_f32") else 2)
            if ("exec", 0) in p.dst:
                n = max(n, 5 if c.dpp else 4 if c.base.startswith(("v_readlane", "v_readfirstlane", "v_writelane", "v_permlane")) else 0)
            if ("op_sel" in getattr(p, "mods", "") or "dst_sel" in getattr(p, "mods", "")) and pv & (c.src | c.dst) and not p.base.startswith("v_pk") and not p.base.startswith("v_dot"):
                n = max(n, 1)
        if p.base.startswith("v_dot") and pv & (c.src | c.dst):
            same_c = (c.kind == "valu" and c.base == p.base and not (pv & getattr(c, "srcab_dot", set())))
            if not same_c: n = max(n, 3)
        if c.kind == "mfma" and ("exec", 0) in p.dst: n = max(n, 4)
        if c.kind == "vmem" and ps & c.src: n = max(n, 5)
        if c.kind == "salu" and ps & c.src: n = max(n, 1)
    if p.kind == "salu":
        if ("m0", 0) in p.dst and c.kind == "vmem" and ("m0", 0) in c.src: n = max(n, 1)
    if p.kind == "vmem" and getattr(p, "wide_store", False):
        if c.kind == "valu" and p.sdata & c.dst: n = max(n, 2)
        elif c.kind in ("vmem", "ds", "mfma") and p.sdata & c.dst: n = max(n, 1)
    if p.kind == "mfma":
        big = {4: 8, 8: 12}[p.passes]; ovl = {4: 6, 8: 10}[p.passes]; war = {4: 3, 8: 7}[p.passes]
        if c.kind == "mfma":
            if p.dst & c.srcab: n = max(n, big)
            if p.dst & c.srcc:
                if not (p.dst == c.srcc and p.passes == c.passes): n = max(n, ovl)
            if p.dst & c.dst and not (p.dst == c.srcc and p.passes == c.passes): n = max(n, ovl)
        elif c.kind in ("valu", "vmem", "ds"):
            if p.dst & (c.src | c.dst): n = max(n, big)
            if c.kind == "valu" and p.srcc & c.dst: n = max(n, war)
            if c.kind in ("vmem", "ds") and p.srcc & c.dst: n = max(n, war)
    return n

MAXD = 20

def pad(lines):
    out = []
    for text in lines:
        c = Ins(text)
        if c.states == 0:
            out.append(c); continue
        req = 0; dist = 0
        for p in reversed(out):
            if p.states == 0: continue
            k = need(p, c)
            if k > dist: req = max(req, k - dist)
            dist += p.states
            if dist >= MAXD: break
        while req > 0:
            k = min(req, 16)
            out.append(Ins(f"    s_nop {k-1}"))
            req -= k
        out.append(c)
    labels = {ins.label: i for i, ins in enumerate(out) if ins.label}
    problems = []
    for i, b in enumerate(out):
        if b.kind != "branch" or b.target not in labels: continue
        t = labels[b.target]
        after = []; d = 0
        for c in out[t:]:
            if c.states == 0: continue
            after.append((d, c)); d += c.states
            if d >= MAXD: break
        d0 = 1
        for p in reversed(out[:i]):
            if p.states == 0: continue
            for (d, c) in after:
                k = need(p, c)
                if k > d0 + d:
                    problems.append(f"branch edge {b.text.strip()}: '{p.text.strip()}' -> '{c.text.strip()}' needs {k} has {d0+d}")
            d0 += p.states
            if d0 >= MAXD: break
    if problems:
        raise RuntimeError("hazards on branch edges:\n" + "\n".join(problems))
    return [i.text for i in out]

class Kern:
    def __init__(self, name, nvgpr, nsgpr=96, accum=None):
        self.name = name; self.lines = []; self.nvgpr = nvgpr; self.nsgpr = nsgpr; self.accum = accum
        self.nlab = 0
    def __call__(self, s):
        for l in s.split("\n"):
            l = l.rstrip()
            if not l.strip(): continue
            st = l.strip()
            self.lines.append(st if st.endswith(":") else "    " + st)
    def lab(self, base):
        self.nlab += 1
        return f"L_{self.name}_{base}_{self.nlab}"
    def text(self):
        body = "\n".join(pad(self.lines))
        mx = 0
        for m in re.finditer(r"\bv(\d+)\b|\bv\[(\d+):(\d+)\]", body):
            mx = max(mx, int(m.group(1) or m.group(3)))
        assert mx < (self.accum or self.nvgpr), f"{self.name}: uses v{mx} but budget {self.nvgpr}"
        ms = 0
        for m in re.finditer(r"\bs(\d+)\b|\bs\[(\d+):(\d+)\]", body):
            ms = max(ms, int(m.group(1) or m.group(3)))
        assert ms < self.nsgpr, f"{self.name}: uses s{ms}"
        acc = self.accum or ((self.nvgpr + 3) // 4 * 4)
        return f""".text
.globl {self.name}
.p2align 8
.type {self.name},@function
{self.name}:
{body}
.section .rodata,"a"
.p2align 6
.amdhsa_kernel {self.name}
  .amdhsa_next_free_vgpr {self.nvgpr}
  .amdhsa_next_free_sgpr {self.nsgpr}
  .amdhsa_accum_offset {acc}
  .amdhsa_group_segment_fixed_size 0
  .amdhsa_kernarg_size 104
  .amdhsa_user_sgpr_count 2
  .amdhsa_user_sgpr_kernarg_segment_ptr 1
  .amdhsa_system_sgpr_workgroup_id_x 1
.end_amdhsa_kernel
"""
```

```python
from asm import *
from layout import *

def srd(k, d, lo, hi, size):
    k(f"""s_mov_b32 s{d}, s{lo}
          s_mov_b32 s{d+1}, s{hi}
          s_mov_b32 s{d+2}, {size:#x}
          s_mov_b32 s{d+3}, 0x00020000""")

def prologue_ids(k, nwg, vlane="v1", swave="s28"):
    k(f"""s_cmp_ge_u32 s2, {nwg}
          s_cbranch_scc1 L_{k.name}_end
          v_and_b32 {vlane}, 63, v0
          v_lshrrev_b32 v2, 6, v0
          v_readfirstlane_b32 {swave}, v2""")

def vr(a, n=4): return f"v[{a}:{a+n-1}]"

def xhalf_add(k, a, t):
    k(f"""v_mov_b32 v{t}, v{a}
          v_permlane32_swap_b32 v{a}, v{t}
          v_add_f32 v{a}, v{a}, v{t}""")

def x16_add(k, a, t):
    k(f"""v_mov_b32 v{t}, v{a}
          v_permlane16_swap_b32 v{a}, v{t}
          v_add_f32 v{a}, v{a}, v{t}""")

def ln_stats(k, vsum, vsq, n, vt):
    inv = 1.0 / n
    import struct
    invh = struct.unpack("<I", struct.pack("<f", inv))[0]
    eps = struct.unpack("<I", struct.pack("<f", 1e-5))[0]
    k(f"""v_mul_f32 v{vsum}, {invh:#x}, v{vsum}
          v_mul_f32 v{vsq}, {invh:#x}, v{vsq}
          v_fma_f32 v{vt}, -v{vsum}, v{vsum}, v{vsq}
          v_max_f32 v{vt}, 0, v{vt}
          v_add_f32 v{vt}, {eps:#x}, v{vt}
          v_rsq_f32 v{vsq}, v{vt}""")

def f32(x):
    import struct
    return f"{struct.unpack('<I', struct.pack('<f', x))[0]:#x}"
```

```python
from common import *

def build_k1():
    k = Kern("qkv_kernel", nvgpr=128)
    XL, WL, KVL = 0, 65536, 131072
    prologue_ids(k, 256)
    k("""s_load_dwordx8 s[4:11], s[0:1], 0
         s_load_dwordx2 s[12:13], s[0:1], 96
         s_load_dwordx2 s[14:15], s[0:1], 48
         s_and_b32 s29, s2, 7
         s_lshr_b32 s30, s2, 3
         s_lshl_b32 s29, s29, 2
         s_and_b32 s31, s30, 3
         s_add_u32 s29, s29, s31
         s_lshr_b32 s30, s30, 2           ; cg
         v_mov_b32 v64, 0x3f803f80
         v_mov_b32 v65, 0x3f803f80
         v_mov_b32 v66, 0x3f803f80
         v_mov_b32 v67, 0x3f803f80
         v_mov_b32 v68, 0
         v_mov_b32 v69, 0
         v_mov_b32 v70, 0
         v_mov_b32 v71, 0
         v_lshrrev_b32 v8, 4, v1          ; g = l>>4
         v_lshrrev_b32 v9, 5, v1          ; h
         v_lshrrev_b32 v10, 2, v1
         v_and_b32 v10, 3, v10            ; r
         v_and_b32 v11, 3, v1             ; c4
         s_waitcnt lgkmcnt(0)""")
    srd(k, 16, 4, 5, 2048 * 1024)
    srd(k, 24, 12, 13, WS_USED)
    k(f"""s_cmp_eq_u32 s28, 4
          s_cbranch_scc1 L_k1_kv""")
    srd(k, 20, 6, 7, 512 * 1024)
    k(f"""s_and_b32 s32, s28, 1            ; rh
          s_lshr_b32 s33, s28, 1           ; ch
          s_lshl_b32 s34, s29, 6
          s_lshl_b32 s35, s28, 4
          s_add_u32 s34, s34, s35          ; rb*64+16w
          v_lshrrev_b32 v12, 3, v1         ; i>>3
          v_add_u32 v2, s34, v12
          v_lshlrev_b32 v2, 10, v2
          v_and_b32 v13, 7, v1
          v_xor_b32 v14, v13, v8
          v_lshl_add_u32 v2, v14, 4, v2
          v_xor_b32 v3, 64, v2
          v_add_u32 v3, 8192, v3           ; j odd
          v_add_u32 v4, s35, v12
          v_lshlrev_b32 v4, 10, v4
          v_and_b32 v14, 1, v8
          v_lshlrev_b32 v14, 2, v14
          v_xor_b32 v14, v13, v14
          v_lshl_add_u32 v4, v14, 4, v4
          s_lshl_b32 s36, s30, 7
          v_add_u32 v4, s36, v4
          v_add_u32 v5, 8192, v4
          s_lshl_b32 s37, s28, 11          ; w*2048 (lds)""")
    for c in range(8):
        k(f"""s_add_u32 m0, s37, {XL + c*8192 - c*128}
              s_mov_b32 s38, {c*65536}
              buffer_load_dwordx4 v2, s[16:19], 0 offen offset:{c*128} lds
              s_add_u32 m0, s37, {XL + c*8192 + 1024 - c*128}
              buffer_load_dwordx4 v3, s[16:19], 0 offen offset:{c*128} lds
              s_add_u32 m0, s37, {WL + c*8192}
              buffer_load_dwordx4 v4, s[20:23], s38 offen lds
              s_add_u32 m0, s37, {WL + c*8192 + 1024}
              buffer_load_dwordx4 v5, s[20:23], s38 offen lds""")
    k(f"""v_lshl_add_u32 v6, v9, 3, v10     ; 8h+r
          v_lshlrev_b32 v6, 7, v6
          v_lshrrev_b32 v12, 1, v10
          v_xor_b32 v12, s33, v12
          v_lshl_add_u32 v6, v12, 6, v6
          v_and_b32 v12, 1, v8
          v_lshl_add_u32 v6, v12, 5, v6
          v_lshl_add_u32 v6, v11, 3, v6
          v_add_u32 v6, {WL}, v6
          v_and_b32 v12, 31, v1
          s_lshl_b32 s39, s32, 5
          v_add_u32 v12, s39, v12
          v_lshrrev_b32 v13, 1, v12
          v_and_b32 v13, 7, v13
          v_lshlrev_b32 v12, 7, v12""")
    for q in range(4):
        k(f"""v_add_u32 v14, {2*q}, v9
              v_xor_b32 v14, v14, v13
              v_lshl_add_u32 v{72+q}, v14, 4, v12""")
    for r in range(32):
        k(f"v_mov_b32 v{32+r}, 0")
    FA = lambda s, q: 76 + 0
    def fa(s, q): return (16 if s == 0 else 96) + 0
    def A(s, q): return (80 + 8*q) if s == 0 else (112 + 8*q if q < 2 else 16 + 8*(q-2))
    def B(s, q): return A(s, q) + 4
    def reads(c):
        s = c & 1
        for q in range(4):
            st = 4*c + q
            k(f"""ds_read_b64_tr_b16 v[{A(s,q)}:{A(s,q)+1}], v6 offset:{2048*st}
                  ds_read_b64_tr_b16 v[{A(s,q)+2}:{A(s,q)+3}], v6 offset:{2048*st+512}
                  ds_read_b128 {vr(B(s,q))}, v{72+q} offset:{XL + 8192*c}""")
    def step(c, q):
        s = c & 1
        k(f"""v_mfma_f32_32x32x16_bf16 v[32:47], {vr(A(s,q))}, {vr(B(s,q))}, v[32:47]""")
        for d in range(4):
            k(f"""v_dot2_f32_bf16 v{68+(d&1)}, v{B(s,q)+d}, v64, v{68+(d&1)}""")
        k(f"""v_mfma_f32_32x32x16_bf16 v[48:63], {vr(A(s,q))}, v[64:67], v[48:63]""")
        for d in range(4):
            k(f"""v_dot2_f32_bf16 v{70+(d&1)}, v{B(s,q)+d}, v{B(s,q)+d}, v{70+(d&1)}""")
    k("s_waitcnt vmcnt(28)\ns_barrier")
    reads(0)
    for c in range(8):
        for q in range(3):
            k(f"s_waitcnt lgkmcnt({9-3*q})")
            step(c, q)
        k("s_waitcnt lgkmcnt(0)")
        if c < 7:
            k(f"s_waitcnt vmcnt({28-4*(c+1)})\ns_barrier")
            reads(c+1)
        step(c, 3)
    k("v_add_f32 v68, v68, v69\nv_add_f32 v70, v70, v71")
    xhalf_add(k, 68, 12); xhalf_add(k, 70, 13)
    ln_stats(k, 68, 70, 512, 12)
    k(f"v_mul_f32 v70, {f32(0.25*1.4426950408889634)}, v70")
    for r in range(16):
        k(f"v_fma_f32 v{32+r}, -v68, v{48+r}, v{32+r}")
    for r in range(16):
        k(f"v_mul_f32 v{32+r}, v70, v{32+r}")
    for r in range(8):
        k(f"v_cvt_pk_bf16_f32 v{48+r}, v{32+2*r}, v{33+2*r}")
    k(f"""s_lshl_b32 s34, s29, 1
          s_add_u32 s34, s34, s32          ; rb32
          s_lshl_b32 s34, s34, 5
          s_lshl_b32 s35, s30, 2
          s_add_u32 s34, s34, s35
          s_lshl_b32 s35, s33, 1
          s_add_u32 s34, s34, s35          ; rb32*32+head
          s_lshl_b32 s34, s34, 10
          s_add_u32 s34, s34, {QF}
          v_lshlrev_b32 v2, 4, v1
          buffer_store_dwordx4 v[48:51], v2, s[24:27], s34 offen
          buffer_store_dwordx4 v[52:55], v2, s[24:27], s34 offen offset:1024
          s_endpgm""")
    k("L_k1_kv:")
    k(f"""s_lshr_b32 s32, s30, 2           ; kv
          s_and_b32 s33, s30, 3            ; rq
          s_cmp_eq_u32 s32, 0
          s_cselect_b32 s20, s8, s10
          s_cselect_b32 s21, s9, s11
          s_mov_b32 s22, 16384
          s_mov_b32 s23, 0x00020000""")
    srd(k, 40, 14, 15, 512 * 2752)
    k(f"""v_lshlrev_b32 v2, 4, v1
          s_movk_i32 s34, 2752
          v_mul_lo_u32 v3, v1, s34
          s_lshl_b32 s35, s2, 4
          v_add_u32 v3, s35, v3""")
    for c in range(8):
        k(f"""s_mov_b32 m0, {KVL + 2048*c}
              s_mov_b32 s38, {2048*c}
              s_mov_b32 s39, {c*64*2752}
              buffer_load_dwordx4 v2, s[20:23], s38 offen lds
              buffer_load_dwordx4 v2, s[20:23], s38 offen offset:1024 lds
              buffer_load_dwordx4 {vr(96+4*c)}, v3, s[40:43], s39 offen""")
    k(f"""v_and_b32 v12, 15, v1
          s_lshl_b32 s34, s33, 4
          v_add_u32 v12, s34, v12
          v_lshrrev_b32 v13, 1, v12
          v_and_b32 v13, 7, v13
          v_lshlrev_b32 v12, 7, v12
          v_xor_b32 v14, v8, v13
          v_lshl_add_u32 v72, v14, 4, v12
          v_add_u32 v14, 4, v8
          v_xor_b32 v14, v14, v13
          v_lshl_add_u32 v73, v14, 4, v12
          v_lshl_add_u32 v6, v8, 3, v10     ; 8g+r
          v_lshlrev_b32 v6, 5, v6
          v_lshl_add_u32 v6, v11, 3, v6
          v_add_u32 v6, {KVL}, v6
          s_mov_b32 s44, 0x00003f80
          s_mov_b32 s45, 0x3f800000""")
    for r in range(16):
        k(f"v_mov_b32 v{32+r}, 0")
    for r in range(8):
        k(f"v_mov_b32 v{48+r}, 0")
    for c in range(8):
        k(f"s_waitcnt vmcnt({21-3*c})\ns_barrier")
        for s in range(2):
            st = 2*c + s
            k(f"""ds_read_b64_tr_b16 v[{16+8*s}:{17+8*s}], v6 offset:{1024*st}
                  ds_read_b64_tr_b16 v[{18+8*s}:{19+8*s}], v6 offset:{1024*st+128}
                  ds_read_b128 {vr(20+8*s)}, v{72+s} offset:{XL+8192*c}""")
        for d in range(4):
            k(f"""v_dot2_f32_bf16 v{48+2*d}, v{96+4*c+d}, s44, v{48+2*d}
                  v_dot2_f32_bf16 v{49+2*d}, v{96+4*c+d}, s45, v{49+2*d}""")
        for s in range(2):
            W, X = 16+8*s, 20+8*s
            k(f"""s_waitcnt lgkmcnt({3-3*s})
                  v_mfma_f32_16x16x32_bf16 v[32:35], {vr(W)}, {vr(X)}, v[32:35]
                  v_mfma_f32_16x16x32_bf16 v[36:39], {vr(X)}, {vr(W)}, v[36:39]
                  v_mfma_f32_16x16x32_bf16 v[40:43], {vr(W)}, v[64:67], v[40:43]
                  v_mfma_f32_16x16x32_bf16 v[44:47], v[64:67], {vr(W)}, v[44:47]""")
            for d in range(4):
                k(f"""v_dot2_f32_bf16 v{68+(d&1)}, v{X+d}, v64, v{68+(d&1)}
                      v_dot2_f32_bf16 v{70+(d&1)}, v{X+d}, v{X+d}, v{70+(d&1)}""")
    k("v_add_f32 v68, v68, v69\nv_add_f32 v70, v70, v71")
    xhalf_add(k, 68, 12); xhalf_add(k, 70, 13)
    x16_add(k, 68, 12); x16_add(k, 70, 13)
    ln_stats(k, 68, 70, 512, 12)
    k(f"""s_lshl_b32 s34, s29, 2
          s_add_u32 s34, s34, s33          ; t16
          v_and_b32 v12, 1, v8             ; h
          v_lshrrev_b32 v13, 1, v8         ; piece
          v_and_b32 v14, 15, v1
          s_cmp_eq_u32 s32, 0
          s_cbranch_scc0 L_k1_v""")
    for r in range(4):
        k(f"v_fma_f32 v{32+r}, -v68, v{40+r}, v{32+r}")
    for r in range(4):
        k(f"v_mul_f32 v{32+r}, v70, v{32+r}")
    k(f"""v_cvt_pk_bf16_f32 v36, v32, v33
          v_cvt_pk_bf16_f32 v37, v34, v35
          v_lshlrev_b32 v2, 9, v12
          v_lshl_add_u32 v2, v14, 4, v2
          v_lshl_add_u32 v2, v13, 3, v2
          s_lshr_b32 s35, s34, 1
          s_lshl_b32 s35, s35, 10
          s_and_b32 s36, s34, 1
          s_lshl_b32 s36, s36, 8
          s_add_u32 s35, s35, s36
          s_add_u32 s35, s35, {KF}
          buffer_store_dwordx2 v[36:37], v2, s[24:27], s35 offen
          v_dot2_f32_bf16 v38, v36, v36, 0
          v_dot2_f32_bf16 v38, v37, v37, v38""")
    xhalf_add(k, 38, 12); x16_add(k, 38, 12)
    for sh in (1, 2, 4, 8):
        k(f"v_max_f32_dpp v38, v38, v38 row_ror:{sh} row_mask:0xf bank_mask:0xf")
    k(f"""s_lshl_b32 s35, s34, 2
          s_add_u32 s35, s35, {KMAX}
          v_mov_b32 v2, 0
          buffer_store_dword v38, v2, s[24:27], s35 offen
          s_branch L_k1_cs""")
    k("L_k1_v:")
    k("v_lshlrev_b32 v2, 4, v8")
    for r in range(4):
        k(f"""v_add_u32 v3, {4*r}, v2
              ds_bpermute_b32 v{56+r}, v3, v68
              ds_bpermute_b32 v{60+r}, v3, v70""")
    k("s_waitcnt lgkmcnt(0)")
    for r in range(4):
        k(f"v_fma_f32 v{36+r}, -v{56+r}, v{44+r}, v{36+r}")
    for r in range(4):
        k(f"v_mul_f32 v{36+r}, v{60+r}, v{36+r}")
    k(f"""v_cvt_pk_bf16_f32 v32, v36, v37
          v_cvt_pk_bf16_f32 v33, v38, v39
          v_lshlrev_b32 v2, 8, v12
          v_lshl_add_u32 v2, v14, 4, v2
          v_lshl_add_u32 v2, v13, 3, v2
          s_lshl_b32 s35, s34, 9
          s_add_u32 s35, s35, {VF}
          buffer_store_dwordx2 v[32:33], v2, s[24:27], s35 offen""")
    k("L_k1_cs:")
    for j in range(4):
        k(f"v_permlane32_swap_b32 v{48+j}, v{52+j}")
    for j in range(4):
        k(f"v_add_f32 v{48+j}, v{48+j}, v{52+j}")
    for j in range(2):
        k(f"v_permlane16_swap_b32 v{48+j}, v{50+j}")
    for j in range(2):
        k(f"v_add_f32 v{48+j}, v{48+j}, v{50+j}")
    for sh in (1, 2, 4, 8):
        for j in range(2):
            k(f"v_add_f32_dpp v{48+j}, v{48+j}, v{48+j} row_ror:{sh} row_mask:0xf bank_mask:0xf")
    k(f"""v_lshlrev_b32 v2, 3, v8
          s_lshl_b32 s35, s2, 5
          s_add_u32 s35, s35, {CSUM}
          buffer_store_dwordx2 v[48:49], v2, s[24:27], s35 offen
          v_mov_b32 v52, -1
          v_mov_b32 v53, -1
          v_mov_b32 v54, -1
          v_mov_b32 v55, -1
          v_lshlrev_b32 v2, 4, v1
          s_lshl_b32 s35, s2, 11
          s_add_u32 s35, s35, {ZSTAT}
          buffer_store_dwordx4 v[52:55], v2, s[24:27], s35 offen
          buffer_store_dwordx4 v[52:55], v2, s[24:27], s35 offen offset:1024""")
    k(f"L_{k.name}_end:\ns_endpgm")
    return k, (256, 320, 147456)
```

```python
from common import *

def build_k2():
    k = Kern("attn_kernel", nvgpr=128)
    KL, VL = 0, 65536
    Q = 4; KFR = 8; VFR = [[12, 16], [20, 24]]; P = 28; S = [36, 52]; O = 68; C = 84
    vK, vV = 100, 101
    prologue_ids(k, 256)
    k(f"""s_load_dwordx2 s[12:13], s[0:1], 96
          s_and_b32 s29, s2, 7
          s_lshr_b32 s30, s2, 3
          s_lshl_b32 s29, s29, 3
          s_and_b32 s31, s30, 7
          s_add_u32 s29, s29, s31          ; rb32
          s_lshr_b32 s30, s30, 3
          s_lshl_b32 s30, s30, 3
          s_add_u32 s30, s30, s28          ; head
          s_lshl_b32 s31, s29, 5
          s_add_u32 s31, s31, s30
          s_lshl_b32 s31, s31, 10
          v_lshlrev_b32 v2, 4, v1          ; lane*16
          s_lshl_b32 s32, s28, 10          ; w*1024
          v_add_u32 v3, s32, v2
          v_lshlrev_b32 v102, 3, v1
          s_waitcnt lgkmcnt(0)""")
    srd(k, 24, 12, 13, WS_USED)
    k(f"""s_add_u32 s33, s31, {QF}
          s_mov_b32 s34, {KMAX}
          buffer_load_dwordx4 {vr(Q)}, v2, s[24:27], s33 offen
          buffer_load_dwordx2 v[104:105], v102, s[24:27], s34 offen""")
    for c in range(8):
        k(f"""s_add_u32 m0, s32, {KL + 8192*c}
              s_mov_b32 s34, {KF + 8192*c}
              s_mov_b32 s35, {VF + 8192*c}
              buffer_load_dwordx4 v3, s[24:27], s34 offen lds
              s_add_u32 m0, s32, {VL + 8192*c}
              buffer_load_dwordx4 v3, s[24:27], s35 offen lds""")
    k(f"""v_mov_b32 v{vK}, v2
          v_lshrrev_b32 v103, 5, v1
          v_and_b32 v106, 15, v1
          v_lshl_add_u32 v103, v103, 4, v106
          v_lshlrev_b32 v103, 4, v103
          v_add_u32 v{vV}, {VL}, v103
          s_mov_b32 s40, 0x0000ffff
          s_mov_b32 s41, 0x0000ffff""")
    for i in range(16):
        k(f"v_mov_b32 v{12+i}, 0x3f803f80")
    for i in range(16):
        k(f"v_mov_b32 v{O+i}, 0\nv_mov_b32 v{C+i}, 0")
    k(f"""s_waitcnt vmcnt(16)
          v_max_f32 v104, v104, v105
          v_dot2_f32_bf16 v106, v{Q}, v{Q}, 0
          v_dot2_f32_bf16 v106, v{Q+1}, v{Q+1}, v106
          v_dot2_f32_bf16 v106, v{Q+2}, v{Q+2}, v106
          v_dot2_f32_bf16 v106, v{Q+3}, v{Q+3}, v106""")
    for sh in (1, 2, 4, 8):
        k(f"v_max_f32_dpp v104, v104, v104 row_ror:{sh} row_mask:0xf bank_mask:0xf")
    k("""v_mov_b32 v105, v104
         v_permlane16_swap_b32 v104, v105
         v_max_f32 v104, v104, v105
         v_mov_b32 v105, v104
         v_permlane32_swap_b32 v104, v105
         v_max_f32 v104, v104, v105""")
    xhalf_add(k, 106, 105)
    k(f"""v_mul_f32 v104, v104, v106
          v_cmp_nle_f32 vcc, v104, {f32(3500.0)} """.replace(f"v104, {f32(3500.0)} ", "v104, v107"))
    k.lines.insert(len(k.lines) - 1, f"    v_mov_b32 v107, {f32(3500.0)}")
    k(f"""s_mov_b32 s42, 1
          s_mov_b32 s43, 3
          s_mov_b32 s36, 0
          s_cbranch_vccnz L_k2_slow
          s_waitcnt vmcnt(14)
          s_barrier""")
    k("L_k2_start:")
    k(f"""ds_read_b128 {vr(KFR)}, v{vK}
          s_waitcnt lgkmcnt(0)
          v_mfma_f32_32x32x16_bf16 {vr(S[0],16)}, {vr(KFR)}, {vr(Q)}, {vr(C,16)}
          ds_read_b128 {vr(KFR)}, v{vK} offset:1024
          s_mov_b64 exec, s[40:41]
          ds_read_b128 {vr(VFR[0][0])}, v{vV}
          ds_read_b128 {vr(VFR[0][1])}, v{vV} offset:512
          s_mov_b64 exec, -1
          s_nop 7""")
    k("L_k2_loop:")
    k(f"""s_cmp_eq_u32 s36, s42
          s_cbranch_scc1 L_k2_st1
          s_cmp_eq_u32 s36, s43
          s_cbranch_scc1 L_k2_st3""")
    k("L_k2_body:")
    for u in range(4):
        s = S[u & 1]; sn = S[(u + 1) & 1]; vf = VFR[u & 1]; vn = VFR[(u + 1) & 1]
        k(f"""s_waitcnt lgkmcnt(2)
              v_mfma_f32_32x32x16_bf16 {vr(sn,16)}, {vr(KFR)}, {vr(Q)}, {vr(C,16)}
              ds_read_b128 {vr(KFR)}, v{vK} offset:{1024*(u+2)}
              s_mov_b64 exec, s[40:41]
              ds_read_b128 {vr(vn[0])}, v{vV} offset:{1024*(u+1)}
              ds_read_b128 {vr(vn[1])}, v{vV} offset:{1024*(u+1)+512}
              s_mov_b64 exec, -1""")
        for hf in range(2):
            b = s + 8 * hf
            for i in range(8):
                k(f"v_exp_f32 v{b+i}, v{b+i}")
                if i & 1 and i >= 3:
                    k(f"v_cvt_pk_bf16_f32 v{P+4*hf+(i-3)//2}, v{b+i-3}, v{b+i-2}")
            k(f"v_cvt_pk_bf16_f32 v{P+4*hf+3}, v{b+6}, v{b+7}")
            if hf == 0:
                pend = f"s_waitcnt lgkmcnt(3)\nv_mfma_f32_32x32x16_bf16 {vr(O,16)}, {vr(vf[0])}, {vr(P)}, {vr(O,16)}"
                k(pend)
            else:
                k(f"v_mfma_f32_32x32x16_bf16 {vr(O,16)}, {vr(vf[1])}, {vr(P+4)}, {vr(O,16)}")
    k(f"""v_add_u32 v{vK}, 4096, v{vK}
          v_add_u32 v{vV}, 4096, v{vV}
          s_add_u32 s36, s36, 1
          s_cmp_lt_u32 s36, 16
          s_cbranch_scc1 L_k2_loop""")
    k(f"v_rcp_f32 v104, v{O+8}")
    for r in range(8):
        k(f"v_mul_f32 v{O+r}, v104, v{O+r}")
    for r in range(4):
        k(f"v_cvt_pk_bf16_f32 v{P+r}, v{O+2*r}, v{O+2*r+1}")
    k(f"""s_add_u32 s33, s31, {OF}
          buffer_store_dwordx4 {vr(P)}, v2, s[24:27], s33 offen
          s_endpgm""")
    k(f"""L_k2_st1:
          s_waitcnt vmcnt(12)
          s_barrier
          s_branch L_k2_body
          L_k2_st3:
          s_waitcnt vmcnt(0)
          s_barrier
          s_branch L_k2_body""")
    k(f"""L_k2_slow:
          s_waitcnt vmcnt(0)
          s_barrier
          s_barrier
          s_barrier
          s_mov_b32 s42, 99
          s_mov_b32 s43, 99
          v_mov_b32 v104, 0xff800000
          v_mov_b32 v103, v{vK}
          s_mov_b32 s37, 0
          L_k2_mx:
          ds_read_b128 {vr(KFR)}, v103
          s_waitcnt lgkmcnt(0)
          v_mfma_f32_32x32x16_bf16 {vr(S[0],16)}, {vr(KFR)}, {vr(Q)}, 0
          v_add_u32 v103, 1024, v103""")
    for i in range(8):
        k(f"v_max3_f32 v104, v{S[0]+2*i}, v{S[0]+2*i+1}, v104")
    k(f"""s_add_u32 s37, s37, 1
          s_cmp_lt_u32 s37, 64
          s_cbranch_scc1 L_k2_mx
          v_mov_b32 v105, v104
          v_permlane32_swap_b32 v104, v105
          v_max_f32 v104, v104, v105""")
    for i in range(16):
        k(f"v_sub_f32 v{C+i}, 0, v104")
    k(f"""s_nop 1
          s_branch L_k2_start""")
    k(f"L_{k.name}_end:\ns_endpgm")
    return k, (256, 512, 131072)
```

```python
from common import *

def wt_dma_addr(k, vdst, vdst2, swave16, scolbytes, rowstride_log2=10):
    k(f"""v_lshrrev_b32 v12, 3, v1
          v_and_b32 v13, 7, v1
          v_add_u32 v{vdst}, {swave16}, v12
          v_lshlrev_b32 v{vdst}, {rowstride_log2}, v{vdst}
          v_and_b32 v14, 1, v8
          v_lshlrev_b32 v14, 2, v14
          v_xor_b32 v14, v13, v14
          v_lshl_add_u32 v{vdst}, v14, 4, v{vdst}
          v_add_u32 v{vdst}, {scolbytes}, v{vdst}
          v_add_u32 v{vdst2}, {8 << rowstride_log2}, v{vdst}""")

def wt_tr_base_dorder(k, vdst, sch, WL):
    k(f"""v_lshl_add_u32 v{vdst}, v9, 2, v10     ; 4h+r
          v_lshlrev_b32 v{vdst}, 7, v{vdst}
          v_lshrrev_b32 v12, 1, v10
          v_xor_b32 v12, {sch}, v12
          v_lshl_add_u32 v{vdst}, v12, 6, v{vdst}
          v_and_b32 v12, 1, v8
          v_lshl_add_u32 v{vdst}, v12, 5, v{vdst}
          v_lshl_add_u32 v{vdst}, v11, 3, v{vdst}
          v_add_u32 v{vdst}, {WL}, v{vdst}""")

def lane_fields(k):
    k("""v_lshrrev_b32 v8, 4, v1          ; g = l>>4
         v_lshrrev_b32 v9, 5, v1          ; h
         v_lshrrev_b32 v10, 2, v1
         v_and_b32 v10, 3, v10            ; r
         v_and_b32 v11, 3, v1             ; c4""")

def map64(k):
    k("""s_and_b32 s29, s2, 7
         s_lshr_b32 s30, s2, 3
         s_lshl_b32 s29, s29, 2
         s_and_b32 s31, s30, 3
         s_add_u32 s29, s29, s31
         s_lshr_b32 s30, s30, 2           ; cg
         s_and_b32 s32, s28, 1            ; rh
         s_lshr_b32 s33, s28, 1           ; ch""")

def build_k3():
    k = Kern("wo_kernel", nvgpr=128)
    OL, WL = 0, 65536
    prologue_ids(k, 256)
    k("""s_load_dwordx2 s[4:5], s[0:1], 0
         s_load_dwordx2 s[6:7], s[0:1], 32
         s_load_dwordx2 s[12:13], s[0:1], 96""")
    map64(k); lane_fields(k)
    k("""s_lshl_b32 s35, s28, 4
         s_lshl_b32 s36, s30, 7""")
    wt_dma_addr(k, 4, 5, "s35", "s36")
    k(f"""v_lshlrev_b32 v2, 4, v1
          s_lshl_b32 s34, s29, 1
          s_add_u32 s34, s34, s32
          s_lshl_b32 s40, s34, 15          ; rb32*32*1024
          s_lshl_b32 s41, s33, 11          ; q0*1024, q0=2*(w>>1)
          s_add_u32 s42, s40, s41
          s_add_u32 s42, s42, {OF}
          s_lshl_b32 s43, s32, 12
          s_add_u32 s43, s43, s41
          s_lshl_b32 s37, s28, 11
          s_waitcnt lgkmcnt(0)""")
    srd(k, 16, 4, 5, 2048 * 1024); srd(k, 20, 6, 7, 512 * 1024); srd(k, 24, 12, 13, WS_USED)
    for c in range(8):
        k(f"""s_add_u32 m0, s43, {OL + c*8192}
              s_add_u32 s38, s42, {c*4096}
              s_mov_b32 s39, {c*65536}
              buffer_load_dwordx4 v2, s[24:27], s38 offen lds
              buffer_load_dwordx4 v2, s[24:27], s38 offen offset:1024 lds
              s_add_u32 m0, s37, {WL + c*8192}
              buffer_load_dwordx4 v4, s[20:23], s39 offen lds
              s_add_u32 m0, s37, {WL + c*8192 + 1024}
              buffer_load_dwordx4 v5, s[20:23], s39 offen lds""")
    k(f"""v_and_b32 v12, 31, v1
          v_lshlrev_b32 v3, 10, v12
          v_lshl_add_u32 v3, v9, 3, v3
          s_lshl_b32 s44, s33, 6
          s_add_u32 s44, s44, s36
          s_add_u32 s44, s44, s40""")
    for gq in range(4):
        k(f"buffer_load_dwordx2 v[{64+2*gq}:{65+2*gq}], v3, s[16:19], s44 offen offset:{16*gq}")
    wt_tr_base_dorder(k, 6, "s33", WL)
    k(f"""s_lshl_b32 s45, s32, 12
          v_add_u32 v7, s45, v2""")
    for r in range(16):
        k(f"v_mov_b32 v{32+r}, 0")
    def A(s, q): return (80 + 8*q) if s == 0 else (112 + 8*q if q < 2 else 16 + 8*(q-2))
    def B(s, q): return A(s, q) + 4
    def reads(c):
        s = c & 1
        for q in range(4):
            st = 4*c + q
            k(f"""ds_read_b64_tr_b16 v[{A(s,q)}:{A(s,q)+1}], v6 offset:{2048*st}
                  ds_read_b64_tr_b16 v[{A(s,q)+2}:{A(s,q)+3}], v6 offset:{2048*st+1024}
                  ds_read_b128 {vr(B(s,q))}, v7 offset:{OL + 8192*c + 1024*q}""")
    def step(c, q):
        s = c & 1
        k(f"v_mfma_f32_32x32x16_bf16 v[32:47], {vr(A(s,q))}, {vr(B(s,q))}, v[32:47]")
    k("s_waitcnt vmcnt(32)\ns_barrier")
    reads(0)
    for c in range(8):
        for q in range(3):
            k(f"s_waitcnt lgkmcnt({9-3*q})")
            step(c, q)
        k("s_waitcnt lgkmcnt(0)")
        if c < 7:
            k(f"s_waitcnt vmcnt({32-4*(c+1)})\ns_barrier")
            reads(c+1)
        step(c, 3)
    k("s_waitcnt vmcnt(0)")
    for i in range(8):
        k(f"""v_lshlrev_b32 v{48+2*i}, 16, v{64+i}
              v_and_b32 v{49+2*i}, 0xffff0000, v{64+i}""")
    for r in range(16):
        k(f"v_add_f32 v{32+r}, v{32+r}, v{48+r}")
    for i in range(8):
        k(f"v_cvt_pk_bf16_f32 v{48+i}, v{32+2*i}, v{33+2*i}")
    k(f"""s_lshl_b32 s46, s30, 1
          s_add_u32 s46, s46, s33          ; ct
          s_lshl_b32 s47, s46, 11
          s_add_u32 s47, s47, s40
          s_add_u32 s47, s47, {HF}
          buffer_store_dwordx4 v[48:51], v2, s[24:27], s47 offen
          buffer_store_dwordx4 v[52:55], v2, s[24:27], s47 offen offset:1024
          v_mov_b32 v64, 0x3f803f80
          v_mov_b32 v68, 0
          v_mov_b32 v69, 0""")
    for i in range(8):
        k(f"""v_dot2_f32_bf16 v68, v{48+i}, v64, v68
              v_dot2_f32_bf16 v69, v{48+i}, v{48+i}, v69""")
    xhalf_add(k, 68, 12); xhalf_add(k, 69, 13)
    k(f"""v_and_b32 v12, 31, v1
          v_lshlrev_b32 v12, 7, v12
          s_lshl_b32 s47, s34, 12          ; rb32*32*128
          s_lshl_b32 s46, s46, 3
          s_add_u32 s47, s47, s46
          s_add_u32 s47, s47, {HSTAT}
          buffer_store_dwordx2 v[68:69], v12, s[24:27], s47 offen""")
    k(f"L_{k.name}_end:\ns_endpgm")
    return k, (256, 256, 131072)
```

```python
from common import *
from k3 import lane_fields

GC1 = -2.0 * 0.7978845608028654 * 1.4426950408889634
GC2 = GC1 * 0.044715

def gelu_block(k, regs, vC2, tmp, rmul):
    n = len(regs)
    for i, a in enumerate(regs): k(f"v_mul_f32 v{a}, {rmul(i)}, v{a}")
    for i, a in enumerate(regs): k(f"v_mul_f32 v{tmp+i}, v{a}, v{a}")
    for i, a in enumerate(regs): k(f"v_fmaak_f32 v{tmp+i}, v{vC2}, v{tmp+i}, {f32(GC1)}")
    for i, a in enumerate(regs): k(f"v_mul_f32 v{tmp+i}, v{tmp+i}, v{a}")
    for i, a in enumerate(regs): k(f"v_exp_f32 v{tmp+i}, v{tmp+i}")
    for i, a in enumerate(regs): k(f"v_add_f32 v{tmp+i}, 1.0, v{tmp+i}")
    for i, a in enumerate(regs): k(f"v_rcp_f32 v{tmp+i}, v{tmp+i}")
    for i, a in enumerate(regs): k(f"v_mul_f32 v{a}, v{a}, v{tmp+i}")

def build_k4():
    k = Kern("win_kernel", nvgpr=256)
    WL, SC = 0, 98304
    ACC = 16; WF = 64; ST = 88; H = 128
    prologue_ids(k, 256)
    k("""s_load_dwordx2 s[6:7], s[0:1], 48
         s_load_dwordx2 s[12:13], s[0:1], 96
         s_and_b32 s29, s2, 7
         s_lshr_b32 s30, s2, 3
         s_lshl_b32 s29, s29, 1
         s_and_b32 s31, s30, 1
         s_add_u32 s29, s29, s31          ; rb128
         s_lshl_b32 s29, s29, 2
         s_add_u32 s29, s29, s28          ; rb32
         s_lshr_b32 s30, s30, 1           ; cgi
         s_lshr_b32 s31, s30, 3           ; half
         s_and_b32 s30, s30, 7            ; gi
         s_mul_i32 s32, s30, 3
         s_min_u32 s32, s32, 19           ; tile0
         s_mul_i32 s33, s31, 688
         s_lshl_b32 s34, s32, 5
         s_add_u32 s33, s33, s34          ; col0""")
    lane_fields(k)
    k(f"""v_lshlrev_b32 v2, 4, v1
          s_lshl_b32 s34, s33, 1
          s_movk_i32 s35, 2752
          s_movk_i32 s36, 171""")
    for j in range(3):
        k(f"""v_add_u32 v12, {64*j}, v1
              v_mul_lo_u32 v13, v12, s36
              v_lshrrev_b32 v13, 11, v13       ; k_local
              v_mul_u32_u24 v14, 12, v13
              v_sub_u32 v14, v12, v14          ; p
              v_mul_lo_u32 v13, v13, s35
              v_lshl_add_u32 v13, v14, 4, v13
              v_add_u32 v{3+j}, s34, v13""")
    k(f"""v_and_b32 v15, 31, v1
          v_lshlrev_b32 v12, 7, v15
          v_lshl_add_u32 v12, v9, 6, v12
          s_lshl_b32 s37, s29, 12
          s_add_u32 s37, s37, {HSTAT}
          s_lshl_b32 s38, s33, 2
          s_add_u32 s38, s38, {CSUM}
          s_lshl_b32 s39, s29, 15
          s_add_u32 s39, s39, {HF}
          s_mul_i32 s40, s28, 44032        ; w*16*2752
          s_mul_i32 s41, s28, 3072
          s_waitcnt lgkmcnt(0)""")
    srd(k, 20, 6, 7, 512 * 2752); srd(k, 24, 12, 13, WS_USED)
    for i in range(4):
        k(f"buffer_load_dwordx4 {vr(ST+4*i)}, v12, s[24:27], s37 offen offset:{16*i}")
    def issue(c):
        k(f"""s_add_u32 m0, s41, {WL + c*12288}
              s_add_u32 s42, s40, {c*4*44032}
              s_add_u32 s43, s39, {c*4096}
              buffer_load_dwordx4 v3, s[20:23], s42 offen lds
              s_add_u32 m0, s41, {WL + c*12288 + 1024}
              buffer_load_dwordx4 v4, s[20:23], s42 offen lds
              s_add_u32 m0, s41, {WL + c*12288 + 2048}
              buffer_load_dwordx4 v5, s[20:23], s42 offen lds""")
        for q in range(4):
            k(f"buffer_load_dwordx4 {vr(H+16*c+4*q)}, v2, s[24:27], s43 offen offset:{1024*q}")
    def stats():
        for i in range(1, 8):
            k(f"v_add_f32 v{ST}, v{ST}, v{ST+2*i}\nv_add_f32 v{ST+1}, v{ST+1}, v{ST+2*i+1}")
        k(f"v_mov_b32 v104, v{ST}\nv_mov_b32 v105, v{ST+1}")
        xhalf_add(k, 104, 12); xhalf_add(k, 105, 13)
        ln_stats(k, 104, 105, 512, 12)
    def common_tail():
        k(f"""v_lshl_add_u32 v6, v9, 2, v10
              v_mul_u32_u24 v6, 192, v6
              v_and_b32 v12, 1, v8
              v_lshl_add_u32 v6, v12, 5, v6
              v_lshl_add_u32 v6, v11, 3, v6
              v_add_u32 v7, 49152, v6
              v_mov_b32 v106, {f32(GC2)}""")
    def kloop(swap):
        def reads(s):
            b = WF + 12*(s & 1); base = "v6" if s < 16 else "v7"; o = (s & 15) * 3072
            for t in range(3):
                k(f"""ds_read_b64_tr_b16 v[{b+4*t}:{b+4*t+1}], {base} offset:{o+64*t}
                      ds_read_b64_tr_b16 v[{b+4*t+2}:{b+4*t+3}], {base} offset:{o+64*t+1536}""")
        k("s_waitcnt vmcnt(49)\ns_barrier")
        reads(0)
        for s in range(32):
            if s < 31:
                if s % 4 == 3:
                    k(f"s_waitcnt vmcnt({49-7*(s//4+1)})\ns_barrier")
                reads(s+1)
                k("s_waitcnt lgkmcnt(6)")
            else:
                k("s_waitcnt lgkmcnt(0)")
            b = WF + 12*(s & 1)
            for t in range(3):
                w, h = vr(b+4*t), vr(H+4*s)
                a, bb = (h, w) if swap else (w, h)
                k(f"v_mfma_f32_32x32x16_bf16 {vr(ACC+16*t,16)}, {a}, {bb}, {vr(ACC+16*t,16)}")
    k(f"""s_cmp_eq_u32 s31, 1
          s_cbranch_scc1 L_k4_z2""")
    k("v_lshlrev_b32 v13, 4, v9")
    for t in range(3):
        for gq in range(4):
            k(f"buffer_load_dwordx4 {vr(ACC+16*t+4*gq)}, v13, s[24:27], s38 offen offset:{128*t+32*gq}")
    for c in range(6): issue(c)
    common_tail()
    k("s_waitcnt vmcnt(54)")
    stats()
    k("s_waitcnt vmcnt(42)")
    issue(6); issue(7)
    for r in range(48):
        k(f"v_mul_f32 v{ACC+r}, -v104, v{ACC+r}")
    kloop(False)
    k(f"""s_mul_i32 s44, s29, 44
          s_lshl_b32 s45, s32, 1
          s_add_u32 s44, s44, s45
          s_lshl_b32 s44, s44, 10
          s_add_u32 s44, s44, {Z1}""")
    for t in range(3):
        gelu_block(k, [ACC+16*t+r for r in range(16)], 106, H, lambda i: "v105")
        for i in range(8):
            k(f"v_cvt_pk_bf16_f32 v{H+16+8*t+i}, v{ACC+16*t+2*i}, v{ACC+16*t+2*i+1}")
        k(f"""buffer_store_dwordx4 {vr(H+16+8*t)}, v2, s[24:27], s44 offen
              buffer_store_dwordx4 {vr(H+20+8*t)}, v2, s[24:27], s44 offen offset:1024
              s_add_u32 s44, s44, 2048""")
    k("s_endpgm")
    k("L_k4_z2:")
    k("v_lshlrev_b32 v13, 2, v15")
    for t in range(3):
        k(f"buffer_load_dword v{108+t}, v13, s[24:27], s38 offen offset:{128*t}")
    for c in range(8): issue(c)
    common_tail()
    k(f"""s_lshl_b32 s46, s28, 8
          s_add_u32 s46, s46, {SC}
          v_add_u32 v112, s46, v13
          v_lshlrev_b32 v113, 4, v9
          v_add_u32 v113, s46, v113
          s_waitcnt vmcnt(59)""")
    stats()
    k(f"""ds_write_b32 v112, v104
          ds_write_b32 v112, v105 offset:128""")
    for gq in range(4):
        k(f"""ds_read_b128 {vr(ACC+4*gq)}, v113 offset:{32*gq}
              ds_read_b128 {vr(ST+4*gq)}, v113 offset:{128+32*gq}""")
    k("s_waitcnt vmcnt(56) lgkmcnt(0)")
    for t in (2, 1, 0):
        for r in range(16):
            k(f"v_mul_f32 v{ACC+16*t+r}, -v{ACC+r}, v{108+t}")
    kloop(True)
    for t in range(3):
        gelu_block(k, [ACC+16*t+r for r in range(16)], 106, H, lambda i: f"v{ST+i}")
    SS, SQ = H, H+16
    k(f"""s_cmp_eq_u32 s30, 7
          s_cselect_b32 s50, 0, -1
          s_cselect_b32 s51, 0, -1
          s_cselect_b32 s52, 0xffff, -1
          s_cselect_b32 s53, 0xffff, -1""")
    for r in range(32): k(f"v_mov_b32 v{H+r}, 0")
    for t in range(3):
        k(f"s_mov_b64 exec, {'s[50:51]' if t < 2 else 's[52:53]'}")
        for r in range(16):
            k(f"""v_add_f32 v{SS+r}, v{SS+r}, v{ACC+16*t+r}
                  v_fmac_f32 v{SQ+r}, v{ACC+16*t+r}, v{ACC+16*t+r}""")
    k("s_mov_b64 exec, -1")
    for r in range(16): k(f"v_permlane16_swap_b32 v{SS+r}, v{SQ+r}")
    for r in range(16): k(f"v_add_f32 v{SS+r}, v{SS+r}, v{SQ+r}")
    for sh in (1, 2, 4, 8):
        for r in range(16):
            k(f"v_add_f32_dpp v{SS+r}, v{SS+r}, v{SS+r} row_ror:{sh} row_mask:0xf bank_mask:0xf")
    k(f"""v_and_b32 v12, 1, v8
          v_lshl_add_u32 v114, v12, 7, v113""")
    for gq in range(4):
        k(f"ds_write_b128 v114, {vr(SS+4*gq)} offset:{32*gq}")
    k(f"""ds_read2_b32 v[116:117], v112 offset0:0 offset1:32
          v_lshlrev_b32 v118, 3, v15         ; row*8
          v_lshl_add_u32 v119, v9, 10, v118  ; + h*1024
          s_lshl_b32 s47, s29, 13
          s_add_u32 s47, s47, {ZSTAT}
          s_lshl_b32 s48, s30, 8
          s_add_u32 s48, s48, s47
          s_mov_b32 s49, -2
          s_waitcnt lgkmcnt(0)
          v_min_u32 v116, s49, v116
          v_min_u32 v117, s49, v117
          buffer_store_dwordx2 v[116:117], v118, s[24:27], s48 offen sc1
          s_mov_b32 s54, 0
          L_k4_poll:""")
    for i in range(4):
        k(f"buffer_load_dwordx2 v[{120+2*i}:{121+2*i}], v119, s[24:27], s47 offen offset:{256*i} sc1")
    k(f"""s_waitcnt vmcnt(0)
          v_max3_u32 v12, v120, v121, v122
          v_max3_u32 v13, v123, v124, v125
          v_max3_u32 v12, v12, v126, v127
          v_max_u32 v12, v12, v13
          v_cmp_eq_u32 vcc, -1, v12
          s_add_u32 s54, s54, 1
          s_cmp_gt_u32 s54, 0x40000
          s_cbranch_scc1 L_k4_go
          s_cbranch_vccnz L_k4_poll
          L_k4_go:
          v_add_f32 v120, v120, v122
          v_add_f32 v121, v121, v123
          v_add_f32 v124, v124, v126
          v_add_f32 v125, v125, v127
          v_add_f32 v104, v120, v124
          v_add_f32 v105, v121, v125""")
    xhalf_add(k, 104, 12); xhalf_add(k, 105, 13)
    ln_stats(k, 104, 105, 688, 12)
    k(f"""v_mul_f32 v104, -v104, v105
          ds_write_b32 v112, v104
          ds_write_b32 v112, v105 offset:128""")
    for gq in range(4):
        k(f"""ds_read_b128 {vr(SS+4*gq)}, v113 offset:{32*gq}
              ds_read_b128 {vr(SQ+4*gq)}, v113 offset:{128+32*gq}""")
    k(f"""s_lshl_b32 s44, s32, 7
          s_lshl_b32 s45, s29, 1
          s_add_u32 s44, s44, s45
          s_lshl_b32 s44, s44, 10
          s_add_u32 s44, s44, {Z2F}
          s_waitcnt lgkmcnt(0)""")
    for t in range(3):
        for r in range(16):
            k(f"v_fma_f32 v{ACC+16*t+r}, v{ACC+16*t+r}, v{SQ+r}, v{SS+r}")
        P = H + 32 + 8*t
        for i in range(8):
            k(f"v_cvt_pk_bf16_f32 v{P+i}, v{ACC+16*t+2*i}, v{ACC+16*t+2*i+1}")
        for f in range(2):
            k(f"""v_permlane32_swap_b32 v{P+4*f}, v{P+4*f+2}
                  v_permlane32_swap_b32 v{P+4*f+1}, v{P+4*f+3}""")
        k(f"""buffer_store_dwordx4 {vr(P)}, v2, s[24:27], s44 offen
              buffer_store_dwordx4 {vr(P+4)}, v2, s[24:27], s44 offen offset:1024
              s_add_u32 s44, s44, {128*1024}""")
    k(f"L_{k.name}_end:\ns_endpgm")
    return k, (256, 256, 98304 + 1024)
```

```python
from common import *
from k3 import lane_fields, map64

def build_k5():
    k = Kern("wsp_kernel", nvgpr=128)
    NS, SLOT = 7, 20480
    ACC = 16; F = [64, 80]; Z = 96
    prologue_ids(k, 256)
    k("""s_load_dwordx4 s[4:7], s[0:1], 56
         s_load_dwordx2 s[12:13], s[0:1], 96""")
    map64(k)
    lane_fields(k)
    k(f"""s_mul_i32 s34, s30, 3
          s_min_u32 s34, s34, 19           ; tile0
          v_lshlrev_b32 v2, 4, v1
          v_add_u32 v3, {128*1024}, v2
          v_add_u32 v4, {256*1024}, v2
          s_lshl_b32 s35, s29, 6
          s_lshl_b32 s36, s28, 4
          s_add_u32 s35, s35, s36
          v_lshrrev_b32 v12, 3, v1
          v_add_u32 v5, s35, v12
          v_lshlrev_b32 v5, 12, v5
          v_and_b32 v13, 7, v1
          v_xor_b32 v14, v13, v8
          v_lshl_add_u32 v5, v14, 4, v5
          v_xor_b32 v6, 64, v5
          v_add_u32 v6, {8*4096}, v6
          s_lshl_b32 s40, s34, 17
          s_lshl_b32 s36, s28, 10
          s_add_u32 s40, s40, s36
          s_add_u32 s40, s40, {Z2F}
          s_mov_b32 s41, 0
          s_lshl_b32 s37, s28, 11
          s_add_u32 s37, s37, 12288
          s_lshl_b32 s38, s29, 1
          s_add_u32 s38, s38, s32          ; rb32
          s_mul_i32 s39, s38, 44
          s_lshl_b32 s42, s34, 1
          s_add_u32 s39, s39, s42
          s_mul_i32 s42, s33, 3
          s_add_u32 s39, s39, s42
          s_lshl_b32 s39, s39, 10
          s_add_u32 s42, s39, {Z1}
          v_and_b32 v15, 31, v1
          v_lshlrev_b32 v12, 1, v15
          s_lshl_b32 s43, s38, 6
          s_waitcnt lgkmcnt(0)""")
    srd(k, 16, 4, 5, 2048 * 4096); srd(k, 20, 6, 7, 4096); srd(k, 24, 12, 13, WS_USED); srd(k, 44, 12, 13, WS_USED)
    k("buffer_load_ushort v108, v12, s[20:23], s43 offen")
    for j in range(3):
        k(f"buffer_load_dwordx4 {vr(Z+4*j)}, v2, s[24:27], s42 offen offset:{1024*j}")
    def issue(slot):
        def m0(off, base):
            return f"s_add_u32 m0, {base}, {off}"
        k(f"""s_add_u32 s50, s36, {slot}
              s_add_u32 s51, s37, {slot}
              s_mov_b32 m0, s50
              buffer_load_dwordx4 v2, s[44:47], s40 offen lds
              s_add_u32 m0, s50, 4096
              buffer_load_dwordx4 v3, s[44:47], s40 offen lds
              s_add_u32 m0, s50, 8192
              buffer_load_dwordx4 v4, s[44:47], s40 offen lds
              s_mov_b32 m0, s51
              buffer_load_dwordx4 v5, s[16:19], s41 offen lds
              s_add_u32 m0, s51, 1024
              buffer_load_dwordx4 v6, s[16:19], s41 offen lds
              s_add_u32 s40, s40, 4096
              s_add_u32 s41, s41, 128""")
    for c in range(NS - 1): issue(c * SLOT)
    k(f"""s_lshl_b32 s52, s33, 11
          v_add_u32 v100+9, s52, v2""".replace("v100+9", "v109"))
    k(f"""s_lshl_b32 s52, s32, 5
          v_add_u32 v12, s52, v15           ; row
          v_lshrrev_b32 v13, 1, v12
          v_and_b32 v13, 7, v13
          v_lshlrev_b32 v12, 7, v12
          v_add_u32 v12, 12288, v12
          s_lshl_b32 s52, s33, 2
          v_add_u32 v14, s52, v9            ; 2*q0+h
          v_xor_b32 v7, v14, v13
          v_lshl_add_u32 v110, v7, 4, v12
          v_add_u32 v14, 2, v14
          v_xor_b32 v7, v14, v13
          v_lshl_add_u32 v111, v7, 4, v12
          v_mov_b32 v112, v109
          v_mov_b32 v113, v110
          v_mov_b32 v114, v111
          s_mov_b32 s53, 0
          s_mov_b32 s54, {(NS-1)*SLOT}
          s_mov_b32 s55, 0                  ; c
          s_cmp_eq_u32 s33, 0
          s_cselect_b32 s56, -1, 0
          s_waitcnt vmcnt({3 + 5*(NS-1)})
          v_lshlrev_b32 v108, 16, v108
          v_and_b32 v108, s56, v108""")
    for r in range(48): k(f"v_mov_b32 v{ACC+r}, v108")
    def reads(st, off, vb):
        f = F[st]
        for t in range(3):
            k(f"ds_read_b128 {vr(f+4*t)}, v112 offset:{4096*t+off}")
        k(f"ds_read_b128 {vr(f+12)}, {vb}")
    def mf(st):
        f = F[st]
        for t in range(3):
            k(f"v_mfma_f32_32x32x16_bf16 {vr(ACC+16*t,16)}, {vr(f+4*t)}, {vr(f+12)}, {vr(ACC+16*t,16)}")
    k(f"s_waitcnt vmcnt({5*(NS-2)})\ns_barrier")
    reads(0, 0, "v113")
    k("L_k5_loop:")
    reads(1, 1024, "v114")
    k("s_waitcnt lgkmcnt(4)")
    mf(0)
    k(f"""s_cmp_eq_u32 s55, {32-NS+1}
          s_cselect_b32 s46, 0, s46
          s_cselect_b32 s18, 0, s18
          s_mov_b32 s57, s53
          s_add_u32 s53, s53, {SLOT}
          s_cmp_eq_u32 s53, {NS*SLOT}
          s_cselect_b32 s53, 0, s53
          v_add_u32 v112, s53, v109
          v_add_u32 v113, s53, v110
          s_waitcnt vmcnt({5*(NS-3)})
          s_barrier""")
    reads(0, 0, "v113")
    issue("s54")
    k(f"""v_add_u32 v114, s53, v111
          s_mov_b32 s54, s57
          s_waitcnt lgkmcnt(4)""")
    mf(1)
    k(f"""s_add_u32 s55, s55, 1
          s_cmp_lt_u32 s55, 32
          s_cbranch_scc1 L_k5_loop
          s_waitcnt vmcnt(0) lgkmcnt(0)
          s_barrier
          s_mul_i32 s52, s28, 6144
          v_add_u32 v112, s52, v2
          s_xor_b32 s57, s28, 2
          s_mul_i32 s52, s57, 6144
          v_add_u32 v113, s52, v2
          s_add_u32 s42, s39, {YF}
          s_cmp_eq_u32 s33, 1
          s_cbranch_scc1 L_k5_e1""")
    def epi(keep, give):
        for i in range(6):
            k(f"ds_write_b128 v112, {vr(give+4*i)} offset:{1024*i}")
        k("s_waitcnt lgkmcnt(0)\ns_barrier")
        for i in range(6):
            k(f"ds_read_b128 {vr(64+4*i)}, v113 offset:{1024*i}")
        for i in range(12):
            k(f"""v_lshlrev_b32 v{give+2*i}, 16, v{Z+i}
                  v_and_b32 v{give+2*i+1}, 0xffff0000, v{Z+i}""")
        k("s_waitcnt lgkmcnt(0)")
        for i in range(24): k(f"v_add_f32 v{keep+i}, v{keep+i}, v{64+i}")
        for i in range(24): k(f"v_mul_f32 v{keep+i}, v{keep+i}, v{give+i}")
        for i in range(12): k(f"v_cvt_pk_bf16_f32 v{64+i}, v{keep+2*i}, v{keep+2*i+1}")
        for j in range(3):
            k(f"buffer_store_dwordx4 {vr(64+4*j)}, v2, s[24:27], s42 offen offset:{1024*j}")
    epi(ACC, ACC + 24)
    k("s_endpgm\nL_k5_e1:")
    epi(ACC + 24, ACC)
    k(f"L_{k.name}_end:\ns_endpgm")
    return k, (256, 256, NS * SLOT)
```

```python
from common import *
from k3 import lane_fields, map64, wt_dma_addr, wt_tr_base_dorder

def build_k6():
    k = Kern("wout_kernel", nvgpr=128)
    NS, SLOT = 9, 16384
    prologue_ids(k, 256)
    k("""s_load_dwordx4 s[4:7], s[0:1], 72
         s_load_dwordx2 s[12:13], s[0:1], 96""")
    map64(k); lane_fields(k)
    k("""s_lshl_b32 s35, s28, 4
         s_lshl_b32 s36, s30, 7""")
    wt_dma_addr(k, 4, 5, "s35", "s36")
    k(f"""v_lshlrev_b32 v2, 4, v1
          s_lshl_b32 s34, s29, 1
          s_add_u32 s34, s34, s32          ; rb32
          s_mul_i32 s40, s34, {44*1024}
          s_lshl_b32 s41, s33, 11
          s_add_u32 s42, s40, s41
          s_add_u32 s42, s42, {YF}
          s_lshl_b32 s43, s32, 12
          s_add_u32 s43, s43, s41
          s_lshl_b32 s37, s28, 11
          s_add_u32 s37, s37, 8192
          s_waitcnt lgkmcnt(0)""")
    srd(k, 20, 4, 5, 688 * 1024); srd(k, 16, 6, 7, 2048 * 1024); srd(k, 24, 12, 13, WS_USED)
    def issue(c):
        sl = (c % NS) * SLOT
        k(f"""s_add_u32 m0, s43, {sl}
              s_add_u32 s38, s42, {c*4096}
              s_mov_b32 s39, {c*65536}
              buffer_load_dwordx4 v2, s[24:27], s38 offen lds
              buffer_load_dwordx4 v2, s[24:27], s38 offen offset:1024 lds
              s_add_u32 m0, s37, {sl}
              buffer_load_dwordx4 v4, s[20:23], s39 offen lds
              s_add_u32 m0, s37, {sl + 1024}
              buffer_load_dwordx4 v5, s[20:23], s39 offen lds""")
    for c in range(9): issue(c)
    k(f"""s_lshl_b32 s46, s30, 1
          s_add_u32 s46, s46, s33          ; ct
          s_lshl_b32 s47, s46, 11
          s_lshl_b32 s45, s34, 15
          s_add_u32 s47, s47, s45
          s_add_u32 s47, s47, {HF}
          buffer_load_dwordx4 v[64:67], v2, s[24:27], s47 offen
          buffer_load_dwordx4 v[68:71], v2, s[24:27], s47 offen offset:1024""")
    wt_tr_base_dorder(k, 72, "s33", 8192)
    k(f"""s_lshl_b32 s48, s32, 12
          v_add_u32 v75, s48, v2
          v_add_u32 v73, {3*SLOT}, v72
          v_add_u32 v74, {6*SLOT}, v72
          v_add_u32 v76, {3*SLOT}, v75
          v_add_u32 v77, {6*SLOT}, v75""")
    for r in range(16): k(f"v_mov_b32 v{32+r}, 0")
    def A(s, q): return (80 + 8*q) if s == 0 else (112 + 8*q if q < 2 else 16 + 8*(q-2))
    def B(s, q): return A(s, q) + 4
    def nq(c): return 3 if c == 10 else 4
    def reads(c):
        s = c & 1; sl = c % NS; j = sl // 3; o = (sl % 3) * SLOT
        for q in range(nq(c)):
            k(f"""ds_read_b64_tr_b16 v[{A(s,q)}:{A(s,q)+1}], v{72+j} offset:{o+2048*q}
                  ds_read_b64_tr_b16 v[{A(s,q)+2}:{A(s,q)+3}], v{72+j} offset:{o+2048*q+1024}
                  ds_read_b128 {vr(B(s,q))}, v{75+j} offset:{o+1024*q}""")
    def step(c, q):
        s = c & 1
        k(f"v_mfma_f32_32x32x16_bf16 v[32:47], {vr(A(s,q))}, {vr(B(s,q))}, v[32:47]")
    W = [34, 30, 30, 30, 26, 22, 18, 14, 10, 4, 0]
    k(f"s_waitcnt vmcnt({W[0]})\ns_barrier")
    reads(0)
    for c in range(11):
        n = nq(c)
        for q in range(n - 1):
            k(f"s_waitcnt lgkmcnt({3*(n-1-q)})")
            step(c, q)
        k("s_waitcnt lgkmcnt(0)")
        if c < 10:
            k(f"s_waitcnt vmcnt({W[c+1]})\ns_barrier")
            reads(c + 1)
            if c < 2: issue(9 + c)
        step(c, n - 1)
    for i in range(8):
        k(f"""v_lshlrev_b32 v{48+2*i}, 16, v{64+i}
              v_and_b32 v{49+2*i}, 0xffff0000, v{64+i}""")
    for r in range(16): k(f"v_add_f32 v{32+r}, v{32+r}, v{48+r}")
    for i in range(8): k(f"v_cvt_pk_bf16_f32 v{48+i}, v{32+2*i}, v{33+2*i}")
    for f in range(2):
        k(f"""v_permlane32_swap_b32 v{48+4*f}, v{50+4*f}
              v_permlane32_swap_b32 v{49+4*f}, v{51+4*f}""")
    k(f"""v_and_b32 v12, 31, v1
          v_lshlrev_b32 v12, 10, v12
          v_lshl_add_u32 v12, v9, 4, v12
          s_lshl_b32 s46, s46, 6
          s_add_u32 s46, s46, s45
          buffer_store_dwordx4 v[48:51], v12, s[16:19], s46 offen
          buffer_store_dwordx4 v[52:55], v12, s[16:19], s46 offen offset:32""")
    k(f"L_{k.name}_end:\ns_endpgm")
    return k, (256, 256, NS * SLOT)
```

```python
QF    = 0x000000
OF    = 0x200000
HF    = 0x400000
Z1    = 0x600000
Z2F   = 0x900000
YF    = 0xC00000
KF    = 0xF00000
VF    = 0xF10000
KMAX  = 0xF20000
HSTAT = 0xF30000
CSUM  = 0xF70000
ZSTAT = 0xF80000
WS_USED = 0x1000000
```

```python
import sys
from k1 import build_k1
from k2 import build_k2
builders = [build_k1, build_k2]
try:
    from k3 import build_k3; builders.append(build_k3)
    from k4 import build_k4; builders.append(build_k4)
    from k5 import build_k5; builders.append(build_k5)
    from k6 import build_k6; builders.append(build_k6)
except ImportError as e:
    print("partial:", e)
hdr = open("sequential_preLN__grouped_kv_mqa__mixer_gmlp__prompt.s.ref").read().split("\n")
hdr = [l for l in hdr if l.startswith(";") and "@launch" not in l and "Override" not in l and "grid=ceil" not in l]
ks = [b() for b in builders]
out = "\n".join(hdr) + "\n"
for k, (g, b, lds) in ks:
    out += f"; @launch kernel={k.name} grid=({g},1,1) block=({b},1,1) lds={lds}\n"
out += '.amdgcn_target "amdgcn-amd-amdhsa--gfx950"\n'
for k, _ in ks:
    out += k.text()
dst = sys.argv[1] if len(sys.argv) > 1 else "sequential_preLN__grouped_kv_mqa__mixer_gmlp__prompt.s"
open(dst, "w").write(out)
print("wrote", dst, len(out))
```

```python
import re

TRANS = ("v_exp_f32", "v_log_f32", "v_rcp_f32", "v_rsq_f32", "v_sqrt_f32", "v_sin_f32", "v_cos_f32",
         "v_exp_f16", "v_rcp_f16", "v_rcp_iflag_f32")

def regs_of(tok):
    tok = tok.strip()
    tok = tok.lstrip("-")
    if tok.startswith("abs(") or tok.startswith("neg("):
        tok = tok[4:-1]
    tok = tok.strip("|")
    m = re.fullmatch(r"([vsa])(\d+)", tok)
    if m:
        return {(m.group(1), int(m.group(2)))}
    m = re.fullmatch(r"([vsa])\[(\d+):(\d+)\]", tok)
    if m:
        return {(m.group(1), i) for i in range(int(m.group(2)), int(m.group(3)) + 1)}
    if tok in ("vcc", "vcc_lo", "vcc_hi"):
        return {("vcc", 0)}
    if tok in ("exec", "exec_lo", "exec_hi"):
        return {("exec", 0)}
    if tok == "m0":
        return {("m0", 0)}
    return set()

class Ins:
    def __init__(self, text):
        self.text = text
        t = text.split(";")[0].strip()
        self.label = None
        self.op = None
        self.dst = set(); self.src = set()
        self.kind = "other"
        self.srcc = set(); self.srcab = set()
        self.states = 1
        self.target = None
        if not t:
            self.kind = "none"; self.states = 0; return
        if t.endswith(":"):
            self.label = t[:-1]; self.kind = "label"; self.states = 0; return
        if t.startswith("."):
            self.kind = "none"; self.states = 0; return
        parts = t.split(None, 1)
        op = parts[0]; self.op = op
        rest = parts[1] if len(parts) > 1 else ""
        ops = []
        main = re.split(r"\s+(?=(?:offen|idxen|offset|offset0|offset1|lds|sc0|sc1|nt|op_sel|op_sel_hi|neg_lo|neg_hi|clamp|mul:|div:|row_|quad_perm|bank_mask|bound_ctrl|off\b|cbsz|abid|blgp|dst_sel|src0_sel|src1_sel|dst_unused|wave_))", rest, 1)[0]
        ops = [o.strip() for o in main.split(",") if o.strip()]
        self.mods = rest[len(main):]
        base = re.sub(r"_(e32|e64|dpp|sdwa)$", "", op)
        self.base = base
        self.dpp = ("row_" in self.mods or "quad_perm" in self.mods or "wave_" in self.mods or op.endswith("_dpp"))
        R = [regs_of(o) for o in ops]
        if op == "s_nop":
            self.kind = "nop"; self.states = int(ops[0], 0) + 1; return
        if op.startswith("s_cbranch") or op == "s_branch":
            self.kind = "branch"; self.target = ops[0]; return
        if op.startswith("v_mfma") or op.startswith("v_smfmac"):
            self.kind = "mfma"
            self.dst = R[0]; self.srcab = R[1] | R[2]; self.srcc = R[3] if len(R) > 3 else set()
            self.src = self.srcab | self.srcc
            self.passes = 8 if "32x32" in op else 4
            return
        if op.startswith("buffer_") or op.startswith("global_"):
            self.kind = "vmem"
            islds = " lds" in (" " + self.mods) or "_lds_" in op
            if "store" in op or ("atomic" in op and "sc0" not in self.mods):
                self.src = set().union(*R) if R else set()
                self.wide_store = ("x3" in op or "x4" in op)
                self.sdata = R[0] if op.startswith("buffer_") else R[1]
            elif islds:
                self.src = set().union(*R) | {("m0", 0)}
                self.ldsdma = True
            else:
                self.dst = R[0]; self.src = set().union(*R[1:])
                if "atomic" in op: self.src |= R[0]
            return
        if op.startswith("ds_"):
            self.kind = "ds"
            if op.startswith("ds_write") or (op.startswith("ds_add") and "rtn" not in op) or (op.startswith("ds_max") and "rtn" not in op):
                self.src = set().union(*R)
            else:
                self.dst = R[0]; self.src = set().union(*R[1:])
            return
        if op.startswith("v_"):
            self.kind = "valu"
            if base.startswith("v_cmpx"):
                self.dst = R[0] | {("exec", 0)}; self.src = set().union(*R[1:])
            elif base.startswith("v_cmp"):
                self.dst = R[0]; self.src = set().union(*R[1:])
            elif base.startswith("v_permlane") and "swap" in base:
                self.dst = R[0] | R[1]; self.src = R[0] | R[1]
            elif base in ("v_add_co_u32", "v_sub_co_u32", "v_addc_co_u32", "v_subb_co_u32", "v_div_scale_f32", "v_mad_u64_u32"):
                self.dst = R[0] | R[1]; self.src = set().union(*R[2:])
            else:
                self.dst = R[0]; self.src = set().union(*R[1:]) if len(R) > 1 else set()
                if base in ("v_fmac_f32", "v_pk_fmac_f16", "v_dot2c_f32_bf16", "v_writelane_b32") or self.dpp:
                    self.src |= R[0]
                if base.startswith("v_dot"):
                    self.srcab_dot = R[1] | R[2]
                if base == "v_cndmask_b32" and len(R) == 3:
                    self.src |= {("vcc", 0)}
            return
        if op.startswith("s_"):
            self.kind = "salu"
            if op.startswith("s_cmp") or op in ("s_waitcnt", "s_barrier", "s_endpgm", "s_setprio", "s_sleep"):
                self.src = set().union(*R) if R else set()
            elif op.startswith("s_load") or op.startswith("s_buffer_load") or op.startswith("s_memtime") or op.startswith("s_memrealtime"):
                self.kind = "smem"
                self.dst = R[0]; self.src = set().union(*R[1:]) if len(R) > 1 else set()
            else:
                self.dst = R[0]; self.src = set().union(*R[1:]) if len(R) > 1 else set()
                if "saveexec" in op:
                    self.dst |= {("exec", 0)}
            return

def isv(r): return r[0] in ("v", "a")
def V(s): return {r for r in s if isv(r)}
def S(s): return {r for r in s if r[0] in ("s", "vcc")}

def need(p, c):
    n = 0
    if p.kind == "valu":
        pv = V(p.dst); ps = S(p.dst)
        if c.kind == "mfma" and pv & c.src: n = max(n, 2)
        if c.kind == "valu":
            if c.dpp and pv & c.src: n = max(n, 2)
            if c.base.startswith("v_permlane") and pv & c.src: n = max(n, 2)
            if c.base in ("v_readlane_b32", "v_readfirstlane_b32") and pv & c.src: n = max(n, 1)
            if p.base in TRANS and c.base not in TRANS and pv & c.src: n = max(n, 1)
            if ps & c.src:
                n = max(n, 4 if c.base in ("v_readlane_b32", "v_writelane_b32", "v_div_fmas_f32") else 2)
            if ("exec", 0) in p.dst:
                n = max(n, 5 if c.dpp else 4 if c.base.startswith(("v_readlane", "v_readfirstlane", "v_writelane", "v_permlane")) else 0)
            if ("op_sel" in getattr(p, "mods", "") or "dst_sel" in getattr(p, "mods", "")) and pv & (c.src | c.dst) and not p.base.startswith("v_pk") and not p.base.startswith("v_dot"):
                n = max(n, 1)
        if p.base.startswith("v_dot") and pv & (c.src | c.dst):
            same_c = (c.kind == "valu" and c.base == p.base and not (pv & getattr(c, "srcab_dot", set())))
            if not same_c: n = max(n, 3)
        if c.kind == "mfma" and ("exec", 0) in p.dst: n = max(n, 4)
        if c.kind == "vmem" and ps & c.src: n = max(n, 5)
        if c.kind == "salu" and ps & c.src: n = max(n, 1)
    if p.kind == "salu":
        if ("m0", 0) in p.dst and c.kind == "vmem" and ("m0", 0) in c.src: n = max(n, 1)
    if p.kind == "vmem" and getattr(p, "wide_store", False):
        if c.kind == "valu" and p.sdata & c.dst: n = max(n, 2)
        elif c.kind in ("vmem", "ds", "mfma") and p.sdata & c.dst: n = max(n, 1)
    if p.kind == "mfma":
        big = {4: 8, 8: 12}[p.passes]; ovl = {4: 6, 8: 10}[p.passes]; war = {4: 3, 8: 7}[p.passes]
        if c.kind == "mfma":
            if p.dst & c.srcab: n = max(n, big)
            if p.dst & c.srcc:
                if not (p.dst == c.srcc and p.passes == c.passes): n = max(n, ovl)
            if p.dst & c.dst and not (p.dst == c.srcc and p.passes == c.passes): n = max(n, ovl)
        elif c.kind in ("valu", "vmem", "ds"):
            if p.dst & (c.src | c.dst): n = max(n, big)
            if c.kind == "valu" and p.srcc & c.dst: n = max(n, war)
            if c.kind in ("vmem", "ds") and p.srcc & c.dst: n = max(n, war)
    return n

MAXD = 20
import os
STAMPS = bool(os.environ.get('STAMPS'))

def pad(lines):
    out = []
    for text in lines:
        c = Ins(text)
        if c.states == 0:
            out.append(c); continue
        req = 0; dist = 0
        for p in reversed(out):
            if p.states == 0: continue
            k = need(p, c)
            if k > dist: req = max(req, k - dist)
            dist += p.states
            if dist >= MAXD: break
        while req > 0:
            k = min(req, 16)
            out.append(Ins(f"    s_nop {k-1}"))
            req -= k
        out.append(c)
    labels = {ins.label: i for i, ins in enumerate(out) if ins.label}
    problems = []
    for i, b in enumerate(out):
        if b.kind != "branch" or b.target not in labels: continue
        t = labels[b.target]
        after = []; d = 0
        for c in out[t:]:
            if c.states == 0: continue
            after.append((d, c)); d += c.states
            if d >= MAXD: break
        d0 = 1
        for p in reversed(out[:i]):
            if p.states == 0: continue
            for (d, c) in after:
                k = need(p, c)
                if k > d0 + d:
                    problems.append(f"branch edge {b.text.strip()}: '{p.text.strip()}' -> '{c.text.strip()}' needs {k} has {d0+d}")
            d0 += p.states
            if d0 >= MAXD: break
    if problems:
        raise RuntimeError("hazards on branch edges:\n" + "\n".join(problems))
    return [i.text for i in out]

class Kern:
    def __init__(self, name, nvgpr, nsgpr=96, accum=None):
        self.name = name; self.lines = []; self.nvgpr = nvgpr; self.nsgpr = nsgpr; self.accum = accum
        self.nlab = 0
    def __call__(self, s):
        for l in s.split("\n"):
            l = l.rstrip()
            if not l.strip(): continue
            st = l.strip()
            self.lines.append(st if st.endswith(":") else "    " + st)
    def stamp(self, i, real=False):
        if not STAMPS: return
        if os.environ.get("REAL"): real = True
        self(f"{'s_memrealtime' if real else 's_memtime'} s[{64+2*i}:{65+2*i}]")
        self.nstamp = max(getattr(self, "nstamp", 0), i + 1)
    def flush_stamps(self, kid):
        if not STAMPS: return
        self.stamp(14); self.stamp(15, True)
        self(f"""s_waitcnt lgkmcnt(0)
                 s_lshl_b32 s62, s2, 4
                 s_add_u32 s62, s62, s28
                 s_lshl_b32 s62, s62, 6
                 s_add_u32 s62, s62, {0x1000000 + kid * 0x40000}
                 v_mov_b32 v1, 0""")
        for i in range(16):
            self(f"v_mov_b32 v2, s{64+2*i}\nbuffer_store_dword v2, v1, s[24:27], s62 offen offset:{4*i}")
    def lab(self, base):
        self.nlab += 1
        return f"L_{self.name}_{base}_{self.nlab}"
    def text(self, kid=0):
        if STAMPS:
            old = self.lines; self.lines = []
            for i, l in enumerate(old):
                if l.strip() == "s_endpgm" and i != len(old) - 1:
                    self("s_nop 15\ns_branch L_%s_so" % self.name)
                elif l.strip() == f"L_{self.name}_end:":
                    self("s_nop 15\nL_%s_so:" % self.name); self.flush_stamps(kid); self.lines.append(l)
                else: self.lines.append(l)
        body = "\n".join(pad(self.lines))
        mx = 0
        for m in re.finditer(r"\bv(\d+)\b|\bv\[(\d+):(\d+)\]", body):
            mx = max(mx, int(m.group(1) or m.group(3)))
        assert mx < (self.accum or self.nvgpr), f"{self.name}: uses v{mx} but budget {self.nvgpr}"
        ms = 0
        for m in re.finditer(r"\bs(\d+)\b|\bs\[(\d+):(\d+)\]", body):
            ms = max(ms, int(m.group(1) or m.group(3)))
        assert ms < self.nsgpr, f"{self.name}: uses s{ms}"
        acc = self.accum or ((self.nvgpr + 3) // 4 * 4)
        return f""".text
.globl {self.name}
.p2align 8
.type {self.name},@function
{self.name}:
{body}
.section .rodata,"a"
.p2align 6
.amdhsa_kernel {self.name}
  .amdhsa_next_free_vgpr {self.nvgpr}
  .amdhsa_next_free_sgpr {self.nsgpr}
  .amdhsa_accum_offset {acc}
  .amdhsa_group_segment_fixed_size 0
  .amdhsa_kernarg_size 104
  .amdhsa_user_sgpr_count 2
  .amdhsa_user_sgpr_kernarg_segment_ptr 1
  .amdhsa_system_sgpr_workgroup_id_x 1
.end_amdhsa_kernel
"""
```

```python
from asm import *
from layout import *

def srd(k, d, lo, hi, size):
    k(f"""s_mov_b32 s{d}, s{lo}
          s_mov_b32 s{d+1}, s{hi}
          s_mov_b32 s{d+2}, {size:#x}
          s_mov_b32 s{d+3}, 0x00020000""")

def prologue_ids(k, nwg, vlane="v1", swave="s28"):
    k(f"""s_cmp_ge_u32 s2, {nwg}
          s_cbranch_scc1 L_{k.name}_end
          v_and_b32 {vlane}, 63, v0
          v_lshrrev_b32 v2, 6, v0
          v_readfirstlane_b32 {swave}, v2""")
    for i in range(16): k.stamp(i)
    k.stamp(13, True)

def vr(a, n=4): return f"v[{a}:{a+n-1}]"

def xhalf_add(k, a, t):
    k(f"""v_mov_b32 v{t}, v{a}
          v_permlane32_swap_b32 v{a}, v{t}
          v_add_f32 v{a}, v{a}, v{t}""")

def x16_add(k, a, t):
    k(f"""v_mov_b32 v{t}, v{a}
          v_permlane16_swap_b32 v{a}, v{t}
          v_add_f32 v{a}, v{a}, v{t}""")

def ln_stats(k, vsum, vsq, n, vt):
    inv = 1.0 / n
    import struct
    invh = struct.unpack("<I", struct.pack("<f", inv))[0]
    eps = struct.unpack("<I", struct.pack("<f", 1e-5))[0]
    k(f"""v_mul_f32 v{vsum}, {invh:#x}, v{vsum}
          v_mul_f32 v{vsq}, {invh:#x}, v{vsq}
          v_fma_f32 v{vt}, -v{vsum}, v{vsum}, v{vsq}
          v_max_f32 v{vt}, 0, v{vt}
          v_add_f32 v{vt}, {eps:#x}, v{vt}
          v_rsq_f32 v{vsq}, v{vt}""")

def f32(x):
    import struct
    return f"{struct.unpack('<I', struct.pack('<f', x))[0]:#x}"

import os
SLEEP = int(os.environ.get('SLEEP', 2))
def poll_flags(k, soff, tag, nlanes=64, vt=12):
    sh = f"v_lshlrev_b32 v{vt+1}, 7, v1" if nlanes == 64 else f"v_and_b32 v{vt+1}, {nlanes-1}, v1\nv_lshlrev_b32 v{vt+1}, 7, v{vt+1}"
    k(f"""{sh}
          s_mov_b32 s60, 0
          L_poll_{tag}:
          s_sleep {SLEEP}
          buffer_load_dword v{vt}, v{vt+1}, s[24:27], {soff} offen sc1
          s_add_u32 s60, s60, 1
          s_waitcnt vmcnt(0)
          v_cmp_ne_u32 vcc, 1, v{vt}
          s_cmp_gt_u32 s60, 0x40000
          s_cbranch_scc1 L_pollok_{tag}
          s_cbranch_vccnz L_poll_{tag}
          L_pollok_{tag}:""")

def set_flag(k, soff, vt=12, drain=True):
    if drain: k("s_waitcnt vmcnt(0)")
    k(f"""v_mov_b32 v{vt}, 1
          v_mov_b32 v{vt+1}, 0
          s_mov_b64 exec, 1
          buffer_store_dword v{vt}, v{vt+1}, s[24:27], {soff} offen sc1
          s_mov_b64 exec, -1""")

def hstore(k, instrs, sfast="s63"):
    if isinstance(instrs, str): instrs = [instrs]
    a, b = k.lab("hs"), k.lab("hs")
    k(f"s_cmp_lg_u32 {sfast}, 0\ns_cbranch_scc1 {a}")
    for i in instrs: k(i + " sc1")
    k(f"s_branch {b}\n{a}:")
    for i in instrs: k(i)
    k(f"{b}:")

def set_flag2(k, soff, vt=12):
    k(f"""s_waitcnt vmcnt(0)
          v_mov_b32 v{vt}, 1
          v_mov_b32 v{vt+1}, 0
          s_mov_b64 exec, 1""")
    hstore(k, f"buffer_store_dword v{vt}, v{vt+1}, s[24:27], {soff} offen")
    k("s_mov_b64 exec, -1")

def publish_xcc(k, soff, vt):
    k(f"""s_getreg_b32 s60, hwreg(HW_REG_XCC_ID, 0, 4)
          v_mov_b32 v{vt+1}, 0
          v_mov_b32 v{vt}, s60
          s_mov_b64 exec, 1
          buffer_store_dword v{vt}, v{vt+1}, s[24:27], {soff} offen sc1
          s_mov_b64 exec, -1""")

def check_xcc(k, soff, n, tag, vt):
    k(f"""v_and_b32 v{vt+1}, {n-1}, v1
          v_lshlrev_b32 v{vt+1}, 7, v{vt+1}
          s_mov_b32 s60, 0
          L_xc_{tag}:
          buffer_load_dword v{vt}, v{vt+1}, s[24:27], {soff} offen sc1
          s_add_u32 s60, s60, 1
          s_waitcnt vmcnt(0)
          v_cmp_eq_u32 vcc, -1, v{vt}
          s_cmp_gt_u32 s60, 0x40000
          s_cbranch_scc1 L_xcok_{tag}
          s_cbranch_vccnz L_xc_{tag}
          L_xcok_{tag}:
          v_readfirstlane_b32 s60, v{vt}
          v_cmp_ne_u32 vcc, s60, v{vt}
          s_cmp_eq_u64 vcc, 0
          s_cselect_b32 s60, {FAST}, 0
          v_mov_b32 v{vt}, s60""")
FAST = int(os.environ.get("FAST", 1))

class VQ:
    def __init__(self, k): self.k = k; self.n = 0; self.end = {}
    def issue(self, name, cnt, fn):
        fn(); self.n += cnt; self.end[name] = self.n
    def wait(self, *names, extra=""):
        m = max(self.end[x] for x in names)
        self.k(f"s_waitcnt vmcnt({self.n - m}){extra}")

def poll_n(k, soff, n, tag, vt=12):
    k(f"""v_min_u32 v{vt+1}, {n-1}, v1
          v_lshlrev_b32 v{vt+1}, 7, v{vt+1}
          s_mov_b32 s60, 0
          s_mov_b64 exec, {(1 << n) - 1:#x}
          L_poll_{tag}:
          buffer_load_dword v{vt}, v{vt+1}, s[24:27], {soff} offen sc1
          s_add_u32 s60, s60, 1
          s_waitcnt vmcnt(0)
          v_cmp_ne_u32 vcc, 1, v{vt}
          s_cmp_gt_u32 s60, 0x40000
          s_cbranch_scc1 L_pollok_{tag}
          s_cbranch_vccz L_pollok_{tag}
          s_sleep {SLEEP}
          s_branch L_poll_{tag}
          L_pollok_{tag}:
          s_mov_b64 exec, -1""")
```

```python
from common import *

def w128_dma_voff(k, vdst, t1, t2):
    k(f"""v_lshrrev_b32 v{vdst}, 3, v1
          v_lshlrev_b32 v{vdst}, 10, v{vdst}
          v_lshrrev_b32 v{t1}, 4, v1
          v_lshlrev_b32 v{t1}, 1, v{t1}
          v_and_b32 v{t2}, 7, v1
          v_xor_b32 v{t1}, v{t1}, v{t2}
          v_lshl_add_u32 v{vdst}, v{t1}, 4, v{vdst}""")

def w128_tr_bases(k, vb, base):
    k(f"""v_lshrrev_b32 v12, 1, v8
          v_lshlrev_b32 v{vb}, 4, v12
          v_and_b32 v13, 1, v8
          v_lshl_add_u32 v{vb}, v13, 2, v{vb}
          v_add_u32 v{vb}, v{vb}, v10
          v_lshlrev_b32 v{vb}, 7, v{vb}
          v_lshl_add_u32 v{vb}, v11, 3, v{vb}
          v_lshrrev_b32 v12, 1, v10
          v_lshl_add_u32 v12, v13, 1, v12      ; f = 2*(g&1)+(r>>1)
          v_lshl_add_u32 v{vb}, v12, 5, v{vb}
          v_add_u32 v{vb}, {base}, v{vb}""")
    for u in range(1, 4):
        k(f"v_xor_b32 v{vb+u}, {32*u}, v{vb}")

def act32_voff(k, vdst, srh16):
    k(f"""v_lshrrev_b32 v12, 1, v8
          v_lshlrev_b32 v{vdst}, 10, v12
          v_and_b32 v12, 1, v8
          v_lshl_add_u32 v{vdst}, v12, 9, v{vdst}
          v_and_b32 v12, 15, v1
          v_lshl_add_u32 v{vdst}, v12, 4, v{vdst}
          s_lshl_b32 s60, {srh16}, 8
          v_add_u32 v{vdst}, s60, v{vdst}""")

def gemm64_reads(k, s, woff, WF=32):
    b = WF + 16 * (s & 1)
    for u in range(4):
        vb, o = woff(s, u)
        k(f"ds_read_b128 {vr(b+4*u)}, v{vb} offset:{o}")

def gemm64(k, nsteps, woff, ACT, ACC=16, WF=32, vleft=0):
    for s in range(nsteps):
        if s + 1 < nsteps:
            gemm64_reads(k, s + 1, woff, WF)
            k(f"s_waitcnt vmcnt({nsteps-1-s+vleft}) lgkmcnt(4)")
        else:
            k(f"s_waitcnt vmcnt({vleft}) lgkmcnt(0)")
        b = WF + 16 * (s & 1)
        for u in range(4):
            k(f"v_mfma_f32_16x16x32_bf16 {vr(ACC+4*u)}, {vr(b+4*u)}, {vr(ACT+4*s)}, {vr(ACC+4*u)}")

def ksplit_exchange(k, xbase, swave, ACC=16, T=32, tag="x"):
    k(f"""s_lshl_b32 s60, {swave}, 11
          s_add_u32 s60, s60, {xbase}
          v_add_u32 v12, s60, v2
          s_xor_b32 s60, s60, 8192
          v_add_u32 v13, s60, v2
          s_cmp_eq_u32 s61, 0
          s_cbranch_scc0 L_ex1_{tag}
          ds_write_b128 v12, {vr(ACC+8)}
          ds_write_b128 v12, {vr(ACC+12)} offset:1024
          s_branch L_ex2_{tag}
          L_ex1_{tag}:
          ds_write_b128 v12, {vr(ACC)}
          ds_write_b128 v12, {vr(ACC+4)} offset:1024""")
    for i in range(8): k(f"v_mov_b32 v{ACC+i}, v{ACC+8+i}")
    k(f"""L_ex2_{tag}:
          s_waitcnt lgkmcnt(0)
          s_barrier
          ds_read_b128 {vr(T)}, v13
          ds_read_b128 {vr(T+4)}, v13 offset:1024""")
```

```python
from common import *
from k3 import *

PKB = int(os.environ.get('PKB', 3))
def build_k1():
    k = Kern("qkv_kernel", nvgpr=128)
    XL, WL, KVL, SX = 0, 65536, 131072, 147456
    CSX = SX + 512
    prologue_ids(k, 256)
    k("""s_load_dwordx8 s[4:11], s[0:1], 0
         s_load_dwordx2 s[12:13], s[0:1], 96
         s_load_dwordx2 s[14:15], s[0:1], 48
         s_load_dwordx2 s[50:51], s[0:1], 32
         s_load_dwordx2 s[52:53], s[0:1], 72""")
    map64(k)
    k("""s_lshl_b32 s46, s31, 1
         s_add_u32 s46, s46, s30
         s_and_b32 s46, s46, 7""")
    lane_fields(k)
    k(f"""s_cmp_lt_u32 s28, 4
          s_cbranch_scc1 L_k1_q
          s_cmp_eq_u32 s28, 8
          s_cbranch_scc1 L_k1_kv
          s_cmp_gt_u32 s28, 8
          s_cbranch_scc1 L_k1_pack""")
    k(f"""s_lshl_b32 s34, s29, 6
          s_lshl_b32 s35, s3, 4
          s_add_u32 s34, s34, s35          ; rb*64+16w
          v_lshrrev_b32 v12, 3, v1         ; i>>3
          v_add_u32 v2, s34, v12
          v_lshlrev_b32 v2, 10, v2
          v_and_b32 v13, 7, v1
          v_xor_b32 v14, v13, v8
          v_lshl_add_u32 v2, v14, 4, v2
          v_xor_b32 v3, 64, v2
          v_add_u32 v3, 8192, v3           ; j odd
          s_lshl_b32 s36, s30, 7
          s_lshl_b32 s37, s3, 11""")
    wt_dma_addr(k, 4, 5, "s35", "s36")
    k("s_waitcnt lgkmcnt(0)")
    srd(k, 16, 4, 5, 2048 * 1024); srd(k, 20, 6, 7, 512 * 1024); srd(k, 24, 12, 13, WS_USED)
    def issue(c):
        k(f"""s_add_u32 m0, s37, {XL + c*8192}
              s_lshl_b32 s38, s46, 7
              s_lshl_b32 s39, s46, 16
              buffer_load_dwordx4 v2, s[16:19], s38 offen lds
              s_add_u32 m0, s37, {XL + c*8192 + 1024}
              s_add_u32 s46, s46, 1
              buffer_load_dwordx4 v3, s[16:19], s38 offen lds
              s_add_u32 m0, s37, {WL + c*8192}
              s_and_b32 s46, s46, 7
              buffer_load_dwordx4 v4, s[20:23], s39 offen lds
              s_add_u32 m0, s37, {WL + c*8192 + 1024}
              buffer_load_dwordx4 v5, s[20:23], s39 offen lds""")
    loader_loop(k, issue, 8, 4, DL)
    k("s_endpgm")
    k("L_k1_q:")
    k(f"""v_mov_b32 v64, 0x3f803f80
          v_mov_b32 v65, 0x3f803f80
          v_mov_b32 v66, 0x3f803f80
          v_mov_b32 v67, 0x3f803f80
          v_lshl_add_u32 v6, v9, 3, v10     ; 8h+r
          v_lshlrev_b32 v6, 7, v6
          v_lshrrev_b32 v12, 1, v10
          v_xor_b32 v12, s33, v12
          v_lshl_add_u32 v6, v12, 6, v6
          v_and_b32 v12, 1, v8
          v_lshl_add_u32 v6, v12, 5, v6
          v_lshl_add_u32 v6, v11, 3, v6
          v_add_u32 v6, {WL}, v6
          v_and_b32 v12, 31, v1
          s_lshl_b32 s40, s32, 5
          v_add_u32 v12, s40, v12
          v_lshlrev_b32 v76, 3, v12
          v_add_u32 v76, {SX}, v76
          v_lshlrev_b32 v77, 4, v9
          s_lshl_b32 s41, s33, 7
          s_add_u32 s41, s41, {CSX}
          v_add_u32 v77, s41, v77
          v_lshrrev_b32 v13, 1, v12
          v_and_b32 v13, 7, v13
          v_lshlrev_b32 v12, 7, v12""")
    for q in range(4):
        k(f"""v_add_u32 v14, {2*q}, v9
              v_xor_b32 v14, v14, v13
              v_lshl_add_u32 v{72+q}, v14, 4, v12""")
    for r in range(32): k(f"v_mov_b32 v{32+r}, 0")
    k("s_waitcnt lgkmcnt(0)")
    srd(k, 24, 12, 13, WS_USED)
    def reads(c):
        s = c & 1
        for q in range(4):
            st = 4*c + q
            k(f"""ds_read_b64_tr_b16 v[{FA(s,q)}:{FA(s,q)+1}], v6 offset:{2048*st}
                  ds_read_b64_tr_b16 v[{FA(s,q)+2}:{FA(s,q)+3}], v6 offset:{2048*st+512}
                  ds_read_b128 {vr(FB(s,q))}, v{72+q} offset:{XL + 8192*c}""")
    def step_st(c, q):
        s = c & 1
        k(f"""v_mfma_f32_32x32x16_bf16 v[32:47], {vr(FA(s,q))}, {vr(FB(s,q))}, v[32:47]""")
        for d in range(4):
            k(f"""v_dot2_f32_bf16 v{48+d}, v{FB(s,q)+d}, v64, v{48+d}
                  v_dot2_f32_bf16 v{52+d}, v{FB(s,q)+d}, v{FB(s,q)+d}, v{52+d}""")
    def step_cs(c, q):
        s = c & 1
        k(f"""v_mfma_f32_32x32x16_bf16 v[32:47], {vr(FA(s,q))}, {vr(FB(s,q))}, v[32:47]
              v_mfma_f32_32x32x16_bf16 v[48:63], {vr(FA(s,q))}, v[64:67], v[48:63]""")
    def sum4(dst, a):
        k(f"v_add_f32 v{a}, v{a}, v{a+1}\nv_add_f32 v{a+2}, v{a+2}, v{a+3}\nv_add_f32 v{dst}, v{a}, v{a+2}")
    k(f"""s_lshl_b32 s34, s29, 1
          s_add_u32 s34, s34, s32          ; rb32
          s_lshl_b32 s34, s34, 5
          s_lshl_b32 s35, s30, 2
          s_add_u32 s34, s34, s35
          s_lshl_b32 s35, s33, 1
          s_add_u32 s34, s34, s35          ; rb32*32+head
          s_lshl_b32 s34, s34, 10
          s_add_u32 s34, s34, {QF}
          v_and_b32 v12, 15, v1
          v_lshlrev_b32 v12, 7, v12""")
    if int(os.environ.get("PT", 0)): k("buffer_load_dword v78, v12, s[24:27], s34 offen")
    k("""s_cmp_eq_u32 s32, s33
         s_cbranch_scc0 L_k1_qcs""")
    compute_loop(k, reads, step_st, 8)
    k.stamp(10)
    sum4(68, 48); sum4(69, 52)
    xhalf_add(k, 68, 12); xhalf_add(k, 69, 13)
    ln_stats(k, 68, 69, 512, 12)
    k("""ds_write_b64 v76, v[68:69]
         s_branch L_k1_qfin
         L_k1_qcs:""")
    compute_loop(k, reads, step_cs, 8)
    k.stamp(10)
    for gq in range(4):
        k(f"ds_write_b128 v77, {vr(48+4*gq)} offset:{32*gq}")
    k("""L_k1_qfin:
         s_waitcnt lgkmcnt(0)
         s_barrier
         ds_read_b64 v[68:69], v76""")
    for gq in range(4):
        k(f"ds_read_b128 {vr(48+4*gq)}, v77 offset:{32*gq}")
    k(f"""v_lshlrev_b32 v2, 4, v1
          s_waitcnt vmcnt(0) lgkmcnt(0)
          v_mul_f32 v69, {f32(0.25*1.4426950408889634)}, v69""")
    for r in range(16): k(f"v_fma_f32 v{32+r}, -v68, v{48+r}, v{32+r}")
    for r in range(16): k(f"v_mul_f32 v{32+r}, v69, v{32+r}")
    for r in range(8): k(f"v_cvt_pk_bf16_f32 v{48+r}, v{32+2*r}, v{33+2*r}")
    k(f"""buffer_store_dwordx4 v[48:51], v2, s[24:27], s34 offen
          buffer_store_dwordx4 v[52:55], v2, s[24:27], s34 offen offset:1024
          s_endpgm""")
    k("L_k1_kv:")
    k(f"""s_lshr_b32 s32, s30, 2           ; kv
          s_and_b32 s33, s30, 3            ; rq
          v_lshlrev_b32 v2, 4, v1
          s_waitcnt lgkmcnt(0)
          s_cmp_eq_u32 s32, 0
          s_cselect_b32 s20, s8, s10
          s_cselect_b32 s21, s9, s11
          s_mov_b32 s22, 16384
          s_mov_b32 s23, 0x00020000""")
    srd(k, 24, 12, 13, WS_USED)
    for c in range(8):
        k(f"""s_mov_b32 m0, {KVL + 2048*c}
              s_lshl_b32 s38, s46, 11
              s_add_u32 s46, s46, 1
              buffer_load_dwordx4 v2, s[20:23], s38 offen lds
              buffer_load_dwordx4 v2, s[20:23], s38 offen offset:1024 lds
              s_and_b32 s46, s46, 7""")
    k(f"""v_mov_b32 v64, 0x3f803f80
          v_mov_b32 v65, 0x3f803f80
          v_mov_b32 v66, 0x3f803f80
          v_mov_b32 v67, 0x3f803f80
          v_and_b32 v15, 15, v1
          s_lshl_b32 s34, s33, 4
          v_add_u32 v12, s34, v15
          v_lshlrev_b32 v74, 3, v12
          v_add_u32 v74, {SX}, v74
          v_lshl_add_u32 v75, v8, 2, s34
          v_lshlrev_b32 v75, 3, v75
          v_add_u32 v75, {SX}, v75
          v_lshrrev_b32 v13, 1, v12
          v_and_b32 v13, 7, v13
          v_lshlrev_b32 v12, 7, v12
          v_xor_b32 v14, v8, v13
          v_lshl_add_u32 v72, v14, 4, v12
          v_add_u32 v14, 4, v8
          v_xor_b32 v14, v14, v13
          v_lshl_add_u32 v73, v14, 4, v12
          v_lshl_add_u32 v6, v8, 3, v10     ; 8g+r
          v_lshlrev_b32 v6, 5, v6
          v_lshl_add_u32 v6, v11, 3, v6
          v_add_u32 v6, {KVL}, v6
          s_mov_b32 s44, 0x00003f80
          s_mov_b32 s45, 0x3f800000
          s_lshl_b32 s34, s29, 2
          s_add_u32 s34, s34, s33          ; t16
          v_and_b32 v12, 1, v8             ; h
          v_lshrrev_b32 v13, 1, v8         ; piece""")
    for r in range(8): k(f"v_mov_b32 v{32+r}, 0")
    def kvreads(c):
        b = 16 if c & 1 else 80
        for s in range(2):
            st = 2*c + s
            k(f"""ds_read_b64_tr_b16 v[{b+8*s}:{b+1+8*s}], v6 offset:{1024*st}
                  ds_read_b64_tr_b16 v[{b+2+8*s}:{b+3+8*s}], v6 offset:{1024*st+128}
                  ds_read_b128 {vr(b+4+8*s)}, v{72+s} offset:{XL+8192*c}""")
    def kvloop(isv):
        k(f"s_waitcnt vmcnt(14)\ns_barrier")
        kvreads(0)
        for c in range(8):
            if c < 7:
                k(f"s_waitcnt vmcnt({2*(7-(c+1))})\ns_barrier")
                kvreads(c+1)
            k(f"s_waitcnt lgkmcnt({6 if c < 7 else 0})")
            b = 16 if c & 1 else 80
            for s in range(2):
                W, X = b+8*s, b+4+8*s
                if isv:
                    k(f"""v_mfma_f32_16x16x32_bf16 v[32:35], {vr(X)}, {vr(W)}, v[32:35]
                          v_mfma_f32_16x16x32_bf16 v[36:39], v[64:67], {vr(W)}, v[36:39]""")
                else:
                    k(f"""v_mfma_f32_16x16x32_bf16 v[32:35], {vr(W)}, {vr(X)}, v[32:35]
                          v_mfma_f32_16x16x32_bf16 v[36:39], {vr(W)}, v[64:67], v[36:39]""")
        k("s_barrier")
    k("""s_cmp_eq_u32 s32, 0
         s_cbranch_scc0 L_k1_v""")
    kvloop(False)
    k(f"""ds_read_b64 v[68:69], v74
          v_lshlrev_b32 v2, 9, v12
          v_lshl_add_u32 v2, v15, 4, v2
          v_lshl_add_u32 v2, v13, 3, v2
          s_lshr_b32 s35, s34, 1
          s_lshl_b32 s35, s35, 10
          s_and_b32 s36, s34, 1
          s_lshl_b32 s36, s36, 8
          s_add_u32 s35, s35, s36
          s_add_u32 s35, s35, {KF}
          s_waitcnt lgkmcnt(0)""")
    for r in range(4): k(f"v_fma_f32 v{32+r}, -v68, v{36+r}, v{32+r}")
    for r in range(4): k(f"v_mul_f32 v{32+r}, v69, v{32+r}")
    k(f"""v_cvt_pk_bf16_f32 v36, v32, v33
          v_cvt_pk_bf16_f32 v37, v34, v35
          buffer_store_dwordx2 v[36:37], v2, s[24:27], s35 offen
          v_dot2_f32_bf16 v38, v36, v36, 0
          v_dot2_f32_bf16 v38, v37, v37, v38""")
    xhalf_add(k, 38, 12); x16_add(k, 38, 12)
    for sh in (1, 2, 4, 8):
        k(f"v_max_f32_dpp v38, v38, v38 row_ror:{sh} row_mask:0xf bank_mask:0xf")
    k(f"""s_lshl_b32 s35, s34, 2
          s_add_u32 s35, s35, {KMAX}
          v_mov_b32 v2, 0
          buffer_store_dword v38, v2, s[24:27], s35 offen
          s_branch L_k1_cs""")
    k("L_k1_v:")
    kvloop(True)
    k(f"""ds_read_b128 v[56:59], v75
          ds_read_b128 v[60:63], v75 offset:16
          v_lshlrev_b32 v2, 8, v12
          v_lshl_add_u32 v2, v15, 4, v2
          v_lshl_add_u32 v2, v13, 3, v2
          s_lshl_b32 s35, s34, 9
          s_add_u32 s35, s35, {VF}
          s_waitcnt lgkmcnt(0)""")
    for r in range(4): k(f"v_fma_f32 v{32+r}, -v{56+2*r}, v{36+r}, v{32+r}")
    for r in range(4): k(f"v_mul_f32 v{32+r}, v{57+2*r}, v{32+r}")
    k(f"""v_cvt_pk_bf16_f32 v36, v32, v33
          v_cvt_pk_bf16_f32 v37, v34, v35
          buffer_store_dwordx2 v[36:37], v2, s[24:27], s35 offen""")
    k("L_k1_cs:")
    k(f"""v_mov_b32 v56, -1
          v_mov_b32 v57, -1
          v_mov_b32 v58, -1
          v_mov_b32 v59, -1
          v_lshlrev_b32 v2, 4, v1
          s_lshl_b32 s35, s2, 10
          s_add_u32 s35, s35, {ZSTAT}
          buffer_store_dwordx4 v[56:59], v2, s[24:27], s35 offen
          s_mul_i32 s35, s2, 3072
          s_add_u32 s35, s35, {FLAGS}
          buffer_store_dwordx4 v[56:59], v2, s[24:27], s35 offen
          buffer_store_dwordx4 v[56:59], v2, s[24:27], s35 offen offset:1024
          buffer_store_dwordx4 v[56:59], v2, s[24:27], s35 offen offset:2048
          s_endpgm""")
    PK = SX + 1024
    k(f"""L_k1_pack:
          s_sub_u32 s34, s28, 9
          s_lshl_b32 s35, s34, 8
          s_add_u32 s35, s35, s2           ; J
          s_cmp_ge_u32 s35, 332
          s_cbranch_scc1 L_qkv_kernel_end
          s_mul_i32 s36, s34, {PK}
          s_sub_u32 s36, {PK}, s36
          s_waitcnt lgkmcnt(0)
          s_mov_b32 s23, 0x00020000
          s_cmp_lt_u32 s35, 172
          s_cbranch_scc1 L_pk_in
          s_movk_i32 s40, 1024
          s_cmp_lt_u32 s35, 236
          s_cbranch_scc1 L_pk_o
          s_sub_u32 s35, s35, 236
          s_mul_i32 s37, s35, 171
          s_lshr_b32 s37, s37, 9           ; U = J'/3
          s_mul_i32 s38, s37, 3
          s_sub_u32 s38, s35, s38          ; part
          s_mov_b32 s20, s52
          s_mov_b32 s21, s53
          s_mov_b32 s22, {688*1024}
          s_mul_i32 s39, s37, 24576
          s_add_u32 s39, s39, {WUP}
          s_branch L_pk_d
          L_pk_o:
          s_sub_u32 s35, s35, 172
          s_lshr_b32 s37, s35, 1
          s_and_b32 s38, s35, 1
          s_mov_b32 s20, s50
          s_mov_b32 s21, s51
          s_mov_b32 s22, {512*1024}
          s_lshl_b32 s39, s37, 14
          s_add_u32 s39, s39, {WOP}
          L_pk_d:
          v_lshrrev_b32 v12, 1, v8
          v_lshlrev_b32 v6, 4, v12
          v_and_b32 v12, 1, v8
          v_lshl_add_u32 v6, v12, 2, v6
          s_movk_i32 s41, 256
          s_mov_b32 s42, 0
          s_branch L_pk_go
          L_pk_in:
          s_movk_i32 s40, 2752
          s_lshr_b32 s37, s35, 1
          s_and_b32 s38, s35, 1
          s_mov_b32 s20, s14
          s_mov_b32 s21, s15
          s_mov_b32 s22, {512*2752}
          s_lshl_b32 s39, s37, 14
          s_add_u32 s39, s39, {WPK}
          v_lshlrev_b32 v6, 2, v8
          s_movk_i32 s41, 512
          s_mov_b32 s42, 1
          L_pk_go:
          v_add_u32 v6, v6, v10
          v_lshlrev_b32 v6, 5, v6
          v_lshl_add_u32 v6, v11, 3, v6
          v_add_u32 v6, s36, v6
          v_add_u32 v7, s41, v6
          s_lshl_b32 s43, s38, 13
          s_add_u32 s39, s39, s43           ; dst
          s_add_u32 s47, s39, 4096
          v_lshrrev_b32 v3, 1, v1
          v_mul_lo_u32 v3, v3, s40
          v_and_b32 v12, 1, v1
          v_lshl_add_u32 v3, v12, 4, v3
          s_lshl_b32 s43, s40, 8
          s_mul_i32 s43, s43, s38
          s_lshl_b32 s44, s37, 5
          s_add_u32 s43, s43, s44
          s_lshl_b32 s44, s40, 5            ; 32 rows
          v_lshlrev_b32 v2, 4, v1
          v_mov_b32 v64, 0x3f803f80
          v_mov_b32 v48, 0
          v_mov_b32 v49, 0""")
    srd(k, 24, 12, 13, WS_USED)
    k("s_barrier\n" * PKB)
    for i in range(8):
        k(f"""s_add_u32 m0, s36, {1024*i}
              buffer_load_dwordx4 v3, s[20:23], s43 offen lds
              s_add_u32 s43, s43, s44""")
    k("s_barrier\n" * (9 - PKB) + "s_waitcnt vmcnt(0)")
    for h in range(2):
        for i in range(4*h, 4*h+4):
            k(f"""ds_read_b64_tr_b16 v[{16+4*i}:{17+4*i}], v6 offset:{1024*i}
                  ds_read_b64_tr_b16 v[{18+4*i}:{19+4*i}], v7 offset:{1024*i}""")
        k("s_waitcnt lgkmcnt(0)")
        for i in range(4*h, 4*h+4):
            k(f"buffer_store_dwordx4 {vr(16+4*i)}, v2, s[24:27], {'s47' if h else 's39'} offen offset:{1024*(i&3)}")
    k("""s_cmp_eq_u32 s42, 0
         s_cbranch_scc1 L_qkv_kernel_end""")
    for i in range(32):
        k(f"v_dot2_f32_bf16 v{48+(i&1)}, v{16+i}, v64, v{48+(i&1)}")
    k("v_add_f32 v48, v48, v49")
    xhalf_add(k, 48, 12); x16_add(k, 48, 12)
    k(f"""v_and_b32 v12, 15, v1
          v_lshlrev_b32 v12, 2, v12
          s_lshl_b32 s35, s37, 6
          s_lshl_b32 s36, s38, 13
          s_add_u32 s35, s35, s36
          s_add_u32 s35, s35, {CSUM}
          buffer_store_dword v48, v12, s[24:27], s35 offen""")
    k(f"L_{k.name}_end:\ns_endpgm")
    return k, (256, 704, PK + 8192)
```

```python
from common import *
import os

def build_k2(NW=int(os.environ.get("K2_NW", 16)), PRIO=int(os.environ.get("K2_PRIO", 1)), SCHED=int(os.environ.get("K2_SCHED", 1))):
    k = Kern("attn_kernel", nvgpr=128)
    KL, VL, XL = 0, 65536, 131072
    Q = 4; KFR = 8; VFR = [[12, 16], [20, 24]]; P = 28; S = [36, 52]; O = 68; C = 84
    vK, vV = 100, 101
    KS = NW // 8
    NCH = 8 // KS
    NIT = 16 // KS
    prologue_ids(k, 256)
    k(f"""s_load_dwordx2 s[12:13], s[0:1], 96
          s_and_b32 s29, s2, 7
          s_lshr_b32 s30, s2, 3
          s_lshl_b32 s29, s29, 3
          s_and_b32 s31, s30, 7
          s_add_u32 s29, s29, s31          ; rb32
          s_lshr_b32 s30, s30, 3
          s_lshl_b32 s30, s30, 3
          s_and_b32 s38, s28, 7            ; q idx
          s_lshr_b32 s39, s28, 3
          s_add_u32 s30, s30, s38          ; head
          s_lshl_b32 s31, s29, 5
          s_add_u32 s31, s31, s30
          s_lshl_b32 s31, s31, 10
          v_lshlrev_b32 v2, 4, v1          ; lane*16
          s_lshl_b32 s44, s39, 15          ; half*32768
          s_lshl_b32 s32, s38, 10
          s_add_u32 s32, s32, s44
          v_add_u32 v3, s32, v2
          v_lshlrev_b32 v102, 3, v1
          s_waitcnt lgkmcnt(0)""")
    srd(k, 24, 12, 13, WS_USED)
    k(f"""s_add_u32 s33, s31, {QF}
          s_mov_b32 s34, {KMAX}
          buffer_load_dwordx4 {vr(Q)}, v2, s[24:27], s33 offen
          buffer_load_dwordx2 v[104:105], v102, s[24:27], s34 offen""")
    def kvdma(c):
        k(f"""s_add_u32 m0, s32, {KL + 8192*c}
              s_mov_b32 s34, {KF + 8192*c}
              s_mov_b32 s35, {VF + 8192*c}
              buffer_load_dwordx4 v3, s[24:27], s34 offen lds
              s_add_u32 m0, s32, {VL + 8192*c}
              buffer_load_dwordx4 v3, s[24:27], s35 offen lds""")
    kvdma(0)
    k(f"""v_add_u32 v{vK}, s44, v2
          v_lshrrev_b32 v103, 5, v1
          v_and_b32 v106, 15, v1
          v_lshl_add_u32 v103, v103, 4, v106
          v_lshlrev_b32 v103, 4, v103
          v_add_u32 v103, s44, v103
          v_add_u32 v{vV}, {VL}, v103
          s_mov_b32 s40, 0x0000ffff
          s_mov_b32 s41, 0x0000ffff""")
    EXPT = os.environ.get("K2_EXP", "")
    if "one" in EXPT:
        k("""v_and_b32 v106, 31, v1
             v_cmp_eq_u32 vcc, 16, v106
             v_mov_b32 v107, 0x3f803f80
             v_cndmask_b32 v107, 0, v107, vcc""")
    for i in range(16):
        k(f"v_mov_b32 v{12+i}, " + ("v107" if "one" in EXPT else "0x3f803f80"))
    for i in range(16):
        k(f"v_mov_b32 v{O+i}, 0\nv_mov_b32 v{C+i}, 0")
    for i in range(4):
        k(f"v_mov_b32 v{P+4+i}, 0")
    k.stamp(1)
    k(f"""s_waitcnt vmcnt(2)
          v_max_f32 v104, v104, v105
          v_dot2_f32_bf16 v106, v{Q}, v{Q}, 0
          v_dot2_f32_bf16 v106, v{Q+1}, v{Q+1}, v106
          v_dot2_f32_bf16 v106, v{Q+2}, v{Q+2}, v106
          v_dot2_f32_bf16 v106, v{Q+3}, v{Q+3}, v106""")
    for sh in (1, 2, 4, 8):
        k(f"v_max_f32_dpp v104, v104, v104 row_ror:{sh} row_mask:0xf bank_mask:0xf")
    k("""v_mov_b32 v105, v104
         v_permlane16_swap_b32 v104, v105
         v_max_f32 v104, v104, v105
         v_mov_b32 v105, v104
         v_permlane32_swap_b32 v104, v105
         v_max_f32 v104, v104, v105""")
    xhalf_add(k, 106, 105)
    k(f"""v_mul_f32 v104, v104, v106
          v_mov_b32 v107, {f32(3500.0)}
          v_cmp_nle_f32 vcc, v104, v107
          s_mov_b32 s42, 1
          s_mov_b32 s43, 3
          s_mov_b32 s36, 0
          s_waitcnt vmcnt(0)""")
    for c in range(1, NCH): kvdma(c)
    k(f"""s_cbranch_vccnz L_k2_slow
          s_barrier""")
    k.stamp(2)
    k("L_k2_start:")
    k(f"""ds_read_b128 {vr(KFR)}, v{vK}
          s_waitcnt lgkmcnt(0)
          v_mfma_f32_32x32x16_bf16 {vr(S[0],16)}, {vr(KFR)}, {vr(Q)}, {vr(C,16)}
          ds_read_b128 {vr(KFR)}, v{vK} offset:1024
          s_mov_b64 exec, s[40:41]
          ds_read_b128 {vr(VFR[0][0])}, v{vV}
          ds_read_b128 {vr(VFR[0][1])}, v{vV} offset:512
          s_mov_b64 exec, -1
          s_nop 7""")
    k("L_k2_loop:")
    k(f"""s_cmp_eq_u32 s36, s42
          s_cbranch_scc1 L_k2_st1
          s_cmp_eq_u32 s36, s43
          s_cbranch_scc1 L_k2_st3""")
    k("L_k2_body:")
    for u in range(4):
        s = S[u & 1]; sn = S[(u + 1) & 1]; vf = VFR[u & 1]; vn = VFR[(u + 1) & 1]
        if PRIO: k(f"s_setprio {3-u}")
        qk = f"""s_waitcnt lgkmcnt(LG)
              v_mfma_f32_32x32x16_bf16 {vr(sn,16)}, {vr(KFR)}, {vr(Q)}, {vr(C,16)}
              ds_read_b128 {vr(KFR)}, v{vK} offset:{1024*(u+2)}"""
        vrd = f"""s_mov_b64 exec, s[40:41]
              ds_read_b128 {vr(vn[0])}, v{vV} offset:{1024*(u+1)}
              ds_read_b128 {vr(vn[1])}, v{vV} offset:{1024*(u+1)+512}
              s_mov_b64 exec, -1"""
        pva = f"v_mfma_f32_32x32x16_bf16 {vr(O,16)}, {vr(vf[0])}, {vr(P)}, {vr(O,16)}"
        pvb = f"v_mfma_f32_32x32x16_bf16 {vr(O,16)}, {vr(vf[1])}, {vr(P+4)}, {vr(O,16)}"
        pvb_prev = f"v_mfma_f32_32x32x16_bf16 {vr(O,16)}, {vr(vn[1])}, {vr(P+4)}, {vr(O,16)}"
        E = lambda i: f"v_exp_f32 v{s+i}, v{s+i}"
        Cv = lambda j: f"v_cvt_pk_bf16_f32 v{P+j}, v{s+2*j}, v{s+2*j+1}"
        if "nopv" in EXPT: pva = pvb = pvb_prev = "s_nop 0"
        if "noexp" in EXPT: E = lambda i: f"v_mul_f32 v{s+i}, v{s+i}, v{s+i}"
        if "c0" in EXPT: qk = qk.replace(vr(C,16), "0")
        if SCHED == 0:
            k(qk.replace("LG", "2")); k(vrd)
            for hf in range(2):
                for i in range(8):
                    k(E(8*hf+i))
                    if i & 1 and i >= 3: k(Cv(4*hf+(i-3)//2))
                k(Cv(4*hf+3))
                k(("s_waitcnt lgkmcnt(3)\n" + pva) if hf == 0 else pvb)
        else:
            k(E(0)); k(E(1))
            k(pvb_prev); k(vrd)
            k(E(2)); k(E(3)); k(Cv(0)); k(E(4)); k(E(5)); k(Cv(1))
            k(qk.replace("LG", "2"))
            k(E(6)); k(E(7)); k(Cv(2)); k(E(8)); k(E(9)); k(Cv(3)); k(E(10)); k(E(11))
            k(pva)
            k(Cv(4)); k(E(12)); k(E(13)); k(Cv(5)); k(E(14)); k(E(15)); k(Cv(6)); k(Cv(7))
    k(f"""v_add_u32 v{vK}, 4096, v{vK}
          v_add_u32 v{vV}, 4096, v{vV}
          s_add_u32 s36, s36, 1
          s_cmp_lt_u32 s36, {NIT}
          s_cbranch_scc1 L_k2_loop""")
    if SCHED:
        k(f"v_mfma_f32_32x32x16_bf16 {vr(O,16)}, {vr(VFR[1][1])}, {vr(P+4)}, {vr(O,16)}")
    k.stamp(3)
    if KS == 2:
        k(f"""s_mul_i32 s45, s38, 2304
              s_add_u32 s45, s45, {XL}
              v_add_u32 v103, s45, v2
              v_lshlrev_b32 v104, 2, v1
              v_add_u32 v104, s45, v104
              s_cmp_eq_u32 s39, 0
              s_cbranch_scc1 L_k2_fin
              ds_write_b128 v103, {vr(O)}
              ds_write_b128 v103, {vr(O+4)} offset:1024
              ds_write_b32 v104, v{O+8} offset:2048
              s_waitcnt lgkmcnt(0)
              s_barrier
              s_endpgm
              L_k2_fin:
              s_barrier
              ds_read_b128 {vr(S[0])}, v103
              ds_read_b128 {vr(S[0]+4)}, v103 offset:1024
              ds_read_b32 v{S[0]+8}, v104 offset:2048
              s_waitcnt lgkmcnt(0)""")
        for r in range(9):
            k(f"v_add_f32 v{O+r}, v{O+r}, v{S[0]+r}")
    if "one" in EXPT:
        k(f"v_mov_b32 v104, v{O+8}\nv_permlane32_swap_b32 v{O+8}, v104")
    k(f"v_rcp_f32 v104, v{O+8}")
    for r in range(8):
        k(f"v_mul_f32 v{O+r}, v104, v{O+r}")
    for r in range(4):
        k(f"v_cvt_pk_bf16_f32 v{P+r}, v{O+2*r}, v{O+2*r+1}")
    k(f"""s_add_u32 s33, s31, {OF}
          buffer_store_dwordx4 {vr(P)}, v2, s[24:27], s33 offen
          s_endpgm""")
    PF = int(os.environ.get("K2_PF", 1))
    pf = ""
    if PF:
        pf = f"""
          s_load_dwordx2 s[48:49], s[0:1], 32
          s_load_dwordx4 s[52:55], s[0:1], 48
          s_load_dwordx2 s[56:57], s[0:1], 72
          s_lshr_b32 s46, s2, 3
          s_mul_i32 s46, s46, {NW}
          s_add_u32 s46, s46, s28
          v_lshlrev_b32 v108, 7, v1        ; lane*128
          s_and_b32 s47, s2, 7
          s_lshr_b32 s47, s47, 1
          s_lshl_b32 s47, s47, 21          ; rowgrp*512*4096
          s_waitcnt lgkmcnt(0)
          s_mov_b32 s50, {512*1024}
          s_mov_b32 s51, 0x00020000
          s_mov_b32 s60, s52
          s_mov_b32 s61, s53
          s_mov_b32 s62, {512*2752}
          s_mov_b32 s63, 0x00020000
          s_mov_b32 s52, s54
          s_mov_b32 s53, s55
          s_mov_b32 s54, {2048*4096}
          s_mov_b32 s55, 0x00020000
          s_mov_b32 s58, {688*1024}
          s_mov_b32 s59, 0x00020000
          s_lshl_b32 s46, s46, 13
          buffer_load_dword v109, v108, s[48:51], s46 offen
          buffer_load_dword v109, v108, s[60:63], s46 offen
          buffer_load_dword v109, v108, s[56:59], s46 offen
          s_cmp_ge_u32 s46, {2*1024*1024}
          s_cbranch_scc1 L_k2_body
          s_add_u32 s46, s46, s47
          buffer_load_dword v109, v108, s[52:55], s46 offen"""
        assert NW == 16
    k(f"""L_k2_st1:
          s_waitcnt vmcnt({2*NCH-4})
          s_barrier
          s_branch L_k2_body
          L_k2_st3:
          s_waitcnt vmcnt(0)
          s_barrier{pf}
          s_branch L_k2_body""")
    k(f"""L_k2_slow:
          s_waitcnt vmcnt(0)
          s_barrier
          s_barrier
          s_barrier
          s_mov_b32 s42, 99
          s_mov_b32 s43, 99
          v_mov_b32 v104, 0xff800000
          v_mov_b32 v103, v2
          s_mov_b32 s37, 0
          L_k2_mx:
          ds_read_b128 {vr(KFR)}, v103
          s_waitcnt lgkmcnt(0)
          v_mfma_f32_32x32x16_bf16 {vr(S[0],16)}, {vr(KFR)}, {vr(Q)}, 0
          v_add_u32 v103, 1024, v103""")
    for i in range(8):
        k(f"v_max3_f32 v104, v{S[0]+2*i}, v{S[0]+2*i+1}, v104")
    k(f"""s_add_u32 s37, s37, 1
          s_cmp_lt_u32 s37, 64
          s_cbranch_scc1 L_k2_mx
          v_mov_b32 v105, v104
          v_permlane32_swap_b32 v104, v105
          v_max_f32 v104, v104, v105""")
    for i in range(16):
        k(f"v_sub_f32 v{C+i}, 0, v104")
    k(f"""s_nop 1
          s_branch L_k2_start""")
    k(f"L_{k.name}_end:\ns_endpgm")
    return k, (256, 64 * NW, 131072 + (18432 if KS == 2 else 0))
```

```python
from common import *
import os
DL = int(os.environ.get("DL", 5))

def wt_dma_addr(k, vdst, vdst2, swave16, scolbytes, rowstride_log2=10):
    k(f"""v_lshrrev_b32 v12, 3, v1
          v_and_b32 v13, 7, v1
          v_add_u32 v{vdst}, {swave16}, v12
          v_lshlrev_b32 v{vdst}, {rowstride_log2}, v{vdst}
          v_and_b32 v14, 1, v8
          v_lshlrev_b32 v14, 2, v14
          v_xor_b32 v14, v13, v14
          v_lshl_add_u32 v{vdst}, v14, 4, v{vdst}
          v_add_u32 v{vdst}, {scolbytes}, v{vdst}
          v_add_u32 v{vdst2}, {8 << rowstride_log2}, v{vdst}""")

def wt_tr_base_dorder(k, vdst, sch, WL):
    k(f"""v_lshl_add_u32 v{vdst}, v9, 2, v10     ; 4h+r
          v_lshlrev_b32 v{vdst}, 7, v{vdst}
          v_lshrrev_b32 v12, 1, v10
          v_xor_b32 v12, {sch}, v12
          v_lshl_add_u32 v{vdst}, v12, 6, v{vdst}
          v_and_b32 v12, 1, v8
          v_lshl_add_u32 v{vdst}, v12, 5, v{vdst}
          v_lshl_add_u32 v{vdst}, v11, 3, v{vdst}
          v_add_u32 v{vdst}, {WL}, v{vdst}""")

def lane_fields(k):
    k("""v_lshrrev_b32 v8, 4, v1          ; g = l>>4
         v_lshrrev_b32 v9, 5, v1          ; h
         v_lshrrev_b32 v10, 2, v1
         v_and_b32 v10, 3, v10            ; r
         v_and_b32 v11, 3, v1             ; c4""")

def map64(k):
    k("""s_and_b32 s29, s2, 7
         s_lshr_b32 s30, s2, 3
         s_lshl_b32 s29, s29, 2
         s_and_b32 s31, s30, 3
         s_add_u32 s29, s29, s31
         s_lshr_b32 s30, s30, 2           ; cg
         s_and_b32 s3, s28, 3
         s_and_b32 s32, s28, 1            ; rh
         s_lshr_b32 s33, s3, 1            ; ch""")

R0 = int(os.environ.get("R0", 2))
def loader_loop(k, issue, n, per, D, nslots=None):
    nxt = 0
    for _ in range(min(R0, n)): issue(nxt); nxt += 1
    for c in range(n):
        k(f"s_waitcnt vmcnt({per*(nxt-1-c)})\ns_barrier")
        for _ in range(2):
            if nxt < n and nxt - c <= D:
                if nslots: assert nxt - nslots <= c - 1
                issue(nxt); nxt += 1

def compute_loop(k, reads, step, n, nq=lambda c: 4, stamps=True):
    k.stamp(1)
    k("s_barrier")
    k.stamp(2)
    reads(0)
    for c in range(n):
        m = nq(c)
        for q in range(m - 1):
            k(f"s_waitcnt lgkmcnt({3*(m-1-q)})")
            step(c, q)
        k("s_waitcnt lgkmcnt(0)")
        if c < n - 1:
            k("s_barrier")
            if stamps and c < 8: k.stamp(3 + c)
            reads(c + 1)
        step(c, m - 1)

def FA(s, q): return (80 + 8*q) if s == 0 else (112 + 8*q if q < 2 else 16 + 8*(q-2))
def FB(s, q): return FA(s, q) + 4

def build_k3():
    k = Kern("wo_kernel", nvgpr=128)
    OL, WL = 0, 65536
    prologue_ids(k, 256)
    k("""s_load_dwordx2 s[4:5], s[0:1], 0
         s_load_dwordx2 s[6:7], s[0:1], 32
         s_load_dwordx2 s[12:13], s[0:1], 96""")
    map64(k); lane_fields(k)
    k(f"""v_lshlrev_b32 v2, 4, v1
          s_lshl_b32 s36, s30, 7
          s_lshl_b32 s34, s29, 1
          s_add_u32 s34, s34, s32
          s_lshl_b32 s40, s34, 15          ; rb32*32*1024
          s_cmp_lt_u32 s28, 4
          s_cbranch_scc1 L_k3_comp
          s_lshl_b32 s35, s3, 4""")
    wt_dma_addr(k, 4, 5, "s35", "s36")
    k(f"""s_lshl_b32 s41, s33, 11          ; q0*1024, q0=2*(w>>1)
          s_add_u32 s42, s40, s41
          s_add_u32 s42, s42, {OF}
          s_lshl_b32 s43, s32, 12
          s_add_u32 s43, s43, s41
          s_lshl_b32 s37, s3, 11
          s_lshl_b32 s48, s31, 1
          s_add_u32 s48, s48, s30
          s_and_b32 s48, s48, 7
          s_waitcnt lgkmcnt(0)""")
    srd(k, 20, 6, 7, 512 * 1024); srd(k, 24, 12, 13, WS_USED)
    def issue(c):
        k(f"""s_add_u32 m0, s43, {OL + c*8192}
              s_lshl_b32 s38, s48, 12
              s_add_u32 s38, s38, s42
              s_lshl_b32 s39, s48, 16
              buffer_load_dwordx4 v2, s[24:27], s38 offen lds
              buffer_load_dwordx4 v2, s[24:27], s38 offen offset:1024 lds
              s_add_u32 m0, s37, {WL + c*8192}
              s_add_u32 s48, s48, 1
              buffer_load_dwordx4 v4, s[20:23], s39 offen lds
              s_add_u32 m0, s37, {WL + c*8192 + 1024}
              s_and_b32 s48, s48, 7
              buffer_load_dwordx4 v5, s[20:23], s39 offen lds""")
    loader_loop(k, issue, 8, 4, DL)
    k("s_endpgm\nL_k3_comp:")
    k(f"""v_and_b32 v12, 31, v1
          v_lshlrev_b32 v3, 10, v12
          v_lshl_add_u32 v3, v9, 3, v3
          s_lshl_b32 s44, s33, 6
          s_add_u32 s44, s44, s36
          s_add_u32 s44, s44, s40""")
    wt_tr_base_dorder(k, 6, "s33", WL)
    k(f"""s_lshl_b32 s45, s32, 12
          v_add_u32 v7, s45, v2""")
    for r in range(16): k(f"v_mov_b32 v{32+r}, 0")
    k("s_waitcnt lgkmcnt(0)")
    srd(k, 16, 4, 5, 2048 * 1024); srd(k, 24, 12, 13, WS_USED)
    def reads(c):
        s = c & 1
        for q in range(4):
            st = 4*c + q
            k(f"""ds_read_b64_tr_b16 v[{FA(s,q)}:{FA(s,q)+1}], v6 offset:{2048*st}
                  ds_read_b64_tr_b16 v[{FA(s,q)+2}:{FA(s,q)+3}], v6 offset:{2048*st+1024}
                  ds_read_b128 {vr(FB(s,q))}, v7 offset:{OL + 8192*c + 1024*q}""")
        if c == 3:
            for gq in range(4):
                k(f"buffer_load_dwordx2 v[{64+2*gq}:{65+2*gq}], v3, s[16:19], s44 offen offset:{16*gq}")
    def step(c, q):
        s = c & 1
        k(f"v_mfma_f32_32x32x16_bf16 v[32:47], {vr(FA(s,q))}, {vr(FB(s,q))}, v[32:47]")
    compute_loop(k, reads, step, 8)
    k.stamp(10)
    k("s_waitcnt vmcnt(0)")
    for i in range(8):
        k(f"""v_lshlrev_b32 v{48+2*i}, 16, v{64+i}
              v_and_b32 v{49+2*i}, 0xffff0000, v{64+i}""")
    for r in range(16): k(f"v_add_f32 v{32+r}, v{32+r}, v{48+r}")
    for i in range(8): k(f"v_cvt_pk_bf16_f32 v{48+i}, v{32+2*i}, v{33+2*i}")
    k(f"""s_lshl_b32 s46, s30, 1
          s_add_u32 s46, s46, s33          ; ct
          s_lshl_b32 s47, s46, 11
          s_add_u32 s47, s47, s40
          s_add_u32 s47, s47, {HF}
          buffer_store_dwordx4 v[48:51], v2, s[24:27], s47 offen
          buffer_store_dwordx4 v[52:55], v2, s[24:27], s47 offen offset:1024
          v_mov_b32 v64, 0x3f803f80
          v_mov_b32 v68, 0
          v_mov_b32 v69, 0""")
    for i in range(8):
        k(f"""v_dot2_f32_bf16 v68, v{48+i}, v64, v68
              v_dot2_f32_bf16 v69, v{48+i}, v{48+i}, v69""")
    xhalf_add(k, 68, 12); xhalf_add(k, 69, 13)
    k(f"""v_and_b32 v12, 31, v1
          v_lshlrev_b32 v12, 3, v12
          s_lshl_b32 s47, s34, 12          ; rb32*4096
          s_lshl_b32 s46, s46, 8
          s_add_u32 s47, s47, s46
          s_add_u32 s47, s47, {HSTAT}
          buffer_store_dwordx2 v[68:69], v12, s[24:27], s47 offen""")
    k(f"L_{k.name}_end:\ns_endpgm")
    return k, (256, 512, 131072)
```

```python
from common import *
from k3 import lane_fields
import os

GC1 = -2.0 * 0.7978845608028654 * 1.4426950408889634
GC2 = GC1 * 0.044715
NSH = 4
WL, HL = 0, 98304

def k4_ids(k):
    k("""s_and_b32 s29, s2, 7
         s_lshr_b32 s30, s2, 3
         s_lshl_b32 s29, s29, 1
         s_and_b32 s31, s30, 1
         s_add_u32 s29, s29, s31          ; rb128
         s_lshr_b32 s30, s30, 1           ; g
         s_mul_i32 s31, s30, 3
         s_min_u32 s31, s31, 40           ; u0
         s_and_b32 s3, s28, 3
         s_lshl_b32 s32, s29, 2
         s_add_u32 s32, s32, s3           ; rb32""")

def k4_w_setup(k):
    k(f"""s_lshl_b32 s40, s31, 14
          s_add_u32 s40, s40, {WPK}
          s_add_u32 s41, s40, {43*16384}
          s_lshl_b32 s38, s3, 12
          v_lshlrev_b32 v2, 4, v1""")

def k4_w_group(k, i):
    off = 98304 - 16384*(i+1)
    base, rel = ("s40", off - 49152) if off >= 49152 else ("s41", off)
    k(f"""s_add_u32 m0, s38, {WL + off}
          s_add_u32 s42, s38, {rel}
          s_add_u32 s42, s42, {base}""")
    for q in range(4):
        k(f"buffer_load_dwordx4 v2, s[24:27], s42 offen offset:{1024*q} lds")

def k4_loader_w(k):
    k4_w_setup(k)
    for i in range(6): k4_w_group(k, i)

def k4_loader_h(k, sc=""):
    k(f"""s_lshl_b32 s39, s32, 15
          s_add_u32 s39, s39, {HF}
          s_lshl_b32 s43, s3, 12
          v_lshlrev_b32 v2, 4, v1
          v_and_b32 v15, 31, v1
          v_lshlrev_b32 v5, 3, v15
          s_lshl_b32 s44, s3, 8
          s_add_u32 s44, s44, {HL}
          v_add_u32 v6, s44, v5
          v_lshl_add_u32 v5, v9, 11, v5
          s_lshl_b32 s37, s32, 12
          s_add_u32 s37, s37, {HSTAT}""")
    def issue(c):
        k(f"""s_add_u32 m0, s43, {HL + (c % NSH)*16384}
              s_add_u32 s42, s39, {c*4096}""")
        for q in range(4):
            k(f"buffer_load_dwordx4 v2, s[24:27], s42 offen offset:{1024*q} {sc} lds")
    q = VQ(k)
    hi = lambda c: q.issue(f"h{c}", 4, lambda: issue(c))
    def sl():
        for i in range(8):
            k(f"buffer_load_dwordx2 v[{96+2*i}:{97+2*i}], v5, s[24:27], s37 offen offset:{256*i} {sc}")
    hi(0); hi(1)
    for c in range(8):
        if c == 7:
            k("ds_write_b64 v6, v[96:97]\ns_waitcnt lgkmcnt(0)")
        q.wait(f"h{c}"); k("s_barrier")
        if c == 0: hi(2); hi(3)
        if 1 <= c <= 4: hi(c + 3)
        if c == 1: q.issue("st", 8, sl)
        if c == 5:
            S = 96
            for i in range(1, 8):
                k(f"v_add_f32 v{S}, v{S}, v{S+2*i}\nv_add_f32 v{S+1}, v{S+1}, v{S+2*i+1}")
            xhalf_add(k, S, 12); xhalf_add(k, S+1, 13)
            ln_stats(k, S, S+1, 512, 12)

def k4_compute(k, sc="", sync=None, st=None):
    if st is None: st = lambda s: k(s + " sc1")
    ACC = 16; F = [40, 60]; RA = 80; MU = 88; T = 40
    k(f"""v_and_b32 v15, 31, v1
          s_lshl_b32 s37, s3, 8
          s_add_u32 s37, s37, {HL}
          v_and_b32 v14, 15, v1            ; n
          v_and_b32 v13, 1, v8
          v_lshrrev_b32 v12, 1, v8          ; g>>1
          v_lshlrev_b32 v6, 10, v12
          v_lshl_add_u32 v6, v13, 9, v6
          v_lshl_add_u32 v6, v14, 4, v6
          s_lshl_b32 s38, s3, 12
          s_add_u32 s38, s38, {HL}
          v_add_u32 v6, s38, v6
          v_lshlrev_b32 v7, 4, v12
          v_lshl_add_u32 v7, v13, 2, v7
          v_add_u32 v7, v7, v10
          v_lshlrev_b32 v7, 5, v7
          v_lshl_add_u32 v7, v11, 3, v7
          s_cmp_lt_u32 s28, 4
          s_cselect_b32 s38, 0, 49152
          v_add_u32 v7, s38, v7
          v_add_u32 v7, {WL}, v7""")
    for i in range(24): k(f"v_mov_b32 v{ACC+i}, 0")
    k("s_cbranch_scc0 L_k4_z1")
    def kloop(z2, extra):
        def reads(s):
            b = F[s & 1]; c = s // 2; so = (c % NSH) * 16384 + (s & 1) * 2048
            o = s * 1024
            for rh in range(2):
                k(f"ds_read_b128 {vr(b+4*rh)}, v6 offset:{so + 256*rh}")
            for u in range(3):
                k(f"""ds_read_b64_tr_b16 v[{b+8+4*u}:{b+9+4*u}], v7 offset:{o+16384*u}
                      ds_read_b64_tr_b16 v[{b+10+4*u}:{b+11+4*u}], v7 offset:{o+16384*u+256}""")
        k.stamp(1)
        k("s_barrier")
        k.stamp(2)
        reads(0)
        for s in range(16):
            k("s_waitcnt lgkmcnt(0)")
            if s < 15:
                if s & 1:
                    k("s_barrier")
                    k.stamp(3 + s // 2)
                reads(s + 1)
            b = F[s & 1]
            for rh in range(2):
                for u in range(3):
                    a = ACC + 12*rh + 4*u
                    h, w = vr(b+4*rh), vr(b+8+4*u)
                    A, B = (h, w) if z2 else (w, h)
                    k(f"v_mfma_f32_16x16x32_bf16 {vr(a)}, {A}, {B}, {vr(a)}")
            extra(s)
        k.stamp(10)
    k(f"""s_lshl_b32 s38, s31, 6
          s_add_u32 s38, s38, {CSUM + 688*4}
          v_lshlrev_b32 v12, 2, v14""")
    for u in range(3):
        k(f"buffer_load_dword v{112+u}, v12, s[24:27], s38 offen offset:{64*u}")
    k("s_add_u32 s38, s38, 8192")
    for u in range(3):
        k(f"buffer_load_dword v{116+u}, v12, s[24:27], s38 offen offset:{64*u}")
    k(f"""v_lshlrev_b32 v4, 4, v8
          v_mov_b32 v115, {f32(GC2)}""")
    k(f"""v_lshlrev_b32 v5, 5, v8
          v_add_u32 v5, s37, v5
          s_waitcnt vmcnt(0)""")
    for u in range(3): k(f"v_add_f32 v{112+u}, v{112+u}, v{116+u}")
    if sync: sync("z2")
    def extra2(s):
        if s == 14:
            for i in range(4):
                k(f"ds_read_b128 {vr(RA+4*i)}, v5 offset:{128*(i//2)+16*(i%2)}")
    kloop(True, extra2)
    k("s_setprio 3")
    for rh in range(2):
        for u in range(3):
            for r in range(4):
                a = ACC+12*rh+4*u+r
                k(f"v_fma_f32 v{a}, -v{RA+8*rh+2*r}, v{112+u}, v{a}")
    regs = [ACC + i for i in range(24)]
    ridx = lambda i: RA + 4*(i//12) + i % 4
    for i, a in enumerate(regs): k(f"v_mul_f32 v{a}, v{RA+8*(i//12)+2*(i%4)+1}, v{a}")
    for i, a in enumerate(regs): k(f"v_mul_f32 v{T+i}, v{a}, v{a}")
    for i, a in enumerate(regs): k(f"v_fmaak_f32 v{T+i}, v115, v{T+i}, {f32(GC1)}")
    for i, a in enumerate(regs): k(f"v_mul_f32 v{T+i}, v{T+i}, v{a}")
    for i, a in enumerate(regs): k(f"v_exp_f32 v{T+i}, v{T+i}")
    for i, a in enumerate(regs): k(f"v_add_f32 v{T+i}, 1.0, v{T+i}")
    for i, a in enumerate(regs): k(f"v_rcp_f32 v{T+i}, v{T+i}")
    for i, a in enumerate(regs): k(f"v_mul_f32 v{a}, v{a}, v{T+i}")
    k.stamp(11)
    SQ = 64
    for j in range(8):
        a = ACC + 12*(j//4) + j % 4
        k(f"v_mov_b32 v{SQ+2*j}, v{a+8}\nv_mul_f32 v{SQ+2*j+1}, v{a+8}, v{a+8}")
    k("""s_cmp_eq_u32 s30, 14
         s_cbranch_scc1 L_k4_red""")
    for u in range(2):
        for j in range(8):
            a = ACC + 12*(j//4) + j % 4 + 4*u
            k(f"v_add_f32 v{SQ+2*j}, v{SQ+2*j}, v{a}\nv_fmac_f32 v{SQ+2*j+1}, v{a}, v{a}")
    k("s_nop 0\nL_k4_red:")
    for i in range(8):
        k(f"v_add_f32_dpp v{SQ+i}, v{SQ+i}, v{SQ+i} row_ror:8 row_mask:0xf bank_mask:0x3")
    for i in range(8):
        k(f"v_add_f32_dpp v{SQ+i}, v{SQ+8+i}, v{SQ+8+i} row_ror:8 row_mask:0xf bank_mask:0xc")
    for i in range(4):
        k(f"v_add_f32_dpp v{SQ+i}, v{SQ+i}, v{SQ+i} row_ror:12 row_mask:0xf bank_mask:0x5")
    for i in range(4):
        k(f"v_add_f32_dpp v{SQ+i}, v{SQ+4+i}, v{SQ+4+i} row_ror:4 row_mask:0xf bank_mask:0xa")
    for qp in ("[1,0,3,2]", "[2,3,0,1]"):
        for i in range(4):
            k(f"v_add_f32_dpp v{SQ+i}, v{SQ+i}, v{SQ+i} quad_perm:{qp} row_mask:0xf bank_mask:0xf")
    k(f"""s_mov_b32 s49, -2
          s_lshl_b32 s47, s32, 12
          s_add_u32 s47, s47, {ZSTAT}
          s_lshl_b32 s48, s30, 8
          s_add_u32 s48, s48, s47
          v_lshlrev_b32 v12, 5, v8           ; g*32
          v_and_b32 v13, 1, v10
          v_lshl_add_u32 v12, v13, 4, v12    ; + (bank&1)*16
          v_lshrrev_b32 v13, 1, v10
          v_lshl_add_u32 v12, v13, 7, v12    ; + (bank>>1)*128
          v_lshlrev_b32 v13, 3, v15
          v_lshl_add_u32 v13, v9, 11, v13    ; row*8 + h*2048""")
    for j in range(4): k(f"v_min_u32 v{SQ+j}, s49, v{SQ+j}")
    k(f"""s_mov_b32 s50, 0x11111111
          s_mov_b32 s51, 0x11111111
          s_mov_b64 exec, s[50:51]
          """)
    st(f"buffer_store_dwordx4 {vr(SQ)}, v12, s[24:27], s48 offen")
    k(f"""s_mov_b64 exec, -1
          s_setprio 0
          s_mov_b32 s54, 0
          L_k4_poll:
          s_sleep {SLEEP}""")
    for i in range(8):
        k(f"buffer_load_dwordx2 v[{96+2*i}:{97+2*i}], v13, s[24:27], s47 offen offset:{256*i} sc1")
    k(f"""s_waitcnt vmcnt(0)
          v_max3_u32 v112, v96, v97, v98
          v_max3_u32 v113, v99, v100, v101
          v_max3_u32 v114, v102, v103, v104
          v_max3_u32 v112, v112, v105, v106
          v_max3_u32 v113, v113, v107, v108
          v_max3_u32 v114, v114, v109, v110
          v_max3_u32 v112, v112, v113, v111
          v_max_u32 v112, v112, v114
          v_cmp_eq_u32 vcc, -1, v112
          s_add_u32 s54, s54, 1
          s_cmp_gt_u32 s54, 0x40000
          s_cbranch_scc1 L_k4_go
          s_cbranch_vccnz L_k4_poll
          L_k4_go:
          s_setprio 3""")
    k.stamp(12)
    for i in range(1, 8):
        k(f"v_add_f32 v96, v96, v{96+2*i}\nv_add_f32 v97, v97, v{97+2*i}")
    xhalf_add(k, 96, 12); xhalf_add(k, 97, 13)
    ln_stats(k, 96, 97, 688, 12)
    k("v_mul_f32 v96, -v96, v97")
    for i in range(8):
        o = 64*(i//4) + 4*(i%4)
        k(f"""v_add_u32 v12, {o}, v4
              ds_bpermute_b32 v{T+i}, v12, v96
              ds_bpermute_b32 v{RA+i}, v12, v97""")
    k(f"""v_lshrrev_b32 v12, 1, v8
          v_lshlrev_b32 v12, 9, v12
          v_lshl_add_u32 v12, v14, 4, v12
          v_and_b32 v13, 1, v8
          v_lshl_add_u32 v12, v13, 3, v12
          s_lshl_b32 s45, s32, 11
          s_add_u32 s45, s45, {Z2F}
          s_waitcnt lgkmcnt(0)""")
    for i, a in enumerate(regs):
        k(f"v_fma_f32 v{a}, v{a}, v{ridx(i)}, v{T + 4*(i//12) + i%4}")
    for u in range(3):
        k(f"""s_add_u32 s44, s31, {u}
              s_lshr_b32 s46, s44, 1
              s_lshl_b32 s46, s46, 17
              s_and_b32 s44, s44, 1
              s_lshl_b32 s44, s44, 8
              s_add_u32 s44, s44, s46
              s_add_u32 s44, s44, s45""")
        for rh in range(2):
            a = ACC + 12*rh + 4*u; p = 64 + 4*u + 2*rh
            k(f"""v_cvt_pk_bf16_f32 v{p}, v{a}, v{a+1}
                  v_cvt_pk_bf16_f32 v{p+1}, v{a+2}, v{a+3}
                  buffer_store_dwordx2 v[{p}:{p+1}], v12, s[24:27], s44 offen offset:{1024*rh}""")
    k("s_endpgm")
    k("L_k4_z1:")
    k(f"""s_lshl_b32 s38, s31, 6
          s_add_u32 s38, s38, {CSUM}
          v_lshlrev_b32 v12, 4, v8""")
    for u in range(3):
        k(f"buffer_load_dwordx4 {vr(112+4*u)}, v12, s[24:27], s38 offen offset:{64*u}")
    k("s_add_u32 s38, s38, 8192")
    for u in range(3):
        k(f"buffer_load_dwordx4 {vr(96+4*u)}, v12, s[24:27], s38 offen offset:{64*u}")
    k("s_waitcnt vmcnt(0)")
    for i in range(12): k(f"v_add_f32 v{112+i}, v{112+i}, v{96+i}")
    k(f"""v_lshlrev_b32 v5, 3, v14
          v_add_u32 v5, s37, v5""")
    if sync: sync("z1")
    def extra1(s):
        if s == 14:
            k(f"""ds_read_b64 v[{MU}:{MU+1}], v5
                  ds_read_b64 v[{MU+2}:{MU+3}], v5 offset:128""")
        if s == 15:
            for rh in range(2):
                r = MU + 2*rh + 1
                k(f"""v_mul_f32 v{RA+rh}, {f32(GC1)}, v{r}
                      v_mul_f32 v{RA+2+rh}, v{r}, v{r}
                      v_mul_f32 v{RA+2+rh}, v{RA+2+rh}, v{r}
                      v_mul_f32 v{RA+2+rh}, {f32(GC2)}, v{RA+2+rh}
                      v_rcp_f32 v{RA+4+rh}, v{r}""")
    kloop(False, extra1)
    for i, a in enumerate(regs): k(f"v_fma_f32 v{a}, -v{MU+2*(i//12)}, v{112+i%12}, v{a}")
    for i, a in enumerate(regs): k(f"v_mul_f32 v{T+i}, v{a}, v{a}")
    for i, a in enumerate(regs): k(f"v_fma_f32 v{T+i}, v{T+i}, v{RA+2+i//12}, v{RA+i//12}")
    for i, a in enumerate(regs): k(f"v_mul_f32 v{T+i}, v{T+i}, v{a}")
    for i, a in enumerate(regs): k(f"v_exp_f32 v{T+i}, v{T+i}")
    for i, a in enumerate(regs): k(f"v_fma_f32 v{T+i}, v{T+i}, v{RA+4+i//12}, v{RA+4+i//12}")
    for i, a in enumerate(regs): k(f"v_rcp_f32 v{T+i}, v{T+i}")
    for i, a in enumerate(regs): k(f"v_mul_f32 v{a}, v{a}, v{T+i}")
    k(f"""v_and_b32 v13, 1, v8
          v_lshlrev_b32 v12, 9, v13
          v_lshl_add_u32 v12, v14, 4, v12
          v_lshrrev_b32 v13, 1, v8
          v_lshl_add_u32 v12, v13, 3, v12
          s_mul_i32 s44, s32, 44
          s_add_u32 s44, s44, s31
          s_lshl_b32 s44, s44, 10
          s_add_u32 s44, s44, {Z1}""")
    for u in range(3):
        for rh in range(2):
            a = ACC + 12*rh + 4*u; p = 64 + 4*u + 2*rh
            k(f"""v_cvt_pk_bf16_f32 v{p}, v{a}, v{a+1}
                  v_cvt_pk_bf16_f32 v{p+1}, v{a+2}, v{a+3}
                  buffer_store_dwordx2 v[{p}:{p+1}], v12, s[24:27], s44 offen offset:{1024*u+256*rh}""")

def k4_idle_wg(k, st=None):
    k(f"""v_mov_b32 v4, 0
          v_mov_b32 v5, 0
          v_and_b32 v12, 31, v1
          v_lshlrev_b32 v12, 3, v12
          s_lshl_b32 s47, s32, 12
          s_add_u32 s47, s47, {ZSTAT + 15*256}
          buffer_store_dwordx2 v[4:5], v12, s[24:27], s47 offen sc1""")

def build_k4():
    k = Kern("win_kernel", nvgpr=128)
    prologue_ids(k, 256)
    k("""s_load_dwordx2 s[6:7], s[0:1], 48
         s_load_dwordx2 s[12:13], s[0:1], 96""")
    k4_ids(k); lane_fields(k)
    k("s_waitcnt lgkmcnt(0)")
    srd(k, 20, 6, 7, 512 * 2752); srd(k, 24, 12, 13, WS_USED)
    k("""s_cmp_eq_u32 s30, 15
         s_cbranch_scc0 L_k4_work""")
    k4_idle_wg(k)
    k("""s_endpgm
         L_k4_work:
         s_cmp_lt_u32 s28, 8
         s_cbranch_scc1 L_k4_comp""")
    k4_loader_w(k); k4_loader_h(k)
    k("s_endpgm\nL_k4_comp:")
    k4_compute(k)
    k(f"L_{k.name}_end:\ns_endpgm")
    return k, (256, 768, 163840)
```

```python
from common import *
from k3 import lane_fields
import os
ROT = int(os.environ.get("K5_ROT", 1))
NS = int(os.environ.get("K5_NS", 7))

def build_k5():
    k = Kern("wsp_kernel", nvgpr=128)
    SLOT = 20480
    ACC = 16; F = [64, 80]; Z = 96
    prologue_ids(k, 256)
    k("""s_load_dwordx4 s[4:7], s[0:1], 56
         s_load_dwordx2 s[12:13], s[0:1], 96
         s_and_b32 s29, s2, 7
         s_lshr_b32 s58, s2, 3            ; j
         s_and_b32 s30, s29, 1
         s_lshl_b32 s30, s30, 2
         s_lshr_b32 s31, s58, 3
         s_add_u32 s30, s30, s31          ; gi
         s_lshr_b32 s29, s29, 1
         s_lshl_b32 s29, s29, 3
         s_and_b32 s31, s58, 7
         s_add_u32 s29, s29, s31          ; tb
         s_and_b32 s3, s28, 3
         s_and_b32 s32, s28, 1            ; th
         s_lshr_b32 s33, s3, 1            ; kh
         s_mul_i32 s34, s30, 3
         s_min_u32 s34, s34, 19           ; tile0
         v_lshlrev_b32 v2, 4, v1""")
    if not ROT: k("s_mov_b32 s58, 0")
    lane_fields(k)
    k(f"""s_cmp_lt_u32 s28, 4
          s_cbranch_scc1 L_k5_comp
          v_add_u32 v3, {128*1024}, v2
          v_add_u32 v4, {256*1024}, v2
          s_lshl_b32 s35, s29, 6
          s_lshl_b32 s36, s3, 4
          s_add_u32 s35, s35, s36
          v_lshrrev_b32 v12, 3, v1
          v_add_u32 v5, s35, v12
          v_lshlrev_b32 v5, 12, v5
          v_and_b32 v13, 7, v1
          v_xor_b32 v14, v13, v8
          v_lshl_add_u32 v5, v14, 4, v5
          v_xor_b32 v6, 64, v5
          v_add_u32 v6, {8*4096}, v6
          s_lshl_b32 s40, s34, 17
          s_lshl_b32 s36, s3, 10
          s_add_u32 s40, s40, s36
          s_add_u32 s59, s40, {Z2F}
          s_lshl_b32 s37, s3, 11
          s_add_u32 s37, s37, 12288
          s_waitcnt lgkmcnt(0)""")
    srd(k, 16, 4, 5, 2048 * 4096); srd(k, 24, 12, 13, WS_USED)
    def issue(slot):
        k(f"""s_add_u32 s50, s36, {slot}
              s_add_u32 s51, s37, {slot}
              s_lshl_b32 s40, s58, 12
              s_add_u32 s40, s40, s59
              s_lshl_b32 s41, s58, 7
              s_mov_b32 m0, s50
              buffer_load_dwordx4 v2, s[24:27], s40 offen lds
              s_add_u32 m0, s50, 4096
              buffer_load_dwordx4 v3, s[24:27], s40 offen lds
              s_add_u32 m0, s50, 8192
              buffer_load_dwordx4 v4, s[24:27], s40 offen lds
              s_mov_b32 m0, s51
              buffer_load_dwordx4 v5, s[16:19], s41 offen lds
              s_add_u32 m0, s51, 1024
              buffer_load_dwordx4 v6, s[16:19], s41 offen lds
              s_add_u32 s58, s58, 1
              s_and_b32 s58, s58, 31""")
    D = NS - 2
    issue(0); issue(SLOT)
    nxt = 2; b = 0
    while nxt < b + D:
        k(f"s_waitcnt vmcnt({5*(nxt-1-b)})\ns_barrier")
        for _ in range(2):
            if nxt <= b + D: issue((nxt % NS) * SLOT); nxt += 1
        b += 1
    assert nxt == b + D
    k(f"""s_mov_b32 s54, {(nxt % NS)*SLOT}
          s_mov_b32 s55, {b}
          L_k5_ld:
          s_waitcnt vmcnt({5*(D-1)})
          s_barrier""")
    issue("s54")
    k(f"""s_add_u32 s54, s54, {SLOT}
          s_cmp_eq_u32 s54, {NS*SLOT}
          s_cselect_b32 s54, 0, s54
          s_add_u32 s55, s55, 1
          s_cmp_lt_u32 s55, {32-D}
          s_cbranch_scc1 L_k5_ld""")
    for c in range(32 - D, 32):
        k(f"s_waitcnt vmcnt({5*(31-c)})\ns_barrier")
    k("s_endpgm")
    k("L_k5_comp:")
    k(f"""s_lshl_b32 s38, s29, 1
          s_add_u32 s38, s38, s32          ; rb32
          s_mul_i32 s39, s38, 44
          s_lshl_b32 s42, s34, 1
          s_add_u32 s39, s39, s42
          s_mul_i32 s42, s33, 3
          s_add_u32 s39, s39, s42
          s_lshl_b32 s39, s39, 10
          s_add_u32 s42, s39, {Z1}
          v_and_b32 v15, 31, v1
          v_lshlrev_b32 v12, 1, v15
          s_lshl_b32 s43, s38, 6
          s_waitcnt lgkmcnt(0)""")
    srd(k, 20, 6, 7, 4096); srd(k, 24, 12, 13, WS_USED)
    k("buffer_load_ushort v108, v12, s[20:23], s43 offen")
    for j in range(3):
        k(f"buffer_load_dwordx4 {vr(Z+4*j)}, v2, s[24:27], s42 offen offset:{1024*j}")
    k(f"""s_lshl_b32 s52, s33, 11
          v_add_u32 v109, s52, v2
          s_lshl_b32 s52, s32, 5
          v_add_u32 v12, s52, v15           ; row
          v_lshrrev_b32 v13, 1, v12
          v_and_b32 v13, 7, v13
          v_lshlrev_b32 v12, 7, v12
          v_add_u32 v12, 12288, v12
          s_lshl_b32 s52, s33, 2
          v_add_u32 v14, s52, v9            ; 2*q0+h
          v_xor_b32 v7, v14, v13
          v_lshl_add_u32 v110, v7, 4, v12
          v_add_u32 v14, 2, v14
          v_xor_b32 v7, v14, v13
          v_lshl_add_u32 v111, v7, 4, v12
          v_mov_b32 v112, v109
          v_mov_b32 v113, v110
          v_mov_b32 v114, v111
          s_mov_b32 s53, 0
          s_mov_b32 s55, 0                  ; c
          s_cmp_eq_u32 s33, 0
          s_cselect_b32 s56, -1, 0
          s_waitcnt vmcnt(3)
          v_lshlrev_b32 v108, 16, v108
          v_and_b32 v108, s56, v108""")
    for r in range(48): k(f"v_mov_b32 v{ACC+r}, v108")
    def reads(st, off, vb):
        f = F[st]
        for t in range(3):
            k(f"ds_read_b128 {vr(f+4*t)}, v112 offset:{4096*t+off}")
        k(f"ds_read_b128 {vr(f+12)}, {vb}")
    def mf(st):
        f = F[st]
        for t in range(3):
            k(f"v_mfma_f32_32x32x16_bf16 {vr(ACC+16*t,16)}, {vr(f+4*t)}, {vr(f+12)}, {vr(ACC+16*t,16)}")
    k.stamp(1)
    k("s_barrier")
    k.stamp(2)
    reads(0, 0, "v113")
    k("L_k5_loop:")
    reads(1, 1024, "v114")
    k(f"""s_add_u32 s53, s53, {SLOT}
          s_cmp_eq_u32 s53, {NS*SLOT}
          s_cselect_b32 s53, 0, s53
          s_add_u32 s55, s55, 1
          v_add_u32 v112, s53, v109
          v_add_u32 v113, s53, v110
          v_add_u32 v114, s53, v111
          s_waitcnt lgkmcnt(4)""")
    mf(0)
    k(f"""s_cmp_eq_u32 s55, 32
          s_cbranch_scc1 L_k5_last
          s_barrier""")
    reads(0, 0, "v113")
    k("s_waitcnt lgkmcnt(4)")
    mf(1)
    k("s_branch L_k5_loop")
    k("L_k5_last:\ns_waitcnt lgkmcnt(0)")
    mf(1)
    k.stamp(3)
    XS = ((31 + 2) % NS) * SLOT
    a = (32 % NS)
    assert a + 1 < NS or True
    if a + 1 >= NS: a = 0 if (31 % NS) > 2 else None
    XS = a * SLOT
    assert all((s % NS) not in (a, a + 1) for s in (30, 31))
    k(f"""s_mul_i32 s52, s28, 6144
          s_add_u32 s52, s52, {XS}
          v_add_u32 v112, s52, v2
          s_xor_b32 s57, s28, 2
          s_mul_i32 s52, s57, 6144
          s_add_u32 s52, s52, {XS}
          v_add_u32 v113, s52, v2
          s_add_u32 s42, s39, {YF}
          s_cmp_eq_u32 s33, 1
          s_cbranch_scc1 L_k5_e1""")
    def epi(keep, give):
        for i in range(6):
            k(f"ds_write_b128 v112, {vr(give+4*i)} offset:{1024*i}")
        k("s_waitcnt vmcnt(0) lgkmcnt(0)\ns_barrier")
        for i in range(6):
            k(f"ds_read_b128 {vr(64+4*i)}, v113 offset:{1024*i}")
        for i in range(12):
            k(f"""v_lshlrev_b32 v{give+2*i}, 16, v{Z+i}
                  v_and_b32 v{give+2*i+1}, 0xffff0000, v{Z+i}""")
        k("s_waitcnt lgkmcnt(0)")
        for i in range(24): k(f"v_add_f32 v{keep+i}, v{keep+i}, v{64+i}")
        for i in range(24): k(f"v_mul_f32 v{keep+i}, v{keep+i}, v{give+i}")
        for i in range(12): k(f"v_cvt_pk_bf16_f32 v{64+i}, v{keep+2*i}, v{keep+2*i+1}")
        for j in range(3):
            k(f"buffer_store_dwordx4 {vr(64+4*j)}, v2, s[24:27], s42 offen offset:{1024*j}")
    epi(ACC, ACC + 24)
    k("s_endpgm\nL_k5_e1:")
    epi(ACC + 24, ACC)
    k(f"L_{k.name}_end:\ns_endpgm")
    return k, (256, 512, NS * SLOT)
```

```python
from common import *
from k3 import *

def build_k6():
    k = Kern("wout_kernel", nvgpr=128)
    NS, SLOT = 9, 16384
    prologue_ids(k, 256)
    k("""s_load_dwordx4 s[4:7], s[0:1], 72
         s_load_dwordx2 s[12:13], s[0:1], 96""")
    map64(k); lane_fields(k)
    k(f"""v_lshlrev_b32 v2, 4, v1
          s_lshl_b32 s34, s29, 1
          s_add_u32 s34, s34, s32          ; rb32
          s_cmp_lt_u32 s28, 4
          s_cbranch_scc1 L_k6_comp
          s_lshl_b32 s35, s3, 4
          s_lshl_b32 s36, s30, 7""")
    wt_dma_addr(k, 4, 5, "s35", "s36")
    k(f"""s_mul_i32 s40, s34, {44*1024}
          s_lshl_b32 s41, s33, 11
          s_add_u32 s42, s40, s41
          s_add_u32 s42, s42, {YF}
          s_lshl_b32 s43, s32, 12
          s_add_u32 s43, s43, s41
          s_lshl_b32 s37, s3, 11
          s_add_u32 s37, s37, 8192
          s_lshl_b32 s49, s31, 1
          s_add_u32 s49, s49, s30
          s_and_b32 s49, s49, 7
          s_waitcnt lgkmcnt(0)""")
    srd(k, 20, 4, 5, 688 * 1024); srd(k, 24, 12, 13, WS_USED)
    def issue(c):
        sl = (c % NS) * SLOT
        if c == 10: k("s_mov_b32 s49, 10")
        k(f"""s_add_u32 m0, s43, {sl}
              s_lshl_b32 s38, s49, 12
              s_add_u32 s38, s38, s42
              s_lshl_b32 s39, s49, 16
              buffer_load_dwordx4 v2, s[24:27], s38 offen lds
              buffer_load_dwordx4 v2, s[24:27], s38 offen offset:1024 lds
              s_add_u32 m0, s37, {sl}
              s_add_u32 s49, s49, 1
              buffer_load_dwordx4 v4, s[20:23], s39 offen lds
              s_add_u32 m0, s37, {sl + 1024}
              s_cmp_eq_u32 s49, 10
              s_cselect_b32 s49, 0, s49
              buffer_load_dwordx4 v5, s[20:23], s39 offen lds""")
    loader_loop(k, issue, 11, 4, DL, NS)
    k("s_endpgm\nL_k6_comp:")
    k(f"""s_lshl_b32 s46, s30, 1
          s_add_u32 s46, s46, s33          ; ct
          s_lshl_b32 s47, s46, 11
          s_lshl_b32 s45, s34, 15
          s_add_u32 s47, s47, s45
          s_add_u32 s47, s47, {HF}""")
    wt_tr_base_dorder(k, 72, "s33", 8192)
    k(f"""s_lshl_b32 s48, s32, 12
          v_add_u32 v75, s48, v2
          v_add_u32 v73, {3*SLOT}, v72
          v_add_u32 v74, {6*SLOT}, v72
          v_add_u32 v76, {3*SLOT}, v75
          v_add_u32 v77, {6*SLOT}, v75""")
    for r in range(16): k(f"v_mov_b32 v{32+r}, 0")
    k("s_waitcnt lgkmcnt(0)")
    srd(k, 16, 6, 7, 2048 * 1024); srd(k, 24, 12, 13, WS_USED)
    def nq(c): return 3 if c == 10 else 4
    def reads(c):
        s = c & 1; sl = c % NS; j = sl // 3; o = (sl % 3) * SLOT
        for q in range(nq(c)):
            k(f"""ds_read_b64_tr_b16 v[{FA(s,q)}:{FA(s,q)+1}], v{72+j} offset:{o+2048*q}
                  ds_read_b64_tr_b16 v[{FA(s,q)+2}:{FA(s,q)+3}], v{72+j} offset:{o+2048*q+1024}
                  ds_read_b128 {vr(FB(s,q))}, v{75+j} offset:{o+1024*q}""")
        if c == 5:
            k("""buffer_load_dwordx4 v[64:67], v2, s[24:27], s47 offen
                 buffer_load_dwordx4 v[68:71], v2, s[24:27], s47 offen offset:1024""")
    def step(c, q):
        s = c & 1
        k(f"v_mfma_f32_32x32x16_bf16 v[32:47], {vr(FA(s,q))}, {vr(FB(s,q))}, v[32:47]")
    compute_loop(k, reads, step, 11, nq)
    k.stamp(11)
    k("s_waitcnt vmcnt(0)")
    for i in range(8):
        k(f"""v_lshlrev_b32 v{48+2*i}, 16, v{64+i}
              v_and_b32 v{49+2*i}, 0xffff0000, v{64+i}""")
    for r in range(16): k(f"v_add_f32 v{32+r}, v{32+r}, v{48+r}")
    for i in range(8): k(f"v_cvt_pk_bf16_f32 v{48+i}, v{32+2*i}, v{33+2*i}")
    for f in range(2):
        k(f"""v_permlane32_swap_b32 v{48+4*f}, v{50+4*f}
              v_permlane32_swap_b32 v{49+4*f}, v{51+4*f}""")
    k(f"""v_and_b32 v12, 31, v1
          v_lshlrev_b32 v12, 10, v12
          v_lshl_add_u32 v12, v9, 4, v12
          s_lshl_b32 s46, s46, 6
          s_add_u32 s46, s46, s45
          buffer_store_dwordx4 v[48:51], v12, s[16:19], s46 offen
          buffer_store_dwordx4 v[52:55], v12, s[16:19], s46 offen offset:32""")
    k(f"L_{k.name}_end:\ns_endpgm")
    return k, (256, 512, NS * SLOT)
```

```python
from common import *
from k3 import *
from g16 import *
from k4 import GC1, GC2
import os
LSC = os.environ.get('LSC', '')
MAPC = int(os.environ.get('MAPC', 0))
ZSC = os.environ.get('ZSC', 'sc1')
PT = int(os.environ.get('PT', 0))
HW = int(os.environ.get('HW', 6))
PF2 = int(os.environ.get('PF2', 1))
WSL = int(os.environ.get('WSL', 1))
PFM = int(os.environ.get('PFM', 15))
PFSC = os.environ.get('PFSC', '')

def build_kb():
    k = Kern("attn_kernel", nvgpr=128)
    NW = 16
    KL, VL, XL = 0, 65536, 131072
    Q = 4; KFR = 8; VFR = [[12, 16], [20, 24]]; P = 28; S = [36, 52]; O = 68; C = 84
    vK, vV = 100, 101
    NCH, NIT = 4, 8
    prologue_ids(k, 256)
    k("s_load_dwordx2 s[12:13], s[0:1], 96")
    k("""s_and_b32 s29, s2, 7
         s_lshr_b32 s30, s2, 3
         s_lshl_b32 s29, s29, 2
         s_lshr_b32 s31, s30, 3
         s_add_u32 s29, s29, s31          ; rb64
         s_and_b32 s30, s30, 7            ; cg
         s_and_b32 s3, s28, 3
         s_and_b32 s32, s28, 1            ; rh""")
    k(f"""s_and_b32 s38, s28, 7            ; q idx
          s_lshr_b32 s39, s28, 3
          s_lshl_b32 s33, s29, 1
          s_add_u32 s33, s33, s32
          s_lshl_b32 s33, s33, 5
          s_lshl_b32 s34, s30, 2
          s_add_u32 s33, s33, s34
          s_lshr_b32 s34, s38, 1
          s_add_u32 s33, s33, s34
          s_lshl_b32 s46, s33, 10
          v_lshlrev_b32 v2, 4, v1          ; lane*16
          s_lshl_b32 s44, s39, 15          ; half*32768
          s_lshl_b32 s47, s38, 10
          s_add_u32 s47, s47, s44
          v_add_u32 v3, s47, v2
          v_lshlrev_b32 v102, 3, v1
          s_waitcnt lgkmcnt(0)""")
    srd(k, 24, 12, 13, WS_USED)
    k(f"""s_add_u32 s33, s46, {QF}
          s_mov_b32 s34, {KMAX}
          buffer_load_dwordx4 {vr(Q)}, v2, s[24:27], s33 offen
          buffer_load_dwordx2 v[104:105], v102, s[24:27], s34 offen""")
    def kvdma(c):
        k(f"""s_add_u32 m0, s47, {KL + 8192*c}
              s_mov_b32 s34, {KF + 8192*c}
              s_mov_b32 s35, {VF + 8192*c}
              buffer_load_dwordx4 v3, s[24:27], s34 offen lds
              s_add_u32 m0, s47, {VL + 8192*c}
              buffer_load_dwordx4 v3, s[24:27], s35 offen lds""")
    kvdma(0)
    k(f"""s_lshr_b32 s63, s29, 1
          s_lshl_b32 s63, s63, 11
          s_add_u32 s63, s63, {XID}
          s_cmp_eq_u32 s28, 4
          s_cbranch_scc0 L_kb_nopub
          s_and_b32 s34, s29, 1
          s_lshl_b32 s34, s34, 3
          s_add_u32 s34, s34, s30
          s_lshl_b32 s34, s34, 7
          s_add_u32 s34, s34, s63""")
    publish_xcc(k, "s34", 106)
    k("L_kb_nopub:")
    k(f"""v_add_u32 v{vK}, s44, v2
          v_lshrrev_b32 v103, 5, v1
          v_and_b32 v106, 15, v1
          v_lshl_add_u32 v103, v103, 4, v106
          v_lshlrev_b32 v103, 4, v103
          v_add_u32 v103, s44, v103
          v_add_u32 v{vV}, {VL}, v103
          s_mov_b32 s40, 0x0000ffff
          s_mov_b32 s41, 0x0000ffff
          v_and_b32 v106, 31, v1
          v_cmp_eq_u32 vcc, 16, v106
          v_mov_b32 v107, 0x3f803f80
          v_cndmask_b32 v107, 0, v107, vcc""")
    for i in range(16): k(f"v_mov_b32 v{12+i}, v107")
    for i in range(16): k(f"v_mov_b32 v{O+i}, 0\nv_mov_b32 v{C+i}, 0")
    for i in range(4): k(f"v_mov_b32 v{P+4+i}, 0")
    k(f"""s_waitcnt vmcnt(2)
          v_max_f32 v104, v104, v105
          v_dot2_f32_bf16 v106, v{Q}, v{Q}, 0
          v_dot2_f32_bf16 v106, v{Q+1}, v{Q+1}, v106
          v_dot2_f32_bf16 v106, v{Q+2}, v{Q+2}, v106
          v_dot2_f32_bf16 v106, v{Q+3}, v{Q+3}, v106""")
    for sh in (1, 2, 4, 8):
        k(f"v_max_f32_dpp v104, v104, v104 row_ror:{sh} row_mask:0xf bank_mask:0xf")
    k("""v_mov_b32 v105, v104
         v_permlane16_swap_b32 v104, v105
         v_max_f32 v104, v104, v105
         v_mov_b32 v105, v104
         v_permlane32_swap_b32 v104, v105
         v_max_f32 v104, v104, v105""")
    xhalf_add(k, 106, 105)
    k(f"""v_mul_f32 v104, v104, v106
          v_mov_b32 v107, {f32(3500.0)}
          v_cmp_nle_f32 vcc, v104, v107
          s_mov_b32 s42, 1
          s_mov_b32 s43, 3
          s_mov_b32 s36, 0
          s_waitcnt vmcnt(0)""")
    for c in range(1, NCH): kvdma(c)
    k(f"""s_cbranch_vccnz L_k2_slow
          s_barrier""")
    k.stamp(1)
    k("L_k2_start:")
    k(f"""ds_read_b128 {vr(KFR)}, v{vK}
          s_waitcnt lgkmcnt(0)
          v_mfma_f32_32x32x16_bf16 {vr(S[0],16)}, {vr(KFR)}, {vr(Q)}, {vr(C,16)}
          ds_read_b128 {vr(KFR)}, v{vK} offset:1024
          s_mov_b64 exec, s[40:41]
          ds_read_b128 {vr(VFR[0][0])}, v{vV}
          ds_read_b128 {vr(VFR[0][1])}, v{vV} offset:512
          s_mov_b64 exec, -1
          s_nop 7""")
    k("L_k2_loop:")
    k(f"""s_cmp_eq_u32 s36, s42
          s_cbranch_scc1 L_k2_st1
          s_cmp_eq_u32 s36, s43
          s_cbranch_scc1 L_k2_st3
          s_cmp_eq_u32 s36, 6
          s_cbranch_scc1 L_k2_st6""")
    k("L_k2_body:")
    for u in range(4):
        s = S[u & 1]; sn = S[(u + 1) & 1]; vf = VFR[u & 1]; vn = VFR[(u + 1) & 1]
        k(f"s_setprio {3-u}")
        qk = f"""s_waitcnt lgkmcnt(2)
              v_mfma_f32_32x32x16_bf16 {vr(sn,16)}, {vr(KFR)}, {vr(Q)}, {vr(C,16)}
              ds_read_b128 {vr(KFR)}, v{vK} offset:{1024*(u+2)}"""
        vrd = f"""s_mov_b64 exec, s[40:41]
              ds_read_b128 {vr(vn[0])}, v{vV} offset:{1024*(u+1)}
              ds_read_b128 {vr(vn[1])}, v{vV} offset:{1024*(u+1)+512}
              s_mov_b64 exec, -1"""
        pva = f"v_mfma_f32_32x32x16_bf16 {vr(O,16)}, {vr(vf[0])}, {vr(P)}, {vr(O,16)}"
        pvb_prev = f"v_mfma_f32_32x32x16_bf16 {vr(O,16)}, {vr(vn[1])}, {vr(P+4)}, {vr(O,16)}"
        E = lambda i: f"v_exp_f32 v{s+i}, v{s+i}"
        Cv = lambda j: f"v_cvt_pk_bf16_f32 v{P+j}, v{s+2*j}, v{s+2*j+1}"
        k(E(0)); k(E(1))
        k(pvb_prev); k(vrd)
        k(E(2)); k(E(3)); k(Cv(0)); k(E(4)); k(E(5)); k(Cv(1))
        k(qk)
        k(E(6)); k(E(7)); k(Cv(2)); k(E(8)); k(E(9)); k(Cv(3)); k(E(10)); k(E(11))
        k(pva)
        k(Cv(4)); k(E(12)); k(E(13)); k(Cv(5)); k(E(14)); k(E(15)); k(Cv(6)); k(Cv(7))
    k(f"""v_add_u32 v{vK}, 4096, v{vK}
          v_add_u32 v{vV}, 4096, v{vV}
          s_add_u32 s36, s36, 1
          s_cmp_lt_u32 s36, {NIT}
          s_cbranch_scc1 L_k2_loop
          v_mfma_f32_32x32x16_bf16 {vr(O,16)}, {vr(VFR[1][1])}, {vr(P+4)}, {vr(O,16)}
          s_setprio 0""")
    k.stamp(2)
    k("""s_cmp_eq_u32 s28, 4
         s_cbranch_scc0 L_kb_nochk""")
    check_xcc(k, "s63", 16, "b", 106)
    k(f"""v_mov_b32 v107, {XL + 18432}
          ds_write_b32 v107, v106
          s_waitcnt lgkmcnt(0)
          L_kb_nochk:
          s_nop 3""")
    k(f"""s_mul_i32 s45, s38, 2304
          s_add_u32 s45, s45, {XL}
          v_add_u32 v103, s45, v2
          v_lshlrev_b32 v104, 2, v1
          v_add_u32 v104, s45, v104
          s_cmp_eq_u32 s39, 0
          s_cbranch_scc1 L_k2_fin
          ds_write_b128 v103, {vr(O)}
          ds_write_b128 v103, {vr(O+4)} offset:1024
          ds_write_b32 v104, v{O+8} offset:2048
          s_waitcnt vmcnt(0) lgkmcnt(0)
          s_barrier
          s_cmp_lt_u32 s28, 12
          s_cbranch_scc1 L_kb_loader
          s_endpgm""")
    k(f"""L_k2_st1:
          s_waitcnt vmcnt({2*NCH-4})
          s_barrier
          s_branch L_k2_body
          L_k2_st3:
          s_waitcnt vmcnt(0)
          s_barrier
          s_load_dwordx2 s[52:53], s[0:1], 56
          s_lshr_b32 s61, s2, 3
          s_lshl_b32 s61, s61, 4
          s_add_u32 s61, s61, s28
          v_lshlrev_b32 v108, 7, v1        ; lane*128
          s_and_b32 s37, s2, 7
          s_lshl_b32 s37, s37, 20
          s_lshl_b32 s61, s61, 13
          s_add_u32 s34, s61, {WPK}
          s_mov_b32 s54, {2048*4096}
          s_mov_b32 s55, 0x00020000
          s_waitcnt lgkmcnt(0)
          s_cmp_ge_u32 s61, {3*1024*1024}
          s_cbranch_scc0 L_k2_pf2
          s_add_u32 s37, s37, s61
          s_sub_u32 s37, s37, {3*1024*1024}
          buffer_load_dword v109, v108, s[52:55], s37 offen
          s_branch L_k2_body
          L_k2_pf2:
          buffer_load_dword v109, v108, s[24:27], s34 offen
          """)
    if PT:
        k(f"""s_cmp_ge_u32 s28, 8
              s_cbranch_scc1 L_k2_body
              v_and_b32 v110, 7, v1
              v_lshlrev_b32 v110, 7, v110
              s_add_u32 s34, s46, {OF}
              buffer_load_dword v109, v110, s[24:27], s34 offen
              s_lshl_b32 s34, s29, 2
              s_add_u32 s34, s34, s3
              s_lshl_b32 s34, s34, 4
              s_lshl_b32 s35, s30, 1
              s_add_u32 s34, s34, s35
              s_lshr_b32 s35, s28, 2
              s_add_u32 s34, s34, s35
              s_lshl_b32 s35, s34, 10
              s_add_u32 s35, s35, {HF}
              buffer_load_dword v109, v110, s[24:27], s35 offen
              s_lshl_b32 s35, s34, 7
              s_add_u32 s35, s35, {HSTAT}
              v_mov_b32 v111, 0
              buffer_load_dword v109, v111, s[24:27], s35 offen
              s_and_b32 s34, s29, 1
              s_lshl_b32 s34, s34, 3
              s_add_u32 s34, s34, s30
              s_mul_i32 s34, s34, 3
              s_min_u32 s34, s34, 40
              s_lshr_b32 s35, s29, 1
              s_lshl_b32 s35, s35, 2
              s_add_u32 s35, s35, s3
              s_mul_i32 s35, s35, 44
              s_add_u32 s35, s35, s34
              s_lshl_b32 s35, s35, 10
              s_add_u32 s35, s35, {Z1}
              v_min_u32 v111, 23, v1
              v_lshlrev_b32 v111, 7, v111
              buffer_load_dword v109, v111, s[24:27], s35 offen""")
    k("s_branch L_k2_body")
    k(f"""L_k2_st6:
          s_lshl_b32 s34, s30, 16
          s_lshl_b32 s35, s28, 12
          s_add_u32 s34, s34, s35
          s_add_u32 s34, s34, {WOP}
          s_lshr_b32 s37, s28, 2
          s_lshl_b32 s37, s37, 15
          s_lshl_b32 s35, s3, 12
          s_add_u32 m0, s37, s35
          s_waitcnt lgkmcnt(0)
          s_barrier""")
    for j in range(4):
        k(f"buffer_load_dwordx4 v2, s[24:27], s34 offen offset:{1024*j} lds")
    k("s_branch L_k2_body")
    k(f"""L_k2_slow:
          s_waitcnt vmcnt(0)
          s_barrier
          s_barrier
          s_barrier
          s_mov_b32 s42, 99
          s_mov_b32 s43, 99
          v_mov_b32 v104, 0xff800000
          v_mov_b32 v103, v2
          s_mov_b32 s37, 0
          L_k2_mx:
          ds_read_b128 {vr(KFR)}, v103
          s_waitcnt lgkmcnt(0)
          v_mfma_f32_32x32x16_bf16 {vr(S[0],16)}, {vr(KFR)}, {vr(Q)}, 0
          v_add_u32 v103, 1024, v103""")
    for i in range(8):
        k(f"v_max3_f32 v104, v{S[0]+2*i}, v{S[0]+2*i+1}, v104")
    k(f"""s_add_u32 s37, s37, 1
          s_cmp_lt_u32 s37, 64
          s_cbranch_scc1 L_k2_mx
          v_mov_b32 v105, v104
          v_permlane32_swap_b32 v104, v105
          v_max_f32 v104, v104, v105""")
    for i in range(16): k(f"v_sub_f32 v{C+i}, 0, v104")
    k(f"""s_nop 1
          s_branch L_k2_start""")
    k(f"""L_k2_fin:
          s_load_dwordx2 s[4:5], s[0:1], 0
          s_waitcnt vmcnt(0)
          s_barrier
          ds_read_b128 {vr(S[0])}, v103
          ds_read_b128 {vr(S[0]+4)}, v103 offset:1024
          ds_read_b32 v{S[0]+8}, v104 offset:2048
          v_mov_b32 v107, {XL + 18432}
          ds_read_b32 v106, v107
          s_waitcnt lgkmcnt(0)
          v_readfirstlane_b32 s63, v106""")
    for r in range(9): k(f"v_add_f32 v{O+r}, v{O+r}, v{S[0]+r}")
    k(f"""v_mov_b32 v104, v{O+8}
          v_permlane32_swap_b32 v{O+8}, v104
          v_rcp_f32 v104, v{O+8}""")
    for r in range(8): k(f"v_mul_f32 v{O+r}, v104, v{O+r}")
    for r in range(4): k(f"v_cvt_pk_bf16_f32 v{P+r}, v{O+2*r}, v{O+2*r+1}")
    k(f"""s_add_u32 s33, s46, {OF}
          """)
    hstore(k, f"buffer_store_dwordx4 {vr(P)}, v2, s[24:27], s33 offen")
    k("s_barrier")
    lane_fields(k)
    k(f"""s_lshl_b32 s33, s29, 13
          s_add_u32 s33, s33, {OFLAG}
          s_lshl_b32 s34, s32, 12
          s_add_u32 s34, s34, s33
          s_lshl_b32 s35, s30, 9
          s_add_u32 s34, s34, s35
          s_lshr_b32 s35, s28, 1
          s_lshl_b32 s35, s35, 7
          s_add_u32 s34, s34, s35
          s_and_b32 s35, s28, 2
          s_lshl_b32 s35, s35, 11
          s_add_u32 s33, s33, s35
          s_and_b32 s35, s28, 4
          s_lshl_b32 s35, s35, 9
          s_add_u32 s33, s33, s35""")
    k(f"""s_lshr_b32 s61, s28, 2           ; kh
          s_lshl_b32 s36, s29, 2
          s_add_u32 s36, s36, s3           ; rb16
          s_lshl_b32 s37, s30, 1
          s_add_u32 s37, s37, s61
          v_and_b32 v14, 15, v1
          v_lshlrev_b32 v3, 10, v14
          v_lshl_add_u32 v3, v8, 3, v3
          s_lshl_b32 s44, s36, 14
          s_lshl_b32 s45, s37, 6
          s_add_u32 s44, s44, s45""")
    srd(k, 16, 4, 5, 2048 * 1024)
    set_flag2(k, "s34")
    k.stamp(3)
    k("""buffer_load_dwordx2 v[96:97], v3, s[16:19], s44 offen
         buffer_load_dwordx2 v[98:99], v3, s[16:19], s44 offen offset:32
         s_lshl_b32 s45, s61, 13
         v_add_u32 v4, s45, v2
         v_add_u32 v5, 65536, v4""")
    act32_voff(k, 3, "s32")
    k(f"""s_lshr_b32 s46, s36, 1
          s_lshl_b32 s46, s46, 15
          s_lshl_b32 s47, s61, 14
          s_add_u32 s46, s46, s47
          s_add_u32 s46, s46, {OF}""")
    for r in range(16): k(f"v_mov_b32 v{16+r}, 0")
    woff = lambda s, u: (4 + (u >> 1), (u & 1) * 32768 + s * 1024)
    gemm64_reads(k, 0, woff)
    poll_n(k, "s33", 16, "o")
    k.stamp(4)
    for s in range(8):
        if s % 2 == 0: k(f"s_add_u32 s47, s46, {s*2048}")
        k(f"buffer_load_dwordx4 {vr(64+4*s)}, v3, s[24:27], s47 offen offset:{2048*(s&1)} {LSC}")
    gemm64(k, 8, woff, 64)
    k.stamp(5)
    k("s_barrier")
    ksplit_exchange(k, 0, "s28", tag="b")
    k(f"""v_lshlrev_b32 v40, 16, v96
          v_and_b32 v41, 0xffff0000, v96
          v_lshlrev_b32 v42, 16, v97
          v_and_b32 v43, 0xffff0000, v97
          v_lshlrev_b32 v44, 16, v98
          v_and_b32 v45, 0xffff0000, v98
          v_lshlrev_b32 v46, 16, v99
          v_and_b32 v47, 0xffff0000, v99
          s_lshl_b32 s47, s36, 4
          s_add_u32 s47, s47, s37
          s_lshl_b32 s46, s47, 7
          s_add_u32 s33, s46, {HFLAG}
          s_add_u32 s46, s46, {HSTAT}
          s_lshl_b32 s47, s47, 10
          s_add_u32 s47, s47, {HF}""")
    for i in range(8): k(f"v_add_f32 v{16+i}, v{16+i}, v{40+i}")
    k("s_waitcnt lgkmcnt(0)")
    for i in range(8): k(f"v_add_f32 v{16+i}, v{16+i}, v{32+i}")
    for i in range(4): k(f"v_cvt_pk_bf16_f32 v{48+i}, v{16+2*i}, v{17+2*i}")
    hstore(k, "buffer_store_dwordx4 v[48:51], v2, s[24:27], s47 offen")
    k("""v_mov_b32 v54, 0x3f803f80
         v_dot2_f32_bf16 v52, v48, v54, 0
         v_dot2_f32_bf16 v53, v48, v48, 0""")
    for i in range(1, 4):
        k(f"""v_dot2_f32_bf16 v52, v{48+i}, v54, v52
              v_dot2_f32_bf16 v53, v{48+i}, v{48+i}, v53""")
    xhalf_add(k, 52, 12); xhalf_add(k, 53, 13)
    x16_add(k, 52, 12); x16_add(k, 53, 13)
    k("""v_lshlrev_b32 v12, 3, v14
         s_mov_b64 exec, 0xffff""")
    hstore(k, "buffer_store_dwordx2 v[52:53], v12, s[24:27], s46 offen")
    k(f"""s_mov_b64 exec, -1
          s_and_b32 s31, s29, 1
          s_lshl_b32 s31, s31, 3
          s_add_u32 s30, s30, s31          ; g
          s_lshr_b32 s29, s29, 1           ; rb128
          s_mul_i32 s31, s30, 3
          s_min_u32 s31, s31, 40           ; u0
          s_lshl_b32 s36, s29, 3
          s_add_u32 s36, s36, s28
          s_lshl_b32 s62, s36, 11
          s_add_u32 s62, s62, {HFLAG}
          s_lshl_b32 s47, s36, 11
          s_add_u32 s47, s47, {ZSTAT}""")
    ACC, WF, H = 16, 40, 64
    k(f"""v_mov_b32 v4, v2
          v_add_u32 v5, 65536, v4
          v_add_u32 v6, 131072, v4
          v_lshlrev_b32 v7, 3, v14
          v_lshl_add_u32 v7, v8, 9, v7      ; n*8 + g*512""")
    set_flag2(k, "s33")
    k.stamp(6)
    k(f"""s_cmp_eq_u32 s30, 15
          s_cbranch_scc0 L_k4_work
          v_mov_b32 v16, 0
          v_mov_b32 v17, 0
          v_lshlrev_b32 v12, 3, v14
          s_add_u32 s47, s47, {15*128}
          buffer_store_dwordx2 v[16:17], v12, s[24:27], s47 offen sc1
          s_endpgm
          L_k4_work:""")
    UP = [("v4", 16384), ("v4", 49152), ("v5", 16384), ("v5", 49152), ("v6", 0), ("v6", 16384)]
    def wreads(s, half):
        for u in range(3):
            b, o = UP[3*half + u]; f = WF + 12*half + 4*u
            k(f"ds_read_b128 {vr(f)}, {b} offset:{o + 1024*s}")
    for r in range(24): k(f"v_mov_b32 v{ACC+r}, 0")
    wreads(0, 0)
    k(f"""s_lshl_b32 s46, s36, 14
          s_add_u32 s46, s46, {HF}
          s_lshl_b32 s45, s36, 11
          s_add_u32 s45, s45, {HSTAT}
          """)
    poll_n(k, "s62", 16, "h")
    k.stamp(7)
    q = VQ(k); hl = []
    for s in range(16):
        def f(s=s):
            if s % 4 == 0: k(f"s_add_u32 s44, s46, {s*1024}")
            k(f"buffer_load_dwordx4 {vr(H+4*s)}, v2, s[24:27], s44 offen offset:{1024*(s&3)} {LSC}")
        hl.append(f)
    for s in range(HW): q.issue(f"h{s}", 1, hl[s])
    def sl():
        for i in range(4):
            k(f"buffer_load_dwordx2 v[{8+2*i}:{9+2*i}], v7, s[24:27], s45 offen offset:{128*i} {LSC}")
    CS2, CS1, MR = 64, 72, 96
    for s in range(16):
        wreads(s, 1)
        q.wait(f"h{s}", extra=" lgkmcnt(3)")
        for u in range(3):
            k(f"v_mfma_f32_16x16x32_bf16 {vr(ACC+4*u)}, {vr(H+4*s)}, {vr(WF+4*u)}, {vr(ACC+4*u)}")
        if s + HW < 16: q.issue(f"h{s+HW}", 1, hl[s+HW])
        if s == 7: q.issue("st", 4, sl)
        if s < 15:
            wreads(s + 1, 0); k("s_waitcnt lgkmcnt(3)")
        else:
            k("s_waitcnt lgkmcnt(0)")
        for u in range(3):
            k(f"v_mfma_f32_16x16x32_bf16 {vr(ACC+12+4*u)}, {vr(WF+12+4*u)}, {vr(H+4*s)}, {vr(ACC+12+4*u)}")
        if s == 6:
            k.stamp(8)
        if s == 8:
            def cs():
                k(f"""v_and_b32 v3, 15, v1
                      v_lshlrev_b32 v3, 2, v3
                      s_lshl_b32 s38, s31, 6
                      s_add_u32 s38, s38, {CSUM}
                      s_add_u32 s39, s38, {688*4}""")
                for p in range(2):
                    for u in range(3):
                        k(f"buffer_load_dword v{CS2+3*p+u}, v3, s[24:27], s39 offen offset:{64*u}")
                    k("s_add_u32 s39, s39, 8192")
                k("v_lshrrev_b32 v3, 4, v1\nv_lshlrev_b32 v3, 4, v3")
                for p in range(2):
                    for u in range(3):
                        k(f"buffer_load_dwordx4 {vr(CS1+12*p+4*u)}, v3, s[24:27], s38 offen offset:{64*u}")
                    k("s_add_u32 s38, s38, 8192")
            q.issue("cs", 12, cs)
        if s == 12:
            q.wait("st")
            k("""v_add_f32 v8, v8, v10
                 v_add_f32 v9, v9, v11
                 v_add_f32 v12, v12, v14
                 v_add_f32 v13, v13, v15
                 v_add_f32 v8, v8, v12
                 v_add_f32 v9, v9, v13""")
            xhalf_add(k, 8, 12); xhalf_add(k, 9, 13)
        if s == 13:
            x16_add(k, 8, 12); x16_add(k, 9, 13)
            ln_stats(k, 8, 9, 512, 12)
        if s == 15:
            for r in range(4):
                k(f"""v_add_u32 v12, {4*r}, v3
                      ds_bpermute_b32 v{MR+r}, v12, v8
                      ds_bpermute_b32 v{MR+4+r}, v12, v9""")
    k.stamp(9)
    T = 40; z2r = [ACC + i for i in range(12)]; z1r = [ACC + 12 + i for i in range(12)]
    k(f"""v_mov_b32 v15, {f32(GC2)}
          v_and_b32 v14, 15, v1
          s_waitcnt vmcnt(0)""")
    for u in range(3): k(f"v_add_f32 v{CS2+u}, v{CS2+u}, v{CS2+3+u}")
    k("s_waitcnt lgkmcnt(0)")
    for i, a in enumerate(z2r): k(f"v_fma_f32 v{a}, -v{MR+i%4}, v{CS2+i//4}, v{a}")
    for i, a in enumerate(z2r): k(f"v_mul_f32 v{a}, v{MR+4+i%4}, v{a}")
    for i, a in enumerate(z2r): k(f"v_mul_f32 v{T+i}, v{a}, v{a}")
    for i, a in enumerate(z2r): k(f"v_fmaak_f32 v{T+i}, v15, v{T+i}, {f32(GC1)}")
    for i, a in enumerate(z2r): k(f"v_mul_f32 v{T+i}, v{T+i}, v{a}")
    for i, a in enumerate(z2r): k(f"v_exp_f32 v{T+i}, v{T+i}")
    for i, a in enumerate(z2r): k(f"v_add_f32 v{T+i}, 1.0, v{T+i}")
    for i, a in enumerate(z2r): k(f"v_rcp_f32 v{T+i}, v{T+i}")
    for i, a in enumerate(z2r): k(f"v_mul_f32 v{a}, v{a}, v{T+i}")
    SQ = 52
    for r in range(4):
        k(f"v_mov_b32 v{SQ+2*r}, v{ACC+8+r}\nv_mul_f32 v{SQ+2*r+1}, v{ACC+8+r}, v{ACC+8+r}")
    k("""s_cmp_eq_u32 s30, 14
         s_cbranch_scc1 L_k4_red""")
    for u in range(2):
        for r in range(4):
            a = ACC + 4*u + r
            k(f"v_add_f32 v{SQ+2*r}, v{SQ+2*r}, v{a}\nv_fmac_f32 v{SQ+2*r+1}, v{a}, v{a}")
    k("s_nop 0\nL_k4_red:")
    for i in range(4): k(f"v_add_f32_dpp v{SQ+i}, v{SQ+i}, v{SQ+i} row_ror:8 row_mask:0xf bank_mask:0x3")
    for i in range(4): k(f"v_add_f32_dpp v{SQ+i}, v{SQ+4+i}, v{SQ+4+i} row_ror:8 row_mask:0xf bank_mask:0xc")
    for m_ in ("row_half_mirror", "quad_perm:[1,0,3,2]", "quad_perm:[2,3,0,1]"):
        for i in range(4): k(f"v_add_f32_dpp v{SQ+i}, v{SQ+i}, v{SQ+i} {m_} row_mask:0xf bank_mask:0xf")
    k(f"""s_mov_b32 s49, -2
          s_lshl_b32 s48, s30, 7
          s_add_u32 s48, s48, s47
          v_lshlrev_b32 v12, 1, v1           ; (l>>3)*16 for lanes l%8==0""")
    for j in range(4): k(f"v_min_u32 v{SQ+j}, s49, v{SQ+j}")
    k(f"""s_mov_b32 s50, 0x01010101
          s_mov_b32 s51, 0x01010101
          s_mov_b64 exec, s[50:51]""")
    hstore(k, f"buffer_store_dwordx4 {vr(SQ)}, v12, s[24:27], s48 offen")
    k("s_mov_b64 exec, -1")
    k.stamp(10)
    k(f"""v_mul_f32 v10, {f32(GC1)}, v9
          v_mul_f32 v11, v9, v9
          v_mul_f32 v11, v11, v9
          v_mul_f32 v11, {f32(GC2)}, v11
          v_rcp_f32 v13, v9""")
    for i in range(12): k(f"v_add_f32 v{CS1+i}, v{CS1+i}, v{CS1+12+i}")
    for i, a in enumerate(z1r): k(f"v_fma_f32 v{a}, -v8, v{CS1+i}, v{a}")
    for i, a in enumerate(z1r): k(f"v_mul_f32 v{T+i}, v{a}, v{a}")
    for i, a in enumerate(z1r): k(f"v_fma_f32 v{T+i}, v{T+i}, v11, v10")
    for i, a in enumerate(z1r): k(f"v_mul_f32 v{T+i}, v{T+i}, v{a}")
    for i, a in enumerate(z1r): k(f"v_exp_f32 v{T+i}, v{T+i}")
    for i, a in enumerate(z1r): k(f"v_fma_f32 v{T+i}, v{T+i}, v13, v13")
    for i, a in enumerate(z1r): k(f"v_rcp_f32 v{T+i}, v{T+i}")
    for i, a in enumerate(z1r): k(f"v_mul_f32 v{a}, v{a}, v{T+i}")
    k(f"""v_lshrrev_b32 v10, 4, v1           ; g
          v_and_b32 v11, 1, v10
          v_lshrrev_b32 v10, 1, v10
          v_lshlrev_b32 v12, 9, v11
          v_lshl_add_u32 v12, v14, 4, v12
          v_lshl_add_u32 v12, v10, 3, v12
          v_lshlrev_b32 v6, 9, v10
          v_lshl_add_u32 v6, v14, 4, v6
          v_lshl_add_u32 v6, v11, 3, v6
          s_lshr_b32 s44, s36, 1
          s_mul_i32 s44, s44, 44
          s_add_u32 s44, s44, s31
          s_lshl_b32 s44, s44, 10
          s_and_b32 s45, s36, 1
          s_lshl_b32 s45, s45, 8
          s_add_u32 s44, s44, s45
          s_add_u32 s44, s44, {Z1}
          s_mov_b32 s54, 0""")
    for u in range(3):
        a = ACC + 12 + 4*u; p = 64 + 2*u
        k(f"""v_cvt_pk_bf16_f32 v{p}, v{a}, v{a+1}
              v_cvt_pk_bf16_f32 v{p+1}, v{a+2}, v{a+3}
              buffer_store_dwordx2 v[{p}:{p+1}], v12, s[24:27], s44 offen offset:{1024*u} {ZSC}""")
    k("L_k4_poll:")
    for i in range(4):
        k(f"buffer_load_dwordx2 v[{72+2*i}:{73+2*i}], v7, s[24:27], s47 offen offset:{128*i} sc1")
    k(f"""s_waitcnt vmcnt(0)
          v_max3_u32 v12, v72, v73, v74
          v_max3_u32 v13, v75, v76, v77
          v_max3_u32 v12, v12, v78, v79
          v_max_u32 v12, v12, v13
          v_cmp_eq_u32 vcc, -1, v12
          s_add_u32 s54, s54, 1
          s_cmp_gt_u32 s54, 0x40000
          s_cbranch_scc1 L_k4_go
          s_cbranch_vccz L_k4_go
          s_sleep {SLEEP}
          s_branch L_k4_poll
          L_k4_go:""")
    k.stamp(11)
    k("""v_add_f32 v72, v72, v74
         v_add_f32 v73, v73, v75
         v_add_f32 v76, v76, v78
         v_add_f32 v77, v77, v79
         v_add_f32 v72, v72, v76
         v_add_f32 v73, v73, v77""")
    xhalf_add(k, 72, 12); xhalf_add(k, 73, 13)
    x16_add(k, 72, 12); x16_add(k, 73, 13)
    ln_stats(k, 72, 73, 688, 12)
    k("v_mul_f32 v72, -v72, v73")
    for r in range(4):
        k(f"""v_add_u32 v12, {4*r}, v3
              ds_bpermute_b32 v{MR+r}, v12, v72
              ds_bpermute_b32 v{MR+4+r}, v12, v73""")
    k(f"""s_lshl_b32 s45, s36, 10
          s_add_u32 s45, s45, {Z2F}
          s_waitcnt lgkmcnt(0)""")
    for i, a in enumerate(z2r): k(f"v_fma_f32 v{a}, v{a}, v{MR+4+i%4}, v{MR+i%4}")
    for u in range(3):
        a = ACC + 4*u; p = 80 + 2*u
        k(f"""s_add_u32 s44, s31, {u}
              s_lshr_b32 s46, s44, 1
              s_lshl_b32 s46, s46, 17
              s_and_b32 s44, s44, 1
              s_lshl_b32 s44, s44, 8
              s_add_u32 s44, s44, s46
              s_add_u32 s44, s44, s45
              v_cvt_pk_bf16_f32 v{p}, v{a}, v{a+1}
              v_cvt_pk_bf16_f32 v{p+1}, v{a+2}, v{a+3}
              buffer_store_dwordx2 v[{p}:{p+1}], v6, s[24:27], s44 offen {ZSC}""")
    k("s_endpgm")
    k(f"""L_kb_loader:
          s_and_b32 s31, s29, 1
          s_lshl_b32 s31, s31, 3
          s_add_u32 s30, s30, s31          ; g
          s_mul_i32 s31, s30, 3
          s_min_u32 s31, s31, 40           ; u0
          s_lshl_b32 s40, s31, 14
          s_lshl_b32 s38, s3, 12
          s_add_u32 s40, s40, s38
          s_add_u32 s40, s40, {WPK}
          s_barrier""")
    for i, pos in enumerate([16384, 49152, 81920, 114688, 131072, 147456]):
        src = (43 + i) * 16384 if i < 3 else (i - 3) * 16384
        k(f"""s_add_u32 m0, s38, {pos}
              s_add_u32 s42, s40, {src}""")
        for j in range(4):
            k(f"buffer_load_dwordx4 v2, s[24:27], s42 offen offset:{1024*j} lds")
            if WSL: k(f"s_sleep {WSL}")
    k.stamp(3)
    k(f"""s_load_dwordx2 s[52:53], s[0:1], 56
          s_lshr_b32 s61, s2, 3
          s_lshl_b32 s61, s61, 2
          s_add_u32 s61, s61, s3
          s_lshl_b32 s61, s61, 13
          s_and_b32 s37, s2, 7
          s_lshl_b32 s37, s37, 20
          s_add_u32 s37, s37, s61
          v_lshlrev_b32 v108, 7, v1
          s_mov_b32 s54, {2048*4096}
          s_mov_b32 s55, 0x00020000
          s_waitcnt vmcnt(0) lgkmcnt(0)""")
    if PF2: k("buffer_load_dword v109, v108, s[52:55], s37 offen")
    k.stamp(4)
    k("s_endpgm")
    k(f"L_{k.name}_end:\ns_endpgm")
    return k, (256, 1024, 163840)
```

```python
from common import *
from k3 import lane_fields
from g16 import *
import os
EX = os.environ.get('K5_EX', '')
PT = int(os.environ.get('PT', 0))
ROT = int(os.environ.get('K5_ROT', 0))
PF0 = int(os.environ.get('K5_PF0', 0))
PFW = int(os.environ.get('K5_PFW', 1))
AD = int(os.environ.get('AD', 4))
BD = int(os.environ.get('BD', 6))
WB = int(os.environ.get('WB', 28))
NS = 8
WL = 65536
XS = 0
FW = 156 * 1024

def build_kc():
    k = Kern("wsp_kernel", nvgpr=256)
    prologue_ids(k, 256)
    k(f"""s_load_dwordx4 s[4:7], s[0:1], 56
          s_load_dwordx4 s[8:11], s[0:1], 72
          s_load_dwordx2 s[12:13], s[0:1], 96
          s_and_b32 s29, s2, 7
          s_lshr_b32 s58, s2, 3            ; j
          s_and_b32 s30, s58, 7            ; gi
          s_lshl_b32 s29, s29, 2
          s_lshr_b32 s31, s58, 3
          s_add_u32 s29, s29, s31          ; tb
          s_and_b32 s3, s28, 3
          s_and_b32 s32, s28, 1
          s_lshr_b32 s61, s28, 2           ; kh (K6)
          s_mul_i32 s34, s30, 3
          s_min_u32 s34, s34, 19           ; tile0
          s_lshl_b32 s62, s29, 12
          s_add_u32 s62, s62, {YFLAG}
          s_add_u32 s52, s34, s28
          s_lshl_b32 s52, s52, 7
          s_add_u32 s52, s52, s62
          s_mul_i32 s53, s61, {11*128}
          s_add_u32 s62, s62, s53
          v_lshlrev_b32 v2, 4, v1
          s_mul_i32 s58, s58, {ROT}
          s_and_b32 s58, s58, 31""")
    lane_fields(k)
    k(f"""s_cmp_lt_u32 s28, 3
          s_cbranch_scc1 L_k5_comp
          s_cmp_eq_u32 s28, 3
          s_cbranch_scc1 L_kc_help
          s_lshl_b32 s35, s29, {0 if 'sb' in EX else 6}
          s_lshl_b32 s36, s3, 4
          s_add_u32 s35, s35, s36
          v_lshrrev_b32 v12, 3, v1
          v_add_u32 v5, s35, v12
          v_lshlrev_b32 v5, 12, v5
          v_and_b32 v13, 7, v1
          v_xor_b32 v14, v13, v8
          v_lshl_add_u32 v5, v14, 4, v5
          v_xor_b32 v6, 64, v5
          v_add_u32 v6, {8*4096}, v6
          s_lshl_b32 s37, s3, 11""")
    k(f"""s_lshl_b32 s36, s30, 2
          s_add_u32 s36, s36, s3
          s_mul_i32 s36, s36, 24576
          s_add_u32 s36, s36, {WUP}
          s_mul_i32 s35, s3, 22528
          s_add_u32 s35, s35, {WL}
          s_waitcnt lgkmcnt(0)""")
    srd(k, 16, 4, 5, 0 if 'nob' in EX else 2048 * 4096); srd(k, 24, 12, 13, WS_USED)
    q = VQ(k)
    def bi(c):
        q.issue(f"b{c}", 2, lambda: k(f"""s_add_u32 m0, s37, {(c % NS)*8192}
              s_lshl_b32 s41, s58, 7
              s_add_u32 s58, s58, 1
              s_and_b32 s58, s58, 31
              buffer_load_dwordx4 v5, s[16:19], s41 offen lds
              s_add_u32 m0, s37, {(c % NS)*8192 + 1024}
              buffer_load_dwordx4 v6, s[16:19], s41 offen lds"""))
    def wi(c):
        q.issue(f"w{c}", 2, lambda: k(f"""s_add_u32 m0, s35, {c*2048}
              s_add_u32 s39, s36, {c*2048}
              buffer_load_dwordx4 v2, s[24:27], s39 offen lds
              buffer_load_dwordx4 v2, s[24:27], s39 offen offset:1024 lds"""))
    nxt = 0
    for _ in range(3): bi(nxt); nxt += 1
    for b in range(32):
        q.wait(f"b{b}"); k("s_barrier")
        for _ in range(2):
            if nxt < 32 and nxt - NS <= b - 1 and nxt - b <= BD: bi(nxt); nxt += 1
        if b >= WB:
            for c in range(3*(b-WB), min(3*(b-WB)+3, 11)): wi(c)
    k("s_waitcnt vmcnt(0)")
    k.stamp(3)
    k("s_branch L_k6")
    k(f"""L_kc_help:
          s_lshl_b32 s35, s29, 10
          s_add_u32 s35, s35, {XIDC}
          s_lshl_b32 s36, s30, 7
          s_add_u32 s36, s36, s35
          s_waitcnt lgkmcnt(0)""")
    srd(k, 24, 12, 13, WS_USED)
    publish_xcc(k, "s36", 20)
    if PT:
        k(f"""v_min_u32 v22, 47, v1
              v_lshlrev_b32 v22, 7, v22
              s_mul_i32 s39, s29, 88
              s_lshl_b32 s42, s34, 1
              s_add_u32 s39, s39, s42
              s_lshl_b32 s39, s39, 10
              s_add_u32 s39, s39, {YF}
              s_add_u32 s42, s39, {44*1024}
              buffer_load_dword v23, v22, s[24:27], s39 offen
              buffer_load_dword v23, v22, s[24:27], s42 offen""")
    srd(k, 16, 4, 5, 2048 * 4096)
    k(f"""s_lshr_b32 s40, s2, 3
          s_mul_i32 s41, s40, 44
          v_min_u32 v22, 43, v1
          v_add_u32 v22, s41, v22           ; L
          v_lshrrev_b32 v23, 6, v22
          v_lshlrev_b32 v23, 17, v23
          v_and_b32 v22, 63, v22
          v_lshl_add_u32 v22, v22, 7, v23
          v_and_b32 v23, 15, v1
          s_lshl_b32 s41, s40, 3
          s_and_b32 s42, s2, 7
          s_lshl_b32 s42, s42, 8
          s_add_u32 s41, s41, s42
          v_lshrrev_b32 v24, 1, v23
          v_add_u32 v24, s41, v24
          v_lshlrev_b32 v24, 12, v24
          v_and_b32 v23, 1, v23
          v_lshl_add_u32 v23, v23, 7, v24
          s_mov_b32 s43, {Z2F}
          s_mov_b32 s44, 0""")
    def pf():
        k("buffer_load_dword v25, v22, s[24:27], s43 offen")
        if PFW: k("buffer_load_dword v25, v23, s[16:19], s44 offen")
        k("s_add_u32 s43, s43, 8192\ns_add_u32 s44, s44, 256")
    for _ in range(PF0): pf()
    k(f"""s_mul_i32 s45, s40, 24576
          s_add_u32 s45, s45, {WUP}
          v_lshlrev_b32 v26, 7, v1""")
    k(f"""s_mov_b32 s55, 0
         L_kc_hb:
         s_bitcmp1_b32 s55, 0
         s_cbranch_scc1 L_kc_nopf
         s_cmp_ge_u32 s44, 4096
         s_cbranch_scc1 L_kc_nopf""")
    if PF0: pf()
    k("""L_kc_nopf:
         s_barrier
         s_add_u32 s55, s55, 1
         s_cmp_gt_u32 s55, 12
         s_cbranch_scc1 L_kc_nw
         s_and_b32 s46, s55, 3
         s_cbranch_scc1 L_kc_nw
         buffer_load_dword v25, v26, s[24:27], s45 offen
         s_add_u32 s45, s45, 8192
         L_kc_nw:
         s_cmp_eq_u32 s55, 28
         s_cbranch_scc0 L_kc_hc""")
    check_xcc(k, "s35", 8, "c", 20)
    k(f"""v_mov_b32 v21, {FW}
          ds_write_b32 v21, v20
          s_waitcnt lgkmcnt(0)
          L_kc_hc:
          s_cmp_lt_u32 s55, 32
          s_cbranch_scc1 L_kc_hb
          s_branch L_k6""")
    ACC = 16; BF = 48; A = 112; Z = 96
    k("L_k5_comp:")
    k(f"""s_add_u32 s34, s34, s28          ; tile
          s_lshl_b32 s40, {'s28' if 'sa' in EX else 's34'}, 17
          s_add_u32 s59, s40, {Z2F}
          s_lshl_b32 s40, s58, 12
          s_add_u32 s40, s40, s59
          v_and_b32 v15, 31, v1
          v_lshlrev_b32 v12, 1, v15
          s_lshl_b32 s43, s29, 7
          s_waitcnt lgkmcnt(0)""")
    srd(k, 20, 6, 7, 4096); srd(k, 24, 12, 13, WS_USED)
    k("""buffer_load_ushort v80, v12, s[20:23], s43 offen
         buffer_load_ushort v81, v12, s[20:23], s43 offen offset:64""")
    k(f"""s_mul_i32 s39, s29, 88
          s_lshl_b32 s42, s34, 1
          s_add_u32 s39, s39, s42
          s_lshl_b32 s39, s39, 10
          s_add_u32 s42, s39, {Z1}
          s_add_u32 s43, s42, {44*1024}""")
    def aload(slot):
        for j in range(4):
            k(f"buffer_load_dwordx4 {vr(A+16*slot+4*j)}, v2, s[24:27], s40 offen offset:{1024*j}")
        k("s_add_u32 s58, s58, 1\ns_and_b32 s58, s58, 31\ns_lshl_b32 s40, s58, 12\ns_add_u32 s40, s40, s59")
    for i in range(AD): aload(i)
    for th in range(2):
        for f in range(2):
            k(f"buffer_load_dwordx4 {vr(Z+8*th+4*f)}, v2, s[24:27], {'s43' if th else 's42'} offen offset:{1024*f}")
    k(f"""v_lshrrev_b32 v13, 1, v15
          v_and_b32 v13, 7, v13
          v_lshlrev_b32 v12, 7, v15""")
    for qq in range(4):
        k(f"""v_add_u32 v14, {2*qq}, v9
              v_xor_b32 v14, v14, v13
              v_lshl_add_u32 v{4+qq}, v14, 4, v12""")
    k(f"""s_mov_b32 s55, 0
          s_waitcnt vmcnt({4*AD+4})
          v_lshlrev_b32 v80, 16, v80
          v_lshlrev_b32 v81, 16, v81""")
    for r in range(16): k(f"v_mov_b32 v{ACC+r}, v80\nv_mov_b32 v{ACC+16+r}, v81")
    def breads(half, slotoff):
        for j in range(2):
            for th in range(2):
                k(f"ds_read_b128 {vr(BF+16*half+8*j+4*th)}, v{4+2*half+j} offset:{slotoff+4096*th}")
    def mf(half, slot, ld=False):
        for j in range(2):
            for th in range(2):
                if 'nom' not in EX: k(f"v_mfma_f32_32x32x16_bf16 {vr(ACC+16*th,16)}, {vr(A+16*slot+8*half+4*j)}, {vr(BF+16*half+8*j+4*th)}, {vr(ACC+16*th,16)}")
            if ld:
                jj = 2*half + j
                k(f"buffer_load_dwordx4 {vr(A+16*slot+4*jj)}, v2, s[24:27], s40 offen offset:{1024*jj}")
    k.stamp(1)
    k("s_barrier")
    k.stamp(2)
    if 'noa' in EX: k("s_mov_b32 s26, 0")
    breads(0, 0)
    k("L_k5_loop:")
    for i in range(AD):
        breads(1, i * 8192)
        k(f"s_waitcnt vmcnt({4*AD-2}) lgkmcnt(4)")
        mf(0, i, True)
        k(f"s_waitcnt vmcnt({4*AD-2}) lgkmcnt(0)")
        if i == AD - 1:
            if AD == 4:
                for qq in range(4): k(f"v_xor_b32 v{4+qq}, 32768, v{4+qq}")
            k(f"""s_add_u32 s55, s55, 1
                 s_cmp_eq_u32 s55, {32//AD}
                 s_cbranch_scc1 L_k5_last""")
        k("s_barrier")
        breads(0, ((i + 1) % AD) * 8192)
        mf(1, i, True)
        k("s_add_u32 s58, s58, 1\ns_and_b32 s58, s58, 31\ns_lshl_b32 s40, s58, 12\ns_add_u32 s40, s40, s59")
    k(f"""s_cmp_eq_u32 s55, {32//AD-1}
         s_cselect_b32 s26, 0, s26
         s_branch L_k5_loop""")
    k("L_k5_last:")
    mf(1, AD - 1)
    k(f"""s_mov_b32 s26, {WS_USED}
          v_mov_b32 v14, {FW}
          ds_read_b32 v14, v14""")
    k.stamp(3)
    k(f"""s_add_u32 s42, s39, {YF}
          s_add_u32 s43, s42, {44*1024}
          s_waitcnt vmcnt(0) lgkmcnt(0)
          v_readfirstlane_b32 s63, v14""")
    for i in range(16):
        k(f"""v_lshlrev_b32 v{112+2*i}, 16, v{Z+i}
              v_and_b32 v{113+2*i}, 0xffff0000, v{Z+i}""")
    for i in range(32): k(f"v_mul_f32 v{ACC+i}, v{ACC+i}, v{112+i}")
    for i in range(16): k(f"v_cvt_pk_bf16_f32 v{Z+i}, v{ACC+2*i}, v{ACC+2*i+1}")
    hstore(k, [f"buffer_store_dwordx4 {vr(Z+8*th+4*f)}, v2, s[24:27], {'s43' if th else 's42'} offen offset:{1024*f}" for th in range(2) for f in range(2)])
    set_flag2(k, "s52")
    k.stamp(4)
    k("L_k6:")
    k(f"""s_lshl_b32 s36, s29, 2
          s_add_u32 s36, s36, s3           ; rb16
          s_lshl_b32 s37, s30, 1
          s_add_u32 s37, s37, s61
          s_lshl_b32 s47, s36, 4
          s_add_u32 s47, s47, s37
          s_lshl_b32 s47, s47, 10
          s_add_u32 s47, s47, {HF}
          buffer_load_dwordx4 v[112:115], v2, s[24:27], s47 offen
          s_mul_i32 s45, s61, {11*1024}
          s_add_u32 s45, s45, {WL}
          v_add_u32 v4, s45, v2
          v_add_u32 v5, {2*22528}, v4""")
    act32_voff(k, 3, "s32")
    k(f"""s_lshr_b32 s46, s36, 1
          s_mul_i32 s46, s46, {44*1024}
          s_mul_i32 s47, s61, {22*1024}
          s_add_u32 s46, s46, s47
          s_add_u32 s46, s46, {YF}
          s_cmp_eq_u32 s61, 0
          s_cselect_b32 s49, -1, 0""")
    srd(k, 16, 10, 11, 2048 * 1024)
    for r in range(16): k(f"v_mov_b32 v{16+r}, 0")
    for r in range(4): k(f"v_mov_b32 v{64+40+r}, 0")
    k("s_barrier")
    woff = lambda s, u: (4 + (u >> 1), (u & 1) * 22528 + s * 1024)
    gemm64_reads(k, 0, woff)
    poll_n(k, "s62", 11, "y")
    k.stamp(5)
    woff = lambda s, u: (4 + (u >> 1), (u & 1) * 22528 + s * 1024)
    for s in range(11):
        if s % 2 == 0: k(f"s_add_u32 s47, s46, {s*2048}")
        if s == 10: k("s_mov_b32 exec_hi, s49")
        k(f"buffer_load_dwordx4 {vr(64+4*s)}, v3, s[24:27], s47 offen offset:{2048*(s&1)}")
    k("s_mov_b32 exec_hi, -1")
    gemm64(k, 11, woff, 64)
    k.stamp(6)
    ksplit_exchange(k, XS, "s28", tag="c")
    for i in range(4):
        k(f"""v_lshlrev_b32 v{40+2*i}, 16, v{112+i}
              v_and_b32 v{41+2*i}, 0xffff0000, v{112+i}""")
    for i in range(8): k(f"v_add_f32 v{16+i}, v{16+i}, v{40+i}")
    k(f"""v_and_b32 v12, 15, v1
          v_lshlrev_b32 v12, 10, v12
          v_and_b32 v13, 1, v8
          v_lshl_add_u32 v12, v13, 5, v12
          v_lshl_add_u32 v12, v9, 4, v12
          s_lshl_b32 s46, s36, 14
          s_lshl_b32 s47, s37, 6
          s_add_u32 s46, s46, s47
          s_waitcnt lgkmcnt(0)""")
    for i in range(8): k(f"v_add_f32 v{16+i}, v{16+i}, v{32+i}")
    for i in range(4): k(f"v_cvt_pk_bf16_f32 v{48+i}, v{16+2*i}, v{17+2*i}")
    k("""v_permlane16_swap_b32 v48, v50
         v_permlane16_swap_b32 v49, v51
         buffer_store_dwordx4 v[48:51], v12, s[16:19], s46 offen""")
    k(f"L_{k.name}_end:\ns_endpgm")
    return k, (256, 512, 163840)
```

```python
QF    = 0x000000
OF    = 0x200000
HF    = 0x400000
Z1    = 0x600000
Z2F   = 0x900000
YF    = 0xC00000
KF    = 0xF00000
VF    = 0xF10000
KMAX  = 0xF20000
HSTAT = 0xF30000
CSUM  = 0xF70000
ZSTAT = 0xF80000
WPK   = 0x1400000
WOP   = 0x1580000
WUP   = 0x1600000
WS_USED = 0x1700000
FLAGS = 0x1300000
OFLAG = FLAGS
HFLAG = FLAGS + 0x40000
YFLAG = FLAGS + 0x90000
XID   = FLAGS + 0x80000
XIDC  = FLAGS + 0x88000
KVFLAG = FLAGS + 0xC0000
PFLAG  = FLAGS + 0xC8000
```

```python
import sys
import os
from k1 import build_k1
from k2 import build_k2
from k3 import build_k3
from k4 import build_k4
from k5 import build_k5
from k6 import build_k6
from kb import build_kb
if os.environ.get("SPLITB"): builders = [build_k1, build_k2, build_k3, build_k4]
else: builders = [build_k1, build_kb]
if os.environ.get("SPLITC") or not os.path.exists("kc.py"): builders += [build_k5, build_k6]
else:
    from kc import build_kc
    builders += [build_kc]
hdr = open("sequential_preLN__grouped_kv_mqa__mixer_gmlp__prompt.s.ref").read().split("\n")
hdr = [l for l in hdr if l.startswith(";") and "@launch" not in l and "Override" not in l and "grid=ceil" not in l]
ks = [b() for b in builders]
out = "\n".join(hdr) + "\n"
for k, (g, b, lds) in ks:
    out += f"; @launch kernel={k.name} grid=({g},1,1) block=({b},1,1) lds={lds}\n"
if os.environ.get("DUPC"):
    k, (g_, b_, lds_) = ks[-1]
    out += f"; @launch kernel={k.name} grid=({g_},1,1) block=({b_},1,1) lds={lds_}\n"
out += '.amdgcn_target "amdgcn-amd-amdhsa--gfx950"\n'
for i, (k, _) in enumerate(ks):
    out += k.text(i)
dst = sys.argv[1] if len(sys.argv) > 1 else "sequential_preLN__grouped_kv_mqa__mixer_gmlp__prompt.s"
open(dst, "w").write(out)
print("wrote", dst, len(out))
```

```python
from asm import *
from layout import *

def srd(k, d, lo, hi, size):
    k(f"""s_mov_b32 s{d}, s{lo}
          s_mov_b32 s{d+1}, s{hi}
          s_mov_b32 s{d+2}, {size:#x}
          s_mov_b32 s{d+3}, 0x00020000""")

def prologue_ids(k, nwg, vlane="v1", swave="s28"):
    k(f"""s_cmp_ge_u32 s2, {nwg}
          s_cbranch_scc1 L_{k.name}_end
          v_and_b32 {vlane}, 63, v0
          v_lshrrev_b32 v2, 6, v0
          v_readfirstlane_b32 {swave}, v2""")
    for i in range(16): k.stamp(i)
    k.stamp(13, True)

def vr(a, n=4): return f"v[{a}:{a+n-1}]"

def xhalf_add(k, a, t):
    k(f"""v_mov_b32 v{t}, v{a}
          v_permlane32_swap_b32 v{a}, v{t}
          v_add_f32 v{a}, v{a}, v{t}""")

def x16_add(k, a, t):
    k(f"""v_mov_b32 v{t}, v{a}
          v_permlane16_swap_b32 v{a}, v{t}
          v_add_f32 v{a}, v{a}, v{t}""")

def ln_stats(k, vsum, vsq, n, vt):
    inv = 1.0 / n
    import struct
    invh = struct.unpack("<I", struct.pack("<f", inv))[0]
    eps = struct.unpack("<I", struct.pack("<f", 1e-5))[0]
    k(f"""v_mul_f32 v{vsum}, {invh:#x}, v{vsum}
          v_mul_f32 v{vsq}, {invh:#x}, v{vsq}
          v_fma_f32 v{vt}, -v{vsum}, v{vsum}, v{vsq}
          v_max_f32 v{vt}, 0, v{vt}
          v_add_f32 v{vt}, {eps:#x}, v{vt}
          v_rsq_f32 v{vsq}, v{vt}""")

def f32(x):
    import struct
    return f"{struct.unpack('<I', struct.pack('<f', x))[0]:#x}"

import os
SLEEP = int(os.environ.get('SLEEP', 2))
def poll_flags(k, soff, tag, nlanes=64, vt=12):
    sh = f"v_lshlrev_b32 v{vt+1}, 7, v1" if nlanes == 64 else f"v_and_b32 v{vt+1}, {nlanes-1}, v1\nv_lshlrev_b32 v{vt+1}, 7, v{vt+1}"
    k(f"""{sh}
          s_mov_b32 s60, 0
          L_poll_{tag}:
          s_sleep {SLEEP}
          buffer_load_dword v{vt}, v{vt+1}, s[24:27], {soff} offen sc1
          s_add_u32 s60, s60, 1
          s_waitcnt vmcnt(0)
          v_cmp_ne_u32 vcc, 1, v{vt}
          s_cmp_gt_u32 s60, 0x40000
          s_cbranch_scc1 L_pollok_{tag}
          s_cbranch_vccnz L_poll_{tag}
          L_pollok_{tag}:""")

def set_flag(k, soff, vt=12, drain=True):
    if drain: k("s_waitcnt vmcnt(0)")
    k(f"""v_mov_b32 v{vt}, 1
          v_mov_b32 v{vt+1}, 0
          s_mov_b64 exec, 1
          buffer_store_dword v{vt}, v{vt+1}, s[24:27], {soff} offen sc1
          s_mov_b64 exec, -1""")

def hstore(k, instrs, sfast="s63"):
    if isinstance(instrs, str): instrs = [instrs]
    a, b = k.lab("hs"), k.lab("hs")
    k(f"s_cmp_lg_u32 {sfast}, 0\ns_cbranch_scc1 {a}")
    for i in instrs: k(i + " sc1")
    k(f"s_branch {b}\n{a}:")
    for i in instrs: k(i)
    k(f"{b}:")

def set_flag2(k, soff, vt=12):
    k(f"""s_waitcnt vmcnt(0)
          v_mov_b32 v{vt}, 1
          v_mov_b32 v{vt+1}, 0
          s_mov_b64 exec, 1""")
    hstore(k, f"buffer_store_dword v{vt}, v{vt+1}, s[24:27], {soff} offen")
    k("s_mov_b64 exec, -1")

def publish_xcc(k, soff, vt):
    k(f"""s_getreg_b32 s60, hwreg(HW_REG_XCC_ID, 0, 4)
          v_mov_b32 v{vt+1}, 0
          v_mov_b32 v{vt}, s60
          s_mov_b64 exec, 1
          buffer_store_dword v{vt}, v{vt+1}, s[24:27], {soff} offen sc1
          s_mov_b64 exec, -1""")

def check_xcc(k, soff, n, tag, vt):
    k(f"""v_and_b32 v{vt+1}, {n-1}, v1
          v_lshlrev_b32 v{vt+1}, 7, v{vt+1}
          s_mov_b32 s60, 0
          L_xc_{tag}:
          buffer_load_dword v{vt}, v{vt+1}, s[24:27], {soff} offen sc1
          s_add_u32 s60, s60, 1
          s_waitcnt vmcnt(0)
          v_cmp_eq_u32 vcc, -1, v{vt}
          s_cmp_gt_u32 s60, 0x40000
          s_cbranch_scc1 L_xcok_{tag}
          s_cbranch_vccnz L_xc_{tag}
          L_xcok_{tag}:
          v_readfirstlane_b32 s60, v{vt}
          v_cmp_ne_u32 vcc, s60, v{vt}
          s_cmp_eq_u64 vcc, 0
          s_cselect_b32 s60, {FAST}, 0
          v_mov_b32 v{vt}, s60""")
FAST = int(os.environ.get("FAST", 1))

class VQ:
    def __init__(self, k): self.k = k; self.n = 0; self.end = {}
    def issue(self, name, cnt, fn):
        fn(); self.n += cnt; self.end[name] = self.n
    def wait(self, *names, extra=""):
        m = max(self.end[x] for x in names)
        self.k(f"s_waitcnt vmcnt({self.n - m}){extra}")

def poll_n(k, soff, n, tag, vt=12):
    k(f"""v_min_u32 v{vt+1}, {n-1}, v1
          v_lshlrev_b32 v{vt+1}, 7, v{vt+1}
          s_mov_b32 s60, 0
          s_mov_b64 exec, {(1 << n) - 1:#x}
          L_poll_{tag}:
          buffer_load_dword v{vt}, v{vt+1}, s[24:27], {soff} offen sc1
          s_add_u32 s60, s60, 1
          s_waitcnt vmcnt(0)
          v_cmp_ne_u32 vcc, 1, v{vt}
          s_cmp_gt_u32 s60, 0x40000
          s_cbranch_scc1 L_pollok_{tag}
          s_cbranch_vccz L_pollok_{tag}
          s_sleep {SLEEP}
          s_branch L_poll_{tag}
          L_pollok_{tag}:
          s_mov_b64 exec, -1""")

def set_flagN(k, soff, vt=12, drain=True, fast=True):
    if drain: k("s_waitcnt vmcnt(0)")
    k(f"""v_mov_b32 v{vt}, s58
          v_mov_b32 v{vt+1}, s59
          v_mov_b32 v15, 0
          s_mov_b64 exec, 1""")
    ins = f"buffer_store_dwordx2 v[{vt}:{vt+1}], v15, s[24:27], {soff} offen"
    if fast: hstore(k, ins)
    else: k(ins + " sc1")
    k("s_mov_b64 exec, -1")

def pollN(k, soff, tag, n=None, vt=12, va=15, sl=None, pre=0):
    if n:
        k(f"""v_lshlrev_b32 v{va}, 7, v1
              s_mov_b64 exec, {(1 << n) - 1:#x}""")
    if pre: k(f"s_sleep {pre}")
    k(f"""s_mov_b32 s60, 0
          L_poll_{tag}:
          buffer_load_dwordx2 v[{vt}:{vt+1}], v{va}, s[24:27], {soff} offen sc1
          s_add_u32 s60, s60, 1
          s_waitcnt vmcnt(0)
          v_xor_b32 v{vt}, s58, v{vt}
          v_xor_b32 v{vt+1}, s59, v{vt+1}
          v_or_b32 v{vt}, v{vt}, v{vt+1}
          v_cmp_ne_u32 vcc, 0, v{vt}
          s_cmp_gt_u32 s60, 0x40000
          s_cbranch_scc1 L_pollok_{tag}
          s_cbranch_vccz L_pollok_{tag}
          s_sleep {SLEEP if sl is None else sl}
          s_branch L_poll_{tag}
          L_pollok_{tag}:
          s_mov_b64 exec, -1""")
```

```python
from common import *
from k3 import *
from g16 import *
from k4 import GC1, GC2
import os
LSC = os.environ.get('LSC', '')
MAPC = int(os.environ.get('MAPC', 0))
ZSC = os.environ.get('ZSC', 'sc1')
PT = int(os.environ.get('PT', 0))
HW = int(os.environ.get('HW', 6))
PF2 = int(os.environ.get('PF2', 1))
WSL = int(os.environ.get('WSL', 1))
WSL2 = int(os.environ.get('WSL2', 1))
KVROT = int(os.environ.get('KVROT', 1))
PFM = int(os.environ.get('PFM', 15))
PFSC = os.environ.get('PFSC', '')

FUSEC = int(os.environ.get('FUSEC', 1))
def build_kall():
    k = Kern("sequential_preLN__grouped_kv_mqa__mixer_gmlp__prompt_kernel", nvgpr=128)
    NW = 16
    KL, VL, XL = 0, 65536, 131072
    Q = 4; KFR = 8; VFR = [[12, 16], [20, 24]]; P = 28; S = [36, 52]; O = 68; C = 84
    vK, vV = 100, 101
    NCH, NIT = 4, 8
    prologue_ids(k, 256)
    k("""s_load_dwordx8 s[4:11], s[0:1], 0
         s_load_dwordx4 s[12:15], s[0:1], 88""")
    k("""s_and_b32 s29, s2, 7
         s_lshr_b32 s30, s2, 3
         s_lshl_b32 s29, s29, 2
         s_lshr_b32 s31, s30, 3
         s_add_u32 s29, s29, s31          ; rb64
         s_and_b32 s30, s30, 7            ; cg
         s_and_b32 s3, s28, 3
         s_and_b32 s32, s28, 1            ; rh
         s_mov_b32 s56, s29
         s_mov_b32 s57, s30""")
    XL0, WL0, KVL, SX, QL = 0, 65536, 131072, 147456, 131072
    CSX = SX + 512
    k("""s_lshl_b32 s46, s31, 1
         s_add_u32 s46, s46, s30
         s_and_b32 s46, s46, 7
         s_lshr_b32 s33, s3, 1            ; ch
         s_mov_b32 s62, 0
         s_mov_b32 s20, 0
         s_mov_b32 s21, 0
         s_mov_b32 s22, 0
         s_mov_b32 s23, 0x00020000
         v_mov_b32 v108, 0
         v_mov_b32 v109, 0
         v_mov_b32 v113, 0
         v_lshlrev_b32 v2, 4, v1""")
    lane_fields(k)
    k(f"""s_cmp_lt_u32 s28, 4
          s_cbranch_scc1 L_p0_q
          s_cmp_ge_u32 s28, 12
          s_cbranch_scc1 L_p0_st
          s_cmp_eq_u32 s28, 8
          s_cbranch_scc1 L_p0_kv
          s_cmp_eq_u32 s28, 11
          s_cbranch_scc1 L_p0_n
          s_cmp_gt_u32 s28, 8
          s_cbranch_scc1 L_p0_pack""")
    k(f"""s_lshl_b32 s34, s29, 6
          s_lshl_b32 s35, s3, 4
          s_add_u32 s34, s34, s35
          v_lshrrev_b32 v12, 3, v1
          v_add_u32 v6, s34, v12
          v_lshlrev_b32 v6, 10, v6
          v_and_b32 v13, 7, v1
          v_xor_b32 v14, v13, v8
          v_lshl_add_u32 v6, v14, 4, v6
          v_xor_b32 v7, 64, v6
          v_add_u32 v7, 8192, v7
          s_lshl_b32 s36, s30, 7
          s_lshl_b32 s37, s3, 11
          s_mov_b32 s45, s46""")
    wt_dma_addr(k, 4, 5, "s35", "s36")
    k("s_waitcnt lgkmcnt(0)")
    srd(k, 16, 4, 5, 2048 * 1024); srd(k, 20, 6, 7, 512 * 1024); srd(k, 24, 14, 15, WS_USED)
    q = VQ(k)
    def xi(c):
        q.issue(f"x{c}", 2, lambda: k(f"""s_add_u32 m0, s37, {XL0 + c*8192}
              s_lshl_b32 s38, s46, 7
              s_add_u32 s46, s46, 1
              buffer_load_dwordx4 v6, s[16:19], s38 offen lds
              s_add_u32 m0, s37, {XL0 + c*8192 + 1024}
              s_and_b32 s46, s46, 7
              buffer_load_dwordx4 v7, s[16:19], s38 offen lds"""))
    def wqi(c):
        q.issue(f"w{c}", 2, lambda: k(f"""s_add_u32 m0, s37, {WL0 + c*8192}
              s_lshl_b32 s38, s45, 16
              s_add_u32 s45, s45, 1
              buffer_load_dwordx4 v4, s[20:23], s38 offen lds
              s_add_u32 m0, s37, {WL0 + c*8192 + 1024}
              s_and_b32 s45, s45, 7
              buffer_load_dwordx4 v5, s[20:23], s38 offen lds"""))
    for c in range(6): xi(c)
    k.stamp(2); q.wait("x1"); k.stamp(3); k("s_barrier"); k.stamp(4)
    xi(6); xi(7); wqi(0); wqi(1)
    q.wait("x3"); k("s_barrier")
    wqi(2); wqi(3); wqi(4)
    q.wait("x5"); k("s_barrier")
    wqi(5); wqi(6); wqi(7)
    q.wait("x7"); k.stamp(5); k("s_barrier\ns_barrier")
    for i in range(4):
        q.wait(f"w{2*i+1}"); k("s_barrier")
    k.stamp(6)
    k("s_barrier\ns_branch L_att")
    k(f"""L_p0_q:
          v_mov_b32 v64, 0x3f803f80
          v_mov_b32 v65, 0x3f803f80
          v_mov_b32 v66, 0x3f803f80
          v_mov_b32 v67, 0x3f803f80
          v_lshl_add_u32 v6, v9, 3, v10
          v_lshlrev_b32 v6, 7, v6
          v_lshrrev_b32 v12, 1, v10
          v_xor_b32 v12, s33, v12
          v_lshl_add_u32 v6, v12, 6, v6
          v_and_b32 v12, 1, v8
          v_lshl_add_u32 v6, v12, 5, v6
          v_lshl_add_u32 v6, v11, 3, v6
          v_add_u32 v6, {WL0}, v6
          v_and_b32 v12, 31, v1
          s_lshl_b32 s40, s32, 5
          v_add_u32 v12, s40, v12
          v_lshlrev_b32 v76, 3, v12
          v_add_u32 v76, {SX}, v76
          v_lshlrev_b32 v77, 4, v9
          s_lshl_b32 s41, s33, 7
          s_add_u32 s41, s41, {CSX}
          v_add_u32 v77, s41, v77
          v_lshrrev_b32 v13, 1, v12
          v_and_b32 v13, 7, v13
          v_lshlrev_b32 v12, 7, v12""")
    for qq in range(4):
        k(f"""v_add_u32 v14, {2*qq}, v9
              v_xor_b32 v14, v14, v13
              v_lshl_add_u32 v{72+qq}, v14, 4, v12""")
    for r in range(32): k(f"v_mov_b32 v{32+r}, 0")
    k("s_waitcnt lgkmcnt(0)")
    srd(k, 24, 14, 15, WS_USED)
    k("s_barrier\n" * 5)
    k.stamp(4)
    def qreads(c):
        s = c & 1
        for qq in range(4):
            st = 4*c + qq
            k(f"""ds_read_b64_tr_b16 v[{FA(s,qq)}:{FA(s,qq)+1}], v6 offset:{2048*st}
                  ds_read_b64_tr_b16 v[{FA(s,qq)+2}:{FA(s,qq)+3}], v6 offset:{2048*st+512}
                  ds_read_b128 {vr(FB(s,qq))}, v{72+qq} offset:{XL0 + 8192*c}""")
    def qloop(cs):
        def step(c, qq):
            s = c & 1
            k(f"v_mfma_f32_32x32x16_bf16 v[32:47], {vr(FA(s,qq))}, {vr(FB(s,qq))}, v[32:47]")
            if cs: k(f"v_mfma_f32_32x32x16_bf16 v[48:63], {vr(FA(s,qq))}, v[64:67], v[48:63]")
        k("s_barrier")
        k.stamp(5)
        qreads(0)
        for c in range(8):
            for qq in range(3):
                k(f"s_waitcnt lgkmcnt({9-3*qq})"); step(c, qq)
            k("s_waitcnt lgkmcnt(0)")
            if c < 7:
                if c & 1: k("s_barrier")
                qreads(c + 1)
            step(c, 3)
    k("""s_cmp_eq_u32 s32, s33
         s_cbranch_scc0 L_p0_qcs""")
    qloop(False)
    k("s_branch L_p0_qfin\nL_p0_qcs:")
    qloop(True)
    for gq in range(4): k(f"ds_write_b128 v77, {vr(48+4*gq)} offset:{32*gq}")
    k("""L_p0_qfin:
         s_waitcnt lgkmcnt(0)
         s_barrier""")
    k.stamp(6)
    k("ds_read_b64 v[68:69], v76")
    for gq in range(4): k(f"ds_read_b128 {vr(48+4*gq)}, v77 offset:{32*gq}")
    k(f"""s_lshl_b32 s34, s33, 12
          s_lshl_b32 s35, s32, 10
          s_add_u32 s34, s34, s35
          s_add_u32 s34, s34, {QL}
          v_add_u32 v3, s34, v2
          s_waitcnt lgkmcnt(0)
          v_mul_f32 v69, {f32(0.25*1.4426950408889634)}, v69""")
    for r in range(16): k(f"v_fma_f32 v{32+r}, -v68, v{48+r}, v{32+r}")
    for r in range(16): k(f"v_mul_f32 v{32+r}, v69, v{32+r}")
    for r in range(8): k(f"v_cvt_pk_bf16_f32 v{48+r}, v{32+2*r}, v{33+2*r}")
    k("""ds_write_b128 v3, v[48:51]
         ds_write_b128 v3, v[52:55] offset:2048
         s_branch L_att""")
    k(f"""L_p0_st:
          v_lshrrev_b32 v12, 2, v1
          s_lshl_b32 s34, s3, 4
          v_add_u32 v12, s34, v12           ; row
          v_lshlrev_b32 v7, 3, v12
          v_add_u32 v7, {SX}, v7
          v_lshrrev_b32 v13, 1, v12
          v_and_b32 v13, 7, v13
          v_lshlrev_b32 v12, 7, v12
          v_lshlrev_b32 v14, 1, v11
          v_xor_b32 v14, v14, v13
          v_lshl_add_u32 v4, v14, 4, v12
          v_xor_b32 v5, 16, v4
          v_mov_b32 v64, 0x3f803f80""")
    for i in range(4): k(f"v_mov_b32 v{48+i}, 0")
    k("s_waitcnt lgkmcnt(0)")
    srd(k, 24, 14, 15, WS_USED)
    for gi_ in range(4):
        k("s_barrier")
        for c in range(2):
            k(f"""ds_read_b128 {vr(16+8*c)}, v4 offset:{XL0 + 8192*(2*gi_+c)}
                  ds_read_b128 {vr(20+8*c)}, v5 offset:{XL0 + 8192*(2*gi_+c)}""")
        k("s_waitcnt lgkmcnt(0)")
        for d in range(16):
            k(f"""v_dot2_f32_bf16 v{48+(d&1)}, v{16+d}, v64, v{48+(d&1)}
                  v_dot2_f32_bf16 v{50+(d&1)}, v{16+d}, v{16+d}, v{50+(d&1)}""")
    k("v_add_f32 v48, v48, v49\nv_add_f32 v49, v50, v51")
    for qp in ("[1,0,3,2]", "[2,3,0,1]"):
        for i in range(2): k(f"v_add_f32_dpp v{48+i}, v{48+i}, v{48+i} quad_perm:{qp} row_mask:0xf bank_mask:0xf")
    ln_stats(k, 48, 49, 512, 12)
    k("ds_write_b64 v7, v[48:49]\ns_waitcnt lgkmcnt(0)")
    k("s_barrier\n" * 6 + "s_branch L_att")
    k(f"""L_p0_n:
          v_mov_b32 v20, 0
          s_memrealtime s[58:59]
          s_waitcnt lgkmcnt(0)""")
    srd(k, 24, 14, 15, WS_USED); srd(k, 16, 12, 13, 256)
    k(f"""s_mov_b64 exec, 1
          s_cmp_eq_u32 s2, 0
          s_cbranch_scc0 L_p0_n1
          s_or_b32 s59, s59, 0x40000000
          v_mov_b32 v22, s58
          v_mov_b32 v23, s59
          buffer_store_dwordx2 v[22:23], v20, s[16:19], 0 offen sc1
          L_p0_n1:
          s_barrier
          s_barrier
          s_mov_b32 s60, 0
          L_p0_np:
          buffer_load_dwordx2 v[22:23], v20, s[16:19], 0 offen sc1
          s_add_u32 s60, s60, 1
          s_cmp_eq_u32 s60, 1
          s_cbranch_scc0 L_p0_nw
          s_barrier
          s_barrier
          L_p0_nw:
          s_waitcnt vmcnt(0)
          v_cmp_eq_u32 vcc, 0, v23
          s_cmp_gt_u32 s60, 0x40000
          s_cbranch_scc1 L_p0_n2
          s_cbranch_vccnz L_p0_np
          L_p0_n2:
          v_mov_b32 v21, {SX + 768}
          ds_write_b64 v21, v[22:23]
          v_readfirstlane_b32 s58, v22
          v_readfirstlane_b32 s59, v23
          s_mov_b64 exec, -1
          v_mov_b32 v21, {SX + 768}
          s_mov_b32 s34, {KVFLAG}
          s_waitcnt lgkmcnt(0)""")
    k.stamp(4)
    k("s_barrier\n" * 6)
    k.stamp(5)
    k(f"""s_mov_b32 s60, 0
          L_p0_gp:""")
    for i in range(4): k(f"buffer_load_dwordx3 v[{28+4*i}:{30+4*i}], v2, s[24:27], s34 offen offset:{1024*i} sc1")
    k("s_add_u32 s60, s60, 1\ns_waitcnt vmcnt(0)")
    for i in range(4):
        k(f"v_xor_b32 v{28+4*i}, s58, v{28+4*i}\nv_xor_b32 v{29+4*i}, s59, v{29+4*i}")
    k(f"""v_or3_b32 v28, v28, v29, v32
          v_or3_b32 v33, v33, v36, v37
          v_or3_b32 v28, v28, v40, v41
          v_or_b32 v28, v28, v33
          v_cmp_ne_u32 vcc, 0, v28
          s_cmp_gt_u32 s60, 0x40000
          s_cbranch_scc1 L_p0_g2
          s_cbranch_vccz L_p0_g2
          s_sleep {SLEEP}
          s_branch L_p0_gp
          L_p0_g2:
          v_max3_f32 v30, v30, v34, v38
          v_max_f32 v30, v30, v42""")
    for sh in (1, 2, 4, 8):
        k(f"v_max_f32_dpp v30, v30, v30 row_ror:{sh} row_mask:0xf bank_mask:0xf")
    k("""v_mov_b32 v31, v30
         v_permlane16_swap_b32 v30, v31
         v_max_f32 v30, v30, v31
         v_mov_b32 v31, v30
         v_permlane32_swap_b32 v30, v31
         v_max_f32 v30, v30, v31
         ds_write_b32 v21, v30 offset:8
         s_branch L_att""")
    k(f"""L_p0_kv:
          s_lshr_b32 s40, s30, 2           ; kv
          s_and_b32 s41, s30, 3            ; rq
          s_waitcnt lgkmcnt(0)
          s_cmp_eq_u32 s40, 0
          s_cselect_b32 s20, s8, s10
          s_cselect_b32 s21, s9, s11
          s_mov_b32 s22, 16384
          s_mov_b32 s23, 0x00020000""")
    srd(k, 24, 14, 15, WS_USED)
    for c in range(8):
        k(f"""s_mov_b32 m0, {KVL + 2048*c}
              s_lshl_b32 s38, s46, 11
              s_add_u32 s46, s46, 1
              buffer_load_dwordx4 v2, s[20:23], s38 offen lds
              buffer_load_dwordx4 v2, s[20:23], s38 offen offset:1024 lds
              s_and_b32 s46, s46, 7""")
    k(f"""v_mov_b32 v64, 0x3f803f80
          v_mov_b32 v65, 0x3f803f80
          v_mov_b32 v66, 0x3f803f80
          v_mov_b32 v67, 0x3f803f80
          v_and_b32 v15, 15, v1
          s_lshl_b32 s34, s41, 4
          v_add_u32 v12, s34, v15
          v_lshlrev_b32 v74, 3, v12
          v_add_u32 v74, {SX}, v74
          v_lshl_add_u32 v75, v8, 2, s34
          v_lshlrev_b32 v75, 3, v75
          v_add_u32 v75, {SX}, v75
          v_lshrrev_b32 v13, 1, v12
          v_and_b32 v13, 7, v13
          v_lshlrev_b32 v12, 7, v12
          v_xor_b32 v14, v8, v13
          v_lshl_add_u32 v72, v14, 4, v12
          v_add_u32 v14, 4, v8
          v_xor_b32 v14, v14, v13
          v_lshl_add_u32 v73, v14, 4, v12
          v_lshl_add_u32 v6, v8, 3, v10
          v_lshlrev_b32 v6, 5, v6
          v_lshl_add_u32 v6, v11, 3, v6
          v_add_u32 v6, {KVL}, v6
          s_lshl_b32 s34, s29, 2
          s_add_u32 s34, s34, s41          ; t16
          v_and_b32 v12, 1, v8             ; h
          v_lshrrev_b32 v13, 1, v8         ; piece
          v_mov_b32 v76, {SX + 768}
          s_and_b32 s37, s2, 7
          s_lshl_b32 s37, s37, 9
          s_lshr_b32 s36, s2, 3
          s_lshl_b32 s36, s36, 4
          s_add_u32 s37, s37, s36
          s_add_u32 s37, s37, {KVFLAG}""")
    for r in range(8): k(f"v_mov_b32 v{32+r}, 0")
    def kvloop(isv):
        for gi_ in range(4):
            k(f"s_waitcnt vmcnt({4*(3-gi_)})\ns_barrier")
            for s in range(4):
                st = 4*gi_ + s; b = 80 + 8*s
                k(f"""ds_read_b64_tr_b16 v[{b}:{b+1}], v6 offset:{1024*st}
                      ds_read_b64_tr_b16 v[{b+2}:{b+3}], v6 offset:{1024*st+128}
                      ds_read_b128 {vr(b+4)}, v{72+(s&1)} offset:{XL0+8192*(st//2)}""")
            for s in range(4):
                W, X = 80 + 8*s, 84 + 8*s
                k(f"s_waitcnt lgkmcnt({9-3*s})")
                if isv:
                    k(f"""v_mfma_f32_16x16x32_bf16 v[32:35], {vr(X)}, {vr(W)}, v[32:35]
                          v_mfma_f32_16x16x32_bf16 v[36:39], v[64:67], {vr(W)}, v[36:39]""")
                else:
                    k(f"""v_mfma_f32_16x16x32_bf16 v[32:35], {vr(W)}, {vr(X)}, v[32:35]
                          v_mfma_f32_16x16x32_bf16 v[36:39], {vr(W)}, v[64:67], v[36:39]""")
        k("s_barrier\nds_read_b64 v[40:41], v76")
    k("""s_cmp_eq_u32 s40, 0
         s_cbranch_scc0 L_p0_v""")
    kvloop(False)
    k(f"""ds_read_b64 v[68:69], v74
          v_lshlrev_b32 v3, 9, v12
          v_lshl_add_u32 v3, v15, 4, v3
          v_lshl_add_u32 v3, v13, 3, v3
          s_lshr_b32 s35, s34, 1
          s_lshl_b32 s35, s35, 10
          s_and_b32 s36, s34, 1
          s_lshl_b32 s36, s36, 8
          s_add_u32 s35, s35, s36
          s_add_u32 s35, s35, {KF}
          s_waitcnt lgkmcnt(0)""")
    for r in range(4): k(f"v_fma_f32 v{32+r}, -v68, v{36+r}, v{32+r}")
    for r in range(4): k(f"v_mul_f32 v{32+r}, v69, v{32+r}")
    k(f"""v_cvt_pk_bf16_f32 v36, v32, v33
          v_cvt_pk_bf16_f32 v37, v34, v35
          buffer_store_dwordx2 v[36:37], v3, s[24:27], s35 offen sc1
          v_dot2_f32_bf16 v42, v36, v36, 0
          v_dot2_f32_bf16 v42, v37, v37, v42""")
    xhalf_add(k, 42, 12); x16_add(k, 42, 12)
    for sh in (1, 2, 4, 8):
        k(f"v_max_f32_dpp v42, v42, v42 row_ror:{sh} row_mask:0xf bank_mask:0xf")
    k("s_branch L_p0_kvf\nL_p0_v:")
    kvloop(True)
    k(f"""ds_read_b128 v[56:59], v75
          ds_read_b128 v[60:63], v75 offset:16
          v_lshlrev_b32 v3, 8, v12
          v_lshl_add_u32 v3, v15, 4, v3
          v_lshl_add_u32 v3, v13, 3, v3
          s_lshl_b32 s35, s34, 9
          s_add_u32 s35, s35, {VF}
          v_mov_b32 v42, 0
          s_waitcnt lgkmcnt(0)""")
    for r in range(4): k(f"v_fma_f32 v{32+r}, -v{56+2*r}, v{36+r}, v{32+r}")
    for r in range(4): k(f"v_mul_f32 v{32+r}, v{57+2*r}, v{32+r}")
    k(f"""v_cvt_pk_bf16_f32 v36, v32, v33
          v_cvt_pk_bf16_f32 v37, v34, v35
          buffer_store_dwordx2 v[36:37], v3, s[24:27], s35 offen sc1
          L_p0_kvf:
          v_mov_b32 v43, 0
          s_barrier
          s_waitcnt vmcnt(0)
          s_mov_b64 exec, 1
          buffer_store_dwordx4 v[40:43], v43, s[24:27], s37 offen sc1
          s_mov_b64 exec, -1""")
    k.stamp(4)
    k("s_barrier\n" * 4 + "s_branch L_att")
    k(f"""L_p0_pack:
          s_load_dwordx2 s[48:49], s[0:1], 48
          s_load_dwordx2 s[50:51], s[0:1], 32
          s_load_dwordx2 s[52:53], s[0:1], 72
          s_sub_u32 s34, s28, 9
          s_lshl_b32 s35, s34, 8
          s_add_u32 s35, s35, s2           ; J
          s_mul_i32 s36, s34, {145*1024 - 136*1024}
          s_sub_u32 s36, {145*1024}, s36
          s_waitcnt lgkmcnt(0)""")
    srd(k, 24, 14, 15, WS_USED)
    k(f"""s_cmp_lt_u32 s35, 332
          s_cbranch_scc1 L_pk_job""")
    k("L_pk_done:\n" + "s_barrier\n" * 10 + "s_branch L_att")
    k(f"""L_pk_job:
          s_lshl_b32 s62, s35, 7
          s_add_u32 s62, s62, {PFLAG}
          s_mov_b32 s23, 0x00020000
          s_cmp_lt_u32 s35, 172
          s_cbranch_scc1 L_pk_in
          s_movk_i32 s40, 1024
          s_cmp_lt_u32 s35, 236
          s_cbranch_scc1 L_pk_o
          s_sub_u32 s35, s35, 236
          s_mul_i32 s37, s35, 171
          s_lshr_b32 s37, s37, 9
          s_mul_i32 s38, s37, 3
          s_sub_u32 s38, s35, s38
          s_mov_b32 s20, s52
          s_mov_b32 s21, s53
          s_mov_b32 s22, {688*1024}
          s_mul_i32 s39, s37, 24576
          s_add_u32 s39, s39, {WUP}
          s_branch L_pk_d
          L_pk_o:
          s_sub_u32 s35, s35, 172
          s_lshr_b32 s37, s35, 1
          s_and_b32 s38, s35, 1
          s_mov_b32 s20, s50
          s_mov_b32 s21, s51
          s_mov_b32 s22, {512*1024}
          s_lshl_b32 s39, s37, 14
          s_add_u32 s39, s39, {WOP}
          L_pk_d:
          v_lshrrev_b32 v12, 1, v8
          v_lshlrev_b32 v6, 4, v12
          v_and_b32 v12, 1, v8
          v_lshl_add_u32 v6, v12, 2, v6
          s_movk_i32 s41, 256
          s_mov_b32 s42, 0
          s_branch L_pk_go
          L_pk_in:
          s_movk_i32 s40, 2752
          s_lshr_b32 s37, s35, 1
          s_and_b32 s38, s35, 1
          s_mov_b32 s20, s48
          s_mov_b32 s21, s49
          s_mov_b32 s22, {512*2752}
          s_lshl_b32 s39, s37, 14
          s_add_u32 s39, s39, {WPK}
          v_lshlrev_b32 v6, 2, v8
          s_movk_i32 s41, 512
          s_mov_b32 s42, 1
          L_pk_go:
          v_add_u32 v6, v6, v10
          v_lshlrev_b32 v6, 5, v6
          v_lshl_add_u32 v6, v11, 3, v6
          v_add_u32 v108, s36, v6
          v_add_u32 v109, s41, v108
          s_lshl_b32 s43, s38, 13
          s_add_u32 s48, s39, s43           ; dst
          v_lshrrev_b32 v113, 1, v1
          v_mul_lo_u32 v113, v113, s40
          v_and_b32 v12, 1, v1
          v_lshl_add_u32 v113, v12, 4, v113
          s_lshl_b32 s50, s40, 8
          s_mul_i32 s50, s50, s38
          s_lshl_b32 s44, s37, 5
          s_add_u32 s50, s50, s44           ; src
          s_lshl_b32 s51, s40, 5            ; 32 rows
          s_lshl_b32 s49, s37, 6
          s_add_u32 s49, s49, s43
          s_add_u32 s49, s49, {CSUM}
          s_mul_i32 s49, s49, s42
          s_mov_b32 s45, s36
          s_branch L_pk_done""")
    k(f"""L_att:
          s_and_b32 s38, s28, 7            ; q idx
          s_lshr_b32 s39, s28, 3
          s_lshl_b32 s33, s29, 1
          s_add_u32 s33, s33, s32
          s_lshl_b32 s33, s33, 5
          s_lshl_b32 s34, s30, 2
          s_add_u32 s33, s33, s34
          s_lshr_b32 s34, s38, 1
          s_add_u32 s33, s33, s34
          s_lshl_b32 s46, s33, 10
          v_lshlrev_b32 v2, 4, v1          ; lane*16
          s_lshl_b32 s44, s39, 15          ; half*32768
          s_lshl_b32 s47, s38, 10
          v_add_u32 v102, s47, v2
          v_add_u32 v102, {QL}, v102
          s_add_u32 s47, s47, s44
          v_add_u32 v3, s47, v2
          v_mov_b32 v103, {SX + 768}
          v_mov_b32 v112, 0""")
    k.stamp(8)
    k("""s_waitcnt lgkmcnt(0)
          s_barrier""")
    k.stamp(7)
    def kvdma(c):
        k(f"""s_add_u32 m0, s47, {KL + 8192*c}
              s_add_u32 s34, s57, {c}
              s_and_b32 s34, s34, {3 if KVROT else 0}
              s_lshl_b32 s34, s34, 13
              s_add_u32 s34, s34, {KF + (0 if KVROT else 8192*c)}
              s_add_u32 s35, s34, {VF - KF}
              buffer_load_dwordx4 v3, s[24:27], s34 offen lds
              s_add_u32 m0, s47, {VL + 8192*c}
              buffer_load_dwordx4 v3, s[24:27], s35 offen lds""")
    kvdma(0)
    k(f"""ds_read_b128 {vr(Q)}, v102
          ds_read_b128 v[120:123], v103""")
    k(f"""s_lshr_b32 s63, s29, 1
          s_lshl_b32 s63, s63, 11
          s_add_u32 s63, s63, {XID}
          """)
    k(f"""v_add_u32 v{vK}, s44, v2
          v_lshrrev_b32 v103, 5, v1
          v_and_b32 v106, 15, v1
          v_lshl_add_u32 v103, v103, 4, v106
          v_lshlrev_b32 v103, 4, v103
          v_add_u32 v103, s44, v103
          v_add_u32 v{vV}, {VL}, v103
          s_mov_b32 s40, 0x0000ffff
          s_mov_b32 s41, 0x0000ffff
          v_and_b32 v106, 31, v1
          v_cmp_eq_u32 vcc, 16, v106
          v_mov_b32 v107, 0x3f803f80
          v_cndmask_b32 v107, 0, v107, vcc""")
    for i in range(16): k(f"v_mov_b32 v{12+i}, v107")
    for i in range(16): k(f"v_mov_b32 v{O+i}, 0\nv_mov_b32 v{C+i}, 0")
    for i in range(4): k(f"v_mov_b32 v{P+4+i}, 0")
    k(f"""s_waitcnt lgkmcnt(0)
          v_readfirstlane_b32 s58, v120
          v_readfirstlane_b32 s59, v121
          v_mov_b32 v104, v122
          v_dot2_f32_bf16 v106, v{Q}, v{Q}, 0
          v_dot2_f32_bf16 v106, v{Q+1}, v{Q+1}, v106
          v_dot2_f32_bf16 v106, v{Q+2}, v{Q+2}, v106
          v_dot2_f32_bf16 v106, v{Q+3}, v{Q+3}, v106""")
    xhalf_add(k, 106, 105)
    k(f"""v_mul_f32 v104, v104, v106
          v_mov_b32 v107, {f32(3500.0)}
          v_cmp_nle_f32 vcc, v104, v107
          s_mov_b32 s42, 1
          s_mov_b32 s43, 3
          s_mov_b32 s36, 0
          s_waitcnt vmcnt(0)""")
    k(f"""s_movk_i32 s31, 0x4a
          s_cmp_eq_u32 s28, 5
          s_cselect_b32 s31, 0x6a, s31
          s_cmp_lg_u32 s62, 0
          s_cselect_b32 s31, 0x5a, s31""")
    def late():
        k(f"""s_cmp_eq_u32 s62, 0
              s_cbranch_scc1 L_nopk
              """)
        for i in range(8):
            k(f"""s_add_u32 m0, s45, {1024*i}
                  buffer_load_dwordx4 v113, s[20:23], s50 offen lds
                  s_add_u32 s50, s50, s51""")
        k(f"""L_nopk:
              s_cmp_ge_u32 s28, 8
              s_cbranch_scc1 L_nozc
              s_lshr_b32 s34, s29, 1
              s_lshl_b32 s34, s34, 3
              s_add_u32 s34, s34, s28
              s_lshl_b32 s34, s34, 4
              s_and_b32 s35, s29, 1
              s_lshl_b32 s35, s35, 3
              s_add_u32 s34, s34, s35
              s_add_u32 s34, s34, s30
              s_lshl_b32 s34, s34, 7
              s_add_u32 s34, s34, {ZSTAT}
              v_mov_b32 v116, -1
              v_mov_b32 v117, -1
              v_lshlrev_b32 v118, 3, v1
              s_mov_b64 exec, 0xffff
              buffer_store_dwordx2 v[116:117], v118, s[24:27], s34 offen sc1
              s_mov_b64 exec, -1
              L_nozc:""")

    k(f"""s_cbranch_vccnz L_k2_slow
          s_barrier""")
    kvdma(1)
    k.stamp(1)
    if os.environ.get("STP0"): k.stamp = lambda i, real=False: None if i < 13 else Kern.stamp(k, i, real)
    k("L_k2_start:")
    k(f"""ds_read_b128 {vr(KFR)}, v{vK}
          s_waitcnt lgkmcnt(0)
          v_mfma_f32_32x32x16_bf16 {vr(S[0],16)}, {vr(KFR)}, {vr(Q)}, {vr(C,16)}
          ds_read_b128 {vr(KFR)}, v{vK} offset:1024
          s_mov_b64 exec, s[40:41]
          ds_read_b128 {vr(VFR[0][0])}, v{vV}
          ds_read_b128 {vr(VFR[0][1])}, v{vV} offset:512
          s_mov_b64 exec, -1
          s_nop 7""")
    k("L_k2_loop:")
    k("""s_bitcmp1_b32 s31, s36
         s_cbranch_scc1 L_k2_ev""")
    k("L_k2_body:")
    for u in range(4):
        s = S[u & 1]; sn = S[(u + 1) & 1]; vf = VFR[u & 1]; vn = VFR[(u + 1) & 1]
        k(f"s_setprio {3-u}")
        qk = f"""s_waitcnt lgkmcnt(2)
              v_mfma_f32_32x32x16_bf16 {vr(sn,16)}, {vr(KFR)}, {vr(Q)}, {vr(C,16)}
              ds_read_b128 {vr(KFR)}, v{vK} offset:{1024*(u+2)}"""
        vrd = f"""s_mov_b64 exec, s[40:41]
              ds_read_b128 {vr(vn[0])}, v{vV} offset:{1024*(u+1)}
              ds_read_b128 {vr(vn[1])}, v{vV} offset:{1024*(u+1)+512}
              s_mov_b64 exec, -1"""
        pva = f"v_mfma_f32_32x32x16_bf16 {vr(O,16)}, {vr(vf[0])}, {vr(P)}, {vr(O,16)}"
        pvb_prev = f"v_mfma_f32_32x32x16_bf16 {vr(O,16)}, {vr(vn[1])}, {vr(P+4)}, {vr(O,16)}"
        E = lambda i: f"v_exp_f32 v{s+i}, v{s+i}"
        Cv = lambda j: f"v_cvt_pk_bf16_f32 v{P+j}, v{s+2*j}, v{s+2*j+1}"
        k(E(0)); k(E(1))
        k(pvb_prev); k(vrd)
        k(E(2)); k(E(3)); k(Cv(0)); k(E(4)); k(E(5)); k(Cv(1))
        k(qk)
        k(E(6)); k(E(7)); k(Cv(2)); k(E(8)); k(E(9)); k(Cv(3)); k(E(10)); k(E(11))
        k(pva)
        k(Cv(4)); k(E(12)); k(E(13)); k(Cv(5)); k(E(14)); k(E(15)); k(Cv(6)); k(Cv(7))
    k(f"""v_add_u32 v{vK}, 4096, v{vK}
          v_add_u32 v{vV}, 4096, v{vV}
          s_add_u32 s36, s36, 1
          s_cmp_lt_u32 s36, {NIT}
          s_cbranch_scc1 L_k2_loop
          v_mfma_f32_32x32x16_bf16 {vr(O,16)}, {vr(VFR[1][1])}, {vr(P+4)}, {vr(O,16)}
          s_setprio 0""")
    k.stamp(2)
    k("""s_cmp_eq_u32 s28, 4
         s_cbranch_scc0 L_kb_nochk""")
    k(f"""v_and_b32 v110, 15, v1
          v_lshlrev_b32 v110, 7, v110
          s_mov_b32 s60, 0
          L_xc_b:
          buffer_load_dwordx2 v[108:109], v110, s[24:27], s63 offen sc1
          s_add_u32 s60, s60, 1
          s_waitcnt vmcnt(0)
          v_subrev_u32 v109, s59, v109
          v_xor_b32 v108, s58, v108
          v_lshrrev_b32 v106, 4, v109
          v_or_b32 v108, v108, v106
          v_cmp_ne_u32 vcc, 0, v108
          s_cmp_gt_u32 s60, 0x40000
          s_cbranch_scc1 L_xcok_b
          s_cbranch_vccnz L_xc_b
          L_xcok_b:
          v_readfirstlane_b32 s60, v109
          v_cmp_ne_u32 vcc, s60, v109
          s_cmp_eq_u64 vcc, 0
          s_cselect_b32 s60, {FAST}, 0
          v_mov_b32 v106, s60""")
    k(f"""v_mov_b32 v107, {XL + 18432}
          ds_write_b32 v107, v106
          s_waitcnt lgkmcnt(0)
          L_kb_nochk:
          s_nop 3""")
    k(f"""s_mul_i32 s45, s38, 2304
          s_add_u32 s45, s45, {XL}
          v_add_u32 v103, s45, v2
          v_lshlrev_b32 v104, 2, v1
          v_add_u32 v104, s45, v104
          s_cmp_eq_u32 s39, 0
          s_cbranch_scc1 L_k2_fin
          ds_write_b128 v103, {vr(O)}
          ds_write_b128 v103, {vr(O+4)} offset:1024
          ds_write_b32 v104, v{O+8} offset:2048
          s_waitcnt vmcnt(0) lgkmcnt(0)
          s_barrier
          s_cmp_lt_u32 s28, 12
          s_cbranch_scc1 L_kb_loader
          s_endpgm""")
    def pfl():
        k(f"""s_and_b32 s34, s29, 1
          s_lshl_b32 s34, s34, 3
          s_add_u32 s34, s34, s30
          s_mul_i32 s34, s34, 6
          s_min_u32 s34, s34, 80           ; 2*u0
          s_lshl_b32 s35, s30, 3
          s_add_u32 s35, s35, 172
          s_mul_i32 s37, s30, 12
          s_add_u32 s37, s37, {236-20}
          s_sub_u32 s34, s34, 8
          v_and_b32 v108, 31, v1
          v_add_u32 v109, s35, v108
          v_add_u32 v110, s34, v108
          v_cmp_lt_u32 vcc, 7, v108
          v_cndmask_b32 v109, v109, v110, vcc
          v_add_u32 v110, {86-6}, v110
          v_cmp_lt_u32 vcc, 13, v108
          v_cndmask_b32 v109, v109, v110, vcc
          v_add_u32 v110, s37, v108
          v_cmp_lt_u32 vcc, 19, v108
          v_cndmask_b32 v109, v109, v110, vcc
          v_lshlrev_b32 v112, 7, v109
          s_mov_b32 s34, {PFLAG}
          buffer_load_dwordx2 v[110:111], v112, s[24:27], s34 offen sc1""")
    k(f"""L_k2_ev:
          s_cmp_eq_u32 s36, 6
          s_cbranch_scc1 L_k2_st6
          s_cmp_eq_u32 s36, 5
          s_cbranch_scc1 L_k2_pfl
          s_cmp_eq_u32 s36, 4
          s_cbranch_scc1 L_k2_st4
          s_cmp_eq_u32 s36, 3
          s_cbranch_scc1 L_k2_st3
          s_cmp_eq_u32 s42, 1
          s_cbranch_scc0 L_k2_st1c
          s_waitcnt vmcnt(0)
          s_barrier""")
    kvdma(2); kvdma(3)
    k("L_k2_st1c:")
    late()
    k(f"""s_branch L_k2_body
          L_k2_pub:
          s_cmp_eq_u32 s28, 4
          s_cbranch_scc0 L_k2_body
          s_and_b32 s34, s29, 1
          s_lshl_b32 s34, s34, 3
          s_add_u32 s34, s34, s30
          s_lshl_b32 s34, s34, 7
          s_add_u32 s34, s34, s63
          s_getreg_b32 s60, hwreg(HW_REG_XCC_ID, 0, 4)
          s_add_u32 s60, s60, s59
          v_mov_b32 v108, s58
          v_mov_b32 v109, s60
          v_mov_b32 v110, 0
          s_mov_b64 exec, 1
          buffer_store_dwordx2 v[108:109], v110, s[24:27], s34 offen sc1
          s_mov_b64 exec, -1
          s_branch L_k2_body
          L_k2_st4:
          v_mov_b32 v112, s58
          v_mov_b32 v113, s59
          v_mov_b32 v114, 0
          s_waitcnt vmcnt(0)
          s_mov_b64 exec, 1
          buffer_store_dwordx2 v[112:113], v114, s[24:27], s62 offen sc1
          s_mov_b64 exec, -1
          s_branch L_k2_body
          L_k2_pk:
          s_mov_b32 s34, 0x3f803f80
          s_add_u32 s35, s48, 4096
          v_mov_b32 v110, 0
          v_mov_b32 v111, 0""")
    for h in range(2):
        for i in range(4):
            k(f"""ds_read_b64_tr_b16 v[{112+4*i}:{113+4*i}], v108 offset:{1024*(4*h+i)}
                  ds_read_b64_tr_b16 v[{114+4*i}:{115+4*i}], v109 offset:{1024*(4*h+i)}""")
        k("s_waitcnt lgkmcnt(0)")
        for i in range(4):
            k(f"buffer_store_dwordx4 {vr(112+4*i)}, v2, s[24:27], {'s35' if h else 's48'} offen offset:{1024*i} sc1")
        for i in range(16): k(f"v_dot2_f32_bf16 v{110+(i&1)}, v{112+i}, s34, v{110+(i&1)}")
    k("""s_cmp_eq_u32 s49, 0
         s_cbranch_scc1 L_k2_body
         v_add_f32 v110, v110, v111""")
    xhalf_add(k, 110, 111); x16_add(k, 110, 111)
    k(f"""v_lshlrev_b32 v111, 2, v1
          s_mov_b64 exec, 0xffff
          buffer_store_dword v110, v111, s[24:27], s49 offen sc1
          s_mov_b64 exec, -1
          s_branch L_k2_body
          L_k2_st3:
          s_waitcnt vmcnt(0)
          s_cmp_eq_u32 s42, 1
          s_cbranch_scc0 L_k2_st3b
          s_barrier
          L_k2_st3b:
          s_cmp_lg_u32 s62, 0
          s_cbranch_scc1 L_k2_pk
          s_cmp_ge_u32 s28, 4
          s_cbranch_scc1 L_k2_body
          s_load_dwordx2 s[52:53], s[0:1], 56
          s_lshr_b32 s61, s2, 3
          s_lshl_b32 s61, s61, 2
          s_add_u32 s61, s61, s28
          v_lshlrev_b32 v108, 7, v1        ; lane*128
          s_and_b32 s37, s2, 7
          s_lshl_b32 s37, s37, 20
          s_lshl_b32 s61, s61, 13
          s_add_u32 s37, s37, s61
          s_mov_b32 s54, {2048*4096}
          s_mov_b32 s55, 0x00020000
          s_waitcnt lgkmcnt(0)
          buffer_load_dword v109, v108, s[52:55], s37 offen
          s_branch L_k2_body
          L_k2_pfl:""")
    pfl()
    k(f"""
          s_branch L_k2_body""")
    k(f"""L_k2_st6:
          s_cmp_eq_u32 s28, 5
          s_cbranch_scc0 L_k2_st6b
          s_mov_b32 s60, 0
          s_mov_b32 s34, {PFLAG}
          L_k2_pv:
          s_waitcnt vmcnt(0)
          v_xor_b32 v110, s58, v110
          v_xor_b32 v111, s59, v111
          v_or_b32 v110, v110, v111
          v_cmp_ne_u32 vcc, 0, v110
          s_add_u32 s60, s60, 1
          s_cmp_gt_u32 s60, 0x40000
          s_cbranch_scc1 L_k2_st6b
          s_cbranch_vccz L_k2_st6b
          buffer_load_dwordx2 v[110:111], v112, s[24:27], s34 offen sc1
          s_branch L_k2_pv
          L_k2_st6b:
          s_lshl_b32 s34, s30, 16
          s_lshl_b32 s35, s28, 12
          s_add_u32 s34, s34, s35
          s_add_u32 s34, s34, {WOP}
          s_lshr_b32 s37, s28, 2
          s_lshl_b32 s37, s37, 15
          s_lshl_b32 s35, s3, 12
          s_add_u32 m0, s37, s35
          s_waitcnt lgkmcnt(0)
          s_barrier""")
    for j in range(4):
        k(f"buffer_load_dwordx4 v2, s[24:27], s34 offen offset:{1024*j} lds")
    k(f"""s_cmp_ge_u32 s28, 12
          s_cbranch_scc1 L_k2_body
          s_lshr_b32 s34, s2, 3
          s_mul_i32 s34, s34, 12
          s_add_u32 s34, s34, s28
          s_lshl_b32 s34, s34, 13
          s_add_u32 s34, s34, {WPK}
          v_lshlrev_b32 v116, 7, v1
          buffer_load_dword v117, v116, s[24:27], s34 offen""")
    k("s_branch L_k2_pub")
    k("L_k2_slow:")
    kvdma(1); kvdma(2); kvdma(3)
    k(f"""s_waitcnt vmcnt(0)
          s_barrier
          s_barrier
          s_barrier
          s_mov_b32 s42, 99
          s_mov_b32 s43, 99
          v_mov_b32 v104, 0xff800000
          v_mov_b32 v103, v2
          s_mov_b32 s37, 0
          L_k2_mx:
          ds_read_b128 {vr(KFR)}, v103
          s_waitcnt lgkmcnt(0)
          v_mfma_f32_32x32x16_bf16 {vr(S[0],16)}, {vr(KFR)}, {vr(Q)}, 0
          v_add_u32 v103, 1024, v103""")
    for i in range(8):
        k(f"v_max3_f32 v104, v{S[0]+2*i}, v{S[0]+2*i+1}, v104")
    k(f"""s_add_u32 s37, s37, 1
          s_cmp_lt_u32 s37, 64
          s_cbranch_scc1 L_k2_mx
          v_mov_b32 v105, v104
          v_permlane32_swap_b32 v104, v105
          v_max_f32 v104, v104, v105""")
    for i in range(16): k(f"v_sub_f32 v{C+i}, 0, v104")
    k(f"""s_nop 1
          s_branch L_k2_start""")
    k(f"""L_k2_fin:
          s_load_dwordx2 s[4:5], s[0:1], 0
          s_waitcnt vmcnt(0)
          s_barrier
          ds_read_b128 {vr(S[0])}, v103
          ds_read_b128 {vr(S[0]+4)}, v103 offset:1024
          ds_read_b32 v{S[0]+8}, v104 offset:2048
          v_mov_b32 v107, {XL + 18432}
          ds_read_b32 v106, v107
          s_waitcnt lgkmcnt(0)
          v_readfirstlane_b32 s63, v106""")
    for r in range(9): k(f"v_add_f32 v{O+r}, v{O+r}, v{S[0]+r}")
    k(f"""v_mov_b32 v104, v{O+8}
          v_permlane32_swap_b32 v{O+8}, v104
          v_rcp_f32 v104, v{O+8}""")
    for r in range(8): k(f"v_mul_f32 v{O+r}, v104, v{O+r}")
    for r in range(4): k(f"v_cvt_pk_bf16_f32 v{P+r}, v{O+2*r}, v{O+2*r+1}")
    k(f"""s_add_u32 s33, s46, {OF}
          """)
    hstore(k, f"buffer_store_dwordx4 {vr(P)}, v2, s[24:27], s33 offen")
    k("s_barrier")
    lane_fields(k)
    k(f"""s_lshl_b32 s33, s29, 13
          s_add_u32 s33, s33, {OFLAG}
          s_lshl_b32 s34, s32, 12
          s_add_u32 s34, s34, s33
          s_lshl_b32 s35, s30, 9
          s_add_u32 s34, s34, s35
          s_lshr_b32 s35, s28, 1
          s_lshl_b32 s35, s35, 7
          s_add_u32 s34, s34, s35
          s_and_b32 s35, s28, 2
          s_lshl_b32 s35, s35, 11
          s_add_u32 s33, s33, s35
          s_and_b32 s35, s28, 4
          s_lshl_b32 s35, s35, 9
          s_add_u32 s33, s33, s35""")
    k(f"""s_lshr_b32 s61, s28, 2           ; kh
          s_lshl_b32 s36, s29, 2
          s_add_u32 s36, s36, s3           ; rb16
          s_lshl_b32 s37, s30, 1
          s_add_u32 s37, s37, s61
          v_and_b32 v14, 15, v1
          v_lshlrev_b32 v3, 10, v14
          v_lshl_add_u32 v3, v8, 3, v3
          s_lshl_b32 s44, s36, 14
          s_lshl_b32 s45, s37, 6
          s_add_u32 s44, s44, s45""")
    srd(k, 16, 4, 5, 2048 * 1024)
    set_flagN(k, "s34")
    k.stamp(3)
    k("""buffer_load_dwordx2 v[96:97], v3, s[16:19], s44 offen
         buffer_load_dwordx2 v[98:99], v3, s[16:19], s44 offen offset:32
         s_lshl_b32 s45, s61, 13
         v_add_u32 v4, s45, v2
         v_add_u32 v5, 65536, v4""")
    act32_voff(k, 3, "s32")
    k(f"""s_lshr_b32 s46, s36, 1
          s_lshl_b32 s46, s46, 15
          s_lshl_b32 s47, s61, 14
          s_add_u32 s46, s46, s47
          s_add_u32 s46, s46, {OF}""")
    for r in range(16): k(f"v_mov_b32 v{16+r}, 0")
    woff = lambda s, u: (4 + (u >> 1), (u & 1) * 32768 + s * 1024)
    gemm64_reads(k, 0, woff)
    pollN(k, "s33", "o", 16)
    k.stamp(4)
    for s in range(8):
        if s % 2 == 0: k(f"s_add_u32 s47, s46, {s*2048}")
        k(f"buffer_load_dwordx4 {vr(64+4*s)}, v3, s[24:27], s47 offen offset:{2048*(s&1)} {LSC}")
    gemm64(k, 8, woff, 64)
    k.stamp(5)
    k("s_barrier")
    ksplit_exchange(k, 0, "s28", tag="b")
    k(f"""v_lshlrev_b32 v40, 16, v96
          v_and_b32 v41, 0xffff0000, v96
          v_lshlrev_b32 v42, 16, v97
          v_and_b32 v43, 0xffff0000, v97
          v_lshlrev_b32 v44, 16, v98
          v_and_b32 v45, 0xffff0000, v98
          v_lshlrev_b32 v46, 16, v99
          v_and_b32 v47, 0xffff0000, v99
          s_lshl_b32 s47, s36, 4
          s_add_u32 s47, s47, s37
          s_lshl_b32 s46, s47, 7
          s_add_u32 s33, s46, {HFLAG}
          s_add_u32 s46, s46, {HSTAT}
          s_lshl_b32 s47, s47, 10
          s_add_u32 s47, s47, {HF}""")
    for i in range(8): k(f"v_add_f32 v{16+i}, v{16+i}, v{40+i}")
    k("s_waitcnt lgkmcnt(0)")
    for i in range(8): k(f"v_add_f32 v{16+i}, v{16+i}, v{32+i}")
    for i in range(4): k(f"v_cvt_pk_bf16_f32 v{48+i}, v{16+2*i}, v{17+2*i}")
    hstore(k, "buffer_store_dwordx4 v[48:51], v2, s[24:27], s47 offen")
    k("""v_mov_b32 v54, 0x3f803f80
         v_dot2_f32_bf16 v52, v48, v54, 0
         v_dot2_f32_bf16 v53, v48, v48, 0""")
    for i in range(1, 4):
        k(f"""v_dot2_f32_bf16 v52, v{48+i}, v54, v52
              v_dot2_f32_bf16 v53, v{48+i}, v{48+i}, v53""")
    xhalf_add(k, 52, 12); xhalf_add(k, 53, 13)
    x16_add(k, 52, 12); x16_add(k, 53, 13)
    k("""v_lshlrev_b32 v12, 3, v14
         s_mov_b64 exec, 0xffff""")
    hstore(k, "buffer_store_dwordx2 v[52:53], v12, s[24:27], s46 offen")
    k(f"""s_mov_b64 exec, -1
          s_and_b32 s31, s29, 1
          s_lshl_b32 s31, s31, 3
          s_add_u32 s30, s30, s31          ; g
          s_lshr_b32 s29, s29, 1           ; rb128
          s_mul_i32 s31, s30, 3
          s_min_u32 s31, s31, 40           ; u0
          s_lshl_b32 s36, s29, 3
          s_add_u32 s36, s36, s28
          s_lshl_b32 s62, s36, 11
          s_add_u32 s62, s62, {HFLAG}
          s_lshl_b32 s47, s36, 11
          s_add_u32 s47, s47, {ZSTAT}""")
    ACC, WF, H = 16, 40, 64
    k(f"""v_mov_b32 v4, v2
          v_add_u32 v5, 65536, v4
          v_add_u32 v6, 131072, v4
          v_lshlrev_b32 v7, 3, v14
          v_lshl_add_u32 v7, v8, 9, v7      ; n*8 + g*512""")
    set_flagN(k, "s33")
    k.stamp(6)
    k(f"""s_cmp_eq_u32 s30, 15
          s_cbranch_scc0 L_k4_work
          v_mov_b32 v16, 0
          v_mov_b32 v17, 0
          v_lshlrev_b32 v12, 3, v14
          s_add_u32 s47, s47, {15*128}
          buffer_store_dwordx2 v[16:17], v12, s[24:27], s47 offen sc1
          s_barrier
          s_branch L_z_done
          L_k4_work:""")
    UP = [("v4", 16384), ("v4", 49152), ("v5", 16384), ("v5", 49152), ("v6", 0), ("v6", 16384)]
    def wreads(s, half):
        for u in range(3):
            b, o = UP[3*half + u]; f = WF + 12*half + 4*u
            k(f"ds_read_b128 {vr(f)}, {b} offset:{o + 1024*s}")
    for r in range(24): k(f"v_mov_b32 v{ACC+r}, 0")
    wreads(0, 0)
    k(f"""s_lshl_b32 s46, s36, 14
          s_add_u32 s46, s46, {HF}
          s_lshl_b32 s45, s36, 11
          s_add_u32 s45, s45, {HSTAT}
          """)
    pollN(k, "s62", "h", 16)
    k.stamp(7)
    q = VQ(k); hl = []
    for s in range(16):
        def f(s=s):
            if s % 4 == 0: k(f"s_add_u32 s44, s46, {s*1024}")
            k(f"buffer_load_dwordx4 {vr(H+4*s)}, v2, s[24:27], s44 offen offset:{1024*(s&3)} {LSC}")
        hl.append(f)
    for s in range(HW): q.issue(f"h{s}", 1, hl[s])
    def sl():
        for i in range(4):
            k(f"buffer_load_dwordx2 v[{8+2*i}:{9+2*i}], v7, s[24:27], s45 offen offset:{128*i} {LSC}")
    CS2, CS1, MR = 64, 72, 96
    for s in range(16):
        wreads(s, 1)
        q.wait(f"h{s}", extra=" lgkmcnt(3)")
        for u in range(3):
            k(f"v_mfma_f32_16x16x32_bf16 {vr(ACC+4*u)}, {vr(H+4*s)}, {vr(WF+4*u)}, {vr(ACC+4*u)}")
        if s + HW < 16: q.issue(f"h{s+HW}", 1, hl[s+HW])
        if s == 7: q.issue("st", 4, sl)
        if s < 15:
            wreads(s + 1, 0); k("s_waitcnt lgkmcnt(3)")
        else:
            k("s_waitcnt lgkmcnt(0)")
        for u in range(3):
            k(f"v_mfma_f32_16x16x32_bf16 {vr(ACC+12+4*u)}, {vr(WF+12+4*u)}, {vr(H+4*s)}, {vr(ACC+12+4*u)}")
        if s == 6:
            k.stamp(8)
        if s == 8:
            def cs():
                k(f"""v_and_b32 v3, 15, v1
                      v_lshlrev_b32 v3, 2, v3
                      s_lshl_b32 s38, s31, 6
                      s_add_u32 s38, s38, {CSUM}
                      s_add_u32 s39, s38, {688*4}""")
                for p in range(2):
                    for u in range(3):
                        k(f"buffer_load_dword v{CS2+3*p+u}, v3, s[24:27], s39 offen offset:{64*u}")
                    k("s_add_u32 s39, s39, 8192")
                k("v_lshrrev_b32 v3, 4, v1\nv_lshlrev_b32 v3, 4, v3")
                for p in range(2):
                    for u in range(3):
                        k(f"buffer_load_dwordx4 {vr(CS1+12*p+4*u)}, v3, s[24:27], s38 offen offset:{64*u}")
                    k("s_add_u32 s38, s38, 8192")
            q.issue("cs", 12, cs)
        if s == 12:
            q.wait("st")
            k("""v_add_f32 v8, v8, v10
                 v_add_f32 v9, v9, v11
                 v_add_f32 v12, v12, v14
                 v_add_f32 v13, v13, v15
                 v_add_f32 v8, v8, v12
                 v_add_f32 v9, v9, v13""")
            xhalf_add(k, 8, 12); xhalf_add(k, 9, 13)
        if s == 13:
            x16_add(k, 8, 12); x16_add(k, 9, 13)
            ln_stats(k, 8, 9, 512, 12)
        if s == 15:
            for r in range(4):
                k(f"""v_add_u32 v12, {4*r}, v3
                      ds_bpermute_b32 v{MR+r}, v12, v8
                      ds_bpermute_b32 v{MR+4+r}, v12, v9""")
    k.stamp(9)
    k("s_barrier")
    T = 40; z2r = [ACC + i for i in range(12)]; z1r = [ACC + 12 + i for i in range(12)]
    k(f"""v_mov_b32 v15, {f32(GC2)}
          v_and_b32 v14, 15, v1
          s_waitcnt vmcnt(0)""")
    for u in range(3): k(f"v_add_f32 v{CS2+u}, v{CS2+u}, v{CS2+3+u}")
    k("s_waitcnt lgkmcnt(0)")
    for i, a in enumerate(z2r): k(f"v_fma_f32 v{a}, -v{MR+i%4}, v{CS2+i//4}, v{a}")
    for i, a in enumerate(z2r): k(f"v_mul_f32 v{a}, v{MR+4+i%4}, v{a}")
    for i, a in enumerate(z2r): k(f"v_mul_f32 v{T+i}, v{a}, v{a}")
    for i, a in enumerate(z2r): k(f"v_fmaak_f32 v{T+i}, v15, v{T+i}, {f32(GC1)}")
    for i, a in enumerate(z2r): k(f"v_mul_f32 v{T+i}, v{T+i}, v{a}")
    for i, a in enumerate(z2r): k(f"v_exp_f32 v{T+i}, v{T+i}")
    for i, a in enumerate(z2r): k(f"v_add_f32 v{T+i}, 1.0, v{T+i}")
    for i, a in enumerate(z2r): k(f"v_rcp_f32 v{T+i}, v{T+i}")
    for i, a in enumerate(z2r): k(f"v_mul_f32 v{a}, v{a}, v{T+i}")
    SQ = 52
    for r in range(4):
        k(f"v_mov_b32 v{SQ+2*r}, v{ACC+8+r}\nv_mul_f32 v{SQ+2*r+1}, v{ACC+8+r}, v{ACC+8+r}")
    k("""s_cmp_eq_u32 s30, 14
         s_cbranch_scc1 L_k4_red""")
    for u in range(2):
        for r in range(4):
            a = ACC + 4*u + r
            k(f"v_add_f32 v{SQ+2*r}, v{SQ+2*r}, v{a}\nv_fmac_f32 v{SQ+2*r+1}, v{a}, v{a}")
    k("s_nop 0\nL_k4_red:")
    for i in range(4): k(f"v_add_f32_dpp v{SQ+i}, v{SQ+i}, v{SQ+i} row_ror:8 row_mask:0xf bank_mask:0x3")
    for i in range(4): k(f"v_add_f32_dpp v{SQ+i}, v{SQ+4+i}, v{SQ+4+i} row_ror:8 row_mask:0xf bank_mask:0xc")
    for m_ in ("row_half_mirror", "quad_perm:[1,0,3,2]", "quad_perm:[2,3,0,1]"):
        for i in range(4): k(f"v_add_f32_dpp v{SQ+i}, v{SQ+i}, v{SQ+i} {m_} row_mask:0xf bank_mask:0xf")
    k(f"""s_mov_b32 s49, -2
          s_lshl_b32 s48, s30, 7
          s_add_u32 s48, s48, s47
          v_lshlrev_b32 v12, 1, v1           ; (l>>3)*16 for lanes l%8==0""")
    for j in range(4): k(f"v_min_u32 v{SQ+j}, s49, v{SQ+j}")
    k(f"""s_mov_b32 s50, 0x01010101
          s_mov_b32 s51, 0x01010101
          s_mov_b64 exec, s[50:51]""")
    hstore(k, f"buffer_store_dwordx4 {vr(SQ)}, v12, s[24:27], s48 offen")
    k("s_mov_b64 exec, -1")
    k.stamp(10)
    k(f"""v_mul_f32 v10, {f32(GC1)}, v9
          v_mul_f32 v11, v9, v9
          v_mul_f32 v11, v11, v9
          v_mul_f32 v11, {f32(GC2)}, v11
          v_rcp_f32 v13, v9""")
    for i in range(12): k(f"v_add_f32 v{CS1+i}, v{CS1+i}, v{CS1+12+i}")
    for i, a in enumerate(z1r): k(f"v_fma_f32 v{a}, -v8, v{CS1+i}, v{a}")
    for i, a in enumerate(z1r): k(f"v_mul_f32 v{T+i}, v{a}, v{a}")
    for i, a in enumerate(z1r): k(f"v_fma_f32 v{T+i}, v{T+i}, v11, v10")
    for i, a in enumerate(z1r): k(f"v_mul_f32 v{T+i}, v{T+i}, v{a}")
    for i, a in enumerate(z1r): k(f"v_exp_f32 v{T+i}, v{T+i}")
    for i, a in enumerate(z1r): k(f"v_fma_f32 v{T+i}, v{T+i}, v13, v13")
    for i, a in enumerate(z1r): k(f"v_rcp_f32 v{T+i}, v{T+i}")
    for i, a in enumerate(z1r): k(f"v_mul_f32 v{a}, v{a}, v{T+i}")
    k(f"""v_lshrrev_b32 v10, 4, v1           ; g
          v_and_b32 v11, 1, v10
          v_lshrrev_b32 v10, 1, v10
          v_lshlrev_b32 v12, 9, v11
          v_lshl_add_u32 v12, v14, 4, v12
          v_lshl_add_u32 v12, v10, 3, v12
          v_lshlrev_b32 v6, 9, v10
          v_lshl_add_u32 v6, v14, 4, v6
          v_lshl_add_u32 v6, v11, 3, v6
          s_lshr_b32 s44, s36, 1
          s_mul_i32 s44, s44, 44
          s_add_u32 s44, s44, s31
          s_lshl_b32 s44, s44, 10
          s_and_b32 s45, s36, 1
          s_lshl_b32 s45, s45, 8
          s_add_u32 s44, s44, s45
          s_add_u32 s44, s44, {Z1}
          s_mov_b32 s54, 0""")
    for u in range(3):
        a = ACC + 12 + 4*u; p = 64 + 2*u
        k(f"""v_cvt_pk_bf16_f32 v{p}, v{a}, v{a+1}
              v_cvt_pk_bf16_f32 v{p+1}, v{a+2}, v{a+3}
              buffer_store_dwordx2 v[{p}:{p+1}], v12, s[24:27], s44 offen offset:{1024*u} {ZSC}""")
    k("L_k4_poll:")
    for i in range(4):
        k(f"buffer_load_dwordx2 v[{72+2*i}:{73+2*i}], v7, s[24:27], s47 offen offset:{128*i} sc1")
    k(f"""s_waitcnt vmcnt(0)
          v_max3_u32 v12, v72, v73, v74
          v_max3_u32 v13, v75, v76, v77
          v_max3_u32 v12, v12, v78, v79
          v_max_u32 v12, v12, v13
          v_cmp_eq_u32 vcc, -1, v12
          s_add_u32 s54, s54, 1
          s_cmp_gt_u32 s54, 0x40000
          s_cbranch_scc1 L_k4_go
          s_cbranch_vccz L_k4_go
          s_sleep {SLEEP}
          s_branch L_k4_poll
          L_k4_go:""")
    k.stamp(11)
    k("""v_add_f32 v72, v72, v74
         v_add_f32 v73, v73, v75
         v_add_f32 v76, v76, v78
         v_add_f32 v77, v77, v79
         v_add_f32 v72, v72, v76
         v_add_f32 v73, v73, v77""")
    xhalf_add(k, 72, 12); xhalf_add(k, 73, 13)
    x16_add(k, 72, 12); x16_add(k, 73, 13)
    ln_stats(k, 72, 73, 688, 12)
    k("v_mul_f32 v72, -v72, v73")
    for r in range(4):
        k(f"""v_add_u32 v12, {4*r}, v3
              ds_bpermute_b32 v{MR+r}, v12, v72
              ds_bpermute_b32 v{MR+4+r}, v12, v73""")
    k(f"""s_lshl_b32 s45, s36, 10
          s_add_u32 s45, s45, {Z2F}
          s_waitcnt lgkmcnt(0)""")
    for i, a in enumerate(z2r): k(f"v_fma_f32 v{a}, v{a}, v{MR+4+i%4}, v{MR+i%4}")
    for u in range(3):
        a = ACC + 4*u; p = 80 + 2*u
        k(f"""s_add_u32 s44, s31, {u}
              s_lshr_b32 s46, s44, 1
              s_lshl_b32 s46, s46, 17
              s_and_b32 s44, s44, 1
              s_lshl_b32 s44, s44, 8
              s_add_u32 s44, s44, s46
              s_add_u32 s44, s44, s45
              v_cvt_pk_bf16_f32 v{p}, v{a}, v{a+1}
              v_cvt_pk_bf16_f32 v{p+1}, v{a+2}, v{a+3}
              buffer_store_dwordx2 v[{p}:{p+1}], v6, s[24:27], s44 offen {ZSC}""")
    k("L_z_done:")
    AD, NS, WOL = 3, 6, 65536
    ACC, BF, A = 16, 48, 80
    k(f"""s_load_dwordx2 s[6:7], s[0:1], 64
          s_load_dwordx2 s[10:11], s[0:1], 80
          s_mul_i32 s34, s57, 3
          s_min_u32 s34, s34, 19
          s_add_u32 s34, s34, s28
          s_lshl_b32 s62, s56, 12
          s_add_u32 s62, s62, {YFLAG}
          s_lshl_b32 s52, s34, 7
          s_add_u32 s52, s52, s62
          s_mul_i32 s53, s61, {11*128}
          s_add_u32 s62, s62, s53
          s_lshl_b32 s40, s34, 17
          s_add_u32 s40, s40, {Z2F}
          s_mul_i32 s39, s56, 88
          s_lshl_b32 s42, s34, 1
          s_add_u32 s39, s39, s42
          s_lshl_b32 s39, s39, 10
          v_and_b32 v15, 31, v1
          v_lshlrev_b32 v12, 1, v15
          s_lshl_b32 s43, s56, 7
          s_waitcnt vmcnt(0) lgkmcnt(0)
          s_barrier""")
    k.stamp(12)
    k(f"""s_cmp_lt_u32 s28, 3
          s_cbranch_scc1 L_k5_comp
          s_cmp_eq_u32 s28, 3
          s_cbranch_scc0 L_k5_idle
          s_lshl_b32 s44, s29, 4
          s_add_u32 s44, s44, s30
          s_lshl_b32 s44, s44, 7
          s_add_u32 s44, s44, {XIDC}""")
    set_flagN(k, "s44", drain=False, fast=False)
    k(f"""s_lshl_b32 s44, s57, 1
          s_min_u32 s44, s44, 12
          s_lshl_b32 s44, s44, 7
          s_add_u32 s44, s44, {XIDC}
          v_and_b32 v15, 15, v1
          v_lshlrev_b32 v15, 11, v15
          v_lshrrev_b32 v12, 4, v1
          v_min_u32 v12, 2, v12
          v_lshl_add_u32 v15, v12, 7, v15""")
    pollN(k, "s44", "z")
    k(f"""
          L_k5_idle:
          s_mov_b32 s55, 0
          L_k5_ib:
          s_barrier
          s_add_u32 s55, s55, 1
          s_cmp_lt_u32 s55, 33
          s_cbranch_scc1 L_k5_ib
          s_branch L_k6""")
    k("L_k5_comp:")
    srd(k, 20, 6, 7, 4096)
    k(f"""buffer_load_ushort v8, v12, s[20:23], s43 offen
          buffer_load_ushort v9, v12, s[20:23], s43 offen offset:64
          v_lshrrev_b32 v13, 1, v15
          v_and_b32 v13, 7, v13
          v_lshlrev_b32 v12, 7, v15
          v_lshrrev_b32 v10, 5, v1""")
    for qq in range(4):
        k(f"""v_add_u32 v14, {2*qq}, v10
              v_xor_b32 v14, v14, v13
              v_lshl_add_u32 v{4+qq}, v14, 4, v12""")
    k(f"""s_mov_b32 s55, 0
          s_mov_b32 s54, 24576
          s_waitcnt vmcnt(0)
          v_lshlrev_b32 v8, 16, v8
          v_lshlrev_b32 v9, 16, v9""")
    for r in range(16): k(f"v_mov_b32 v{ACC+r}, v8\nv_mov_b32 v{ACC+16+r}, v9")
    k("s_barrier")
    k.stamp(13 if False else 8)
    for i in range(AD):
        for j in range(4):
            k(f"buffer_load_dwordx4 {vr(A+16*i+4*j)}, v2, s[24:27], s40 offen offset:{1024*j}")
        k("s_add_u32 s40, s40, 4096")
    def breads(half, slotoff):
        for j in range(2):
            for th in range(2):
                k(f"ds_read_b128 {vr(BF+16*half+8*j+4*th)}, v{4+2*half+j} offset:{slotoff+4096*th}")
    def mf(half, slot, ld):
        for j in range(2):
            for th in range(2):
                k(f"v_mfma_f32_32x32x16_bf16 {vr(ACC+16*th,16)}, {vr(A+16*slot+8*half+4*j)}, {vr(BF+16*half+8*j+4*th)}, {vr(ACC+16*th,16)}")
            if ld: ld(2*half + j)
    def ald(slot): return lambda jj: k(f"buffer_load_dwordx4 {vr(A+16*slot+4*jj)}, v2, s[24:27], s40 offen offset:{1024*jj}")
    k("s_barrier")
    breads(0, 0)
    k("L_k5_loop:")
    for i in range(AD):
        breads(1, i * 8192)
        k(f"s_waitcnt vmcnt({4*AD-2}) lgkmcnt(4)")
        mf(0, i, ald(i))
        k(f"s_waitcnt vmcnt({4*AD-2}) lgkmcnt(0)")
        if i == AD - 1:
            for qq in range(4): k(f"v_add_u32 v{4+qq}, s54, v{4+qq}")
            k("""s_sub_u32 s54, 0, s54
                 s_add_u32 s55, s55, 1""")
        k("s_barrier")
        breads(0, ((i + 1) % AD) * 8192)
        mf(1, i, ald(i))
        k("s_add_u32 s40, s40, 4096")
        if i == 1:
            k(f"""s_add_u32 s44, s39, {Z1}
                  s_cmp_eq_u32 s55, 9
                  s_cselect_b32 s40, s44, s40""")
    k("""s_cmp_lt_u32 s55, 10
         s_cbranch_scc1 L_k5_loop""")
    k(f"s_add_u32 s43, s39, {Z1 + 44*1024}")
    breads(1, 0)
    k("s_waitcnt vmcnt(10) lgkmcnt(4)")
    mf(0, 0, lambda jj: k(f"buffer_load_dwordx4 {vr(A+4*jj)}, v2, s[24:27], s43 offen offset:{1024*jj}"))
    k("s_waitcnt vmcnt(10) lgkmcnt(0)\ns_barrier")
    breads(0, 8192)
    mf(1, 0, None)
    breads(1, 8192)
    k("s_waitcnt vmcnt(8) lgkmcnt(4)")
    mf(0, 1, None)
    k("s_waitcnt vmcnt(6) lgkmcnt(0)")
    mf(1, 1, None)
    k.stamp(9)
    Zs = [A + 32 + i for i in range(8)] + [A + i for i in range(8)]
    k(f"""s_add_u32 s42, s39, {YF}
          s_add_u32 s43, s42, {44*1024}
          s_waitcnt vmcnt(0)""")
    for i in range(16):
        k(f"""v_lshlrev_b32 v{48+2*i}, 16, v{Zs[i]}
              v_and_b32 v{49+2*i}, 0xffff0000, v{Zs[i]}""")
    for i in range(32): k(f"v_mul_f32 v{ACC+i}, v{ACC+i}, v{48+i}")
    for i in range(16): k(f"v_cvt_pk_bf16_f32 v{A+i}, v{ACC+2*i}, v{ACC+2*i+1}")
    hstore(k, [f"buffer_store_dwordx4 {vr(A+8*th+4*f)}, v2, s[24:27], {'s43' if th else 's42'} offen offset:{1024*f}" for th in range(2) for f in range(2)])
    set_flagN(k, "s52")
    k.stamp(10)
    k("L_k6:")
    lane_fields(k)
    k(f"""s_lshl_b32 s36, s56, 2
          s_add_u32 s36, s36, s3           ; rb16
          s_lshl_b32 s37, s57, 1
          s_add_u32 s37, s37, s61
          s_lshl_b32 s47, s36, 4
          s_add_u32 s47, s47, s37
          s_lshl_b32 s47, s47, 10
          s_add_u32 s47, s47, {HF}
          buffer_load_dwordx4 v[112:115], v2, s[24:27], s47 offen
          s_mul_i32 s45, s61, {11*1024}
          s_add_u32 s45, s45, {WOL}
          v_add_u32 v4, s45, v2
          v_add_u32 v5, {2*22528}, v4""")
    act32_voff(k, 3, "s32")
    k(f"""s_lshr_b32 s46, s36, 1
          s_mul_i32 s46, s46, {44*1024}
          s_mul_i32 s47, s61, {22*1024}
          s_add_u32 s46, s46, s47
          s_add_u32 s46, s46, {YF}
          s_cmp_eq_u32 s61, 0
          s_cselect_b32 s49, -1, 0""")
    srd(k, 16, 10, 11, 2048 * 1024)
    for r in range(16): k(f"v_mov_b32 v{16+r}, 0")
    for r in range(4): k(f"v_mov_b32 v{64+40+r}, 0")
    woff = lambda s, u: (4 + (u >> 1), (u & 1) * 22528 + s * 1024)
    gemm64_reads(k, 0, woff)
    pollN(k, "s62", "y", 11)
    k.stamp(11)
    for s in range(11):
        if s % 2 == 0: k(f"s_add_u32 s47, s46, {s*2048}")
        if s == 10: k("s_mov_b32 exec_hi, s49")
        k(f"buffer_load_dwordx4 {vr(64+4*s)}, v3, s[24:27], s47 offen offset:{2048*(s&1)}")
    k("s_mov_b32 exec_hi, -1")
    gemm64(k, 11, woff, 64)
    ksplit_exchange(k, 49152, "s28", tag="c")
    for i in range(4):
        k(f"""v_lshlrev_b32 v{40+2*i}, 16, v{112+i}
              v_and_b32 v{41+2*i}, 0xffff0000, v{112+i}""")
    for i in range(8): k(f"v_add_f32 v{16+i}, v{16+i}, v{40+i}")
    k(f"""v_and_b32 v12, 15, v1
          v_lshlrev_b32 v12, 10, v12
          v_and_b32 v13, 1, v8
          v_lshl_add_u32 v12, v13, 5, v12
          v_lshl_add_u32 v12, v9, 4, v12
          s_lshl_b32 s46, s36, 14
          s_lshl_b32 s47, s37, 6
          s_add_u32 s46, s46, s47
          s_waitcnt lgkmcnt(0)""")
    for i in range(8): k(f"v_add_f32 v{16+i}, v{16+i}, v{32+i}")
    for i in range(4): k(f"v_cvt_pk_bf16_f32 v{48+i}, v{16+2*i}, v{17+2*i}")
    k("""v_permlane16_swap_b32 v48, v50
         v_permlane16_swap_b32 v49, v51
         buffer_store_dwordx4 v[48:51], v12, s[16:19], s46 offen
         s_endpgm""")
    k(f"""L_kb_loader:
          s_and_b32 s31, s29, 1
          s_lshl_b32 s31, s31, 3
          s_add_u32 s30, s30, s31          ; g
          s_mul_i32 s31, s30, 3
          s_min_u32 s31, s31, 40           ; u0
          s_lshl_b32 s40, s31, 14
          s_lshl_b32 s38, s3, 12
          s_add_u32 s40, s40, s38
          s_add_u32 s40, s40, {WPK}
          s_barrier""")
    for i, pos in enumerate([16384, 49152, 81920, 114688, 131072, 147456]):
        src = (43 + i) * 16384 if i < 3 else (i - 3) * 16384
        k(f"""s_add_u32 m0, s38, {pos}
              s_add_u32 s42, s40, {src}""")
        for j in range(4):
            k(f"buffer_load_dwordx4 v2, s[24:27], s42 offen offset:{1024*j} lds")
            if WSL: k(f"s_sleep {WSL}")
    k.stamp(3)
    k(f"""s_load_dwordx2 s[16:17], s[0:1], 56
          s_lshl_b32 s35, s56, 6
          s_lshl_b32 s36, s3, 4
          s_add_u32 s35, s35, s36
          v_lshrrev_b32 v12, 3, v1
          v_add_u32 v5, s35, v12
          v_lshlrev_b32 v5, 12, v5
          v_and_b32 v13, 7, v1
          v_lshrrev_b32 v14, 4, v1
          v_xor_b32 v14, v13, v14
          v_lshl_add_u32 v5, v14, 4, v5
          v_xor_b32 v6, 64, v5
          v_add_u32 v6, {8*4096}, v6
          s_lshl_b32 s37, s3, 11
          s_lshl_b32 s36, s57, 2
          s_add_u32 s36, s36, s3
          s_mul_i32 s36, s36, 24576
          s_add_u32 s36, s36, {WUP}
          s_mul_i32 s35, s3, 22528
          s_add_u32 s35, s35, {WOL}
          s_mov_b32 s18, {2048*4096}
          s_mov_b32 s19, 0x00020000
          s_waitcnt vmcnt(0) lgkmcnt(0)""")
    k.stamp(4)
    k("s_barrier\ns_barrier\ns_barrier")
    q = VQ(k)
    def bi(c):
        q.issue(f"b{c}", 2, lambda: k(f"""s_add_u32 m0, s37, {(c % NS)*8192}
              s_movk_i32 s41, {c*128}
              buffer_load_dwordx4 v5, s[16:19], s41 offen lds
              s_add_u32 m0, s37, {(c % NS)*8192 + 1024}
              buffer_load_dwordx4 v6, s[16:19], s41 offen lds"""))
    def wi(c):
        q.issue(f"w{c}", 2, lambda: k(f"""s_add_u32 m0, s35, {c*2048}
              s_add_u32 s39, s36, {c*2048}
              buffer_load_dwordx4 v2, s[24:27], s39 offen lds
              s_sleep {WSL2}
              buffer_load_dwordx4 v2, s[24:27], s39 offen offset:1024 lds
              s_sleep {WSL2}"""))
    for c in range(11): wi(c)
    nxt = 0
    for _ in range(NS): bi(nxt); nxt += 1
    k.stamp(5)
    k("s_barrier\ns_barrier")
    for b in range(32):
        q.wait(f"b{b}"); k("s_barrier")
        if nxt < 32 and nxt - NS <= b - 1: bi(nxt); nxt += 1
    k("s_endpgm")
    k(f"L_{k.name}_end:\ns_endpgm")
    return k, (256, 1024, 163840)
```

```python
from common import *
from k3 import *
from g16 import *
from k4 import GC1, GC2
import os
LSC = os.environ.get('LSC', '')
MAPC = int(os.environ.get('MAPC', 0))
ZSC = os.environ.get('ZSC', 'sc1')
PT = int(os.environ.get('PT', 0))
HW = int(os.environ.get('HW', 6))
PF2 = int(os.environ.get('PF2', 1))
WSL = int(os.environ.get('WSL', 1))
WSL2 = int(os.environ.get('WSL2', 1))
PFM = int(os.environ.get('PFM', 15))
PFSC = os.environ.get('PFSC', '')

FUSEC = int(os.environ.get('FUSEC', 1))
def build_kbc():
    k = Kern("attn_kernel", nvgpr=128)
    NW = 16
    KL, VL, XL = 0, 65536, 131072
    Q = 4; KFR = 8; VFR = [[12, 16], [20, 24]]; P = 28; S = [36, 52]; O = 68; C = 84
    vK, vV = 100, 101
    NCH, NIT = 4, 8
    prologue_ids(k, 256)
    k("s_load_dwordx2 s[12:13], s[0:1], 96")
    k("""s_and_b32 s29, s2, 7
         s_lshr_b32 s30, s2, 3
         s_lshl_b32 s29, s29, 2
         s_lshr_b32 s31, s30, 3
         s_add_u32 s29, s29, s31          ; rb64
         s_and_b32 s30, s30, 7            ; cg
         s_and_b32 s3, s28, 3
         s_and_b32 s32, s28, 1            ; rh
         s_mov_b32 s56, s29
         s_mov_b32 s57, s30""")
    k(f"""s_and_b32 s38, s28, 7            ; q idx
          s_lshr_b32 s39, s28, 3
          s_lshl_b32 s33, s29, 1
          s_add_u32 s33, s33, s32
          s_lshl_b32 s33, s33, 5
          s_lshl_b32 s34, s30, 2
          s_add_u32 s33, s33, s34
          s_lshr_b32 s34, s38, 1
          s_add_u32 s33, s33, s34
          s_lshl_b32 s46, s33, 10
          v_lshlrev_b32 v2, 4, v1          ; lane*16
          s_lshl_b32 s44, s39, 15          ; half*32768
          s_lshl_b32 s47, s38, 10
          s_add_u32 s47, s47, s44
          v_add_u32 v3, s47, v2
          v_lshlrev_b32 v102, 3, v1
          s_waitcnt lgkmcnt(0)""")
    srd(k, 24, 12, 13, WS_USED)
    k(f"""s_add_u32 s33, s46, {QF}
          s_mov_b32 s34, {KMAX}
          buffer_load_dwordx4 {vr(Q)}, v2, s[24:27], s33 offen
          buffer_load_dwordx2 v[104:105], v102, s[24:27], s34 offen""")
    def kvdma(c):
        k(f"""s_add_u32 m0, s47, {KL + 8192*c}
              s_mov_b32 s34, {KF + 8192*c}
              s_mov_b32 s35, {VF + 8192*c}
              buffer_load_dwordx4 v3, s[24:27], s34 offen lds
              s_add_u32 m0, s47, {VL + 8192*c}
              buffer_load_dwordx4 v3, s[24:27], s35 offen lds""")
    kvdma(0)
    k(f"""s_lshr_b32 s63, s29, 1
          s_lshl_b32 s63, s63, 11
          s_add_u32 s63, s63, {XID}
          s_cmp_eq_u32 s28, 4
          s_cbranch_scc0 L_kb_nopub
          s_and_b32 s34, s29, 1
          s_lshl_b32 s34, s34, 3
          s_add_u32 s34, s34, s30
          s_lshl_b32 s34, s34, 7
          s_add_u32 s34, s34, s63""")
    publish_xcc(k, "s34", 106)
    k("L_kb_nopub:")
    k(f"""v_add_u32 v{vK}, s44, v2
          v_lshrrev_b32 v103, 5, v1
          v_and_b32 v106, 15, v1
          v_lshl_add_u32 v103, v103, 4, v106
          v_lshlrev_b32 v103, 4, v103
          v_add_u32 v103, s44, v103
          v_add_u32 v{vV}, {VL}, v103
          s_mov_b32 s40, 0x0000ffff
          s_mov_b32 s41, 0x0000ffff
          v_and_b32 v106, 31, v1
          v_cmp_eq_u32 vcc, 16, v106
          v_mov_b32 v107, 0x3f803f80
          v_cndmask_b32 v107, 0, v107, vcc""")
    for i in range(16): k(f"v_mov_b32 v{12+i}, v107")
    for i in range(16): k(f"v_mov_b32 v{O+i}, 0\nv_mov_b32 v{C+i}, 0")
    for i in range(4): k(f"v_mov_b32 v{P+4+i}, 0")
    k(f"""s_waitcnt vmcnt(2)
          v_max_f32 v104, v104, v105
          v_dot2_f32_bf16 v106, v{Q}, v{Q}, 0
          v_dot2_f32_bf16 v106, v{Q+1}, v{Q+1}, v106
          v_dot2_f32_bf16 v106, v{Q+2}, v{Q+2}, v106
          v_dot2_f32_bf16 v106, v{Q+3}, v{Q+3}, v106""")
    for sh in (1, 2, 4, 8):
        k(f"v_max_f32_dpp v104, v104, v104 row_ror:{sh} row_mask:0xf bank_mask:0xf")
    k("""v_mov_b32 v105, v104
         v_permlane16_swap_b32 v104, v105
         v_max_f32 v104, v104, v105
         v_mov_b32 v105, v104
         v_permlane32_swap_b32 v104, v105
         v_max_f32 v104, v104, v105""")
    xhalf_add(k, 106, 105)
    k(f"""v_mul_f32 v104, v104, v106
          v_mov_b32 v107, {f32(3500.0)}
          v_cmp_nle_f32 vcc, v104, v107
          s_mov_b32 s42, 1
          s_mov_b32 s43, 3
          s_mov_b32 s36, 0
          s_waitcnt vmcnt(0)""")
    for c in range(1, NCH): kvdma(c)
    k(f"""s_cbranch_vccnz L_k2_slow
          s_barrier""")
    k.stamp(1)
    k("L_k2_start:")
    k(f"""ds_read_b128 {vr(KFR)}, v{vK}
          s_waitcnt lgkmcnt(0)
          v_mfma_f32_32x32x16_bf16 {vr(S[0],16)}, {vr(KFR)}, {vr(Q)}, {vr(C,16)}
          ds_read_b128 {vr(KFR)}, v{vK} offset:1024
          s_mov_b64 exec, s[40:41]
          ds_read_b128 {vr(VFR[0][0])}, v{vV}
          ds_read_b128 {vr(VFR[0][1])}, v{vV} offset:512
          s_mov_b64 exec, -1
          s_nop 7""")
    k("L_k2_loop:")
    k(f"""s_cmp_eq_u32 s36, s42
          s_cbranch_scc1 L_k2_st1
          s_cmp_eq_u32 s36, s43
          s_cbranch_scc1 L_k2_st3
          s_cmp_eq_u32 s36, 6
          s_cbranch_scc1 L_k2_st6""")
    k("L_k2_body:")
    for u in range(4):
        s = S[u & 1]; sn = S[(u + 1) & 1]; vf = VFR[u & 1]; vn = VFR[(u + 1) & 1]
        k(f"s_setprio {3-u}")
        qk = f"""s_waitcnt lgkmcnt(2)
              v_mfma_f32_32x32x16_bf16 {vr(sn,16)}, {vr(KFR)}, {vr(Q)}, {vr(C,16)}
              ds_read_b128 {vr(KFR)}, v{vK} offset:{1024*(u+2)}"""
        vrd = f"""s_mov_b64 exec, s[40:41]
              ds_read_b128 {vr(vn[0])}, v{vV} offset:{1024*(u+1)}
              ds_read_b128 {vr(vn[1])}, v{vV} offset:{1024*(u+1)+512}
              s_mov_b64 exec, -1"""
        pva = f"v_mfma_f32_32x32x16_bf16 {vr(O,16)}, {vr(vf[0])}, {vr(P)}, {vr(O,16)}"
        pvb_prev = f"v_mfma_f32_32x32x16_bf16 {vr(O,16)}, {vr(vn[1])}, {vr(P+4)}, {vr(O,16)}"
        E = lambda i: f"v_exp_f32 v{s+i}, v{s+i}"
        Cv = lambda j: f"v_cvt_pk_bf16_f32 v{P+j}, v{s+2*j}, v{s+2*j+1}"
        k(E(0)); k(E(1))
        k(pvb_prev); k(vrd)
        k(E(2)); k(E(3)); k(Cv(0)); k(E(4)); k(E(5)); k(Cv(1))
        k(qk)
        k(E(6)); k(E(7)); k(Cv(2)); k(E(8)); k(E(9)); k(Cv(3)); k(E(10)); k(E(11))
        k(pva)
        k(Cv(4)); k(E(12)); k(E(13)); k(Cv(5)); k(E(14)); k(E(15)); k(Cv(6)); k(Cv(7))
    k(f"""v_add_u32 v{vK}, 4096, v{vK}
          v_add_u32 v{vV}, 4096, v{vV}
          s_add_u32 s36, s36, 1
          s_cmp_lt_u32 s36, {NIT}
          s_cbranch_scc1 L_k2_loop
          v_mfma_f32_32x32x16_bf16 {vr(O,16)}, {vr(VFR[1][1])}, {vr(P+4)}, {vr(O,16)}
          s_setprio 0""")
    k.stamp(2)
    k("""s_cmp_eq_u32 s28, 4
         s_cbranch_scc0 L_kb_nochk""")
    check_xcc(k, "s63", 16, "b", 106)
    k(f"""v_mov_b32 v107, {XL + 18432}
          ds_write_b32 v107, v106
          s_waitcnt lgkmcnt(0)
          L_kb_nochk:
          s_nop 3""")
    k(f"""s_mul_i32 s45, s38, 2304
          s_add_u32 s45, s45, {XL}
          v_add_u32 v103, s45, v2
          v_lshlrev_b32 v104, 2, v1
          v_add_u32 v104, s45, v104
          s_cmp_eq_u32 s39, 0
          s_cbranch_scc1 L_k2_fin
          ds_write_b128 v103, {vr(O)}
          ds_write_b128 v103, {vr(O+4)} offset:1024
          ds_write_b32 v104, v{O+8} offset:2048
          s_waitcnt vmcnt(0) lgkmcnt(0)
          s_barrier
          s_cmp_lt_u32 s28, 12
          s_cbranch_scc1 L_kb_loader
          s_endpgm""")
    k(f"""L_k2_st1:
          s_waitcnt vmcnt({2*NCH-4})
          s_barrier
          s_branch L_k2_body
          L_k2_st3:
          s_waitcnt vmcnt(0)
          s_barrier
          s_load_dwordx2 s[52:53], s[0:1], 56
          s_lshr_b32 s61, s2, 3
          s_lshl_b32 s61, s61, 4
          s_add_u32 s61, s61, s28
          v_lshlrev_b32 v108, 7, v1        ; lane*128
          s_and_b32 s37, s2, 7
          s_lshl_b32 s37, s37, 20
          s_lshl_b32 s61, s61, 13
          s_add_u32 s34, s61, {WPK}
          s_mov_b32 s54, {2048*4096}
          s_mov_b32 s55, 0x00020000
          s_waitcnt lgkmcnt(0)
          s_cmp_ge_u32 s61, {3*1024*1024}
          s_cbranch_scc0 L_k2_pf2
          s_add_u32 s37, s37, s61
          s_sub_u32 s37, s37, {3*1024*1024}
          buffer_load_dword v109, v108, s[52:55], s37 offen
          s_branch L_k2_body
          L_k2_pf2:
          buffer_load_dword v109, v108, s[24:27], s34 offen
          """)
    if PT:
        k(f"""s_cmp_ge_u32 s28, 8
              s_cbranch_scc1 L_k2_body
              v_and_b32 v110, 7, v1
              v_lshlrev_b32 v110, 7, v110
              s_add_u32 s34, s46, {OF}
              buffer_load_dword v109, v110, s[24:27], s34 offen
              s_lshl_b32 s34, s29, 2
              s_add_u32 s34, s34, s3
              s_lshl_b32 s34, s34, 4
              s_lshl_b32 s35, s30, 1
              s_add_u32 s34, s34, s35
              s_lshr_b32 s35, s28, 2
              s_add_u32 s34, s34, s35
              s_lshl_b32 s35, s34, 10
              s_add_u32 s35, s35, {HF}
              buffer_load_dword v109, v110, s[24:27], s35 offen
              s_lshl_b32 s35, s34, 7
              s_add_u32 s35, s35, {HSTAT}
              v_mov_b32 v111, 0
              buffer_load_dword v109, v111, s[24:27], s35 offen
              s_and_b32 s34, s29, 1
              s_lshl_b32 s34, s34, 3
              s_add_u32 s34, s34, s30
              s_mul_i32 s34, s34, 3
              s_min_u32 s34, s34, 40
              s_lshr_b32 s35, s29, 1
              s_lshl_b32 s35, s35, 2
              s_add_u32 s35, s35, s3
              s_mul_i32 s35, s35, 44
              s_add_u32 s35, s35, s34
              s_lshl_b32 s35, s35, 10
              s_add_u32 s35, s35, {Z1}
              v_min_u32 v111, 23, v1
              v_lshlrev_b32 v111, 7, v111
              buffer_load_dword v109, v111, s[24:27], s35 offen""")
    k("s_branch L_k2_body")
    k(f"""L_k2_st6:
          s_lshl_b32 s34, s30, 16
          s_lshl_b32 s35, s28, 12
          s_add_u32 s34, s34, s35
          s_add_u32 s34, s34, {WOP}
          s_lshr_b32 s37, s28, 2
          s_lshl_b32 s37, s37, 15
          s_lshl_b32 s35, s3, 12
          s_add_u32 m0, s37, s35
          s_waitcnt lgkmcnt(0)
          s_barrier""")
    for j in range(4):
        k(f"buffer_load_dwordx4 v2, s[24:27], s34 offen offset:{1024*j} lds")
    k("s_branch L_k2_body")
    k(f"""L_k2_slow:
          s_waitcnt vmcnt(0)
          s_barrier
          s_barrier
          s_barrier
          s_mov_b32 s42, 99
          s_mov_b32 s43, 99
          v_mov_b32 v104, 0xff800000
          v_mov_b32 v103, v2
          s_mov_b32 s37, 0
          L_k2_mx:
          ds_read_b128 {vr(KFR)}, v103
          s_waitcnt lgkmcnt(0)
          v_mfma_f32_32x32x16_bf16 {vr(S[0],16)}, {vr(KFR)}, {vr(Q)}, 0
          v_add_u32 v103, 1024, v103""")
    for i in range(8):
        k(f"v_max3_f32 v104, v{S[0]+2*i}, v{S[0]+2*i+1}, v104")
    k(f"""s_add_u32 s37, s37, 1
          s_cmp_lt_u32 s37, 64
          s_cbranch_scc1 L_k2_mx
          v_mov_b32 v105, v104
          v_permlane32_swap_b32 v104, v105
          v_max_f32 v104, v104, v105""")
    for i in range(16): k(f"v_sub_f32 v{C+i}, 0, v104")
    k(f"""s_nop 1
          s_branch L_k2_start""")
    k(f"""L_k2_fin:
          s_load_dwordx2 s[4:5], s[0:1], 0
          s_waitcnt vmcnt(0)
          s_barrier
          ds_read_b128 {vr(S[0])}, v103
          ds_read_b128 {vr(S[0]+4)}, v103 offset:1024
          ds_read_b32 v{S[0]+8}, v104 offset:2048
          v_mov_b32 v107, {XL + 18432}
          ds_read_b32 v106, v107
          s_waitcnt lgkmcnt(0)
          v_readfirstlane_b32 s63, v106""")
    for r in range(9): k(f"v_add_f32 v{O+r}, v{O+r}, v{S[0]+r}")
    k(f"""v_mov_b32 v104, v{O+8}
          v_permlane32_swap_b32 v{O+8}, v104
          v_rcp_f32 v104, v{O+8}""")
    for r in range(8): k(f"v_mul_f32 v{O+r}, v104, v{O+r}")
    for r in range(4): k(f"v_cvt_pk_bf16_f32 v{P+r}, v{O+2*r}, v{O+2*r+1}")
    k(f"""s_add_u32 s33, s46, {OF}
          """)
    hstore(k, f"buffer_store_dwordx4 {vr(P)}, v2, s[24:27], s33 offen")
    k("s_barrier")
    lane_fields(k)
    k(f"""s_lshl_b32 s33, s29, 13
          s_add_u32 s33, s33, {OFLAG}
          s_lshl_b32 s34, s32, 12
          s_add_u32 s34, s34, s33
          s_lshl_b32 s35, s30, 9
          s_add_u32 s34, s34, s35
          s_lshr_b32 s35, s28, 1
          s_lshl_b32 s35, s35, 7
          s_add_u32 s34, s34, s35
          s_and_b32 s35, s28, 2
          s_lshl_b32 s35, s35, 11
          s_add_u32 s33, s33, s35
          s_and_b32 s35, s28, 4
          s_lshl_b32 s35, s35, 9
          s_add_u32 s33, s33, s35""")
    k(f"""s_lshr_b32 s61, s28, 2           ; kh
          s_lshl_b32 s36, s29, 2
          s_add_u32 s36, s36, s3           ; rb16
          s_lshl_b32 s37, s30, 1
          s_add_u32 s37, s37, s61
          v_and_b32 v14, 15, v1
          v_lshlrev_b32 v3, 10, v14
          v_lshl_add_u32 v3, v8, 3, v3
          s_lshl_b32 s44, s36, 14
          s_lshl_b32 s45, s37, 6
          s_add_u32 s44, s44, s45""")
    srd(k, 16, 4, 5, 2048 * 1024)
    set_flag2(k, "s34")
    k.stamp(3)
    k("""buffer_load_dwordx2 v[96:97], v3, s[16:19], s44 offen
         buffer_load_dwordx2 v[98:99], v3, s[16:19], s44 offen offset:32
         s_lshl_b32 s45, s61, 13
         v_add_u32 v4, s45, v2
         v_add_u32 v5, 65536, v4""")
    act32_voff(k, 3, "s32")
    k(f"""s_lshr_b32 s46, s36, 1
          s_lshl_b32 s46, s46, 15
          s_lshl_b32 s47, s61, 14
          s_add_u32 s46, s46, s47
          s_add_u32 s46, s46, {OF}""")
    for r in range(16): k(f"v_mov_b32 v{16+r}, 0")
    woff = lambda s, u: (4 + (u >> 1), (u & 1) * 32768 + s * 1024)
    gemm64_reads(k, 0, woff)
    poll_n(k, "s33", 16, "o")
    k.stamp(4)
    for s in range(8):
        if s % 2 == 0: k(f"s_add_u32 s47, s46, {s*2048}")
        k(f"buffer_load_dwordx4 {vr(64+4*s)}, v3, s[24:27], s47 offen offset:{2048*(s&1)} {LSC}")
    gemm64(k, 8, woff, 64)
    k.stamp(5)
    k("s_barrier")
    ksplit_exchange(k, 0, "s28", tag="b")
    k(f"""v_lshlrev_b32 v40, 16, v96
          v_and_b32 v41, 0xffff0000, v96
          v_lshlrev_b32 v42, 16, v97
          v_and_b32 v43, 0xffff0000, v97
          v_lshlrev_b32 v44, 16, v98
          v_and_b32 v45, 0xffff0000, v98
          v_lshlrev_b32 v46, 16, v99
          v_and_b32 v47, 0xffff0000, v99
          s_lshl_b32 s47, s36, 4
          s_add_u32 s47, s47, s37
          s_lshl_b32 s46, s47, 7
          s_add_u32 s33, s46, {HFLAG}
          s_add_u32 s46, s46, {HSTAT}
          s_lshl_b32 s47, s47, 10
          s_add_u32 s47, s47, {HF}""")
    for i in range(8): k(f"v_add_f32 v{16+i}, v{16+i}, v{40+i}")
    k("s_waitcnt lgkmcnt(0)")
    for i in range(8): k(f"v_add_f32 v{16+i}, v{16+i}, v{32+i}")
    for i in range(4): k(f"v_cvt_pk_bf16_f32 v{48+i}, v{16+2*i}, v{17+2*i}")
    hstore(k, "buffer_store_dwordx4 v[48:51], v2, s[24:27], s47 offen")
    k("""v_mov_b32 v54, 0x3f803f80
         v_dot2_f32_bf16 v52, v48, v54, 0
         v_dot2_f32_bf16 v53, v48, v48, 0""")
    for i in range(1, 4):
        k(f"""v_dot2_f32_bf16 v52, v{48+i}, v54, v52
              v_dot2_f32_bf16 v53, v{48+i}, v{48+i}, v53""")
    xhalf_add(k, 52, 12); xhalf_add(k, 53, 13)
    x16_add(k, 52, 12); x16_add(k, 53, 13)
    k("""v_lshlrev_b32 v12, 3, v14
         s_mov_b64 exec, 0xffff""")
    hstore(k, "buffer_store_dwordx2 v[52:53], v12, s[24:27], s46 offen")
    k(f"""s_mov_b64 exec, -1
          s_and_b32 s31, s29, 1
          s_lshl_b32 s31, s31, 3
          s_add_u32 s30, s30, s31          ; g
          s_lshr_b32 s29, s29, 1           ; rb128
          s_mul_i32 s31, s30, 3
          s_min_u32 s31, s31, 40           ; u0
          s_lshl_b32 s36, s29, 3
          s_add_u32 s36, s36, s28
          s_lshl_b32 s62, s36, 11
          s_add_u32 s62, s62, {HFLAG}
          s_lshl_b32 s47, s36, 11
          s_add_u32 s47, s47, {ZSTAT}""")
    ACC, WF, H = 16, 40, 64
    k(f"""v_mov_b32 v4, v2
          v_add_u32 v5, 65536, v4
          v_add_u32 v6, 131072, v4
          v_lshlrev_b32 v7, 3, v14
          v_lshl_add_u32 v7, v8, 9, v7      ; n*8 + g*512""")
    set_flag2(k, "s33")
    k.stamp(6)
    k(f"""s_cmp_eq_u32 s30, 15
          s_cbranch_scc0 L_k4_work
          v_mov_b32 v16, 0
          v_mov_b32 v17, 0
          v_lshlrev_b32 v12, 3, v14
          s_add_u32 s47, s47, {15*128}
          buffer_store_dwordx2 v[16:17], v12, s[24:27], s47 offen sc1
          s_barrier
          s_branch L_z_done
          L_k4_work:""")
    UP = [("v4", 16384), ("v4", 49152), ("v5", 16384), ("v5", 49152), ("v6", 0), ("v6", 16384)]
    def wreads(s, half):
        for u in range(3):
            b, o = UP[3*half + u]; f = WF + 12*half + 4*u
            k(f"ds_read_b128 {vr(f)}, {b} offset:{o + 1024*s}")
    for r in range(24): k(f"v_mov_b32 v{ACC+r}, 0")
    wreads(0, 0)
    k(f"""s_lshl_b32 s46, s36, 14
          s_add_u32 s46, s46, {HF}
          s_lshl_b32 s45, s36, 11
          s_add_u32 s45, s45, {HSTAT}
          """)
    poll_n(k, "s62", 16, "h")
    k.stamp(7)
    q = VQ(k); hl = []
    for s in range(16):
        def f(s=s):
            if s % 4 == 0: k(f"s_add_u32 s44, s46, {s*1024}")
            k(f"buffer_load_dwordx4 {vr(H+4*s)}, v2, s[24:27], s44 offen offset:{1024*(s&3)} {LSC}")
        hl.append(f)
    for s in range(HW): q.issue(f"h{s}", 1, hl[s])
    def sl():
        for i in range(4):
            k(f"buffer_load_dwordx2 v[{8+2*i}:{9+2*i}], v7, s[24:27], s45 offen offset:{128*i} {LSC}")
    CS2, CS1, MR = 64, 72, 96
    for s in range(16):
        wreads(s, 1)
        q.wait(f"h{s}", extra=" lgkmcnt(3)")
        for u in range(3):
            k(f"v_mfma_f32_16x16x32_bf16 {vr(ACC+4*u)}, {vr(H+4*s)}, {vr(WF+4*u)}, {vr(ACC+4*u)}")
        if s + HW < 16: q.issue(f"h{s+HW}", 1, hl[s+HW])
        if s == 7: q.issue("st", 4, sl)
        if s < 15:
            wreads(s + 1, 0); k("s_waitcnt lgkmcnt(3)")
        else:
            k("s_waitcnt lgkmcnt(0)")
        for u in range(3):
            k(f"v_mfma_f32_16x16x32_bf16 {vr(ACC+12+4*u)}, {vr(WF+12+4*u)}, {vr(H+4*s)}, {vr(ACC+12+4*u)}")
        if s == 6:
            k.stamp(8)
        if s == 8:
            def cs():
                k(f"""v_and_b32 v3, 15, v1
                      v_lshlrev_b32 v3, 2, v3
                      s_lshl_b32 s38, s31, 6
                      s_add_u32 s38, s38, {CSUM}
                      s_add_u32 s39, s38, {688*4}""")
                for p in range(2):
                    for u in range(3):
                        k(f"buffer_load_dword v{CS2+3*p+u}, v3, s[24:27], s39 offen offset:{64*u}")
                    k("s_add_u32 s39, s39, 8192")
                k("v_lshrrev_b32 v3, 4, v1\nv_lshlrev_b32 v3, 4, v3")
                for p in range(2):
                    for u in range(3):
                        k(f"buffer_load_dwordx4 {vr(CS1+12*p+4*u)}, v3, s[24:27], s38 offen offset:{64*u}")
                    k("s_add_u32 s38, s38, 8192")
            q.issue("cs", 12, cs)
        if s == 12:
            q.wait("st")
            k("""v_add_f32 v8, v8, v10
                 v_add_f32 v9, v9, v11
                 v_add_f32 v12, v12, v14
                 v_add_f32 v13, v13, v15
                 v_add_f32 v8, v8, v12
                 v_add_f32 v9, v9, v13""")
            xhalf_add(k, 8, 12); xhalf_add(k, 9, 13)
        if s == 13:
            x16_add(k, 8, 12); x16_add(k, 9, 13)
            ln_stats(k, 8, 9, 512, 12)
        if s == 15:
            for r in range(4):
                k(f"""v_add_u32 v12, {4*r}, v3
                      ds_bpermute_b32 v{MR+r}, v12, v8
                      ds_bpermute_b32 v{MR+4+r}, v12, v9""")
    k.stamp(9)
    k("s_barrier")
    T = 40; z2r = [ACC + i for i in range(12)]; z1r = [ACC + 12 + i for i in range(12)]
    k(f"""v_mov_b32 v15, {f32(GC2)}
          v_and_b32 v14, 15, v1
          s_waitcnt vmcnt(0)""")
    for u in range(3): k(f"v_add_f32 v{CS2+u}, v{CS2+u}, v{CS2+3+u}")
    k("s_waitcnt lgkmcnt(0)")
    for i, a in enumerate(z2r): k(f"v_fma_f32 v{a}, -v{MR+i%4}, v{CS2+i//4}, v{a}")
    for i, a in enumerate(z2r): k(f"v_mul_f32 v{a}, v{MR+4+i%4}, v{a}")
    for i, a in enumerate(z2r): k(f"v_mul_f32 v{T+i}, v{a}, v{a}")
    for i, a in enumerate(z2r): k(f"v_fmaak_f32 v{T+i}, v15, v{T+i}, {f32(GC1)}")
    for i, a in enumerate(z2r): k(f"v_mul_f32 v{T+i}, v{T+i}, v{a}")
    for i, a in enumerate(z2r): k(f"v_exp_f32 v{T+i}, v{T+i}")
    for i, a in enumerate(z2r): k(f"v_add_f32 v{T+i}, 1.0, v{T+i}")
    for i, a in enumerate(z2r): k(f"v_rcp_f32 v{T+i}, v{T+i}")
    for i, a in enumerate(z2r): k(f"v_mul_f32 v{a}, v{a}, v{T+i}")
    SQ = 52
    for r in range(4):
        k(f"v_mov_b32 v{SQ+2*r}, v{ACC+8+r}\nv_mul_f32 v{SQ+2*r+1}, v{ACC+8+r}, v{ACC+8+r}")
    k("""s_cmp_eq_u32 s30, 14
         s_cbranch_scc1 L_k4_red""")
    for u in range(2):
        for r in range(4):
            a = ACC + 4*u + r
            k(f"v_add_f32 v{SQ+2*r}, v{SQ+2*r}, v{a}\nv_fmac_f32 v{SQ+2*r+1}, v{a}, v{a}")
    k("s_nop 0\nL_k4_red:")
    for i in range(4): k(f"v_add_f32_dpp v{SQ+i}, v{SQ+i}, v{SQ+i} row_ror:8 row_mask:0xf bank_mask:0x3")
    for i in range(4): k(f"v_add_f32_dpp v{SQ+i}, v{SQ+4+i}, v{SQ+4+i} row_ror:8 row_mask:0xf bank_mask:0xc")
    for m_ in ("row_half_mirror", "quad_perm:[1,0,3,2]", "quad_perm:[2,3,0,1]"):
        for i in range(4): k(f"v_add_f32_dpp v{SQ+i}, v{SQ+i}, v{SQ+i} {m_} row_mask:0xf bank_mask:0xf")
    k(f"""s_mov_b32 s49, -2
          s_lshl_b32 s48, s30, 7
          s_add_u32 s48, s48, s47
          v_lshlrev_b32 v12, 1, v1           ; (l>>3)*16 for lanes l%8==0""")
    for j in range(4): k(f"v_min_u32 v{SQ+j}, s49, v{SQ+j}")
    k(f"""s_mov_b32 s50, 0x01010101
          s_mov_b32 s51, 0x01010101
          s_mov_b64 exec, s[50:51]""")
    hstore(k, f"buffer_store_dwordx4 {vr(SQ)}, v12, s[24:27], s48 offen")
    k("s_mov_b64 exec, -1")
    k.stamp(10)
    k(f"""v_mul_f32 v10, {f32(GC1)}, v9
          v_mul_f32 v11, v9, v9
          v_mul_f32 v11, v11, v9
          v_mul_f32 v11, {f32(GC2)}, v11
          v_rcp_f32 v13, v9""")
    for i in range(12): k(f"v_add_f32 v{CS1+i}, v{CS1+i}, v{CS1+12+i}")
    for i, a in enumerate(z1r): k(f"v_fma_f32 v{a}, -v8, v{CS1+i}, v{a}")
    for i, a in enumerate(z1r): k(f"v_mul_f32 v{T+i}, v{a}, v{a}")
    for i, a in enumerate(z1r): k(f"v_fma_f32 v{T+i}, v{T+i}, v11, v10")
    for i, a in enumerate(z1r): k(f"v_mul_f32 v{T+i}, v{T+i}, v{a}")
    for i, a in enumerate(z1r): k(f"v_exp_f32 v{T+i}, v{T+i}")
    for i, a in enumerate(z1r): k(f"v_fma_f32 v{T+i}, v{T+i}, v13, v13")
    for i, a in enumerate(z1r): k(f"v_rcp_f32 v{T+i}, v{T+i}")
    for i, a in enumerate(z1r): k(f"v_mul_f32 v{a}, v{a}, v{T+i}")
    k(f"""v_lshrrev_b32 v10, 4, v1           ; g
          v_and_b32 v11, 1, v10
          v_lshrrev_b32 v10, 1, v10
          v_lshlrev_b32 v12, 9, v11
          v_lshl_add_u32 v12, v14, 4, v12
          v_lshl_add_u32 v12, v10, 3, v12
          v_lshlrev_b32 v6, 9, v10
          v_lshl_add_u32 v6, v14, 4, v6
          v_lshl_add_u32 v6, v11, 3, v6
          s_lshr_b32 s44, s36, 1
          s_mul_i32 s44, s44, 44
          s_add_u32 s44, s44, s31
          s_lshl_b32 s44, s44, 10
          s_and_b32 s45, s36, 1
          s_lshl_b32 s45, s45, 8
          s_add_u32 s44, s44, s45
          s_add_u32 s44, s44, {Z1}
          s_mov_b32 s54, 0""")
    for u in range(3):
        a = ACC + 12 + 4*u; p = 64 + 2*u
        k(f"""v_cvt_pk_bf16_f32 v{p}, v{a}, v{a+1}
              v_cvt_pk_bf16_f32 v{p+1}, v{a+2}, v{a+3}
              buffer_store_dwordx2 v[{p}:{p+1}], v12, s[24:27], s44 offen offset:{1024*u} {ZSC}""")
    k("L_k4_poll:")
    for i in range(4):
        k(f"buffer_load_dwordx2 v[{72+2*i}:{73+2*i}], v7, s[24:27], s47 offen offset:{128*i} sc1")
    k(f"""s_waitcnt vmcnt(0)
          v_max3_u32 v12, v72, v73, v74
          v_max3_u32 v13, v75, v76, v77
          v_max3_u32 v12, v12, v78, v79
          v_max_u32 v12, v12, v13
          v_cmp_eq_u32 vcc, -1, v12
          s_add_u32 s54, s54, 1
          s_cmp_gt_u32 s54, 0x40000
          s_cbranch_scc1 L_k4_go
          s_cbranch_vccz L_k4_go
          s_sleep {SLEEP}
          s_branch L_k4_poll
          L_k4_go:""")
    k.stamp(11)
    k("""v_add_f32 v72, v72, v74
         v_add_f32 v73, v73, v75
         v_add_f32 v76, v76, v78
         v_add_f32 v77, v77, v79
         v_add_f32 v72, v72, v76
         v_add_f32 v73, v73, v77""")
    xhalf_add(k, 72, 12); xhalf_add(k, 73, 13)
    x16_add(k, 72, 12); x16_add(k, 73, 13)
    ln_stats(k, 72, 73, 688, 12)
    k("v_mul_f32 v72, -v72, v73")
    for r in range(4):
        k(f"""v_add_u32 v12, {4*r}, v3
              ds_bpermute_b32 v{MR+r}, v12, v72
              ds_bpermute_b32 v{MR+4+r}, v12, v73""")
    k(f"""s_lshl_b32 s45, s36, 10
          s_add_u32 s45, s45, {Z2F}
          s_waitcnt lgkmcnt(0)""")
    for i, a in enumerate(z2r): k(f"v_fma_f32 v{a}, v{a}, v{MR+4+i%4}, v{MR+i%4}")
    for u in range(3):
        a = ACC + 4*u; p = 80 + 2*u
        k(f"""s_add_u32 s44, s31, {u}
              s_lshr_b32 s46, s44, 1
              s_lshl_b32 s46, s46, 17
              s_and_b32 s44, s44, 1
              s_lshl_b32 s44, s44, 8
              s_add_u32 s44, s44, s46
              s_add_u32 s44, s44, s45
              v_cvt_pk_bf16_f32 v{p}, v{a}, v{a+1}
              v_cvt_pk_bf16_f32 v{p+1}, v{a+2}, v{a+3}
              buffer_store_dwordx2 v[{p}:{p+1}], v6, s[24:27], s44 offen {ZSC}""")
    k("L_z_done:")
    AD, NS, WOL = 3, 6, 65536
    ACC, BF, A = 16, 48, 80
    k(f"""s_load_dwordx2 s[6:7], s[0:1], 64
          s_load_dwordx2 s[10:11], s[0:1], 80
          s_mul_i32 s34, s57, 3
          s_min_u32 s34, s34, 19
          s_add_u32 s34, s34, s28
          s_lshl_b32 s62, s56, 12
          s_add_u32 s62, s62, {YFLAG}
          s_lshl_b32 s52, s34, 7
          s_add_u32 s52, s52, s62
          s_mul_i32 s53, s61, {11*128}
          s_add_u32 s62, s62, s53
          s_lshl_b32 s40, s34, 17
          s_add_u32 s40, s40, {Z2F}
          s_mul_i32 s39, s56, 88
          s_lshl_b32 s42, s34, 1
          s_add_u32 s39, s39, s42
          s_lshl_b32 s39, s39, 10
          v_and_b32 v15, 31, v1
          v_lshlrev_b32 v12, 1, v15
          s_lshl_b32 s43, s56, 7
          s_waitcnt vmcnt(0) lgkmcnt(0)
          s_barrier""")
    k.stamp(12)
    k(f"""s_cmp_lt_u32 s28, 3
          s_cbranch_scc1 L_k5_comp
          s_cmp_eq_u32 s28, 3
          s_cbranch_scc0 L_k5_idle
          s_lshl_b32 s44, s29, 4
          s_add_u32 s44, s44, s30
          s_lshl_b32 s44, s44, 7
          s_add_u32 s44, s44, {XIDC}""")
    set_flag(k, "s44", drain=False)
    k(f"""s_lshl_b32 s44, s57, 1
          s_min_u32 s44, s44, 12
          s_lshl_b32 s44, s44, 7
          s_add_u32 s44, s44, {XIDC}
          v_and_b32 v13, 15, v1
          v_lshlrev_b32 v13, 11, v13
          v_lshrrev_b32 v12, 4, v1
          v_min_u32 v12, 2, v12
          v_lshl_add_u32 v13, v12, 7, v13
          s_mov_b32 s60, 0
          L_poll_z:
          buffer_load_dword v12, v13, s[24:27], s44 offen sc1
          s_add_u32 s60, s60, 1
          s_waitcnt vmcnt(0)
          v_cmp_ne_u32 vcc, 1, v12
          s_cmp_gt_u32 s60, 0x40000
          s_cbranch_scc1 L_k5_idle
          s_cbranch_vccz L_k5_idle
          s_sleep {SLEEP}
          s_branch L_poll_z
          L_k5_idle:
          s_mov_b32 s55, 0
          L_k5_ib:
          s_barrier
          s_add_u32 s55, s55, 1
          s_cmp_lt_u32 s55, 33
          s_cbranch_scc1 L_k5_ib
          s_branch L_k6""")
    k("L_k5_comp:")
    srd(k, 20, 6, 7, 4096)
    k(f"""buffer_load_ushort v8, v12, s[20:23], s43 offen
          buffer_load_ushort v9, v12, s[20:23], s43 offen offset:64
          v_lshrrev_b32 v13, 1, v15
          v_and_b32 v13, 7, v13
          v_lshlrev_b32 v12, 7, v15
          v_lshrrev_b32 v10, 5, v1""")
    for qq in range(4):
        k(f"""v_add_u32 v14, {2*qq}, v10
              v_xor_b32 v14, v14, v13
              v_lshl_add_u32 v{4+qq}, v14, 4, v12""")
    k(f"""s_mov_b32 s55, 0
          s_mov_b32 s54, 24576
          s_waitcnt vmcnt(0)
          v_lshlrev_b32 v8, 16, v8
          v_lshlrev_b32 v9, 16, v9""")
    for r in range(16): k(f"v_mov_b32 v{ACC+r}, v8\nv_mov_b32 v{ACC+16+r}, v9")
    k("s_barrier")
    k.stamp(13 if False else 8)
    for i in range(AD):
        for j in range(4):
            k(f"buffer_load_dwordx4 {vr(A+16*i+4*j)}, v2, s[24:27], s40 offen offset:{1024*j}")
        k("s_add_u32 s40, s40, 4096")
    def breads(half, slotoff):
        for j in range(2):
            for th in range(2):
                k(f"ds_read_b128 {vr(BF+16*half+8*j+4*th)}, v{4+2*half+j} offset:{slotoff+4096*th}")
    def mf(half, slot, ld):
        for j in range(2):
            for th in range(2):
                k(f"v_mfma_f32_32x32x16_bf16 {vr(ACC+16*th,16)}, {vr(A+16*slot+8*half+4*j)}, {vr(BF+16*half+8*j+4*th)}, {vr(ACC+16*th,16)}")
            if ld: ld(2*half + j)
    def ald(slot): return lambda jj: k(f"buffer_load_dwordx4 {vr(A+16*slot+4*jj)}, v2, s[24:27], s40 offen offset:{1024*jj}")
    k("s_barrier")
    breads(0, 0)
    k("L_k5_loop:")
    for i in range(AD):
        breads(1, i * 8192)
        k(f"s_waitcnt vmcnt({4*AD-2}) lgkmcnt(4)")
        mf(0, i, ald(i))
        k(f"s_waitcnt vmcnt({4*AD-2}) lgkmcnt(0)")
        if i == AD - 1:
            for qq in range(4): k(f"v_add_u32 v{4+qq}, s54, v{4+qq}")
            k("""s_sub_u32 s54, 0, s54
                 s_add_u32 s55, s55, 1""")
        k("s_barrier")
        breads(0, ((i + 1) % AD) * 8192)
        mf(1, i, ald(i))
        k("s_add_u32 s40, s40, 4096")
        if i == 1:
            k(f"""s_add_u32 s44, s39, {Z1}
                  s_cmp_eq_u32 s55, 9
                  s_cselect_b32 s40, s44, s40""")
    k("""s_cmp_lt_u32 s55, 10
         s_cbranch_scc1 L_k5_loop""")
    k(f"s_add_u32 s43, s39, {Z1 + 44*1024}")
    breads(1, 0)
    k("s_waitcnt vmcnt(10) lgkmcnt(4)")
    mf(0, 0, lambda jj: k(f"buffer_load_dwordx4 {vr(A+4*jj)}, v2, s[24:27], s43 offen offset:{1024*jj}"))
    k("s_waitcnt vmcnt(10) lgkmcnt(0)\ns_barrier")
    breads(0, 8192)
    mf(1, 0, None)
    breads(1, 8192)
    k("s_waitcnt vmcnt(8) lgkmcnt(4)")
    mf(0, 1, None)
    k("s_waitcnt vmcnt(6) lgkmcnt(0)")
    mf(1, 1, None)
    k.stamp(9)
    Zs = [A + 32 + i for i in range(8)] + [A + i for i in range(8)]
    k(f"""s_add_u32 s42, s39, {YF}
          s_add_u32 s43, s42, {44*1024}
          s_waitcnt vmcnt(0)""")
    for i in range(16):
        k(f"""v_lshlrev_b32 v{48+2*i}, 16, v{Zs[i]}
              v_and_b32 v{49+2*i}, 0xffff0000, v{Zs[i]}""")
    for i in range(32): k(f"v_mul_f32 v{ACC+i}, v{ACC+i}, v{48+i}")
    for i in range(16): k(f"v_cvt_pk_bf16_f32 v{A+i}, v{ACC+2*i}, v{ACC+2*i+1}")
    hstore(k, [f"buffer_store_dwordx4 {vr(A+8*th+4*f)}, v2, s[24:27], {'s43' if th else 's42'} offen offset:{1024*f}" for th in range(2) for f in range(2)])
    set_flag2(k, "s52")
    k.stamp(10)
    k("L_k6:")
    lane_fields(k)
    k(f"""s_lshl_b32 s36, s56, 2
          s_add_u32 s36, s36, s3           ; rb16
          s_lshl_b32 s37, s57, 1
          s_add_u32 s37, s37, s61
          s_lshl_b32 s47, s36, 4
          s_add_u32 s47, s47, s37
          s_lshl_b32 s47, s47, 10
          s_add_u32 s47, s47, {HF}
          buffer_load_dwordx4 v[112:115], v2, s[24:27], s47 offen
          s_mul_i32 s45, s61, {11*1024}
          s_add_u32 s45, s45, {WOL}
          v_add_u32 v4, s45, v2
          v_add_u32 v5, {2*22528}, v4""")
    act32_voff(k, 3, "s32")
    k(f"""s_lshr_b32 s46, s36, 1
          s_mul_i32 s46, s46, {44*1024}
          s_mul_i32 s47, s61, {22*1024}
          s_add_u32 s46, s46, s47
          s_add_u32 s46, s46, {YF}
          s_cmp_eq_u32 s61, 0
          s_cselect_b32 s49, -1, 0""")
    srd(k, 16, 10, 11, 2048 * 1024)
    for r in range(16): k(f"v_mov_b32 v{16+r}, 0")
    for r in range(4): k(f"v_mov_b32 v{64+40+r}, 0")
    woff = lambda s, u: (4 + (u >> 1), (u & 1) * 22528 + s * 1024)
    gemm64_reads(k, 0, woff)
    poll_n(k, "s62", 11, "y")
    k.stamp(11)
    for s in range(11):
        if s % 2 == 0: k(f"s_add_u32 s47, s46, {s*2048}")
        if s == 10: k("s_mov_b32 exec_hi, s49")
        k(f"buffer_load_dwordx4 {vr(64+4*s)}, v3, s[24:27], s47 offen offset:{2048*(s&1)}")
    k("s_mov_b32 exec_hi, -1")
    gemm64(k, 11, woff, 64)
    ksplit_exchange(k, 49152, "s28", tag="c")
    for i in range(4):
        k(f"""v_lshlrev_b32 v{40+2*i}, 16, v{112+i}
              v_and_b32 v{41+2*i}, 0xffff0000, v{112+i}""")
    for i in range(8): k(f"v_add_f32 v{16+i}, v{16+i}, v{40+i}")
    k(f"""v_and_b32 v12, 15, v1
          v_lshlrev_b32 v12, 10, v12
          v_and_b32 v13, 1, v8
          v_lshl_add_u32 v12, v13, 5, v12
          v_lshl_add_u32 v12, v9, 4, v12
          s_lshl_b32 s46, s36, 14
          s_lshl_b32 s47, s37, 6
          s_add_u32 s46, s46, s47
          s_waitcnt lgkmcnt(0)""")
    for i in range(8): k(f"v_add_f32 v{16+i}, v{16+i}, v{32+i}")
    for i in range(4): k(f"v_cvt_pk_bf16_f32 v{48+i}, v{16+2*i}, v{17+2*i}")
    k("""v_permlane16_swap_b32 v48, v50
         v_permlane16_swap_b32 v49, v51
         buffer_store_dwordx4 v[48:51], v12, s[16:19], s46 offen
         s_endpgm""")
    k(f"""L_kb_loader:
          s_and_b32 s31, s29, 1
          s_lshl_b32 s31, s31, 3
          s_add_u32 s30, s30, s31          ; g
          s_mul_i32 s31, s30, 3
          s_min_u32 s31, s31, 40           ; u0
          s_lshl_b32 s40, s31, 14
          s_lshl_b32 s38, s3, 12
          s_add_u32 s40, s40, s38
          s_add_u32 s40, s40, {WPK}
          s_barrier""")
    for i, pos in enumerate([16384, 49152, 81920, 114688, 131072, 147456]):
        src = (43 + i) * 16384 if i < 3 else (i - 3) * 16384
        k(f"""s_add_u32 m0, s38, {pos}
              s_add_u32 s42, s40, {src}""")
        for j in range(4):
            k(f"buffer_load_dwordx4 v2, s[24:27], s42 offen offset:{1024*j} lds")
            if WSL: k(f"s_sleep {WSL}")
    k.stamp(3)
    k(f"""s_load_dwordx2 s[16:17], s[0:1], 56
          s_lshl_b32 s35, s56, 6
          s_lshl_b32 s36, s3, 4
          s_add_u32 s35, s35, s36
          v_lshrrev_b32 v12, 3, v1
          v_add_u32 v5, s35, v12
          v_lshlrev_b32 v5, 12, v5
          v_and_b32 v13, 7, v1
          v_lshrrev_b32 v14, 4, v1
          v_xor_b32 v14, v13, v14
          v_lshl_add_u32 v5, v14, 4, v5
          v_xor_b32 v6, 64, v5
          v_add_u32 v6, {8*4096}, v6
          s_lshl_b32 s37, s3, 11
          s_lshl_b32 s36, s57, 2
          s_add_u32 s36, s36, s3
          s_mul_i32 s36, s36, 24576
          s_add_u32 s36, s36, {WUP}
          s_mul_i32 s35, s3, 22528
          s_add_u32 s35, s35, {WOL}
          s_mov_b32 s18, {2048*4096}
          s_mov_b32 s19, 0x00020000
          s_waitcnt vmcnt(0) lgkmcnt(0)""")
    k.stamp(4)
    k("s_barrier\ns_barrier\ns_barrier")
    q = VQ(k)
    def bi(c):
        q.issue(f"b{c}", 2, lambda: k(f"""s_add_u32 m0, s37, {(c % NS)*8192}
              s_movk_i32 s41, {c*128}
              buffer_load_dwordx4 v5, s[16:19], s41 offen lds
              s_add_u32 m0, s37, {(c % NS)*8192 + 1024}
              buffer_load_dwordx4 v6, s[16:19], s41 offen lds"""))
    def wi(c):
        q.issue(f"w{c}", 2, lambda: k(f"""s_add_u32 m0, s35, {c*2048}
              s_add_u32 s39, s36, {c*2048}
              buffer_load_dwordx4 v2, s[24:27], s39 offen lds
              s_sleep {WSL2}
              buffer_load_dwordx4 v2, s[24:27], s39 offen offset:1024 lds
              s_sleep {WSL2}"""))
    for c in range(11): wi(c)
    nxt = 0
    for _ in range(NS): bi(nxt); nxt += 1
    k.stamp(5)
    k("s_barrier\ns_barrier")
    for b in range(32):
        q.wait(f"b{b}"); k("s_barrier")
        if nxt < 32 and nxt - NS <= b - 1: bi(nxt); nxt += 1
    k("s_endpgm")
    k(f"L_{k.name}_end:\ns_endpgm")
    return k, (256, 1024, 163840)
```

```python
import sys
import os
from k1 import build_k1
from k2 import build_k2
from k3 import build_k3
from k4 import build_k4
from k5 import build_k5
from k6 import build_k6
from kb import build_kb
if os.environ.get("SPLITC"):
    from kc import build_kc
    builders = [build_k1, build_kb, build_kc]
elif os.environ.get("SPLITA"):
    from kbc import build_kbc
    builders = [build_k1, build_kbc]
else:
    from kall import build_kall
    builders = [build_kall]
hdr = open("sequential_preLN__grouped_kv_mqa__mixer_gmlp__prompt.s.ref").read().split("\n")
hdr = [l for l in hdr if l.startswith(";") and "@launch" not in l and "Override" not in l and "grid=ceil" not in l]
ks = [b() for b in builders]
out = "\n".join(hdr) + "\n"
plain = len(ks) == 1 and (len(sys.argv) < 2 or os.environ.get("PLAIN"))
for k, (g, b, lds) in ks:
    out += f"; @launch {'' if plain else 'kernel=' + k.name + ' '}grid=({g},1,1) block=({b},1,1) lds={lds}\n"
if os.environ.get("DUPC"):
    k, (g_, b_, lds_) = ks[-1]
    out += f"; @launch kernel={k.name} grid=({g_},1,1) block=({b_},1,1) lds={lds_}\n"
out += '.amdgcn_target "amdgcn-amd-amdhsa--gfx950"\n'
for i, (k, _) in enumerate(ks):
    out += k.text(i)
dst = sys.argv[1] if len(sys.argv) > 1 else "sequential_preLN__grouped_kv_mqa__mixer_gmlp__prompt.s"
open(dst, "w").write(out)
print("wrote", dst, len(out))
```

```python
from common import *
from k3 import *
from g16 import *
from k4 import GC1, GC2
import os
LSC = os.environ.get('LSC', '')
MAPC = int(os.environ.get('MAPC', 0))
ZSC = os.environ.get('ZSC', 'sc1')
PT = int(os.environ.get('PT', 0))
HW = int(os.environ.get('HW', 6))
PF2 = int(os.environ.get('PF2', 1))
WSL = int(os.environ.get('WSL', 1))
WSL2 = int(os.environ.get('WSL2', 1))
KVROT = int(os.environ.get('KVROT', 1))
WOT = os.environ.get('WOT', 'kl')
PROG = int(os.environ.get('PROG', 1))
WB = int(os.environ.get('WB', 28))
PRIO = int(os.environ.get('K2_PRIO', 1))
PFQ = int(os.environ.get('PFQ', 1))
PFM = int(os.environ.get('PFM', 15))
PFSC = os.environ.get('PFSC', '')

FUSEC = int(os.environ.get('FUSEC', 1))
def build_kall():
    k = Kern("sequential_preLN__grouped_kv_mqa__mixer_gmlp__prompt_kernel", nvgpr=128)
    NW = 16
    KL, VL, XL = 0, 65536, 131072
    Q = 4; KFR = 8; VFR = [[12, 16], [20, 24]]; P = 28; S = [36, 52]; O = 68; C = 84
    vK, vV = 100, 101
    NCH, NIT = 4, 8
    prologue_ids(k, 256)
    k("""s_load_dwordx8 s[4:11], s[0:1], 0
         s_load_dwordx4 s[12:15], s[0:1], 88""")
    k("""s_and_b32 s29, s2, 7
         s_lshr_b32 s30, s2, 3
         s_lshl_b32 s29, s29, 2
         s_lshr_b32 s31, s30, 3
         s_add_u32 s29, s29, s31          ; rb64
         s_and_b32 s30, s30, 7            ; cg
         s_and_b32 s3, s28, 3
         s_and_b32 s32, s28, 1            ; rh
         s_mov_b32 s56, s29
         s_mov_b32 s57, s30""")
    XL0, WL0, KVL, SX, QL = 0, 65536, 131072, 147456, 131072
    CSX = SX + 512
    FASTW, CNT = 146 * 1024 + 512, 146 * 1024 + 576
    k("""s_lshl_b32 s46, s31, 1
         s_add_u32 s46, s46, s30
         s_and_b32 s46, s46, 7
         s_lshr_b32 s33, s3, 1            ; ch
         s_mov_b32 s62, 0
         s_mov_b32 s20, 0
         s_mov_b32 s21, 0
         s_mov_b32 s22, 0
         s_mov_b32 s23, 0x00020000
         v_mov_b32 v108, 0
         v_mov_b32 v109, 0
         v_mov_b32 v113, 0
         v_lshlrev_b32 v2, 4, v1""")
    lane_fields(k)
    k(f"""s_cmp_ge_u32 s28, 12
          s_cbranch_scc1 L_p0_st
          s_cmp_ge_u32 s28, 8
          s_cbranch_scc1 L_p0_q
          s_cmp_eq_u32 s28, 2
          s_cbranch_scc1 L_p0_kv
          s_cmp_eq_u32 s28, 3
          s_cbranch_scc1 L_p0_n
          s_cmp_lt_u32 s28, 2
          s_cbranch_scc1 L_p0_pack""")
    k(f"""s_lshl_b32 s34, s29, 6
          s_lshl_b32 s35, s3, 4
          s_add_u32 s34, s34, s35
          v_lshrrev_b32 v12, 3, v1
          v_add_u32 v6, s34, v12
          v_lshlrev_b32 v6, 10, v6
          v_and_b32 v13, 7, v1
          v_xor_b32 v14, v13, v8
          v_lshl_add_u32 v6, v14, 4, v6
          v_xor_b32 v7, 64, v6
          v_add_u32 v7, 8192, v7
          s_lshl_b32 s36, s30, 7
          s_lshl_b32 s37, s3, 11
          s_mov_b32 s45, s46""")
    wt_dma_addr(k, 4, 5, "s35", "s36")
    k("s_waitcnt lgkmcnt(0)")
    srd(k, 16, 4, 5, 2048 * 1024); srd(k, 20, 6, 7, 512 * 1024); srd(k, 24, 14, 15, WS_USED)
    q = VQ(k)
    def xi(c):
        q.issue(f"x{c}", 2, lambda: k(f"""s_add_u32 m0, s37, {XL0 + c*8192}
              s_lshl_b32 s38, s46, 7
              s_add_u32 s46, s46, 1
              buffer_load_dwordx4 v6, s[16:19], s38 offen lds
              s_add_u32 m0, s37, {XL0 + c*8192 + 1024}
              s_and_b32 s46, s46, 7
              buffer_load_dwordx4 v7, s[16:19], s38 offen lds"""))
    def wqi(c):
        q.issue(f"w{c}", 2, lambda: k(f"""s_add_u32 m0, s37, {WL0 + c*8192}
              s_lshl_b32 s38, s45, 16
              s_add_u32 s45, s45, 1
              buffer_load_dwordx4 v4, s[20:23], s38 offen lds
              s_add_u32 m0, s37, {WL0 + c*8192 + 1024}
              s_and_b32 s45, s45, 7
              buffer_load_dwordx4 v5, s[20:23], s38 offen lds"""))
    for c in range(6): xi(c)
    k.stamp(2); q.wait("x1"); k.stamp(3); k("s_barrier"); k.stamp(4)
    xi(6); xi(7); wqi(0); wqi(1)
    q.wait("x3"); k("s_barrier")
    wqi(2); wqi(3); wqi(4)
    q.wait("x5"); k("s_barrier")
    wqi(5); wqi(6); wqi(7)
    q.wait("x7"); k.stamp(5); k("s_barrier\ns_barrier")
    for i in range(4):
        q.wait(f"w{2*i+1}"); k("s_barrier")
    k.stamp(6)
    k("s_barrier\ns_branch L_att")
    k(f"""L_p0_q:
          v_mov_b32 v64, 0x3f803f80
          v_mov_b32 v65, 0x3f803f80
          v_mov_b32 v66, 0x3f803f80
          v_mov_b32 v67, 0x3f803f80
          v_lshl_add_u32 v6, v9, 3, v10
          v_lshlrev_b32 v6, 7, v6
          v_lshrrev_b32 v12, 1, v10
          v_xor_b32 v12, s33, v12
          v_lshl_add_u32 v6, v12, 6, v6
          v_and_b32 v12, 1, v8
          v_lshl_add_u32 v6, v12, 5, v6
          v_lshl_add_u32 v6, v11, 3, v6
          v_add_u32 v6, {WL0}, v6
          v_and_b32 v12, 31, v1
          s_lshl_b32 s40, s32, 5
          v_add_u32 v12, s40, v12
          v_lshlrev_b32 v76, 3, v12
          v_add_u32 v76, {SX}, v76
          v_lshlrev_b32 v77, 4, v9
          s_lshl_b32 s41, s33, 7
          s_add_u32 s41, s41, {CSX}
          v_add_u32 v77, s41, v77
          v_lshrrev_b32 v13, 1, v12
          v_and_b32 v13, 7, v13
          v_lshlrev_b32 v12, 7, v12""")
    for qq in range(4):
        k(f"""v_add_u32 v14, {2*qq}, v9
              v_xor_b32 v14, v14, v13
              v_lshl_add_u32 v{72+qq}, v14, 4, v12""")
    for r in range(32): k(f"v_mov_b32 v{32+r}, 0")
    k("s_waitcnt lgkmcnt(0)")
    srd(k, 24, 14, 15, WS_USED)
    k("s_barrier\n" * 5)
    k.stamp(4)
    def qreads(c):
        s = c & 1
        for qq in range(4):
            st = 4*c + qq
            k(f"""ds_read_b64_tr_b16 v[{FA(s,qq)}:{FA(s,qq)+1}], v6 offset:{2048*st}
                  ds_read_b64_tr_b16 v[{FA(s,qq)+2}:{FA(s,qq)+3}], v6 offset:{2048*st+512}
                  ds_read_b128 {vr(FB(s,qq))}, v{72+qq} offset:{XL0 + 8192*c}""")
    def qloop(cs):
        def step(c, qq):
            s = c & 1
            k(f"v_mfma_f32_32x32x16_bf16 v[32:47], {vr(FA(s,qq))}, {vr(FB(s,qq))}, v[32:47]")
            if cs: k(f"v_mfma_f32_32x32x16_bf16 v[48:63], {vr(FA(s,qq))}, v[64:67], v[48:63]")
        k("s_barrier")
        k.stamp(5)
        qreads(0)
        for c in range(8):
            for qq in range(3):
                k(f"s_waitcnt lgkmcnt({9-3*qq})"); step(c, qq)
            k("s_waitcnt lgkmcnt(0)")
            if c < 7:
                if c & 1: k("s_barrier")
                qreads(c + 1)
            step(c, 3)
    k("""s_cmp_eq_u32 s32, s33
         s_cbranch_scc0 L_p0_qcs""")
    qloop(False)
    k("s_branch L_p0_qfin\nL_p0_qcs:")
    qloop(True)
    for gq in range(4): k(f"ds_write_b128 v77, {vr(48+4*gq)} offset:{32*gq}")
    k("""L_p0_qfin:
         s_waitcnt lgkmcnt(0)
         s_barrier""")
    k.stamp(6)
    k("ds_read_b64 v[68:69], v76")
    for gq in range(4): k(f"ds_read_b128 {vr(48+4*gq)}, v77 offset:{32*gq}")
    k(f"""s_lshl_b32 s34, s33, 12
          s_lshl_b32 s35, s32, 10
          s_add_u32 s34, s34, s35
          s_add_u32 s34, s34, {QL}
          v_add_u32 v3, s34, v2
          s_waitcnt lgkmcnt(0)
          v_mul_f32 v69, {f32(0.25*1.4426950408889634)}, v69""")
    for r in range(16): k(f"v_fma_f32 v{32+r}, -v68, v{48+r}, v{32+r}")
    for r in range(16): k(f"v_mul_f32 v{32+r}, v69, v{32+r}")
    for r in range(8): k(f"v_cvt_pk_bf16_f32 v{48+r}, v{32+2*r}, v{33+2*r}")
    k("""ds_write_b128 v3, v[48:51]
         ds_write_b128 v3, v[52:55] offset:2048
         s_branch L_att""")
    k(f"""L_p0_st:
          v_lshrrev_b32 v12, 2, v1
          s_lshl_b32 s34, s3, 4
          v_add_u32 v12, s34, v12           ; row
          v_lshlrev_b32 v7, 3, v12
          v_add_u32 v7, {SX}, v7
          v_lshrrev_b32 v13, 1, v12
          v_and_b32 v13, 7, v13
          v_lshlrev_b32 v12, 7, v12
          v_lshlrev_b32 v14, 1, v11
          v_xor_b32 v14, v14, v13
          v_lshl_add_u32 v4, v14, 4, v12
          v_xor_b32 v5, 16, v4
          v_mov_b32 v64, 0x3f803f80""")
    for i in range(4): k(f"v_mov_b32 v{48+i}, 0")
    k("s_waitcnt lgkmcnt(0)")
    srd(k, 24, 14, 15, WS_USED)
    for gi_ in range(4):
        k("s_barrier")
        for c in range(2):
            k(f"""ds_read_b128 {vr(16+8*c)}, v4 offset:{XL0 + 8192*(2*gi_+c)}
                  ds_read_b128 {vr(20+8*c)}, v5 offset:{XL0 + 8192*(2*gi_+c)}""")
        k("s_waitcnt lgkmcnt(0)")
        for d in range(16):
            k(f"""v_dot2_f32_bf16 v{48+(d&1)}, v{16+d}, v64, v{48+(d&1)}
                  v_dot2_f32_bf16 v{50+(d&1)}, v{16+d}, v{16+d}, v{50+(d&1)}""")
    k("v_add_f32 v48, v48, v49\nv_add_f32 v49, v50, v51")
    for qp in ("[1,0,3,2]", "[2,3,0,1]"):
        for i in range(2): k(f"v_add_f32_dpp v{48+i}, v{48+i}, v{48+i} quad_perm:{qp} row_mask:0xf bank_mask:0xf")
    ln_stats(k, 48, 49, 512, 12)
    k("ds_write_b64 v7, v[48:49]\ns_waitcnt lgkmcnt(0)")
    k("s_barrier\n" * 6 + "s_branch L_att")
    k(f"""L_p0_n:
          v_mov_b32 v20, 0
          s_memrealtime s[58:59]
          s_waitcnt lgkmcnt(0)""")
    srd(k, 24, 14, 15, WS_USED); srd(k, 16, 12, 13, 256)
    if PFQ:
        srd(k, 20, 6, 7, 512 * 1024)
        k(f"""s_lshr_b32 s34, s2, 3
              s_lshl_b32 s34, s34, 14
              s_add_u32 s35, s34, 8192
              v_lshlrev_b32 v24, 7, v1
              buffer_load_dword v25, v24, s[20:23], s34 offen
              buffer_load_dword v25, v24, s[20:23], s35 offen""")
    k(f"""s_mov_b64 exec, 1
          s_cmp_eq_u32 s2, 0
          s_cbranch_scc0 L_p0_n1
          s_or_b32 s59, s59, 0x40000000
          v_mov_b32 v22, s58
          v_mov_b32 v23, s59
          buffer_store_dwordx2 v[22:23], v20, s[16:19], 0 offen sc1
          L_p0_n1:
          s_barrier
          s_barrier
          s_mov_b32 s60, 0
          L_p0_np:
          buffer_load_dwordx2 v[22:23], v20, s[16:19], 0 offen sc1
          s_add_u32 s60, s60, 1
          s_cmp_eq_u32 s60, 1
          s_cbranch_scc0 L_p0_nw
          s_barrier
          s_barrier
          L_p0_nw:
          s_waitcnt vmcnt(0)
          v_cmp_eq_u32 vcc, 0, v23
          s_cmp_gt_u32 s60, 0x40000
          s_cbranch_scc1 L_p0_n2
          s_cbranch_vccnz L_p0_np
          L_p0_n2:
          v_mov_b32 v21, {SX + 768}
          ds_write_b64 v21, v[22:23]
          v_readfirstlane_b32 s58, v22
          v_readfirstlane_b32 s59, v23
          s_mov_b64 exec, -1
          v_lshlrev_b32 v21, 2, v1
          v_add_u32 v21, {FASTW}, v21
          v_cmp_eq_u32 vcc, 0, v1
          v_cndmask_b32 v22, 0, 2, vcc
          ds_write_b32 v21, v22
          v_mov_b32 v21, {SX + 768}
          s_mov_b32 s34, {KVFLAG}
          s_waitcnt lgkmcnt(0)""")
    k.stamp(4)
    k("s_barrier\n" * 6)
    k.stamp(5)
    k(f"""s_mov_b32 s60, 0
          L_p0_gp:""")
    for i in range(4): k(f"buffer_load_dwordx3 v[{28+4*i}:{30+4*i}], v2, s[24:27], s34 offen offset:{1024*i} sc1")
    k("s_add_u32 s60, s60, 1\ns_waitcnt vmcnt(0)")
    for i in range(4):
        k(f"v_xor_b32 v{28+4*i}, s58, v{28+4*i}\nv_xor_b32 v{29+4*i}, s59, v{29+4*i}")
    k(f"""v_or3_b32 v28, v28, v29, v32
          v_or3_b32 v33, v33, v36, v37
          v_or3_b32 v28, v28, v40, v41
          v_or_b32 v28, v28, v33
          v_cmp_ne_u32 vcc, 0, v28
          s_cmp_gt_u32 s60, 0x40000
          s_cbranch_scc1 L_p0_g2
          s_cbranch_vccz L_p0_g2
          s_sleep {SLEEP}
          s_branch L_p0_gp
          L_p0_g2:
          v_max3_f32 v30, v30, v34, v38
          v_max_f32 v30, v30, v42""")
    for sh in (1, 2, 4, 8):
        k(f"v_max_f32_dpp v30, v30, v30 row_ror:{sh} row_mask:0xf bank_mask:0xf")
    k("""v_mov_b32 v31, v30
         v_permlane16_swap_b32 v30, v31
         v_max_f32 v30, v30, v31
         v_mov_b32 v31, v30
         v_permlane32_swap_b32 v30, v31
         v_max_f32 v30, v30, v31
         ds_write_b32 v21, v30 offset:8
         s_branch L_att""")
    k(f"""L_p0_kv:
          s_lshr_b32 s40, s30, 2           ; kv
          s_and_b32 s41, s30, 3            ; rq
          s_waitcnt lgkmcnt(0)
          s_cmp_eq_u32 s40, 0
          s_cselect_b32 s20, s8, s10
          s_cselect_b32 s21, s9, s11
          s_mov_b32 s22, 16384
          s_mov_b32 s23, 0x00020000""")
    srd(k, 24, 14, 15, WS_USED)
    for c in range(8):
        k(f"""s_mov_b32 m0, {KVL + 2048*c}
              s_lshl_b32 s38, s46, 11
              s_add_u32 s46, s46, 1
              buffer_load_dwordx4 v2, s[20:23], s38 offen lds
              buffer_load_dwordx4 v2, s[20:23], s38 offen offset:1024 lds
              s_and_b32 s46, s46, 7""")
    k(f"""v_mov_b32 v64, 0x3f803f80
          v_mov_b32 v65, 0x3f803f80
          v_mov_b32 v66, 0x3f803f80
          v_mov_b32 v67, 0x3f803f80
          v_and_b32 v15, 15, v1
          s_lshl_b32 s34, s41, 4
          v_add_u32 v12, s34, v15
          v_lshlrev_b32 v74, 3, v12
          v_add_u32 v74, {SX}, v74
          v_lshl_add_u32 v75, v8, 2, s34
          v_lshlrev_b32 v75, 3, v75
          v_add_u32 v75, {SX}, v75
          v_lshrrev_b32 v13, 1, v12
          v_and_b32 v13, 7, v13
          v_lshlrev_b32 v12, 7, v12
          v_xor_b32 v14, v8, v13
          v_lshl_add_u32 v72, v14, 4, v12
          v_add_u32 v14, 4, v8
          v_xor_b32 v14, v14, v13
          v_lshl_add_u32 v73, v14, 4, v12
          v_lshl_add_u32 v6, v8, 3, v10
          v_lshlrev_b32 v6, 5, v6
          v_lshl_add_u32 v6, v11, 3, v6
          v_add_u32 v6, {KVL}, v6
          s_lshl_b32 s34, s29, 2
          s_add_u32 s34, s34, s41          ; t16
          v_and_b32 v12, 1, v8             ; h
          v_lshrrev_b32 v13, 1, v8         ; piece
          v_mov_b32 v76, {SX + 768}
          s_and_b32 s37, s2, 7
          s_lshl_b32 s37, s37, 9
          s_lshr_b32 s36, s2, 3
          s_lshl_b32 s36, s36, 4
          s_add_u32 s37, s37, s36
          s_add_u32 s37, s37, {KVFLAG}""")
    for r in range(8): k(f"v_mov_b32 v{32+r}, 0")
    def kvloop(isv):
        for gi_ in range(4):
            k(f"s_waitcnt vmcnt({4*(3-gi_)})\ns_barrier")
            for s in range(4):
                st = 4*gi_ + s; b = 80 + 8*s
                k(f"""ds_read_b64_tr_b16 v[{b}:{b+1}], v6 offset:{1024*st}
                      ds_read_b64_tr_b16 v[{b+2}:{b+3}], v6 offset:{1024*st+128}
                      ds_read_b128 {vr(b+4)}, v{72+(s&1)} offset:{XL0+8192*(st//2)}""")
            for s in range(4):
                W, X = 80 + 8*s, 84 + 8*s
                k(f"s_waitcnt lgkmcnt({9-3*s})")
                if isv:
                    k(f"""v_mfma_f32_16x16x32_bf16 v[32:35], {vr(X)}, {vr(W)}, v[32:35]
                          v_mfma_f32_16x16x32_bf16 v[36:39], v[64:67], {vr(W)}, v[36:39]""")
                else:
                    k(f"""v_mfma_f32_16x16x32_bf16 v[32:35], {vr(W)}, {vr(X)}, v[32:35]
                          v_mfma_f32_16x16x32_bf16 v[36:39], {vr(W)}, v[64:67], v[36:39]""")
        k("s_barrier\nds_read_b64 v[40:41], v76")
    k("""s_cmp_eq_u32 s40, 0
         s_cbranch_scc0 L_p0_v""")
    kvloop(False)
    k(f"""ds_read_b64 v[68:69], v74
          v_lshlrev_b32 v3, 9, v12
          v_lshl_add_u32 v3, v15, 4, v3
          v_lshl_add_u32 v3, v13, 3, v3
          s_lshr_b32 s35, s34, 1
          s_lshl_b32 s35, s35, 10
          s_and_b32 s36, s34, 1
          s_lshl_b32 s36, s36, 8
          s_add_u32 s35, s35, s36
          s_add_u32 s35, s35, {KF}
          s_waitcnt lgkmcnt(0)""")
    for r in range(4): k(f"v_fma_f32 v{32+r}, -v68, v{36+r}, v{32+r}")
    for r in range(4): k(f"v_mul_f32 v{32+r}, v69, v{32+r}")
    k(f"""v_cvt_pk_bf16_f32 v36, v32, v33
          v_cvt_pk_bf16_f32 v37, v34, v35
          buffer_store_dwordx2 v[36:37], v3, s[24:27], s35 offen sc1
          v_dot2_f32_bf16 v42, v36, v36, 0
          v_dot2_f32_bf16 v42, v37, v37, v42""")
    xhalf_add(k, 42, 12); x16_add(k, 42, 12)
    for sh in (1, 2, 4, 8):
        k(f"v_max_f32_dpp v42, v42, v42 row_ror:{sh} row_mask:0xf bank_mask:0xf")
    k("s_branch L_p0_kvf\nL_p0_v:")
    kvloop(True)
    k(f"""ds_read_b128 v[56:59], v75
          ds_read_b128 v[60:63], v75 offset:16
          v_lshlrev_b32 v3, 8, v12
          v_lshl_add_u32 v3, v15, 4, v3
          v_lshl_add_u32 v3, v13, 3, v3
          s_lshl_b32 s35, s34, 9
          s_add_u32 s35, s35, {VF}
          v_mov_b32 v42, 0
          s_waitcnt lgkmcnt(0)""")
    for r in range(4): k(f"v_fma_f32 v{32+r}, -v{56+2*r}, v{36+r}, v{32+r}")
    for r in range(4): k(f"v_mul_f32 v{32+r}, v{57+2*r}, v{32+r}")
    k(f"""v_cvt_pk_bf16_f32 v36, v32, v33
          v_cvt_pk_bf16_f32 v37, v34, v35
          buffer_store_dwordx2 v[36:37], v3, s[24:27], s35 offen sc1
          L_p0_kvf:
          v_mov_b32 v43, 0
          s_barrier
          s_waitcnt vmcnt(0)
          s_mov_b64 exec, 1
          buffer_store_dwordx4 v[40:43], v43, s[24:27], s37 offen sc1
          s_mov_b64 exec, -1""")
    k.stamp(4)
    k("s_barrier\n" * 4 + "s_branch L_att")
    k(f"""L_p0_pack:
          s_load_dwordx2 s[48:49], s[0:1], 48
          s_load_dwordx2 s[50:51], s[0:1], 32
          s_load_dwordx2 s[52:53], s[0:1], 72
          s_lshl_b32 s35, s28, 8
          s_add_u32 s35, s35, s2           ; J
          s_lshl_b32 s36, s28, 13
          s_add_u32 s36, s36, {128*1024}
          s_waitcnt lgkmcnt(0)""")
    srd(k, 24, 14, 15, WS_USED)
    k(f"""s_cmp_lt_u32 s35, 332
          s_cbranch_scc1 L_pk_job""")
    k("L_pk_done:\n" + "s_barrier\n" * 10 + "s_branch L_att")
    k(f"""L_pk_job:
          s_lshl_b32 s62, s35, 7
          s_add_u32 s62, s62, {PFLAG}
          s_mov_b32 s23, 0x00020000
          s_cmp_lt_u32 s35, 172
          s_cbranch_scc1 L_pk_in
          s_movk_i32 s40, 1024
          s_cmp_lt_u32 s35, 236
          s_cbranch_scc1 L_pk_o
          s_sub_u32 s35, s35, 236
          s_mul_i32 s37, s35, 171
          s_lshr_b32 s37, s37, 9
          s_mul_i32 s38, s37, 3
          s_sub_u32 s38, s35, s38
          s_mov_b32 s20, s52
          s_mov_b32 s21, s53
          s_mov_b32 s22, {688*1024}
          s_mul_i32 s39, s37, 24576
          s_add_u32 s39, s39, {WUP}
          s_branch L_pk_d
          L_pk_o:
          s_sub_u32 s35, s35, 172
          s_lshr_b32 s37, s35, 1
          s_and_b32 s38, s35, 1
          s_mov_b32 s20, s50
          s_mov_b32 s21, s51
          s_mov_b32 s22, {512*1024}
          s_lshl_b32 s39, s37, 14
          s_add_u32 s39, s39, {WOP}
          L_pk_d:
          v_lshrrev_b32 v12, 1, v8
          v_lshlrev_b32 v6, 4, v12
          v_and_b32 v12, 1, v8
          v_lshl_add_u32 v6, v12, 2, v6
          s_movk_i32 s41, 256
          s_mov_b32 s42, 0
          s_branch L_pk_go
          L_pk_in:
          s_movk_i32 s40, 2752
          s_lshr_b32 s37, s35, 1
          s_and_b32 s38, s35, 1
          s_mov_b32 s20, s48
          s_mov_b32 s21, s49
          s_mov_b32 s22, {512*2752}
          s_lshl_b32 s39, s37, 14
          s_add_u32 s39, s39, {WPK}
          v_lshlrev_b32 v6, 2, v8
          s_movk_i32 s41, 512
          s_mov_b32 s42, 1
          L_pk_go:
          v_add_u32 v6, v6, v10
          v_lshlrev_b32 v6, 5, v6
          v_lshl_add_u32 v6, v11, 3, v6
          v_add_u32 v108, s36, v6
          v_add_u32 v109, s41, v108
          s_lshl_b32 s43, s38, 13
          s_add_u32 s48, s39, s43           ; dst
          v_lshrrev_b32 v113, 1, v1
          v_mul_lo_u32 v113, v113, s40
          v_and_b32 v12, 1, v1
          v_lshl_add_u32 v113, v12, 4, v113
          s_lshl_b32 s50, s40, 8
          s_mul_i32 s50, s50, s38
          s_lshl_b32 s44, s37, 5
          s_add_u32 s50, s50, s44           ; src
          s_lshl_b32 s51, s40, 5            ; 32 rows
          s_lshl_b32 s49, s37, 6
          s_add_u32 s49, s49, s43
          s_add_u32 s49, s49, {CSUM}
          s_mul_i32 s49, s49, s42
          s_mov_b32 s45, s36
          s_branch L_pk_done""")
    k(f"""L_att:
          s_and_b32 s38, s28, 7            ; q idx
          s_lshr_b32 s39, s28, 3
          s_lshl_b32 s33, s29, 1
          s_add_u32 s33, s33, s32
          s_lshl_b32 s33, s33, 5
          s_lshl_b32 s34, s30, 2
          s_add_u32 s33, s33, s34
          s_lshr_b32 s34, s38, 1
          s_add_u32 s33, s33, s34
          s_lshl_b32 s46, s33, 10
          v_lshlrev_b32 v2, 4, v1          ; lane*16
          s_lshl_b32 s44, s39, 15          ; half*32768
          s_lshl_b32 s47, s38, 10
          v_add_u32 v102, s47, v2
          v_add_u32 v102, {QL}, v102
          s_add_u32 s47, s47, s44
          v_add_u32 v3, s47, v2
          v_mov_b32 v103, {SX + 768}
          v_mov_b32 v112, 0""")
    k.stamp(8)
    k("""s_waitcnt lgkmcnt(0)
          s_barrier""")
    k.stamp(7)
    def kvdma(c):
        k(f"""s_add_u32 m0, s47, {KL + 8192*c}
              s_add_u32 s34, s57, {c}
              s_and_b32 s34, s34, {3 if KVROT else 0}
              s_lshl_b32 s34, s34, 13
              s_add_u32 s34, s34, {KF + (0 if KVROT else 8192*c)}
              s_add_u32 s35, s34, {VF - KF}
              buffer_load_dwordx4 v3, s[24:27], s34 offen lds
              s_add_u32 m0, s47, {VL + 8192*c}
              buffer_load_dwordx4 v3, s[24:27], s35 offen lds""")
    kvdma(0)
    k(f"""ds_read_b128 {vr(Q)}, v102
          ds_read_b128 v[120:123], v103""")
    k(f"""s_lshr_b32 s63, s29, 1
          s_lshl_b32 s63, s63, 11
          s_add_u32 s63, s63, {XID}
          """)
    k(f"""v_add_u32 v{vK}, s44, v2
          v_lshrrev_b32 v103, 5, v1
          v_and_b32 v106, 15, v1
          v_lshl_add_u32 v103, v103, 4, v106
          v_lshlrev_b32 v103, 4, v103
          v_add_u32 v103, s44, v103
          v_add_u32 v{vV}, {VL}, v103
          s_mov_b32 s40, 0x0000ffff
          s_mov_b32 s41, 0x0000ffff
          v_and_b32 v106, 31, v1
          v_cmp_eq_u32 vcc, 16, v106
          v_mov_b32 v107, 0x3f803f80
          v_cndmask_b32 v107, 0, v107, vcc""")
    for i in range(16): k(f"v_mov_b32 v{12+i}, v107")
    for i in range(16): k(f"v_mov_b32 v{O+i}, 0\nv_mov_b32 v{C+i}, 0")
    for i in range(4): k(f"v_mov_b32 v{P+4+i}, 0")
    k(f"""s_waitcnt lgkmcnt(0)
          v_readfirstlane_b32 s58, v120
          v_readfirstlane_b32 s59, v121
          v_mov_b32 v104, v122
          v_dot2_f32_bf16 v106, v{Q}, v{Q}, 0
          v_dot2_f32_bf16 v106, v{Q+1}, v{Q+1}, v106
          v_dot2_f32_bf16 v106, v{Q+2}, v{Q+2}, v106
          v_dot2_f32_bf16 v106, v{Q+3}, v{Q+3}, v106""")
    xhalf_add(k, 106, 105)
    k(f"""v_mul_f32 v104, v104, v106
          v_mov_b32 v107, {f32(3500.0)}
          v_cmp_nle_f32 vcc, v104, v107
          s_mov_b32 s42, 1
          s_mov_b32 s43, 3
          s_mov_b32 s36, 0
          s_waitcnt vmcnt(0)""")
    k(f"""s_movk_i32 s31, {0x56 if PRIO == 3 else 0x42}
          s_cmp_eq_u32 s28, 4
          s_cselect_b32 s31, {0x5e if PRIO == 3 else 0x4a}, s31
          s_cmp_lg_u32 s62, 0
          s_cselect_b32 s31, {0x5e if PRIO == 3 else 0x5a}, s31
          v_mov_b32 v118, {CNT}
          v_mov_b32 v119, 1
          s_cbranch_vccnz L_k2_slow
          s_barrier""")
    kvdma(1); kvdma(2); kvdma(3)
    k.stamp(1)
    if os.environ.get("STP0"): k.stamp = lambda i, real=False: None if i < 13 else Kern.stamp(k, i, real)
    k("L_k2_start:")
    if PRIO == 3: k("s_setprio 3")
    if PRIO == 2:
        k("""s_cmp_lt_u32 s28, 8
             s_cbranch_scc1 L_pr0
             s_setprio 1
             L_pr0:""")
    k(f"""ds_read_b128 {vr(KFR)}, v{vK}
          s_waitcnt lgkmcnt(0)
          v_mfma_f32_32x32x16_bf16 {vr(S[0],16)}, {vr(KFR)}, {vr(Q)}, {vr(C,16)}
          ds_read_b128 {vr(KFR)}, v{vK} offset:1024
          s_mov_b64 exec, s[40:41]
          ds_read_b128 {vr(VFR[0][0])}, v{vV}
          ds_read_b128 {vr(VFR[0][1])}, v{vV} offset:512
          s_mov_b64 exec, -1
          s_nop 7""")
    k("L_k2_loop:")
    k("""s_bitcmp1_b32 s31, s36
         s_cbranch_scc1 L_k2_ev""")
    k("L_k2_body:")
    for u in range(4):
        s = S[u & 1]; sn = S[(u + 1) & 1]; vf = VFR[u & 1]; vn = VFR[(u + 1) & 1]
        if PRIO == 1: k(f"s_setprio {3-u}")
        qk = f"""s_waitcnt lgkmcnt(2)
              v_mfma_f32_32x32x16_bf16 {vr(sn,16)}, {vr(KFR)}, {vr(Q)}, {vr(C,16)}
              ds_read_b128 {vr(KFR)}, v{vK} offset:{1024*(u+2)}"""
        vrd = f"""s_mov_b64 exec, s[40:41]
              ds_read_b128 {vr(vn[0])}, v{vV} offset:{1024*(u+1)}
              ds_read_b128 {vr(vn[1])}, v{vV} offset:{1024*(u+1)+512}
              s_mov_b64 exec, -1"""
        pva = f"v_mfma_f32_32x32x16_bf16 {vr(O,16)}, {vr(vf[0])}, {vr(P)}, {vr(O,16)}"
        pvb_prev = f"v_mfma_f32_32x32x16_bf16 {vr(O,16)}, {vr(vn[1])}, {vr(P+4)}, {vr(O,16)}"
        E = lambda i: f"v_exp_f32 v{s+i}, v{s+i}"
        Cv = lambda j: f"v_cvt_pk_bf16_f32 v{P+j}, v{s+2*j}, v{s+2*j+1}"
        k(E(0)); k(E(1))
        k(pvb_prev); k(vrd)
        k(E(2)); k(E(3)); k(Cv(0)); k(E(4)); k(E(5)); k(Cv(1))
        k(qk)
        k(E(6)); k(E(7)); k(Cv(2)); k(E(8)); k(E(9)); k(Cv(3)); k(E(10)); k(E(11))
        k(pva)
        k(Cv(4)); k(E(12)); k(E(13)); k(Cv(5)); k(E(14)); k(E(15)); k(Cv(6)); k(Cv(7))
    k(f"""v_add_u32 v{vK}, 4096, v{vK}
          v_add_u32 v{vV}, 4096, v{vV}
          s_add_u32 s36, s36, 1
          s_cmp_lt_u32 s36, {NIT}
          s_cbranch_scc1 L_k2_loop
          v_mfma_f32_32x32x16_bf16 {vr(O,16)}, {vr(VFR[1][1])}, {vr(P+4)}, {vr(O,16)}
          s_setprio 0""")
    k.stamp(2)
    k(f"""s_mul_i32 s45, s38, 2304
          s_add_u32 s45, s45, {XL}
          v_add_u32 v103, s45, v2
          v_lshlrev_b32 v104, 2, v1
          v_add_u32 v104, s45, v104
          v_mov_b32 v107, {FASTW}
          s_lshl_b32 s35, s38, 2
          s_add_u32 s35, s35, {FASTW + 128}
          v_mov_b32 v102, s35
          s_cmp_eq_u32 s39, 0
          s_cbranch_scc1 L_k2_give
          s_mov_b32 s60, 0
          L_k2_mw:
          ds_read_b32 v105, v102
          ds_read_b32 v106, v107
          ds_read_b128 {vr(S[0])}, v103
          ds_read_b128 {vr(S[0]+4)}, v103 offset:1024
          ds_read_b32 v{S[0]+8}, v104 offset:2048
          s_lshl_b32 s34, s29, 13
          s_add_u32 s34, s34, {OFLAG}
          s_lshl_b32 s35, s32, 12
          s_add_u32 s34, s34, s35
          s_lshl_b32 s35, s30, 9
          s_add_u32 s34, s34, s35
          s_lshr_b32 s35, s38, 1
          s_lshl_b32 s35, s35, 7
          s_add_u32 s34, s34, s35
          s_add_u32 s33, s46, {OF}
          s_add_u32 s60, s60, 1
          s_waitcnt lgkmcnt(0)
          v_readfirstlane_b32 s63, v106
          v_readfirstlane_b32 s35, v105
          s_cmp_gt_u32 s60, 0x400000
          s_cbranch_scc1 L_k2_mok
          s_cmp_eq_u32 s63, 2
          s_cbranch_scc1 L_k2_mw
          s_cmp_eq_u32 s35, 0
          s_cbranch_scc1 L_k2_mw
          L_k2_mok:""")
    k.stamp(3)
    for r in range(9): k(f"v_add_f32 v{O+r}, v{O+r}, v{S[0]+r}")
    k(f"""v_mov_b32 v104, v{O+8}
          v_permlane32_swap_b32 v{O+8}, v104
          v_rcp_f32 v104, v{O+8}""")
    for r in range(8): k(f"v_mul_f32 v{O+r}, v104, v{O+r}")
    for r in range(4): k(f"v_cvt_pk_bf16_f32 v{P+r}, v{O+2*r}, v{O+2*r+1}")
    hstore(k, f"buffer_store_dwordx4 {vr(P)}, v2, s[24:27], s33 offen")
    k.stamp(4)
    if STAMPS: k("s_waitcnt vmcnt(0)")
    k.stamp(5)
    set_flagN(k, "s34")
    k.stamp(6)
    k("""s_cmp_lt_u32 s28, 12
         s_cbranch_scc1 L_kb_loader
         s_endpgm""")
    k(f"""L_k2_ev:
          s_cmp_ge_u32 s36, 6
          s_cbranch_scc1 L_k2_cnt
          s_cmp_eq_u32 s36, 4
          s_cbranch_scc1 L_k2_st4
          s_cmp_eq_u32 s36, 3
          s_cbranch_scc1 L_k2_st3
          s_cmp_eq_u32 s36, 1
          s_cbranch_scc1 L_k2_st1
          s_setprio 2
          s_branch L_k2_body
          L_k2_st1:
          s_cmp_eq_u32 s42, 1
          s_cbranch_scc0 L_k2_st1c
          s_waitcnt vmcnt(0)
          s_barrier
          L_k2_st1c:
          s_cmp_eq_u32 s62, 0
          s_cbranch_scc1 L_nopk""")
    for i in range(8):
        k(f"""s_add_u32 m0, s45, {1024*i}
              buffer_load_dwordx4 v113, s[20:23], s50 offen lds
              s_add_u32 s50, s50, s51""")
    k(f"""s_branch L_k2_body
          L_nopk:
          s_lshr_b32 s34, s28, 2
          s_cmp_eq_u32 s34, 1
          s_cbranch_scc0 L_k2_body
          s_load_dwordx2 s[52:53], s[0:1], 56
          s_lshr_b32 s61, s2, 3
          s_lshl_b32 s61, s61, 2
          s_add_u32 s61, s61, s3
          v_lshlrev_b32 v108, 7, v1
          s_and_b32 s37, s2, 7
          s_lshl_b32 s37, s37, 20
          s_lshl_b32 s61, s61, 13
          s_add_u32 s37, s37, s61
          s_mov_b32 s54, {2048*4096}
          s_mov_b32 s55, 0x00020000
          s_waitcnt lgkmcnt(0)
          buffer_load_dword v120, v108, s[52:55], s37 offen
          s_cmp_eq_u32 s28, 4
          s_cbranch_scc0 L_k2_body
          s_lshr_b32 s34, s29, 1
          s_lshl_b32 s34, s34, 7
          s_and_b32 s35, s29, 1
          s_lshl_b32 s35, s35, 3
          s_add_u32 s34, s34, s35
          s_add_u32 s34, s34, s30
          s_lshl_b32 s34, s34, 7
          s_add_u32 s34, s34, {ZSTAT}
          v_mov_b32 v112, -1
          v_mov_b32 v113, -1
          v_mov_b32 v114, -1
          v_mov_b32 v115, -1
          v_lshrrev_b32 v116, 3, v1
          v_lshlrev_b32 v116, 11, v116
          v_and_b32 v117, 7, v1
          v_lshl_add_u32 v116, v117, 4, v116
          buffer_store_dwordx4 v[112:115], v116, s[24:27], s34 offen sc1
          s_branch L_k2_body
          L_k2_cnt:
          {'s_setprio 0' if PRIO == 3 else ''}
          s_waitcnt lgkmcnt(0)
          s_mov_b64 exec, 1
          ds_add_u32 v118, v119
          s_mov_b64 exec, -1
          v_add_u32 v118, 4, v118
          s_branch L_k2_body
          L_k2_st4:
          {'s_setprio 1' if PRIO == 3 else ''}
          s_cmp_eq_u32 s62, 0
          s_cbranch_scc1 L_k2_body
          v_mov_b32 v112, s58
          v_mov_b32 v113, s59
          v_mov_b32 v114, 0
          s_waitcnt vmcnt(0)
          s_mov_b64 exec, 1
          buffer_store_dwordx2 v[112:113], v114, s[24:27], s62 offen sc1
          s_mov_b64 exec, -1
          s_branch L_k2_body
          L_k2_st3:
          s_waitcnt vmcnt(0)
          s_cmp_lg_u32 s62, 0
          s_cbranch_scc1 L_k2_pk
          s_and_b32 s34, s29, 1
          s_lshl_b32 s34, s34, 3
          s_add_u32 s34, s34, s30
          s_lshl_b32 s34, s34, 7
          s_add_u32 s34, s34, s63
          s_getreg_b32 s60, hwreg(HW_REG_XCC_ID, 0, 4)
          s_add_u32 s60, s60, s59
          v_mov_b32 v108, s58
          v_mov_b32 v109, s60
          v_mov_b32 v110, 0
          s_mov_b64 exec, 1
          buffer_store_dwordx2 v[108:109], v110, s[24:27], s34 offen sc1
          s_mov_b64 exec, -1
          s_branch L_k2_body
          L_k2_pk:
          s_mov_b32 s34, 0x3f803f80
          s_add_u32 s35, s48, 4096
          v_mov_b32 v110, 0
          v_mov_b32 v111, 0""")
    for h in range(2):
        for i in range(2):
          for i2 in range(2):
            k(f"""ds_read_b64_tr_b16 v[{120+4*i2}:{121+4*i2}], v108 offset:{1024*(4*h+2*i+i2)}
                  ds_read_b64_tr_b16 v[{122+4*i2}:{123+4*i2}], v109 offset:{1024*(4*h+2*i+i2)}""")
          k("s_waitcnt lgkmcnt(0)")
          for i2 in range(2):
            k(f"buffer_store_dwordx4 {vr(120+4*i2)}, v2, s[24:27], {'s35' if h else 's48'} offen offset:{1024*(2*i+i2)} sc1")
          for i3 in range(8): k(f"v_dot2_f32_bf16 v{110+(i3&1)}, v{120+i3}, s34, v{110+(i3&1)}")
    k("""s_cmp_eq_u32 s49, 0
         s_cbranch_scc1 L_k2_body
         v_add_f32 v110, v110, v111""")
    xhalf_add(k, 110, 111); x16_add(k, 110, 111)
    k(f"""v_lshlrev_b32 v111, 2, v1
          s_mov_b64 exec, 0xffff
          buffer_store_dword v110, v111, s[24:27], s49 offen sc1
          s_mov_b64 exec, -1
          s_branch L_k2_body""")
    k("L_k2_slow:")
    kvdma(1); kvdma(2); kvdma(3)
    k(f"""s_waitcnt vmcnt(0)
          s_barrier
          s_barrier
          s_mov_b32 s42, 99
          s_mov_b32 s43, 99
          v_mov_b32 v104, 0xff800000
          v_mov_b32 v103, v2
          s_mov_b32 s37, 0
          L_k2_mx:
          ds_read_b128 {vr(KFR)}, v103
          s_waitcnt lgkmcnt(0)
          v_mfma_f32_32x32x16_bf16 {vr(S[0],16)}, {vr(KFR)}, {vr(Q)}, 0
          v_add_u32 v103, 1024, v103""")
    for i in range(8):
        k(f"v_max3_f32 v104, v{S[0]+2*i}, v{S[0]+2*i+1}, v104")
    k(f"""s_add_u32 s37, s37, 1
          s_cmp_lt_u32 s37, 64
          s_cbranch_scc1 L_k2_mx
          v_mov_b32 v105, v104
          v_permlane32_swap_b32 v104, v105
          v_max_f32 v104, v104, v105""")
    for i in range(16): k(f"v_sub_f32 v{C+i}, 0, v104")
    k(f"""s_nop 1
          s_branch L_k2_start""")
    def waitcnt_lds(off, tag):
        k(f"""v_mov_b32 v108, {CNT + off}
              s_mov_b32 s60, 0
              L_cw_{tag}:
              ds_read_b32 v109, v108
              s_add_u32 s60, s60, 1
              s_waitcnt lgkmcnt(0)
              v_readfirstlane_b32 s34, v109
              s_cmp_gt_u32 s60, 0x400000
              s_cbranch_scc1 L_cwok_{tag}
              s_cmp_ge_u32 s34, 16
              s_cbranch_scc1 L_cwok_{tag}
              s_sleep 2
              s_branch L_cw_{tag}
              L_cwok_{tag}:""")
    k(f"""L_k2_give:
          s_load_dwordx2 s[4:5], s[0:1], 0
          s_cmp_eq_u32 s28, 4
          s_cbranch_scc0 L_kb_nochk
          v_and_b32 v110, 15, v1
          v_lshlrev_b32 v110, 7, v110
          s_mov_b32 s60, 0
          L_xc_b:
          buffer_load_dwordx2 v[108:109], v110, s[24:27], s63 offen sc1
          s_add_u32 s60, s60, 1
          s_waitcnt vmcnt(0)
          v_subrev_u32 v109, s59, v109
          v_xor_b32 v108, s58, v108
          v_lshrrev_b32 v106, 4, v109
          v_or_b32 v108, v108, v106
          v_cmp_ne_u32 vcc, 0, v108
          s_cmp_gt_u32 s60, 0x40000
          s_cbranch_scc1 L_xcok_b
          s_cbranch_vccnz L_xc_b
          L_xcok_b:
          v_readfirstlane_b32 s60, v109
          v_cmp_ne_u32 vcc, s60, v109
          s_cmp_eq_u64 vcc, 0
          s_cselect_b32 s60, {FAST}, 0
          v_mov_b32 v106, s60
          ds_write_b32 v107, v106
          L_kb_nochk:
          s_and_b32 s31, s29, 1
          s_lshl_b32 s31, s31, 3
          s_add_u32 s31, s31, s30
          s_mul_i32 s31, s31, 3
          s_min_u32 s31, s31, 40           ; u0
          s_lshl_b32 s34, s31, 1
          s_lshl_b32 s35, s30, 3
          s_add_u32 s35, s35, 172
          s_mul_i32 s37, s30, 12
          s_add_u32 s37, s37, {236-20}
          s_sub_u32 s34, s34, 8
          v_and_b32 v108, 31, v1
          v_add_u32 v109, s35, v108
          v_add_u32 v110, s34, v108
          v_cmp_lt_u32 vcc, 7, v108
          v_cndmask_b32 v109, v109, v110, vcc
          v_add_u32 v110, {86-6}, v110
          v_cmp_lt_u32 vcc, 13, v108
          v_cndmask_b32 v109, v109, v110, vcc
          v_add_u32 v110, s37, v108
          v_cmp_lt_u32 vcc, 19, v108
          v_cndmask_b32 v109, v109, v110, vcc
          v_lshlrev_b32 v15, 7, v109
          s_mov_b32 s37, {PFLAG}
          s_mov_b32 exec_hi, 0""")
    pollN(k, "s37", "p")
    k(f"""s_lshl_b32 s40, s31, 14
          s_add_u32 s40, s40, {WPK}        ; z1 base
          s_cmp_ge_u32 s28, 4
          s_cbranch_scc1 L_gv_pf
          s_mul_i32 s35, s28, 3072
          s_add_u32 m0, s35, {148*1024}
          s_add_u32 s35, s35, s40""")
    for j in range(3): k(f"buffer_load_dwordx4 v2, s[24:27], s35 offen offset:{1024*j} lds")
    k(f"""s_mul_i32 s35, s28, 12288
          s_add_u32 s35, s35, s40
          s_add_u32 s35, s35, {43*16384}
          v_lshlrev_b32 v108, 7, v1
          buffer_load_dword v117, v108, s[24:27], s35 offen
          v_and_b32 v109, 31, v1
          v_lshlrev_b32 v109, 7, v109
          s_add_u32 s35, s35, 8192
          buffer_load_dword v117, v109, s[24:27], s35 offen
          s_mul_i32 s35, s28, 9216
          s_add_u32 s35, s35, s40
          s_add_u32 s35, s35, 12288
          buffer_load_dword v117, v108, s[24:27], s35 offen
          v_and_b32 v109, 7, v1
          v_lshlrev_b32 v109, 7, v109
          s_add_u32 s35, s35, 8192
          buffer_load_dword v117, v109, s[24:27], s35 offen""")
    k(f"""s_branch L_gv_c6
          L_gv_pf:
          s_lshr_b32 s35, s2, 3
          s_lshl_b32 s35, s35, 2
          s_add_u32 s35, s35, s3
          s_mul_i32 s35, s35, 6144
          s_add_u32 s35, s35, {WUP}
          v_min_u32 v108, 47, v1
          v_lshlrev_b32 v108, 7, v108
          buffer_load_dword v117, v108, s[24:27], s35 offen
          L_gv_c6:""")
    waitcnt_lds(0, "6")
    k(f"""ds_write_b128 v103, {vr(O)}
          ds_write_b128 v103, {vr(O+4)} offset:1024
          ds_write_b32 v104, v{O+8} offset:2048
          ds_write_b32 v102, v119
          s_lshl_b32 s35, s30, 16
          s_lshl_b32 s37, s28, 13
          s_add_u32 s35, s35, s37
          s_add_u32 s35, s35, {WOP}
          s_lshr_b32 s37, s28, 1
          s_lshl_b32 s37, s37, 15
          s_lshl_b32 s41, s32, 13
          s_add_u32 s41, s41, s37
          s_mov_b32 m0, s41""")
    for j in range(4): k(f"buffer_load_dwordx4 v2, s[24:27], s35 offen offset:{1024*j} lds")
    k("s_add_u32 m0, s41, 4096\ns_add_u32 s35, s35, 4096")
    for j in range(4): k(f"buffer_load_dwordx4 v2, s[24:27], s35 offen offset:{1024*j} lds")
    lane_fields(k)
    k(f"""s_lshl_b32 s35, s28, 12
          s_add_u32 s35, s35, s40
          s_add_u32 s35, s35, {43*16384}
          s_lshl_b32 s41, s32, 12
          s_add_u32 s41, s41, s37
          s_add_u32 m0, s41, 16384""")
    for j in range(4): k(f"buffer_load_dwordx4 v2, s[24:27], s35 offen offset:{1024*j} lds")
    k(f"""s_lshl_b32 s33, s29, 13
          s_add_u32 s33, s33, {OFLAG}
          s_and_b32 s35, s28, 2
          s_lshl_b32 s35, s35, 11
          s_add_u32 s33, s33, s35
          s_and_b32 s35, s28, 4
          s_lshl_b32 s35, s35, 9
          s_add_u32 s33, s33, s35""")
    k(f"""s_lshr_b32 s61, s28, 2           ; kh
          s_lshl_b32 s36, s29, 2
          s_add_u32 s36, s36, s3           ; rb16
          s_lshl_b32 s37, s30, 1
          s_add_u32 s37, s37, s61
          v_and_b32 v14, 15, v1
          v_lshlrev_b32 v3, 10, v14
          v_lshl_add_u32 v3, v8, 3, v3
          s_lshl_b32 s44, s36, 14
          s_lshl_b32 s45, s37, 6
          s_add_u32 s44, s44, s45""")
    srd(k, 16, 4, 5, 2048 * 1024)
    k("""buffer_load_dwordx2 v[96:97], v3, s[16:19], s44 offen
         buffer_load_dwordx2 v[98:99], v3, s[16:19], s44 offen offset:32
         s_lshl_b32 s45, s61, 13
         v_add_u32 v4, s45, v2
         v_add_u32 v5, 65536, v4""")
    act32_voff(k, 3, "s32")
    k(f"""s_lshr_b32 s46, s36, 1
          s_lshl_b32 s46, s46, 15
          s_lshl_b32 s47, s61, 14
          s_add_u32 s46, s46, s47
          s_add_u32 s46, s46, {OF}""")
    for r in range(16): k(f"v_mov_b32 v{16+r}, 0")
    woff = lambda s, u: (4 + (u >> 1), (u & 1) * 32768 + s * 1024)
    k.stamp(3)
    k(f"""s_mov_b32 s60, 0
          L_gv_fw:
          ds_read_b32 v106, v107
          s_add_u32 s60, s60, 1
          s_waitcnt lgkmcnt(0)
          v_readfirstlane_b32 s63, v106
          s_cmp_gt_u32 s60, 0x400000
          s_cbranch_scc1 L_gv_fok
          s_cmp_eq_u32 s63, 2
          s_cbranch_scc1 L_gv_fw
          L_gv_fok:
          s_waitcnt vmcnt(0)
          s_barrier""")
    gemm64_reads(k, 0, woff)
    pollN(k, "s33", "o", 16)
    k.stamp(4)
    for s in range(8):
        if s % 2 == 0: k(f"s_add_u32 s47, s46, {s*2048}")
        k(f"buffer_load_dwordx4 {vr(64+4*s)}, v3, s[24:27], s47 offen offset:{2048*(s&1)} {LSC}")
    gemm64(k, 8, woff, 64)
    k.stamp(5)
    k("s_barrier")
    ksplit_exchange(k, 0, "s28", tag="b")
    k(f"""v_lshlrev_b32 v40, 16, v96
          v_and_b32 v41, 0xffff0000, v96
          v_lshlrev_b32 v42, 16, v97
          v_and_b32 v43, 0xffff0000, v97
          v_lshlrev_b32 v44, 16, v98
          v_and_b32 v45, 0xffff0000, v98
          v_lshlrev_b32 v46, 16, v99
          v_and_b32 v47, 0xffff0000, v99
          s_lshl_b32 s47, s36, 4
          s_add_u32 s47, s47, s37
          s_lshl_b32 s46, s47, 7
          s_add_u32 s33, s46, {HFLAG}
          s_add_u32 s46, s46, {HSTAT}
          s_lshl_b32 s47, s47, 10
          s_add_u32 s47, s47, {HF}""")
    for i in range(8): k(f"v_add_f32 v{16+i}, v{16+i}, v{40+i}")
    k("s_waitcnt lgkmcnt(0)")
    for i in range(8): k(f"v_add_f32 v{16+i}, v{16+i}, v{32+i}")
    for i in range(4): k(f"v_cvt_pk_bf16_f32 v{48+i}, v{16+2*i}, v{17+2*i}")
    hstore(k, "buffer_store_dwordx4 v[48:51], v2, s[24:27], s47 offen")
    k("""v_mov_b32 v54, 0x3f803f80
         v_dot2_f32_bf16 v52, v48, v54, 0
         v_dot2_f32_bf16 v53, v48, v48, 0""")
    for i in range(1, 4):
        k(f"""v_dot2_f32_bf16 v52, v{48+i}, v54, v52
              v_dot2_f32_bf16 v53, v{48+i}, v{48+i}, v53""")
    xhalf_add(k, 52, 12); xhalf_add(k, 53, 13)
    x16_add(k, 52, 12); x16_add(k, 53, 13)
    k("""v_lshlrev_b32 v12, 3, v14
         s_mov_b64 exec, 0xffff""")
    hstore(k, "buffer_store_dwordx2 v[52:53], v12, s[24:27], s46 offen")
    k(f"""s_mov_b64 exec, -1
          s_and_b32 s31, s29, 1
          s_lshl_b32 s31, s31, 3
          s_add_u32 s30, s30, s31          ; g
          s_lshr_b32 s29, s29, 1           ; rb128
          s_mul_i32 s31, s30, 3
          s_min_u32 s31, s31, 40           ; u0
          s_lshl_b32 s36, s29, 3
          s_add_u32 s36, s36, s28
          s_lshl_b32 s62, s36, 11
          s_add_u32 s62, s62, {HFLAG}
          s_lshl_b32 s47, s36, 11
          s_add_u32 s47, s47, {ZSTAT}""")
    ACC, WF, H = 16, 40, 64
    k(f"""v_mov_b32 v4, v2
          v_add_u32 v5, 65536, v4
          v_add_u32 v6, 131072, v4
          v_lshlrev_b32 v7, 3, v14
          v_lshl_add_u32 v7, v8, 9, v7      ; n*8 + g*512""")
    set_flagN(k, "s33")
    k.stamp(6)
    k(f"""s_cmp_eq_u32 s30, 15
          s_cbranch_scc0 L_k4_work
          v_mov_b32 v16, 0
          v_mov_b32 v17, 0
          v_lshlrev_b32 v12, 3, v14
          s_add_u32 s47, s47, {15*128}
          buffer_store_dwordx2 v[16:17], v12, s[24:27], s47 offen sc1
          s_barrier
          s_branch L_z_done
          L_k4_work:""")
    def WA(i):
        if i < 32: return (i >> 3) * 32768 + 16384 + (i & 7) * 1024
        if i < 48: return ((i - 32) >> 2) * 32768 + 24576 + (i & 3) * 1024
        if i < 60: return 148 * 1024 + (i - 48) * 1024
        l, j = divmod(i - 60, 9)
        return l * 32768 + 28672 + j * 1024 if j < 4 else 128 * 1024 + (5 * l + j - 4) * 1024
    def wreads(s, half):
        for u in range(3):
            a_ = WA((3*half + u) * 16 + s); f = WF + 12*half + 4*u
            k(f"ds_read_b128 {vr(f)}, v{4 + (a_ >> 16)} offset:{a_ & 0xffff}")
    for r in range(24): k(f"v_mov_b32 v{ACC+r}, 0")
    wreads(0, 0)
    k(f"""s_lshl_b32 s46, s36, 14
          s_add_u32 s46, s46, {HF}
          s_lshl_b32 s45, s36, 11
          s_add_u32 s45, s45, {HSTAT}
          """)
    pollN(k, "s62", "h", 16)
    k.stamp(7)
    q = VQ(k); hl = []
    for s in range(16):
        def f(s=s):
            if s % 4 == 0: k(f"s_add_u32 s44, s46, {s*1024}")
            k(f"buffer_load_dwordx4 {vr(H+4*s)}, v2, s[24:27], s44 offen offset:{1024*(s&3)} {LSC}")
        hl.append(f)
    for s in range(HW): q.issue(f"h{s}", 1, hl[s])
    def sl():
        for i in range(4):
            k(f"buffer_load_dwordx2 v[{8+2*i}:{9+2*i}], v7, s[24:27], s45 offen offset:{128*i} {LSC}")
    CS2, CS1, MR = 64, 72, 96
    for s in range(16):
        wreads(s, 1)
        q.wait(f"h{s}", extra=" lgkmcnt(3)")
        for u in range(3):
            k(f"v_mfma_f32_16x16x32_bf16 {vr(ACC+4*u)}, {vr(H+4*s)}, {vr(WF+4*u)}, {vr(ACC+4*u)}")
        if s + HW < 16: q.issue(f"h{s+HW}", 1, hl[s+HW])
        if s == 7: q.issue("st", 4, sl)
        if s < 15:
            wreads(s + 1, 0); k("s_waitcnt lgkmcnt(3)")
        else:
            k("s_waitcnt lgkmcnt(0)")
        for u in range(3):
            k(f"v_mfma_f32_16x16x32_bf16 {vr(ACC+12+4*u)}, {vr(WF+12+4*u)}, {vr(H+4*s)}, {vr(ACC+12+4*u)}")
        if s == 6:
            k.stamp(8)
        if s == 8:
            def cs():
                k(f"""v_and_b32 v3, 15, v1
                      v_lshlrev_b32 v3, 2, v3
                      s_lshl_b32 s38, s31, 6
                      s_add_u32 s38, s38, {CSUM}
                      s_add_u32 s39, s38, {688*4}""")
                for p in range(2):
                    for u in range(3):
                        k(f"buffer_load_dword v{CS2+3*p+u}, v3, s[24:27], s39 offen offset:{64*u}")
                    k("s_add_u32 s39, s39, 8192")
                k("v_lshrrev_b32 v3, 4, v1\nv_lshlrev_b32 v3, 4, v3")
                for p in range(2):
                    for u in range(3):
                        k(f"buffer_load_dwordx4 {vr(CS1+12*p+4*u)}, v3, s[24:27], s38 offen offset:{64*u}")
                    k("s_add_u32 s38, s38, 8192")
            q.issue("cs", 12, cs)
        if s == 12:
            q.wait("st")
            k("""v_add_f32 v8, v8, v10
                 v_add_f32 v9, v9, v11
                 v_add_f32 v12, v12, v14
                 v_add_f32 v13, v13, v15
                 v_add_f32 v8, v8, v12
                 v_add_f32 v9, v9, v13""")
            xhalf_add(k, 8, 12); xhalf_add(k, 9, 13)
        if s == 13:
            x16_add(k, 8, 12); x16_add(k, 9, 13)
            ln_stats(k, 8, 9, 512, 12)
        if s == 15:
            for r in range(4):
                k(f"""v_add_u32 v12, {4*r}, v3
                      ds_bpermute_b32 v{MR+r}, v12, v8
                      ds_bpermute_b32 v{MR+4+r}, v12, v9""")
    k.stamp(9)
    k("s_barrier")
    T = 40; z2r = [ACC + i for i in range(12)]; z1r = [ACC + 12 + i for i in range(12)]
    k(f"""v_mov_b32 v15, {f32(GC2)}
          v_and_b32 v14, 15, v1
          s_waitcnt vmcnt(0)""")
    for u in range(3): k(f"v_add_f32 v{CS2+u}, v{CS2+u}, v{CS2+3+u}")
    k("s_waitcnt lgkmcnt(0)")
    for i, a in enumerate(z2r): k(f"v_fma_f32 v{a}, -v{MR+i%4}, v{CS2+i//4}, v{a}")
    for i, a in enumerate(z2r): k(f"v_mul_f32 v{a}, v{MR+4+i%4}, v{a}")
    for i, a in enumerate(z2r): k(f"v_mul_f32 v{T+i}, v{a}, v{a}")
    for i, a in enumerate(z2r): k(f"v_fmaak_f32 v{T+i}, v15, v{T+i}, {f32(GC1)}")
    for i, a in enumerate(z2r): k(f"v_mul_f32 v{T+i}, v{T+i}, v{a}")
    for i, a in enumerate(z2r): k(f"v_exp_f32 v{T+i}, v{T+i}")
    for i, a in enumerate(z2r): k(f"v_add_f32 v{T+i}, 1.0, v{T+i}")
    for i, a in enumerate(z2r): k(f"v_rcp_f32 v{T+i}, v{T+i}")
    for i, a in enumerate(z2r): k(f"v_mul_f32 v{a}, v{a}, v{T+i}")
    SQ = 52
    for r in range(4):
        k(f"v_mov_b32 v{SQ+2*r}, v{ACC+8+r}\nv_mul_f32 v{SQ+2*r+1}, v{ACC+8+r}, v{ACC+8+r}")
    k("""s_cmp_eq_u32 s30, 14
         s_cbranch_scc1 L_k4_red""")
    for u in range(2):
        for r in range(4):
            a = ACC + 4*u + r
            k(f"v_add_f32 v{SQ+2*r}, v{SQ+2*r}, v{a}\nv_fmac_f32 v{SQ+2*r+1}, v{a}, v{a}")
    k("s_nop 0\nL_k4_red:")
    for i in range(4): k(f"v_add_f32_dpp v{SQ+i}, v{SQ+i}, v{SQ+i} row_ror:8 row_mask:0xf bank_mask:0x3")
    for i in range(4): k(f"v_add_f32_dpp v{SQ+i}, v{SQ+4+i}, v{SQ+4+i} row_ror:8 row_mask:0xf bank_mask:0xc")
    for m_ in ("row_half_mirror", "quad_perm:[1,0,3,2]", "quad_perm:[2,3,0,1]"):
        for i in range(4): k(f"v_add_f32_dpp v{SQ+i}, v{SQ+i}, v{SQ+i} {m_} row_mask:0xf bank_mask:0xf")
    k(f"""s_mov_b32 s49, -2
          s_lshl_b32 s48, s30, 7
          s_add_u32 s48, s48, s47
          v_lshlrev_b32 v12, 1, v1           ; (l>>3)*16 for lanes l%8==0""")
    for j in range(4): k(f"v_min_u32 v{SQ+j}, s49, v{SQ+j}")
    k(f"""s_mov_b32 s50, 0x01010101
          s_mov_b32 s51, 0x01010101
          s_mov_b64 exec, s[50:51]""")
    hstore(k, f"buffer_store_dwordx4 {vr(SQ)}, v12, s[24:27], s48 offen")
    k("s_mov_b64 exec, -1")
    k.stamp(10)
    k(f"""v_mul_f32 v10, {f32(GC1)}, v9
          v_mul_f32 v11, v9, v9
          v_mul_f32 v11, v11, v9
          v_mul_f32 v11, {f32(GC2)}, v11
          v_rcp_f32 v13, v9""")
    for i in range(12): k(f"v_add_f32 v{CS1+i}, v{CS1+i}, v{CS1+12+i}")
    for i, a in enumerate(z1r): k(f"v_fma_f32 v{a}, -v8, v{CS1+i}, v{a}")
    for i, a in enumerate(z1r): k(f"v_mul_f32 v{T+i}, v{a}, v{a}")
    for i, a in enumerate(z1r): k(f"v_fma_f32 v{T+i}, v{T+i}, v11, v10")
    for i, a in enumerate(z1r): k(f"v_mul_f32 v{T+i}, v{T+i}, v{a}")
    for i, a in enumerate(z1r): k(f"v_exp_f32 v{T+i}, v{T+i}")
    for i, a in enumerate(z1r): k(f"v_fma_f32 v{T+i}, v{T+i}, v13, v13")
    for i, a in enumerate(z1r): k(f"v_rcp_f32 v{T+i}, v{T+i}")
    for i, a in enumerate(z1r): k(f"v_mul_f32 v{a}, v{a}, v{T+i}")
    k(f"""v_lshrrev_b32 v10, 4, v1           ; g
          v_and_b32 v11, 1, v10
          v_lshrrev_b32 v10, 1, v10
          v_lshlrev_b32 v12, 9, v11
          v_lshl_add_u32 v12, v14, 4, v12
          v_lshl_add_u32 v12, v10, 3, v12
          v_lshlrev_b32 v6, 9, v10
          v_lshl_add_u32 v6, v14, 4, v6
          v_lshl_add_u32 v6, v11, 3, v6
          s_lshr_b32 s44, s36, 1
          s_mul_i32 s44, s44, 44
          s_add_u32 s44, s44, s31
          s_lshl_b32 s44, s44, 10
          s_and_b32 s45, s36, 1
          s_lshl_b32 s45, s45, 8
          s_add_u32 s44, s44, s45
          s_add_u32 s44, s44, {Z1}
          s_mov_b32 s54, 0""")
    def zpoll():
        for i in range(4):
            k(f"buffer_load_dwordx2 v[{72+2*i}:{73+2*i}], v7, s[24:27], s47 offen offset:{128*i} sc1")
    zpoll()
    for u in range(3):
        a = ACC + 12 + 4*u; p = 64 + 2*u
        k(f"""v_cvt_pk_bf16_f32 v{p}, v{a}, v{a+1}
              v_cvt_pk_bf16_f32 v{p+1}, v{a+2}, v{a+3}
              buffer_store_dwordx2 v[{p}:{p+1}], v12, s[24:27], s44 offen offset:{1024*u} {ZSC}""")
    k("s_waitcnt vmcnt(3)\ns_branch L_k4_chk\nL_k4_poll:")
    zpoll()
    k(f"""s_waitcnt vmcnt(0)
          L_k4_chk:
          v_max3_u32 v12, v72, v73, v74
          v_max3_u32 v13, v75, v76, v77
          v_max3_u32 v12, v12, v78, v79
          v_max_u32 v12, v12, v13
          v_cmp_eq_u32 vcc, -1, v12
          s_add_u32 s54, s54, 1
          s_cmp_gt_u32 s54, 0x40000
          s_cbranch_scc1 L_k4_go
          s_cbranch_vccz L_k4_go
          s_sleep {SLEEP}
          s_branch L_k4_poll
          L_k4_go:""")
    k.stamp(11)
    k("""v_add_f32 v72, v72, v74
         v_add_f32 v73, v73, v75
         v_add_f32 v76, v76, v78
         v_add_f32 v77, v77, v79
         v_add_f32 v72, v72, v76
         v_add_f32 v73, v73, v77""")
    xhalf_add(k, 72, 12); xhalf_add(k, 73, 13)
    x16_add(k, 72, 12); x16_add(k, 73, 13)
    ln_stats(k, 72, 73, 688, 12)
    k("v_mul_f32 v72, -v72, v73")
    for r in range(4):
        k(f"""v_add_u32 v12, {4*r}, v3
              ds_bpermute_b32 v{MR+r}, v12, v72
              ds_bpermute_b32 v{MR+4+r}, v12, v73""")
    k(f"""s_lshl_b32 s45, s36, 10
          s_add_u32 s45, s45, {Z2F}
          s_waitcnt lgkmcnt(0)""")
    for i, a in enumerate(z2r): k(f"v_fma_f32 v{a}, v{a}, v{MR+4+i%4}, v{MR+i%4}")
    for u in range(3):
        a = ACC + 4*u; p = 80 + 2*u
        k(f"""s_add_u32 s44, s31, {u}
              s_lshr_b32 s46, s44, 1
              s_lshl_b32 s46, s46, 17
              s_and_b32 s44, s44, 1
              s_lshl_b32 s44, s44, 8
              s_add_u32 s44, s44, s46
              s_add_u32 s44, s44, s45
              v_cvt_pk_bf16_f32 v{p}, v{a}, v{a+1}
              v_cvt_pk_bf16_f32 v{p+1}, v{a+2}, v{a+3}
              buffer_store_dwordx2 v[{p}:{p+1}], v6, s[24:27], s44 offen {ZSC}""")
    k("L_z_done:")
    AD, NS, WOL = 3, 6, 65536
    ORD = [((p & 14) << 1) + (p & 1) + ((p >> 4) << 1) for p in range(32)] if PROG else list(range(32))
    ACC, BF, A = 16, 48, 80
    k(f"""s_load_dwordx2 s[6:7], s[0:1], 64
          s_load_dwordx2 s[10:11], s[0:1], 80
          s_mul_i32 s34, s57, 3
          s_min_u32 s34, s34, 19
          s_add_u32 s34, s34, s28
          s_lshl_b32 s62, s56, 12
          s_add_u32 s62, s62, {YFLAG}
          s_lshl_b32 s52, s34, 7
          s_add_u32 s52, s52, s62
          s_mul_i32 s53, s61, {11*128}
          s_add_u32 s62, s62, s53
          s_lshl_b32 s40, s34, 17
          s_add_u32 s41, s40, {Z2F}
          s_mov_b32 s40, s41
          s_mov_b32 s45, 0
          s_mul_i32 s39, s56, 88
          s_lshl_b32 s42, s34, 1
          s_add_u32 s39, s39, s42
          s_lshl_b32 s39, s39, 10
          v_and_b32 v15, 31, v1
          v_lshlrev_b32 v12, 1, v15
          s_lshl_b32 s43, s56, 7
          s_waitcnt vmcnt(0) lgkmcnt(0)
          s_barrier""")
    k.stamp(12)
    k(f"""s_cmp_lt_u32 s28, 3
          s_cbranch_scc1 L_k5_comp
          s_cmp_eq_u32 s28, 3
          s_cbranch_scc0 L_k5_idle
          s_lshl_b32 s44, s29, 4
          s_add_u32 s44, s44, s30
          s_lshl_b32 s44, s44, 7
          s_add_u32 s44, s44, {XIDC}""")
    set_flagN(k, "s44", drain=False, fast=False)
    k(f"""s_lshl_b32 s44, s57, 1
          s_min_u32 s44, s44, 12
          s_lshl_b32 s44, s44, 7
          s_add_u32 s44, s44, {XIDC}
          v_and_b32 v15, 7, v1
          v_lshlrev_b32 v15, 12, v15
          v_lshrrev_b32 v12, 3, v1
          v_min_u32 v12, 2, v12
          v_lshl_add_u32 v15, v12, 7, v15""")
    pollN(k, "s44", "z")
    k("s_barrier\n" * (6 if PROG else 0) + "s_add_u32 s44, s44, 2048")
    pollN(k, "s44", "z2")
    k(f"""s_mov_b32 s55, {6 if PROG else 0}
          s_branch L_k5_ib
          L_k5_idle:
          s_mov_b32 s55, 0
          L_k5_ib:
          s_barrier
          s_add_u32 s55, s55, 1
          s_cmp_lt_u32 s55, 17
          s_cbranch_scc1 L_k5_ib
          s_branch L_k6""")
    k("L_k5_comp:")
    srd(k, 20, 6, 7, 4096)
    k(f"""buffer_load_ushort v8, v12, s[20:23], s43 offen
          buffer_load_ushort v9, v12, s[20:23], s43 offen offset:64
          v_lshrrev_b32 v13, 1, v15
          v_and_b32 v13, 7, v13
          v_lshlrev_b32 v12, 7, v15
          v_lshrrev_b32 v10, 5, v1""")
    for qq in range(4):
        k(f"""v_add_u32 v14, {2*qq}, v10
              v_xor_b32 v14, v14, v13
              v_lshl_add_u32 v{4+qq}, v14, 4, v12""")
    k(f"""s_cmp_eq_u32 s34, 21
          s_cselect_b32 s44, {0x3ff & ~256}, -1
          v_and_b32 v3, s44, v2
          s_mov_b32 s55, 0
          s_mov_b32 s54, 24576
          s_waitcnt vmcnt(0)
          v_lshlrev_b32 v8, 16, v8
          v_lshlrev_b32 v9, 16, v9""")
    for r in range(16): k(f"v_mov_b32 v{ACC+r}, v8\nv_mov_b32 v{ACC+16+r}, v9")
    k("s_barrier")
    k.stamp(13 if False else 8)
    for i in range(AD):
        for j in range(4):
            k(f"buffer_load_dwordx4 {vr(A+16*i+4*j)}, v3, s[24:27], s40 offen offset:{1024*j}")
        k(f"s_add_u32 s40, s40, {(ORD[i+1]-ORD[i])*4096}")
    k(f"s_add_u32 s41, s41, 8192\ns_add_u32 s45, s39, {Z1}")
    def breads(half, slotoff):
        for j in range(2):
            for th in range(2):
                k(f"ds_read_b128 {vr(BF+16*half+8*j+4*th)}, v{4+2*half+j} offset:{slotoff+4096*th}")
    def mf(half, slot, ld):
        for j in range(2):
            for th in range(2):
                k(f"v_mfma_f32_32x32x16_bf16 {vr(ACC+16*th,16)}, {vr(A+16*slot+8*half+4*j)}, {vr(BF+16*half+8*j+4*th)}, {vr(ACC+16*th,16)}")
            if ld: ld(2*half + j)
    def ald(slot): return lambda jj: k(f"buffer_load_dwordx4 {vr(A+16*slot+4*jj)}, v3, s[24:27], s40 offen offset:{1024*jj}")
    k("s_barrier")
    breads(0, 0)
    k("L_k5_loop:")
    for i in range(6):
        sl = i % AD
        breads(1, i * 8192)
        k(f"s_waitcnt vmcnt({4*AD-2}) lgkmcnt(4)")
        mf(0, sl, ald(sl))
        if i & 1:
            k(f"s_waitcnt vmcnt({4*AD-2}) lgkmcnt(0)\ns_barrier")
            breads(0, ((i + 1) % 6) * 8192)
        else:
            breads(0, (i + 1) * 8192)
            k(f"s_waitcnt vmcnt({4*AD-2}) lgkmcnt(4)")
        mf(1, sl, ald(sl))
        k(f"s_add_u32 s40, s40, {12288 if i % 2 == 0 else 4096}" if PROG else "s_add_u32 s40, s40, 4096")
        if i == 0 and PROG:
            k(f"""s_cmp_eq_u32 s55, 2
                  s_cselect_b32 s40, s41, s40""")
        if i == 4:
            k(f"""s_add_u32 s55, s55, 1
                  s_cmp_eq_u32 s55, 5
                  s_cselect_b32 s40, s45, s40
                  s_cselect_b32 s44, -1, 0
                  v_and_or_b32 v3, s44, v2, v3""")
    k("""s_cmp_lt_u32 s55, 5
         s_cbranch_scc1 L_k5_loop""")
    k(f"s_add_u32 s43, s39, {Z1 + 44*1024}")
    breads(1, 0)
    k("s_waitcnt vmcnt(10) lgkmcnt(4)")
    mf(0, 0, lambda jj: k(f"buffer_load_dwordx4 {vr(A+4*jj)}, v2, s[24:27], s43 offen offset:{1024*jj}"))
    breads(0, 8192)
    k("s_waitcnt vmcnt(10) lgkmcnt(4)")
    mf(1, 0, None)
    breads(1, 8192)
    k("s_waitcnt vmcnt(8) lgkmcnt(4)")
    mf(0, 1, None)
    k("s_waitcnt vmcnt(6) lgkmcnt(0)")
    mf(1, 1, None)
    k.stamp(9)
    Zs = [A + 32 + i for i in range(8)] + [A + i for i in range(8)]
    k(f"""s_add_u32 s42, s39, {YF}
          s_add_u32 s43, s42, {44*1024}
          s_waitcnt vmcnt(0)""")
    for i in range(16):
        k(f"""v_lshlrev_b32 v{48+2*i}, 16, v{Zs[i]}
              v_and_b32 v{49+2*i}, 0xffff0000, v{Zs[i]}""")
    for i in range(32): k(f"v_mul_f32 v{ACC+i}, v{ACC+i}, v{48+i}")
    for i in range(16): k(f"v_cvt_pk_bf16_f32 v{A+i}, v{ACC+2*i}, v{ACC+2*i+1}")
    hstore(k, [f"buffer_store_dwordx4 {vr(A+8*th+4*f)}, v2, s[24:27], {'s43' if th else 's42'} offen offset:{1024*f}" for th in range(2) for f in range(2)])
    set_flagN(k, "s52")
    k.stamp(10)
    k("L_k6:")
    lane_fields(k)
    k(f"""s_lshl_b32 s36, s56, 2
          s_add_u32 s36, s36, s3           ; rb16
          s_lshl_b32 s37, s57, 1
          s_add_u32 s37, s37, s61
          s_lshl_b32 s47, s36, 4
          s_add_u32 s47, s47, s37
          s_lshl_b32 s47, s47, 10
          s_add_u32 s47, s47, {HF}
          buffer_load_dwordx4 v[112:115], v2, s[24:27], s47 offen
          s_mul_i32 s45, s61, {11*1024}
          s_add_u32 s45, s45, {WOL}
          v_add_u32 v4, s45, v2
          v_add_u32 v5, {2*22528}, v4""")
    act32_voff(k, 3, "s32")
    k(f"""s_lshr_b32 s46, s36, 1
          s_mul_i32 s46, s46, {44*1024}
          s_mul_i32 s47, s61, {22*1024}
          s_add_u32 s46, s46, s47
          s_add_u32 s46, s46, {YF}
          s_cmp_eq_u32 s61, 0
          s_cselect_b32 s49, -1, 0""")
    srd(k, 16, 10, 11, 2048 * 1024)
    for r in range(16): k(f"v_mov_b32 v{16+r}, 0")
    for r in range(4): k(f"v_mov_b32 v{64+40+r}, 0")
    woff = lambda s, u: (4 + (u >> 1), (u & 1) * 22528 + s * 1024)
    if WOT != 'tail': gemm64_reads(k, 0, woff)
    pollN(k, "s62", "y", 11)
    k.stamp(11)
    for s in range(11):
        if s % 2 == 0: k(f"s_add_u32 s47, s46, {s*2048}")
        if s == 10: k("s_mov_b32 exec_hi, s49")
        k(f"buffer_load_dwordx4 {vr(64+4*s)}, v3, s[24:27], s47 offen offset:{2048*(s&1)}")
    k("s_mov_b32 exec_hi, -1")
    if WOT == 'tail':
        k("s_barrier")
        gemm64_reads(k, 0, woff)
    gemm64(k, 11, woff, 64)
    ksplit_exchange(k, 49152, "s28", tag="c")
    for i in range(4):
        k(f"""v_lshlrev_b32 v{40+2*i}, 16, v{112+i}
              v_and_b32 v{41+2*i}, 0xffff0000, v{112+i}""")
    for i in range(8): k(f"v_add_f32 v{16+i}, v{16+i}, v{40+i}")
    k(f"""v_and_b32 v12, 15, v1
          v_lshlrev_b32 v12, 10, v12
          v_and_b32 v13, 1, v8
          v_lshl_add_u32 v12, v13, 5, v12
          v_lshl_add_u32 v12, v9, 4, v12
          s_lshl_b32 s46, s36, 14
          s_lshl_b32 s47, s37, 6
          s_add_u32 s46, s46, s47
          s_waitcnt lgkmcnt(0)""")
    for i in range(8): k(f"v_add_f32 v{16+i}, v{16+i}, v{32+i}")
    for i in range(4): k(f"v_cvt_pk_bf16_f32 v{48+i}, v{16+2*i}, v{17+2*i}")
    k("""v_permlane16_swap_b32 v48, v50
         v_permlane16_swap_b32 v49, v51
         buffer_store_dwordx4 v[48:51], v12, s[16:19], s46 offen
         s_endpgm""")
    k(f"""L_kb_loader:
          s_and_b32 s31, s29, 1
          s_lshl_b32 s31, s31, 3
          s_add_u32 s30, s30, s31          ; g
          s_mul_i32 s31, s30, 3
          s_min_u32 s31, s31, 40           ; u0
          s_lshl_b32 s40, s31, 14
          s_lshl_b32 s38, s3, 12
          s_add_u32 s41, s40, s38
          s_add_u32 s41, s41, {WPK + 43*16384 + 32768}
          s_mul_i32 s38, s3, 9216
          s_add_u32 s40, s40, s38
          s_add_u32 s40, s40, {WPK + 12*1024}
          s_lshl_b32 s42, s3, 15
          s_add_u32 m0, s42, 24576
          s_mul_i32 s38, s3, 5120
          s_barrier""")
    for j in range(4): k(f"buffer_load_dwordx4 v2, s[24:27], s41 offen offset:{1024*j} lds")
    k("s_add_u32 m0, s42, 28672")
    for j in range(4): k(f"buffer_load_dwordx4 v2, s[24:27], s40 offen offset:{1024*j} lds")
    k(f"s_add_u32 m0, s38, {128*1024}\ns_add_u32 s40, s40, 4096")
    for j in range(4): k(f"buffer_load_dwordx4 v2, s[24:27], s40 offen offset:{1024*j} lds")
    k(f"s_add_u32 m0, s38, {128*1024+4096}\ns_add_u32 s40, s40, 4096\nbuffer_load_dwordx4 v2, s[24:27], s40 offen lds")
    k.stamp(3)
    k(f"""s_load_dwordx2 s[16:17], s[0:1], 56
          s_lshl_b32 s35, s56, 6
          s_lshl_b32 s36, s3, 4
          s_add_u32 s35, s35, s36
          v_lshrrev_b32 v12, 3, v1
          v_add_u32 v5, s35, v12
          v_lshlrev_b32 v5, 12, v5
          v_and_b32 v13, 7, v1
          v_lshrrev_b32 v14, 4, v1
          v_xor_b32 v14, v13, v14
          v_lshl_add_u32 v5, v14, 4, v5
          v_xor_b32 v6, 64, v5
          v_add_u32 v6, {8*4096}, v6
          s_lshl_b32 s37, s3, 11
          s_lshl_b32 s36, s57, 2
          s_add_u32 s36, s36, s3
          s_mul_i32 s36, s36, 24576
          s_add_u32 s36, s36, {WUP}
          s_mul_i32 s35, s3, 22528
          s_add_u32 s35, s35, {WOL}
          s_mov_b32 s18, {2048*4096}
          s_mov_b32 s19, 0x00020000
          s_waitcnt vmcnt(0) lgkmcnt(0)""")
    k.stamp(4)
    k("s_barrier\ns_barrier\ns_barrier")
    q = VQ(k)
    def bi(c):
        q.issue(f"b{c}", 2, lambda: k(f"""s_add_u32 m0, s37, {(c % NS)*8192}
              s_movk_i32 s41, {ORD[c]*128}
              buffer_load_dwordx4 v5, s[16:19], s41 offen lds
              s_add_u32 m0, s37, {(c % NS)*8192 + 1024}
              buffer_load_dwordx4 v6, s[16:19], s41 offen lds"""))
    def wi(c):
        q.issue(f"w{c}", 2, lambda: k(f"""s_add_u32 m0, s35, {c*2048}
              s_add_u32 s39, s36, {c*2048}
              buffer_load_dwordx4 v2, s[24:27], s39 offen lds
              s_sleep {WSL2}
              buffer_load_dwordx4 v2, s[24:27], s39 offen offset:1024 lds
              s_sleep {WSL2}"""))
    if WOT == 'kl':
        for c in range(11): wi(c)
    nxt = 0
    for _ in range(NS): bi(nxt); nxt += 1
    k.stamp(5)
    k("s_barrier")
    if WOT == 'zb':
        for c in range(11): wi(c)
    k("s_barrier")
    for b in range(16):
        q.wait(f"b{2*b+1}"); k("s_barrier")
        while nxt < 32 and nxt - NS <= 2*b - 1: bi(nxt); nxt += 1
    k("s_waitcnt vmcnt(0)\ns_endpgm")
    k(f"L_{k.name}_end:\ns_endpgm")
    return k, (256, 1024, 163840)
```

```python
import re

TRANS = ("v_exp_f32", "v_log_f32", "v_rcp_f32", "v_rsq_f32", "v_sqrt_f32", "v_sin_f32", "v_cos_f32",
         "v_exp_f16", "v_rcp_f16", "v_rcp_iflag_f32")

def regs_of(tok):
    tok = tok.strip()
    tok = tok.lstrip("-")
    if tok.startswith("abs(") or tok.startswith("neg("):
        tok = tok[4:-1]
    tok = tok.strip("|")
    m = re.fullmatch(r"([vsa])(\d+)", tok)
    if m:
        return {(m.group(1), int(m.group(2)))}
    m = re.fullmatch(r"([vsa])\[(\d+):(\d+)\]", tok)
    if m:
        return {(m.group(1), i) for i in range(int(m.group(2)), int(m.group(3)) + 1)}
    if tok in ("vcc", "vcc_lo", "vcc_hi"):
        return {("vcc", 0)}
    if tok in ("exec", "exec_lo", "exec_hi"):
        return {("exec", 0)}
    if tok == "m0":
        return {("m0", 0)}
    return set()

class Ins:
    def __init__(self, text):
        self.text = text
        t = text.split(";")[0].strip()
        self.label = None
        self.op = None
        self.dst = set(); self.src = set()
        self.kind = "other"
        self.srcc = set(); self.srcab = set()
        self.states = 1
        self.target = None
        if not t:
            self.kind = "none"; self.states = 0; return
        if t.endswith(":"):
            self.label = t[:-1]; self.kind = "label"; self.states = 0; return
        if t.startswith("."):
            self.kind = "none"; self.states = 0; return
        parts = t.split(None, 1)
        op = parts[0]; self.op = op
        rest = parts[1] if len(parts) > 1 else ""
        ops = []
        main = re.split(r"\s+(?=(?:offen|idxen|offset|offset0|offset1|lds|sc0|sc1|nt|op_sel|op_sel_hi|neg_lo|neg_hi|clamp|mul:|div:|row_|quad_perm|bank_mask|bound_ctrl|off\b|cbsz|abid|blgp|dst_sel|src0_sel|src1_sel|dst_unused|wave_))", rest, 1)[0]
        ops = [o.strip() for o in main.split(",") if o.strip()]
        self.mods = rest[len(main):]
        base = re.sub(r"_(e32|e64|dpp|sdwa)$", "", op)
        self.base = base
        self.dpp = ("row_" in self.mods or "quad_perm" in self.mods or "wave_" in self.mods or op.endswith("_dpp"))
        R = [regs_of(o) for o in ops]
        if op == "s_nop":
            self.kind = "nop"; self.states = int(ops[0], 0) + 1; return
        if op.startswith("s_cbranch") or op == "s_branch":
            self.kind = "branch"; self.target = ops[0]; return
        if op.startswith("v_mfma") or op.startswith("v_smfmac"):
            self.kind = "mfma"
            self.dst = R[0]; self.srcab = R[1] | R[2]; self.srcc = R[3] if len(R) > 3 else set()
            if op.startswith("v_smfmac"):
                self.srcab |= self.srcc; self.srcc = set(self.dst)
            self.src = self.srcab | self.srcc
            self.passes = 8 if "32x32" in op else 4
            return
        if op.startswith("buffer_") or op.startswith("global_"):
            self.kind = "vmem"
            islds = " lds" in (" " + self.mods) or "_lds_" in op
            if "store" in op or ("atomic" in op and "sc0" not in self.mods):
                self.src = set().union(*R) if R else set()
                self.wide_store = ("x3" in op or "x4" in op)
                self.sdata = R[0] if op.startswith("buffer_") else R[1]
            elif islds:
                self.src = set().union(*R) | {("m0", 0)}
                self.ldsdma = True
            else:
                self.dst = R[0]; self.src = set().union(*R[1:])
                if "atomic" in op: self.src |= R[0]
            return
        if op.startswith("ds_"):
            self.kind = "ds"
            if op.startswith("ds_write") or (op.startswith("ds_add") and "rtn" not in op) or (op.startswith("ds_max") and "rtn" not in op):
                self.src = set().union(*R)
            else:
                self.dst = R[0]; self.src = set().union(*R[1:])
            return
        if op.startswith("v_"):
            self.kind = "valu"
            if base.startswith("v_cmpx"):
                self.dst = R[0] | {("exec", 0)}; self.src = set().union(*R[1:])
            elif base.startswith("v_cmp"):
                self.dst = R[0]; self.src = set().union(*R[1:])
            elif base.startswith("v_permlane") and "swap" in base:
                self.dst = R[0] | R[1]; self.src = R[0] | R[1]
            elif base in ("v_add_co_u32", "v_sub_co_u32", "v_addc_co_u32", "v_subb_co_u32", "v_div_scale_f32", "v_mad_u64_u32"):
                self.dst = R[0] | R[1]; self.src = set().union(*R[2:])
            else:
                self.dst = R[0]; self.src = set().union(*R[1:]) if len(R) > 1 else set()
                if base in ("v_fmac_f32", "v_pk_fmac_f16", "v_dot2c_f32_bf16", "v_writelane_b32") or self.dpp:
                    self.src |= R[0]
                if base.startswith("v_dot"):
                    self.srcab_dot = R[1] | R[2]
                if base == "v_cndmask_b32" and len(R) == 3:
                    self.src |= {("vcc", 0)}
            return
        if op.startswith("s_"):
            self.kind = "salu"
            if op.startswith("s_cmp") or op in ("s_waitcnt", "s_barrier", "s_endpgm", "s_setprio", "s_sleep"):
                self.src = set().union(*R) if R else set()
            elif op.startswith("s_load") or op.startswith("s_buffer_load") or op.startswith("s_memtime") or op.startswith("s_memrealtime"):
                self.kind = "smem"
                self.dst = R[0]; self.src = set().union(*R[1:]) if len(R) > 1 else set()
            else:
                self.dst = R[0]; self.src = set().union(*R[1:]) if len(R) > 1 else set()
                if "saveexec" in op:
                    self.dst |= {("exec", 0)}
            return

def isv(r): return r[0] in ("v", "a")
def V(s): return {r for r in s if isv(r)}
def S(s): return {r for r in s if r[0] in ("s", "vcc")}

def need(p, c):
    n = 0
    if p.kind == "valu":
        pv = V(p.dst); ps = S(p.dst)
        if c.kind == "mfma" and pv & c.src: n = max(n, 2)
        if c.kind == "valu":
            if c.dpp and pv & c.src: n = max(n, 2)
            if c.base.startswith("v_permlane") and pv & c.src: n = max(n, 2)
            if c.base in ("v_readlane_b32", "v_readfirstlane_b32") and pv & c.src: n = max(n, 1)
            if p.base in TRANS and c.base not in TRANS and pv & c.src: n = max(n, 1)
            if ps & c.src:
                n = max(n, 4 if c.base in ("v_readlane_b32", "v_writelane_b32", "v_div_fmas_f32") else 2)
            if ("exec", 0) in p.dst:
                n = max(n, 5 if c.dpp else 4 if c.base.startswith(("v_readlane", "v_readfirstlane", "v_writelane", "v_permlane")) else 0)
            if ("op_sel" in getattr(p, "mods", "") or "dst_sel" in getattr(p, "mods", "")) and pv & (c.src | c.dst) and not p.base.startswith("v_pk") and not p.base.startswith("v_dot"):
                n = max(n, 1)
        if p.base.startswith("v_dot") and pv & (c.src | c.dst):
            same_c = (c.kind == "valu" and c.base == p.base and not (pv & getattr(c, "srcab_dot", set())))
            if not same_c: n = max(n, 3)
        if c.kind == "mfma" and ("exec", 0) in p.dst: n = max(n, 4)
        if c.kind == "vmem" and ps & c.src: n = max(n, 5)
        if c.kind == "salu" and ps & c.src: n = max(n, 1)
    if p.kind == "salu":
        if ("m0", 0) in p.dst and c.kind == "vmem" and ("m0", 0) in c.src: n = max(n, 1)
    if p.kind == "vmem" and getattr(p, "wide_store", False):
        if c.kind == "valu" and p.sdata & c.dst: n = max(n, 2)
        elif c.kind in ("vmem", "ds", "mfma") and p.sdata & c.dst: n = max(n, 1)
    if p.kind == "mfma":
        big = {4: 8, 8: 12}[p.passes]; ovl = {4: 6, 8: 10}[p.passes]; war = {4: 3, 8: 7}[p.passes]
        if c.kind == "mfma":
            if p.dst & c.srcab: n = max(n, big)
            if p.dst & c.srcc:
                if not (p.dst == c.srcc and p.passes == c.passes): n = max(n, ovl)
            if p.dst & c.dst and not (p.dst == c.srcc and p.passes == c.passes): n = max(n, ovl)
        elif c.kind in ("valu", "vmem", "ds"):
            if p.dst & (c.src | c.dst): n = max(n, big)
            if c.kind == "valu" and p.srcc & c.dst: n = max(n, war)
            if c.kind in ("vmem", "ds") and p.srcc & c.dst: n = max(n, war)
    return n

MAXD = 20
import os
STAMPS = bool(os.environ.get('STAMPS'))

def pad(lines):
    out = []
    for text in lines:
        c = Ins(text)
        if c.states == 0:
            out.append(c); continue
        req = 0; dist = 0
        for p in reversed(out):
            if p.states == 0: continue
            k = need(p, c)
            if k > dist: req = max(req, k - dist)
            dist += p.states
            if dist >= MAXD: break
        while req > 0:
            k = min(req, 16)
            out.append(Ins(f"    s_nop {k-1}"))
            req -= k
        out.append(c)
    labels = {ins.label: i for i, ins in enumerate(out) if ins.label}
    problems = []
    for i, b in enumerate(out):
        if b.kind != "branch" or b.target not in labels: continue
        t = labels[b.target]
        after = []; d = 0
        for c in out[t:]:
            if c.states == 0: continue
            after.append((d, c)); d += c.states
            if d >= MAXD: break
        d0 = 1
        for p in reversed(out[:i]):
            if p.states == 0: continue
            for (d, c) in after:
                k = need(p, c)
                if k > d0 + d:
                    problems.append(f"branch edge {b.text.strip()}: '{p.text.strip()}' -> '{c.text.strip()}' needs {k} has {d0+d}")
            d0 += p.states
            if d0 >= MAXD: break
    if problems:
        raise RuntimeError("hazards on branch edges:\n" + "\n".join(problems))
    return [i.text for i in out]

class Kern:
    def __init__(self, name, nvgpr, nsgpr=96, accum=None):
        self.name = name; self.lines = []; self.nvgpr = nvgpr; self.nsgpr = nsgpr; self.accum = accum
        self.nlab = 0
    def __call__(self, s):
        for l in s.split("\n"):
            l = l.rstrip()
            if not l.strip(): continue
            st = l.strip()
            self.lines.append(st if st.endswith(":") else "    " + st)
    def stamp(self, i, real=False):
        if not STAMPS: return
        if os.environ.get("REAL"): real = True
        self(f"{'s_memrealtime' if real else 's_memtime'} s[{64+2*i}:{65+2*i}]")
        self.nstamp = max(getattr(self, "nstamp", 0), i + 1)
    def flush_stamps(self, kid):
        if not STAMPS: return
        self.stamp(14); self.stamp(15, True)
        self(f"""s_waitcnt lgkmcnt(0)
                 s_lshl_b32 s62, s2, 4
                 s_add_u32 s62, s62, s28
                 s_lshl_b32 s62, s62, 6
                 s_add_u32 s62, s62, {0x1000000 + kid * 0x40000}
                 v_mov_b32 v1, 0""")
        if os.environ.get("DBGOUT"):
            self(f"""s_cmp_eq_u32 s2, {os.environ['DBGOUT']}
                     s_cbranch_scc0 L_nodbg
                     s_cmp_eq_u32 s28, 0
                     s_cbranch_scc0 L_nodbg
                     s_load_dwordx2 s[16:17], s[0:1], 88
                     s_mov_b32 s18, 256
                     s_mov_b32 s19, 0x00020000
                     s_waitcnt lgkmcnt(0)""")
            for i in range(1, 15):
                self(f"s_sub_u32 s3, s{64+2*i}, s58\nv_mov_b32 v2, s3\nbuffer_store_dword v2, v1, s[16:19], 0 offen offset:{4*(i+1)}")
            self("L_nodbg:")
        for i in range(16):
            self(f"v_mov_b32 v2, s{64+2*i}\nbuffer_store_dword v2, v1, s[24:27], s62 offen offset:{4*i}")
    def lab(self, base):
        self.nlab += 1
        return f"L_{self.name}_{base}_{self.nlab}"
    def text(self, kid=0):
        if STAMPS:
            old = self.lines; self.lines = []
            for i, l in enumerate(old):
                if l.strip() == "s_endpgm" and i != len(old) - 1:
                    self("s_nop 15\ns_branch L_%s_so" % self.name)
                elif l.strip() == f"L_{self.name}_end:":
                    self("s_nop 15\nL_%s_so:" % self.name); self.flush_stamps(kid); self.lines.append(l)
                else: self.lines.append(l)
        body = "\n".join(pad(self.lines))
        mx = 0
        for m in re.finditer(r"\bv(\d+)\b|\bv\[(\d+):(\d+)\]", body):
            mx = max(mx, int(m.group(1) or m.group(3)))
        assert mx < (self.accum or self.nvgpr), f"{self.name}: uses v{mx} but budget {self.nvgpr}"
        ms = 0
        for m in re.finditer(r"\bs(\d+)\b|\bs\[(\d+):(\d+)\]", body):
            ms = max(ms, int(m.group(1) or m.group(3)))
        assert ms < self.nsgpr, f"{self.name}: uses s{ms}"
        acc = self.accum or ((self.nvgpr + 3) // 4 * 4)
        return f""".text
.globl {self.name}
.p2align 8
.type {self.name},@function
{self.name}:
{body}
.section .rodata,"a"
.p2align 6
.amdhsa_kernel {self.name}
  .amdhsa_next_free_vgpr {self.nvgpr}
  .amdhsa_next_free_sgpr {self.nsgpr}
  .amdhsa_accum_offset {acc}
  .amdhsa_group_segment_fixed_size 0
  .amdhsa_kernarg_size 104
  .amdhsa_user_sgpr_count 2
  .amdhsa_user_sgpr_kernarg_segment_ptr 1
  .amdhsa_system_sgpr_workgroup_id_x 1
.end_amdhsa_kernel
"""
```

```python
from common import *

def w128_dma_voff(k, vdst, t1, t2):
    k(f"""v_lshrrev_b32 v{vdst}, 3, v1
          v_lshlrev_b32 v{vdst}, 10, v{vdst}
          v_lshrrev_b32 v{t1}, 4, v1
          v_lshlrev_b32 v{t1}, 1, v{t1}
          v_and_b32 v{t2}, 7, v1
          v_xor_b32 v{t1}, v{t1}, v{t2}
          v_lshl_add_u32 v{vdst}, v{t1}, 4, v{vdst}""")

def w128_tr_bases(k, vb, base):
    k(f"""v_lshrrev_b32 v12, 1, v8
          v_lshlrev_b32 v{vb}, 4, v12
          v_and_b32 v13, 1, v8
          v_lshl_add_u32 v{vb}, v13, 2, v{vb}
          v_add_u32 v{vb}, v{vb}, v10
          v_lshlrev_b32 v{vb}, 7, v{vb}
          v_lshl_add_u32 v{vb}, v11, 3, v{vb}
          v_lshrrev_b32 v12, 1, v10
          v_lshl_add_u32 v12, v13, 1, v12      ; f = 2*(g&1)+(r>>1)
          v_lshl_add_u32 v{vb}, v12, 5, v{vb}
          v_add_u32 v{vb}, {base}, v{vb}""")
    for u in range(1, 4):
        k(f"v_xor_b32 v{vb+u}, {32*u}, v{vb}")

def act32_voff(k, vdst, srh16):
    k(f"""v_lshrrev_b32 v12, 1, v8
          v_lshlrev_b32 v{vdst}, 10, v12
          v_and_b32 v12, 1, v8
          v_lshl_add_u32 v{vdst}, v12, 9, v{vdst}
          v_and_b32 v12, 15, v1
          v_lshl_add_u32 v{vdst}, v12, 4, v{vdst}
          s_lshl_b32 s60, {srh16}, 8
          v_add_u32 v{vdst}, s60, v{vdst}""")

def gemm64_reads(k, s, woff, WF=32):
    b = WF + 16 * (s & 1)
    for u in range(4):
        vb, o = woff(s, u)
        k(f"ds_read_b128 {vr(b+4*u)}, v{vb} offset:{o}")

def gemm64(k, nsteps, woff, ACT, ACC=16, WF=32, vleft=0):
    for s in range(nsteps):
        if s + 1 < nsteps:
            gemm64_reads(k, s + 1, woff, WF)
            k(f"s_waitcnt vmcnt({nsteps-1-s+vleft}) lgkmcnt(4)")
        else:
            k(f"s_waitcnt vmcnt({vleft}) lgkmcnt(0)")
        b = WF + 16 * (s & 1)
        for u in range(4):
            k(f"v_mfma_f32_16x16x32_bf16 {vr(ACC+4*u)}, {vr(b+4*u)}, {vr(ACT+4*s)}, {vr(ACC+4*u)}")

def ksplit_exchange(k, xbase, swave, ACC=16, T=32, tag="x"):
    k(f"""s_lshl_b32 s60, {swave}, 11
          s_add_u32 s60, s60, {xbase}
          v_add_u32 v12, s60, v2
          s_xor_b32 s60, s60, 8192
          v_add_u32 v13, s60, v2
          s_cmp_eq_u32 s61, 0
          s_cbranch_scc0 L_ex1_{tag}
          ds_write_b128 v12, {vr(ACC+8)}
          ds_write_b128 v12, {vr(ACC+12)} offset:1024
          s_branch L_ex2_{tag}
          L_ex1_{tag}:
          ds_write_b128 v12, {vr(ACC)}
          ds_write_b128 v12, {vr(ACC+4)} offset:1024""")
    for i in range(8): k(f"v_mov_b32 v{ACC+i}, v{ACC+8+i}")
    k(f"""L_ex2_{tag}:
          s_waitcnt lgkmcnt(0)
          s_barrier
          ds_read_b128 {vr(T)}, v13
          ds_read_b128 {vr(T+4)}, v13 offset:1024""")

def gemm64x2(k, nsteps, woff, ald, ACT, R, ACC=16, WF=48, pre=0):
    q = VQ(k)
    for s in range(min(R, nsteps)):
        for rt in range(2): q.issue(f"a{s}_{rt}", 1, lambda: ald(s, rt))
    for s in range(nsteps):
        if s + 1 < nsteps:
            gemm64_reads(k, s + 1, woff, WF)
            q.wait(f"a{s}_1", extra=" lgkmcnt(4)")
        else:
            q.wait(f"a{s}_1", extra=" lgkmcnt(0)")
        b = WF + 16 * (s & 1); n_ = s - 1 + R
        for rt in range(2):
            for u in range(4):
                a = ACC + 16*rt + 4*u
                k(f"v_mfma_f32_16x16x32_bf16 {vr(a)}, {vr(b+4*u)}, {vr(ACT+8*(s%R)+4*rt)}, {vr(a)}")
                if u == 1 and s >= 1 and n_ < nsteps: q.issue(f"a{n_}_{rt}", 1, lambda: ald(n_, rt))

def ksplit_exchange2(k, xbase, ACC=16, T=48, tag="x"):
    k(f"""s_lshl_b32 s60, s3, 12
          s_add_u32 s60, s60, {xbase}
          v_add_u32 v12, s60, v2
          s_xor_b32 s60, s60, 8192
          v_add_u32 v13, s60, v2
          s_cmp_eq_u32 s61, 0
          s_cbranch_scc0 L_ex1_{tag}""")
    for rt in range(2):
        for j in range(2): k(f"ds_write_b128 v12, {vr(ACC+16*rt+8+4*j)} offset:{2048*rt+1024*j}")
    k(f"s_branch L_ex2_{tag}\nL_ex1_{tag}:")
    for rt in range(2):
        for j in range(2): k(f"ds_write_b128 v12, {vr(ACC+16*rt+4*j)} offset:{2048*rt+1024*j}")
    for rt in range(2):
        for i in range(8): k(f"v_mov_b32 v{ACC+16*rt+i}, v{ACC+16*rt+8+i}")
    k(f"""L_ex2_{tag}:
          s_waitcnt lgkmcnt(0)
          s_barrier""")
    for j in range(4): k(f"ds_read_b128 {vr(T+4*j)}, v13 offset:{1024*j}")
```

```python
from common import *
from k3 import *
from g16 import *
from k4 import GC1, GC2
import os
LSC = os.environ.get('LSC', '')
MAPC = int(os.environ.get('MAPC', 0))
ZSC = os.environ.get('ZSC', 'sc1')
PT = int(os.environ.get('PT', 0))
HW = int(os.environ.get('HW', 6))
PF2 = int(os.environ.get('PF2', 1))
WSL = int(os.environ.get('WSL', 1))
WSL2 = int(os.environ.get('WSL2', 1))
KVROT = int(os.environ.get('KVROT', 1))
WOT = os.environ.get('WOT', 'kl')
PROG = int(os.environ.get('PROG', 1))
WB = int(os.environ.get('WB', 28))
PRIO = int(os.environ.get('K2_PRIO', 1))
PFQ = int(os.environ.get('PFQ', 1))
TLBW = int(os.environ.get('TLBW', 0))
OLB = int(os.environ.get('OLB', 0))
WPR = int(os.environ.get('WPR', 0))
PFM = int(os.environ.get('PFM', 15))
PFSC = os.environ.get('PFSC', '')

FUSEC = int(os.environ.get('FUSEC', 1))
def build_kall():
    k = Kern("sequential_preLN__grouped_kv_mqa__mixer_gmlp__prompt_kernel", nvgpr=128)
    NW = 16
    KL, VL, XL = 0, 65536, 131072
    Q = 4; KFR = 8; VFR = [[12, 16], [20, 24]]; P = 28; S = [36, 52]; O = 68; C = 84
    vK, vV = 100, 101
    NCH, NIT = 4, 8
    prologue_ids(k, 256)
    k("""s_load_dwordx8 s[4:11], s[0:1], 0
         s_load_dwordx4 s[12:15], s[0:1], 88""")
    k("""s_and_b32 s29, s2, 7
         s_lshr_b32 s30, s2, 3
         s_lshl_b32 s29, s29, 2
         s_lshr_b32 s31, s30, 3
         s_add_u32 s29, s29, s31          ; rb64
         s_and_b32 s30, s30, 7            ; cg
         s_and_b32 s3, s28, 3
         s_and_b32 s32, s28, 1            ; rh
         s_mov_b32 s56, s29
         s_mov_b32 s57, s30""")
    XL0, WL0, KVL, SX, QL = 0, 65536, 131072, 147456, 131072
    CSX = SX + 1024
    FASTW, CNT = 146 * 1024 + 512, 146 * 1024 + 576
    k("""s_lshl_b32 s46, s31, 1
         s_add_u32 s46, s46, s30
         s_and_b32 s46, s46, 7
         s_lshr_b32 s33, s3, 1            ; ch
         s_mov_b32 s62, 0
         s_mov_b32 s20, 0
         s_mov_b32 s21, 0
         s_mov_b32 s22, 0
         s_mov_b32 s23, 0x00020000
         v_mov_b32 v108, 0
         v_mov_b32 v109, 0
         v_mov_b32 v113, 0
         v_lshlrev_b32 v2, 4, v1""")
    lane_fields(k)
    k(f"""s_cmp_ge_u32 s28, 12
          s_cbranch_scc1 L_p0_st
          s_cmp_ge_u32 s28, 8
          s_cbranch_scc1 L_p0_q
          s_cmp_eq_u32 s28, 2
          s_cbranch_scc1 L_p0_kv
          s_cmp_eq_u32 s28, 3
          s_cbranch_scc1 L_p0_n
          s_cmp_lt_u32 s28, 2
          s_cbranch_scc1 L_p0_pack""")
    def att_ids():
        k(f"""s_and_b32 s38, s28, 7            ; q idx
              s_lshr_b32 s39, s28, 3
              s_lshl_b32 s44, s39, 15          ; half*32768
              s_lshl_b32 s47, s38, 10
              s_add_u32 s47, s47, s44
              v_add_u32 v3, s47, v2""")
    def kvdma(c):
        k(f"""s_add_u32 m0, s47, {KL + 8192*c}
              s_add_u32 s34, s57, {c}
              s_and_b32 s34, s34, {3 if KVROT else 0}
              s_lshl_b32 s34, s34, 13
              s_add_u32 s34, s34, {KF + (0 if KVROT else 8192*c)}
              s_add_u32 s35, s34, {VF - KF}
              buffer_load_dwordx4 v3, s[24:27], s34 offen lds
              s_add_u32 m0, s47, {VL + 8192*c}
              buffer_load_dwordx4 v3, s[24:27], s35 offen lds""")
    def att_init():
        k(f"""s_lshl_b32 s33, s29, 1
              s_add_u32 s33, s33, s32
              s_lshl_b32 s33, s33, 5
              s_lshl_b32 s34, s30, 2
              s_add_u32 s33, s33, s34
              s_lshr_b32 s34, s38, 1
              s_add_u32 s33, s33, s34
              s_lshl_b32 s46, s33, 10
              s_lshl_b32 s34, s38, 10
              s_add_u32 s34, s34, {QL}
              v_add_u32 v102, s34, v2
              v_mov_b32 v112, 0
              s_lshr_b32 s63, s29, 1
              s_lshl_b32 s63, s63, 11
              s_add_u32 s63, s63, {XID}
              v_add_u32 v{vK}, s44, v2
              v_lshrrev_b32 v103, 5, v1
              v_and_b32 v106, 15, v1
              v_lshl_add_u32 v103, v103, 4, v106
              v_lshlrev_b32 v103, 4, v103
              v_add_u32 v103, s44, v103
              v_add_u32 v{vV}, {VL}, v103
              v_mov_b32 v103, {SX + 768}
              s_mov_b32 s40, 0x0000ffff
              s_mov_b32 s41, 0x0000ffff
              v_and_b32 v106, 31, v1
              v_cmp_eq_u32 vcc, 16, v106
              v_mov_b32 v107, 0x3f803f80
              v_cndmask_b32 v107, 0, v107, vcc
              s_mov_b32 s42, 1
              s_mov_b32 s36, 0
              s_movk_i32 s31, {0x56 if PRIO == 3 else 0x52}
              s_cmp_eq_u32 s28, 4
              s_cselect_b32 s31, {0x5e if PRIO == 3 else 0x5a}, s31
              s_cmp_lg_u32 s62, 0
              s_cselect_b32 s31, {0x5e if PRIO == 3 else 0x5a}, s31
              v_mov_b32 v118, {CNT}
              v_mov_b32 v119, 1""")
        for i in range(16): k(f"v_mov_b32 v{12+i}, v107")
        for i in range(16): k(f"v_mov_b32 v{O+i}, 0\nv_mov_b32 v{C+i}, 0")
        for i in range(4): k(f"v_mov_b32 v{P+4+i}, 0")
        k(f"v_mov_b32 v107, {f32(3500.0)}")
    k(f"""s_lshl_b32 s34, s29, 6
          s_lshl_b32 s35, s3, 4
          s_add_u32 s34, s34, s35
          v_lshrrev_b32 v12, 3, v1
          v_add_u32 v6, s34, v12
          v_lshlrev_b32 v6, 10, v6
          v_and_b32 v13, 7, v1
          v_xor_b32 v14, v13, v8
          v_lshl_add_u32 v6, v14, 4, v6
          v_xor_b32 v7, 64, v6
          v_add_u32 v7, 8192, v7
          s_lshl_b32 s36, s30, 7
          s_lshl_b32 s37, s3, 11
          s_mov_b32 s45, s46""")
    wt_dma_addr(k, 4, 5, "s35", "s36")
    k("s_waitcnt lgkmcnt(0)")
    srd(k, 16, 4, 5, 2048 * 1024); srd(k, 20, 6, 7, 512 * 1024); srd(k, 24, 14, 15, WS_USED)
    q = VQ(k)
    def xi(c):
        q.issue(f"x{c}", 2, lambda: k(f"""s_add_u32 m0, s37, {XL0 + c*8192}
              s_lshl_b32 s38, s46, 7
              s_add_u32 s46, s46, 1
              buffer_load_dwordx4 v6, s[16:19], s38 offen lds
              s_add_u32 m0, s37, {XL0 + c*8192 + 1024}
              s_and_b32 s46, s46, 7
              buffer_load_dwordx4 v7, s[16:19], s38 offen lds"""))
    def wqi(c):
        q.issue(f"w{c}", 2, lambda: k(f"""s_add_u32 m0, s37, {WL0 + c*8192}
              s_lshl_b32 s38, s45, 16
              s_add_u32 s45, s45, 1
              buffer_load_dwordx4 v4, s[20:23], s38 offen lds
              s_add_u32 m0, s37, {WL0 + c*8192 + 1024}
              s_and_b32 s45, s45, 7
              buffer_load_dwordx4 v5, s[20:23], s38 offen lds"""))
    for c in range(6): xi(c)
    k.stamp(2); q.wait("x1"); k.stamp(3); k("s_barrier"); k.stamp(4)
    xi(6); xi(7); wqi(0); wqi(1)
    q.wait("x3"); k("s_barrier")
    wqi(2); wqi(3); wqi(4)
    q.wait("x5"); k("s_barrier")
    wqi(5); wqi(6); wqi(7)
    q.wait("x7"); k.stamp(5); k("s_barrier\ns_barrier")
    for i in range(4):
        q.wait(f"w{2*i+1}"); k("s_barrier")
    k.stamp(6)
    k("s_branch L_att")
    k(f"""L_p0_q:
          v_mov_b32 v64, 0x3f803f80
          v_mov_b32 v65, 0x3f803f80
          v_mov_b32 v66, 0x3f803f80
          v_mov_b32 v67, 0x3f803f80
          v_lshl_add_u32 v6, v9, 3, v10
          v_lshlrev_b32 v6, 7, v6
          v_lshrrev_b32 v12, 1, v10
          v_xor_b32 v12, s33, v12
          v_lshl_add_u32 v6, v12, 6, v6
          v_and_b32 v12, 1, v8
          v_lshl_add_u32 v6, v12, 5, v6
          v_lshl_add_u32 v6, v11, 3, v6
          v_add_u32 v6, {WL0}, v6
          v_and_b32 v12, 31, v1
          s_lshl_b32 s40, s32, 5
          v_add_u32 v12, s40, v12
          v_lshlrev_b32 v76, 3, v12
          v_add_u32 v76, {SX}, v76
          v_lshlrev_b32 v77, 4, v9
          s_lshl_b32 s41, s3, 7
          s_add_u32 s41, s41, {CSX}
          v_add_u32 v77, s41, v77
          v_xor_b32 v78, 128, v77
          v_lshrrev_b32 v13, 1, v12
          v_and_b32 v13, 7, v13
          v_lshlrev_b32 v12, 7, v12""")
    for qq in range(4):
        k(f"""v_add_u32 v14, {2*qq}, v9
              v_xor_b32 v14, v14, v13
              v_lshl_add_u32 v{72+qq}, v14, 4, v12""")
    for r in range(32): k(f"v_mov_b32 v{32+r}, 0")
    k("s_waitcnt lgkmcnt(0)")
    srd(k, 24, 14, 15, WS_USED)
    k("s_barrier\n" * 5)
    k.stamp(4)
    def qreads(c):
        s = c & 1
        for qq in range(4):
            st = 4*c + qq
            k(f"""ds_read_b64_tr_b16 v[{FA(s,qq)}:{FA(s,qq)+1}], v6 offset:{2048*st}
                  ds_read_b64_tr_b16 v[{FA(s,qq)+2}:{FA(s,qq)+3}], v6 offset:{2048*st+512}
                  ds_read_b128 {vr(FB(s,qq))}, v{72+qq} offset:{XL0 + 8192*c}""")
    def qloop(cs):
        def step(c, qq):
            s = c & 1
            k(f"v_mfma_f32_32x32x16_bf16 v[32:47], {vr(FA(s,qq))}, {vr(FB(s,qq))}, v[32:47]")
            if (qq & 1) == cs: k(f"v_mfma_f32_32x32x16_bf16 v[48:63], {vr(FA(s,qq))}, v[64:67], v[48:63]")
        k("s_barrier")
        k.stamp(5)
        qreads(0)
        for c in range(8):
            for qq in range(3):
                k(f"s_waitcnt lgkmcnt({9-3*qq})"); step(c, qq)
            k("s_waitcnt lgkmcnt(0)")
            if c < 7:
                if c & 1: k("s_barrier")
                qreads(c + 1)
            step(c, 3)
    k("""s_cmp_eq_u32 s32, 0
         s_cbranch_scc0 L_p0_qcs""")
    qloop(0)
    k("s_branch L_p0_qfin\nL_p0_qcs:")
    qloop(1)
    k("L_p0_qfin:\ns_nop 7")
    for gq in range(4): k(f"ds_write_b128 v77, {vr(48+4*gq)} offset:{32*gq}")
    k(f"""s_lshl_b32 s34, s33, 12
          s_lshl_b32 s35, s32, 10
          s_add_u32 s34, s34, s35
          s_add_u32 s34, s34, {QL}
          v_add_u32 v70, s34, v2""")
    att_ids()
    k("s_waitcnt lgkmcnt(0)\ns_barrier")
    k.stamp(6)
    k("ds_read_b64 v[68:69], v76")
    for gq in range(4): k(f"ds_read_b128 {vr(80+4*gq)}, v78 offset:{32*gq}")
    kvdma(0)
    k(f"""s_waitcnt lgkmcnt(0)
          v_mul_f32 v69, {f32(0.25*1.4426950408889634)}, v69""")
    for r in range(16): k(f"v_add_f32 v{48+r}, v{48+r}, v{80+r}")
    for r in range(16): k(f"v_fma_f32 v{32+r}, -v68, v{48+r}, v{32+r}")
    for r in range(16): k(f"v_mul_f32 v{32+r}, v69, v{32+r}")
    for r in range(8): k(f"v_cvt_pk_bf16_f32 v{48+r}, v{32+2*r}, v{33+2*r}")
    k("""ds_write_b128 v70, v[48:51]
         ds_write_b128 v70, v[52:55] offset:2048""")
    att_init()
    k("s_branch L_att2")
    k(f"""L_p0_st:
          v_lshrrev_b32 v12, 2, v1
          s_lshl_b32 s34, s3, 4
          v_add_u32 v12, s34, v12           ; row
          v_lshlrev_b32 v7, 3, v12
          v_add_u32 v7, {SX}, v7
          v_lshrrev_b32 v13, 1, v12
          v_and_b32 v13, 7, v13
          v_lshlrev_b32 v12, 7, v12
          v_lshlrev_b32 v14, 1, v11
          v_xor_b32 v14, v14, v13
          v_lshl_add_u32 v4, v14, 4, v12
          v_xor_b32 v5, 16, v4
          v_mov_b32 v64, 0x3f803f80""")
    for i in range(4): k(f"v_mov_b32 v{48+i}, 0")
    k("s_waitcnt lgkmcnt(0)")
    srd(k, 24, 14, 15, WS_USED)
    for gi_ in range(4):
        k("s_barrier")
        for c in range(2):
            k(f"""ds_read_b128 {vr(16+8*c)}, v4 offset:{XL0 + 8192*(2*gi_+c)}
                  ds_read_b128 {vr(20+8*c)}, v5 offset:{XL0 + 8192*(2*gi_+c)}""")
        k("s_waitcnt lgkmcnt(0)")
        for d in range(16):
            k(f"""v_dot2_f32_bf16 v{48+(d&1)}, v{16+d}, v64, v{48+(d&1)}
                  v_dot2_f32_bf16 v{50+(d&1)}, v{16+d}, v{16+d}, v{50+(d&1)}""")
    k("v_add_f32 v48, v48, v49\nv_add_f32 v49, v50, v51")
    for qp in ("[1,0,3,2]", "[2,3,0,1]"):
        for i in range(2): k(f"v_add_f32_dpp v{48+i}, v{48+i}, v{48+i} quad_perm:{qp} row_mask:0xf bank_mask:0xf")
    ln_stats(k, 48, 49, 512, 12)
    k("ds_write_b64 v7, v[48:49]\ns_waitcnt lgkmcnt(0)")
    k("s_barrier\n" * 5 + "s_branch L_att")
    k(f"""L_p0_n:
          v_mov_b32 v20, 0
          s_memrealtime s[58:59]
          s_waitcnt lgkmcnt(0)""")
    srd(k, 24, 14, 15, WS_USED); srd(k, 16, 12, 13, 256)
    if PFQ:
        srd(k, 20, 6, 7, 512 * 1024)
        k(f"""s_lshr_b32 s34, s2, 3
              s_lshl_b32 s34, s34, 14
              s_add_u32 s35, s34, 8192
              v_lshlrev_b32 v24, 7, v1
              buffer_load_dword v25, v24, s[20:23], s34 offen
              buffer_load_dword v25, v24, s[20:23], s35 offen""")
    k(f"""s_mov_b64 exec, 1
          s_cmp_eq_u32 s2, 0
          s_cbranch_scc0 L_p0_n1
          s_or_b32 s59, s59, 0x40000000
          v_mov_b32 v22, s58
          v_mov_b32 v23, s59
          buffer_store_dwordx2 v[22:23], v20, s[16:19], 0 offen sc1
          L_p0_n1:
          s_barrier
          s_barrier
          s_mov_b32 s60, 0
          L_p0_np:
          buffer_load_dwordx2 v[22:23], v20, s[16:19], 0 offen sc1
          s_add_u32 s60, s60, 1
          s_cmp_eq_u32 s60, 1
          s_cbranch_scc0 L_p0_nw
          s_barrier
          s_barrier
          L_p0_nw:
          s_waitcnt vmcnt(0)
          v_cmp_eq_u32 vcc, 0, v23
          s_cmp_gt_u32 s60, 0x40000
          s_cbranch_scc1 L_p0_n2
          s_cbranch_vccnz L_p0_np
          L_p0_n2:
          v_mov_b32 v21, {SX + 768}
          ds_write_b64 v21, v[22:23]
          v_readfirstlane_b32 s58, v22
          v_readfirstlane_b32 s59, v23
          s_mov_b64 exec, -1
          v_lshlrev_b32 v21, 2, v1
          v_add_u32 v21, {FASTW}, v21
          v_cmp_eq_u32 vcc, 0, v1
          v_cndmask_b32 v22, 0, 2, vcc
          ds_write_b32 v21, v22
          v_mov_b32 v21, {SX + 768}
          s_mov_b32 s34, {KVFLAG}
          s_waitcnt lgkmcnt(0)""")
    k.stamp(4)
    k("s_barrier\n" * 5)
    k.stamp(5)
    k(f"""s_mov_b32 s60, 0
          L_p0_gp:""")
    for i in range(4): k(f"buffer_load_dwordx3 v[{28+4*i}:{30+4*i}], v2, s[24:27], s34 offen offset:{1024*i} sc1")
    k("s_add_u32 s60, s60, 1\ns_waitcnt vmcnt(0)")
    for i in range(4):
        k(f"v_xor_b32 v{28+4*i}, s58, v{28+4*i}\nv_xor_b32 v{29+4*i}, s59, v{29+4*i}")
    k(f"""v_or3_b32 v28, v28, v29, v32
          v_or3_b32 v33, v33, v36, v37
          v_or3_b32 v28, v28, v40, v41
          v_or_b32 v28, v28, v33
          v_cmp_ne_u32 vcc, 0, v28
          s_cmp_gt_u32 s60, 0x40000
          s_cbranch_scc1 L_p0_g2
          s_cbranch_vccz L_p0_g2
          s_sleep {SLEEP}
          s_branch L_p0_gp
          L_p0_g2:
          v_max3_f32 v30, v30, v34, v38
          v_max_f32 v30, v30, v42""")
    for sh in (1, 2, 4, 8):
        k(f"v_max_f32_dpp v30, v30, v30 row_ror:{sh} row_mask:0xf bank_mask:0xf")
    k("""v_mov_b32 v31, v30
         v_permlane16_swap_b32 v30, v31
         v_max_f32 v30, v30, v31
         v_mov_b32 v31, v30
         v_permlane32_swap_b32 v30, v31
         v_max_f32 v30, v30, v31
         ds_write_b32 v21, v30 offset:8
         s_branch L_att""")
    k(f"""L_p0_kv:
          s_lshr_b32 s40, s30, 2           ; kv
          s_and_b32 s41, s30, 3            ; rq
          s_waitcnt lgkmcnt(0)
          s_cmp_eq_u32 s40, 0
          s_cselect_b32 s20, s8, s10
          s_cselect_b32 s21, s9, s11
          s_mov_b32 s22, 16384
          s_mov_b32 s23, 0x00020000""")
    srd(k, 24, 14, 15, WS_USED)
    for c in range(8):
        k(f"""s_mov_b32 m0, {KVL + 2048*c}
              s_lshl_b32 s38, s46, 11
              s_add_u32 s46, s46, 1
              buffer_load_dwordx4 v2, s[20:23], s38 offen lds
              buffer_load_dwordx4 v2, s[20:23], s38 offen offset:1024 lds
              s_and_b32 s46, s46, 7""")
    k(f"""v_mov_b32 v64, 0x3f803f80
          v_mov_b32 v65, 0x3f803f80
          v_mov_b32 v66, 0x3f803f80
          v_mov_b32 v67, 0x3f803f80
          v_and_b32 v15, 15, v1
          s_lshl_b32 s34, s41, 4
          v_add_u32 v12, s34, v15
          v_lshlrev_b32 v74, 3, v12
          v_add_u32 v74, {SX}, v74
          v_lshl_add_u32 v75, v8, 2, s34
          v_lshlrev_b32 v75, 3, v75
          v_add_u32 v75, {SX}, v75
          v_lshrrev_b32 v13, 1, v12
          v_and_b32 v13, 7, v13
          v_lshlrev_b32 v12, 7, v12
          v_xor_b32 v14, v8, v13
          v_lshl_add_u32 v72, v14, 4, v12
          v_add_u32 v14, 4, v8
          v_xor_b32 v14, v14, v13
          v_lshl_add_u32 v73, v14, 4, v12
          v_lshl_add_u32 v6, v8, 3, v10
          v_lshlrev_b32 v6, 5, v6
          v_lshl_add_u32 v6, v11, 3, v6
          v_add_u32 v6, {KVL}, v6
          s_lshl_b32 s34, s29, 2
          s_add_u32 s34, s34, s41          ; t16
          v_and_b32 v12, 1, v8             ; h
          v_lshrrev_b32 v13, 1, v8         ; piece
          v_mov_b32 v76, {SX + 768}
          s_and_b32 s37, s2, 7
          s_lshl_b32 s37, s37, 9
          s_lshr_b32 s36, s2, 3
          s_lshl_b32 s36, s36, 4
          s_add_u32 s37, s37, s36
          s_add_u32 s37, s37, {KVFLAG}""")
    for r in range(8): k(f"v_mov_b32 v{32+r}, 0")
    def kvloop(isv):
        for gi_ in range(4):
            k(f"s_waitcnt vmcnt({4*(3-gi_)})\ns_barrier")
            for s in range(4):
                st = 4*gi_ + s; b = 80 + 8*s
                k(f"""ds_read_b64_tr_b16 v[{b}:{b+1}], v6 offset:{1024*st}
                      ds_read_b64_tr_b16 v[{b+2}:{b+3}], v6 offset:{1024*st+128}
                      ds_read_b128 {vr(b+4)}, v{72+(s&1)} offset:{XL0+8192*(st//2)}""")
            for s in range(4):
                W, X = 80 + 8*s, 84 + 8*s
                k(f"s_waitcnt lgkmcnt({9-3*s})")
                if isv:
                    k(f"""v_mfma_f32_16x16x32_bf16 v[32:35], {vr(X)}, {vr(W)}, v[32:35]
                          v_mfma_f32_16x16x32_bf16 v[36:39], v[64:67], {vr(W)}, v[36:39]""")
                else:
                    k(f"""v_mfma_f32_16x16x32_bf16 v[32:35], {vr(W)}, {vr(X)}, v[32:35]
                          v_mfma_f32_16x16x32_bf16 v[36:39], {vr(W)}, v[64:67], v[36:39]""")
        k("s_barrier\nds_read_b64 v[40:41], v76")
    k("""s_cmp_eq_u32 s40, 0
         s_cbranch_scc0 L_p0_v""")
    kvloop(False)
    k(f"""ds_read_b64 v[68:69], v74
          v_lshlrev_b32 v3, 9, v12
          v_lshl_add_u32 v3, v15, 4, v3
          v_lshl_add_u32 v3, v13, 3, v3
          s_lshr_b32 s35, s34, 1
          s_lshl_b32 s35, s35, 10
          s_and_b32 s36, s34, 1
          s_lshl_b32 s36, s36, 8
          s_add_u32 s35, s35, s36
          s_add_u32 s35, s35, {KF}
          s_waitcnt lgkmcnt(0)""")
    for r in range(4): k(f"v_fma_f32 v{32+r}, -v68, v{36+r}, v{32+r}")
    for r in range(4): k(f"v_mul_f32 v{32+r}, v69, v{32+r}")
    k(f"""v_cvt_pk_bf16_f32 v36, v32, v33
          v_cvt_pk_bf16_f32 v37, v34, v35
          buffer_store_dwordx2 v[36:37], v3, s[24:27], s35 offen sc1
          v_dot2_f32_bf16 v42, v36, v36, 0
          v_dot2_f32_bf16 v42, v37, v37, v42""")
    xhalf_add(k, 42, 12); x16_add(k, 42, 12)
    for sh in (1, 2, 4, 8):
        k(f"v_max_f32_dpp v42, v42, v42 row_ror:{sh} row_mask:0xf bank_mask:0xf")
    k("s_branch L_p0_kvf\nL_p0_v:")
    kvloop(True)
    k(f"""ds_read_b128 v[56:59], v75
          ds_read_b128 v[60:63], v75 offset:16
          v_lshlrev_b32 v3, 8, v12
          v_lshl_add_u32 v3, v15, 4, v3
          v_lshl_add_u32 v3, v13, 3, v3
          s_lshl_b32 s35, s34, 9
          s_add_u32 s35, s35, {VF}
          v_mov_b32 v42, 0
          s_waitcnt lgkmcnt(0)""")
    for r in range(4): k(f"v_fma_f32 v{32+r}, -v{56+2*r}, v{36+r}, v{32+r}")
    for r in range(4): k(f"v_mul_f32 v{32+r}, v{57+2*r}, v{32+r}")
    k(f"""v_cvt_pk_bf16_f32 v36, v32, v33
          v_cvt_pk_bf16_f32 v37, v34, v35
          buffer_store_dwordx2 v[36:37], v3, s[24:27], s35 offen sc1
          L_p0_kvf:
          v_mov_b32 v43, 0""")
    k.stamp(2)
    k("s_barrier")
    k.stamp(3)
    k("s_waitcnt vmcnt(0)")
    k.stamp(5)
    k(f"""s_mov_b64 exec, 1
          buffer_store_dwordx4 v[40:43], v43, s[24:27], s37 offen sc1
          s_mov_b64 exec, -1""")
    if STAMPS: k("s_waitcnt vmcnt(0)")
    k.stamp(4)
    k("s_barrier\n" * 3 + "s_branch L_att")
    k(f"""L_p0_pack:
          s_load_dwordx2 s[48:49], s[0:1], 48
          s_load_dwordx2 s[50:51], s[0:1], 32
          s_load_dwordx2 s[52:53], s[0:1], 72
          s_lshl_b32 s35, s28, 8
          s_add_u32 s35, s35, s2           ; J
          s_lshl_b32 s36, s28, 13
          s_add_u32 s36, s36, {128*1024}
          s_waitcnt lgkmcnt(0)""")
    srd(k, 24, 14, 15, WS_USED)
    if TLBW:
        k(f"""s_load_dwordx4 s[40:43], s[0:1], 56
              s_load_dwordx2 s[44:45], s[0:1], 80
              v_lshlrev_b32 v20, {TLBW}, v1
              buffer_load_dword v21, v20, s[24:27], 0 offen
              s_mov_b32 s18, {688*1024}
              s_mov_b32 s19, 0x00020000""")
        for lo, sz in ((48, 512*2752), (50, 512*1024), (52, 688*1024)):
            k(f"""s_mov_b32 s16, s{lo}
                  s_mov_b32 s17, s{lo+1}
                  s_mov_b32 s18, {sz}
                  buffer_load_dword v21, v20, s[16:19], 0 offen""")
        k("s_waitcnt lgkmcnt(0)")
        for lo, sz in ((40, 2048*4096), (42, 4096), (44, 2048*1024)):
            k(f"""s_mov_b32 s16, s{lo}
                  s_mov_b32 s17, s{lo+1}
                  s_mov_b32 s18, {sz}
                  buffer_load_dword v21, v20, s[16:19], 0 offen""")
    k(f"""s_cmp_lt_u32 s35, 332
          s_cbranch_scc1 L_pk_job""")
    k("L_pk_done:\n" + "s_barrier\n" * 9 + "s_branch L_att")
    k(f"""L_pk_job:
          s_lshl_b32 s62, s35, 7
          s_add_u32 s62, s62, {PFLAG}
          s_mov_b32 s23, 0x00020000
          s_cmp_lt_u32 s35, 172
          s_cbranch_scc1 L_pk_in
          s_movk_i32 s40, 1024
          s_cmp_lt_u32 s35, 236
          s_cbranch_scc1 L_pk_o
          s_sub_u32 s35, s35, 236
          s_mul_i32 s37, s35, 171
          s_lshr_b32 s37, s37, 9
          s_mul_i32 s38, s37, 3
          s_sub_u32 s38, s35, s38
          s_mov_b32 s20, s52
          s_mov_b32 s21, s53
          s_mov_b32 s22, {688*1024}
          s_mul_i32 s39, s37, 24576
          s_add_u32 s39, s39, {WUP}
          s_branch L_pk_d
          L_pk_o:
          s_sub_u32 s35, s35, 172
          s_lshr_b32 s37, s35, 1
          s_and_b32 s38, s35, 1
          s_mov_b32 s20, s50
          s_mov_b32 s21, s51
          s_mov_b32 s22, {512*1024}
          s_lshl_b32 s39, s37, 14
          s_add_u32 s39, s39, {WOP}
          L_pk_d:
          v_lshrrev_b32 v12, 1, v8
          v_lshlrev_b32 v6, 4, v12
          v_and_b32 v12, 1, v8
          v_lshl_add_u32 v6, v12, 2, v6
          s_movk_i32 s41, 256
          s_mov_b32 s42, 0
          s_branch L_pk_go
          L_pk_in:
          s_movk_i32 s40, 2752
          s_lshr_b32 s37, s35, 1
          s_and_b32 s38, s35, 1
          s_mov_b32 s20, s48
          s_mov_b32 s21, s49
          s_mov_b32 s22, {512*2752}
          s_lshl_b32 s39, s37, 14
          s_add_u32 s39, s39, {WPK}
          v_lshlrev_b32 v6, 2, v8
          s_movk_i32 s41, 512
          s_mov_b32 s42, 1
          L_pk_go:
          v_add_u32 v6, v6, v10
          v_lshlrev_b32 v6, 5, v6
          v_lshl_add_u32 v6, v11, 3, v6
          v_add_u32 v108, s36, v6
          v_add_u32 v109, s41, v108
          s_lshl_b32 s43, s38, 13
          s_add_u32 s48, s39, s43           ; dst
          v_lshrrev_b32 v113, 1, v1
          v_mul_lo_u32 v113, v113, s40
          v_and_b32 v12, 1, v1
          v_lshl_add_u32 v113, v12, 4, v113
          s_lshl_b32 s50, s40, 8
          s_mul_i32 s50, s50, s38
          s_lshl_b32 s44, s37, 5
          s_add_u32 s50, s50, s44           ; src
          s_lshl_b32 s51, s40, 5            ; 32 rows
          s_lshl_b32 s49, s37, 6
          s_add_u32 s49, s49, s43
          s_add_u32 s49, s49, {CSUM}
          s_mul_i32 s49, s49, s42
          s_mov_b32 s45, s36
          s_branch L_pk_done""")
    k("L_att:")
    att_ids(); att_init()
    k.stamp(8)
    k("s_waitcnt lgkmcnt(0)\ns_barrier")
    k.stamp(7)
    kvdma(0)
    k(f"""L_att2:
          s_waitcnt vmcnt(0) lgkmcnt(0)
          s_barrier
          ds_read_b128 {vr(Q)}, v102
          ds_read_b128 v[120:123], v103
          ds_read_b128 {vr(KFR)}, v{vK}""")
    kvdma(1)
    k(f"""s_waitcnt lgkmcnt(0)
          v_readfirstlane_b32 s58, v120
          v_readfirstlane_b32 s59, v121
          v_mov_b32 v104, v122
          v_dot2_f32_bf16 v106, v{Q}, v{Q}, 0
          v_dot2_f32_bf16 v106, v{Q+1}, v{Q+1}, v106
          v_dot2_f32_bf16 v106, v{Q+2}, v{Q+2}, v106
          v_dot2_f32_bf16 v106, v{Q+3}, v{Q+3}, v106""")
    xhalf_add(k, 106, 105)
    k(f"""v_mul_f32 v104, v104, v106
          v_cmp_nle_f32 vcc, v104, v107""")
    kvdma(2); kvdma(3)
    k("s_cbranch_vccnz L_k2_slow")
    k.stamp(1)
    if os.environ.get("STP0"): k.stamp = lambda i, real=False: None if i < 13 else Kern.stamp(k, i, real)
    k("L_k2_start:")
    if PRIO == 3: k("s_setprio 3")
    if PRIO == 2:
        k("""s_cmp_lt_u32 s28, 8
             s_cbranch_scc1 L_pr0
             s_setprio 1
             L_pr0:""")
    k(f"""s_waitcnt lgkmcnt(0)
          v_mfma_f32_32x32x16_bf16 {vr(S[0],16)}, {vr(KFR)}, {vr(Q)}, {vr(C,16)}
          ds_read_b128 {vr(KFR)}, v{vK} offset:1024
          s_mov_b64 exec, s[40:41]
          ds_read_b128 {vr(VFR[0][0])}, v{vV}
          ds_read_b128 {vr(VFR[0][1])}, v{vV} offset:512
          s_mov_b64 exec, -1
          s_nop 7""")
    k("L_k2_loop:")
    k("""s_bitcmp1_b32 s31, s36
         s_cbranch_scc1 L_k2_ev""")
    k("L_k2_body:")
    for u in range(4):
        s = S[u & 1]; sn = S[(u + 1) & 1]; vf = VFR[u & 1]; vn = VFR[(u + 1) & 1]
        if PRIO == 1: k(f"s_setprio {3-u}")
        qk = f"""s_waitcnt lgkmcnt(2)
              v_mfma_f32_32x32x16_bf16 {vr(sn,16)}, {vr(KFR)}, {vr(Q)}, {vr(C,16)}
              ds_read_b128 {vr(KFR)}, v{vK} offset:{1024*(u+2)}"""
        vrd = f"""s_mov_b64 exec, s[40:41]
              ds_read_b128 {vr(vn[0])}, v{vV} offset:{1024*(u+1)}
              ds_read_b128 {vr(vn[1])}, v{vV} offset:{1024*(u+1)+512}
              s_mov_b64 exec, -1"""
        pva = f"v_mfma_f32_32x32x16_bf16 {vr(O,16)}, {vr(vf[0])}, {vr(P)}, {vr(O,16)}"
        pvb_prev = f"v_mfma_f32_32x32x16_bf16 {vr(O,16)}, {vr(vn[1])}, {vr(P+4)}, {vr(O,16)}"
        E = lambda i: f"v_exp_f32 v{s+i}, v{s+i}"
        Cv = lambda j: f"v_cvt_pk_bf16_f32 v{P+j}, v{s+2*j}, v{s+2*j+1}"
        k(E(0)); k(E(1))
        k(pvb_prev); k(vrd)
        k(E(2)); k(E(3)); k(Cv(0)); k(E(4)); k(E(5)); k(Cv(1))
        k(qk)
        k(E(6)); k(E(7)); k(Cv(2)); k(E(8)); k(E(9)); k(Cv(3)); k(E(10)); k(E(11))
        k(pva)
        k(Cv(4)); k(E(12)); k(E(13)); k(Cv(5)); k(E(14)); k(E(15)); k(Cv(6)); k(Cv(7))
    k(f"""v_add_u32 v{vK}, 4096, v{vK}
          v_add_u32 v{vV}, 4096, v{vV}
          s_add_u32 s36, s36, 1
          s_cmp_lt_u32 s36, {NIT}
          s_cbranch_scc1 L_k2_loop
          v_mfma_f32_32x32x16_bf16 {vr(O,16)}, {vr(VFR[1][1])}, {vr(P+4)}, {vr(O,16)}
          s_setprio 0""")
    k.stamp(2)
    k(f"""s_mul_i32 s45, s38, 2304
          s_add_u32 s45, s45, {XL}
          v_add_u32 v103, s45, v2
          v_lshlrev_b32 v104, 2, v1
          v_add_u32 v104, s45, v104
          v_mov_b32 v107, {FASTW}
          s_lshl_b32 s35, s38, 2
          s_add_u32 s35, s35, {FASTW + 128}
          v_mov_b32 v102, s35
          s_cmp_eq_u32 s39, 0
          s_cbranch_scc1 L_k2_give
          s_mov_b32 s60, 0
          L_k2_mw:
          ds_read_b32 v105, v102
          ds_read_b32 v106, v107
          ds_read_b128 {vr(S[0])}, v103
          ds_read_b128 {vr(S[0]+4)}, v103 offset:1024
          ds_read_b32 v{S[0]+8}, v104 offset:2048
          s_lshl_b32 s34, s29, 13
          s_add_u32 s34, s34, {OFLAG}
          s_lshl_b32 s35, s32, 12
          s_add_u32 s34, s34, s35
          s_lshl_b32 s35, s30, 9
          s_add_u32 s34, s34, s35
          s_lshr_b32 s35, s38, 1
          s_lshl_b32 s35, s35, 7
          s_add_u32 s34, s34, s35
          s_add_u32 s33, s46, {OF}
          s_add_u32 s60, s60, 1
          s_waitcnt lgkmcnt(0)
          v_readfirstlane_b32 s63, v106
          v_readfirstlane_b32 s35, v105
          s_cmp_gt_u32 s60, 0x400000
          s_cbranch_scc1 L_k2_mok
          s_cmp_eq_u32 s63, 2
          s_cbranch_scc1 L_k2_mw
          s_cmp_eq_u32 s35, 0
          s_cbranch_scc1 L_k2_mw
          L_k2_mok:""")
    k.stamp(3)
    for r in range(9): k(f"v_add_f32 v{O+r}, v{O+r}, v{S[0]+r}")
    k(f"""v_mov_b32 v104, v{O+8}
          v_permlane32_swap_b32 v{O+8}, v104
          v_rcp_f32 v104, v{O+8}""")
    for r in range(8): k(f"v_mul_f32 v{O+r}, v104, v{O+r}")
    for r in range(4): k(f"v_cvt_pk_bf16_f32 v{P+r}, v{O+2*r}, v{O+2*r+1}")
    hstore(k, f"buffer_store_dwordx4 {vr(P)}, v2, s[24:27], s33 offen")
    k.stamp(4)
    if STAMPS: k("s_waitcnt vmcnt(0)")
    k.stamp(5)
    set_flagN(k, "s34")
    k.stamp(6)
    k("""s_cmp_lt_u32 s28, 12
         s_cbranch_scc1 L_kb_loader
         s_endpgm""")
    k(f"""L_k2_ev:
          s_cmp_ge_u32 s36, 6
          s_cbranch_scc1 L_k2_cnt
          s_cmp_eq_u32 s36, 4
          s_cbranch_scc1 L_k2_st4
          s_cmp_eq_u32 s36, 3
          s_cbranch_scc1 L_k2_st3
          s_cmp_eq_u32 s36, 1
          s_cbranch_scc1 L_k2_st1
          s_setprio 2
          s_branch L_k2_body
          L_k2_st1:
          s_cmp_eq_u32 s42, 1
          s_cbranch_scc0 L_k2_st1c
          s_waitcnt vmcnt(0)
          s_barrier
          L_k2_st1c:
          s_cmp_eq_u32 s62, 0
          s_cbranch_scc1 L_nopk""")
    for i in range(8):
        k(f"""s_add_u32 m0, s45, {1024*i}
              buffer_load_dwordx4 v113, s[20:23], s50 offen lds
              s_add_u32 s50, s50, s51""")
    k(f"""s_branch L_k2_body
          L_nopk:
          s_lshr_b32 s34, s28, 2
          s_cmp_eq_u32 s34, 1
          s_cbranch_scc0 L_k2_body
          s_load_dwordx2 s[52:53], s[0:1], 56
          s_lshr_b32 s61, s2, 3
          s_lshl_b32 s61, s61, 2
          s_add_u32 s61, s61, s3
          v_lshlrev_b32 v108, 7, v1
          s_and_b32 s37, s2, 7
          s_lshl_b32 s37, s37, 20
          s_lshl_b32 s61, s61, 13
          s_add_u32 s37, s37, s61
          s_mov_b32 s54, {2048*4096}
          s_mov_b32 s55, 0x00020000
          s_waitcnt lgkmcnt(0)
          buffer_load_dword v120, v108, s[52:55], s37 offen
          s_cmp_eq_u32 s28, 4
          s_cbranch_scc0 L_k2_body
          s_lshr_b32 s34, s29, 1
          s_lshl_b32 s34, s34, 7
          s_and_b32 s35, s29, 1
          s_lshl_b32 s35, s35, 3
          s_add_u32 s34, s34, s35
          s_add_u32 s34, s34, s30
          s_lshl_b32 s34, s34, 7
          s_add_u32 s34, s34, {ZSTAT}
          v_mov_b32 v112, -1
          v_mov_b32 v113, -1
          v_mov_b32 v114, -1
          v_mov_b32 v115, -1
          v_lshrrev_b32 v116, 3, v1
          v_lshlrev_b32 v116, 11, v116
          v_and_b32 v117, 7, v1
          v_lshl_add_u32 v116, v117, 4, v116
          buffer_store_dwordx4 v[112:115], v116, s[24:27], s34 offen sc1
          s_branch L_k2_body
          L_k2_cnt:
          {'s_setprio 0' if PRIO == 3 else ''}
          L_k2_cnt2:
          s_waitcnt lgkmcnt(0)
          s_mov_b64 exec, 1
          ds_add_u32 v118, v119
          s_mov_b64 exec, -1
          v_add_u32 v118, 4, v118
          s_branch L_k2_body
          L_k2_st4:
          {'s_setprio 1' if PRIO == 3 else ''}
          s_cmp_eq_u32 s62, 0
          s_cbranch_scc1 L_k2_cnt2
          v_mov_b32 v112, s58
          v_mov_b32 v113, s59
          v_mov_b32 v114, 0
          s_waitcnt vmcnt(0)
          s_mov_b64 exec, 1
          buffer_store_dwordx2 v[112:113], v114, s[24:27], s62 offen sc1
          s_mov_b64 exec, -1
          s_branch L_k2_cnt2
          L_k2_st3:
          s_waitcnt vmcnt(0)
          s_cmp_lg_u32 s62, 0
          s_cbranch_scc1 L_k2_pk
          s_and_b32 s34, s29, 1
          s_lshl_b32 s34, s34, 3
          s_add_u32 s34, s34, s30
          s_lshl_b32 s34, s34, 7
          s_add_u32 s34, s34, s63
          s_getreg_b32 s60, hwreg(HW_REG_XCC_ID, 0, 4)
          s_add_u32 s60, s60, s59
          v_mov_b32 v108, s58
          v_mov_b32 v109, s60
          v_mov_b32 v110, 0
          s_mov_b64 exec, 1
          buffer_store_dwordx2 v[108:109], v110, s[24:27], s34 offen sc1
          s_mov_b64 exec, -1
          s_branch L_k2_body
          L_k2_pk:
          s_mov_b32 s34, 0x3f803f80
          s_add_u32 s35, s48, 4096
          v_mov_b32 v110, 0
          v_mov_b32 v111, 0""")
    for h in range(2):
        for i in range(2):
          for i2 in range(2):
            k(f"""ds_read_b64_tr_b16 v[{120+4*i2}:{121+4*i2}], v108 offset:{1024*(4*h+2*i+i2)}
                  ds_read_b64_tr_b16 v[{122+4*i2}:{123+4*i2}], v109 offset:{1024*(4*h+2*i+i2)}""")
          k("s_waitcnt lgkmcnt(0)")
          for i2 in range(2):
            k(f"buffer_store_dwordx4 {vr(120+4*i2)}, v2, s[24:27], {'s35' if h else 's48'} offen offset:{1024*(2*i+i2)} sc1")
          for i3 in range(8): k(f"v_dot2_f32_bf16 v{110+(i3&1)}, v{120+i3}, s34, v{110+(i3&1)}")
    k("""s_cmp_eq_u32 s49, 0
         s_cbranch_scc1 L_k2_body
         v_add_f32 v110, v110, v111""")
    xhalf_add(k, 110, 111); x16_add(k, 110, 111)
    k(f"""v_lshlrev_b32 v111, 2, v1
          s_mov_b64 exec, 0xffff
          buffer_store_dword v110, v111, s[24:27], s49 offen sc1
          s_mov_b64 exec, -1
          s_branch L_k2_body""")
    k("L_k2_slow:")
    k(f"""s_waitcnt vmcnt(0)
          s_barrier
          s_mov_b32 s42, 99
          v_mov_b32 v104, 0xff800000
          v_mov_b32 v103, v2
          s_mov_b32 s37, 0
          L_k2_mx:
          ds_read_b128 {vr(KFR)}, v103
          s_waitcnt lgkmcnt(0)
          v_mfma_f32_32x32x16_bf16 {vr(S[0],16)}, {vr(KFR)}, {vr(Q)}, 0
          v_add_u32 v103, 1024, v103""")
    for i in range(8):
        k(f"v_max3_f32 v104, v{S[0]+2*i}, v{S[0]+2*i+1}, v104")
    k(f"""s_add_u32 s37, s37, 1
          s_cmp_lt_u32 s37, 64
          s_cbranch_scc1 L_k2_mx
          v_mov_b32 v105, v104
          v_permlane32_swap_b32 v104, v105
          v_max_f32 v104, v104, v105""")
    for i in range(16): k(f"v_sub_f32 v{C+i}, 0, v104")
    k(f"""ds_read_b128 {vr(KFR)}, v{vK}
          s_branch L_k2_start""")
    def waitcnt_lds(off, tag):
        k(f"""v_mov_b32 v108, {CNT + off}
              s_mov_b32 s60, 0
              L_cw_{tag}:
              ds_read_b32 v109, v108
              s_add_u32 s60, s60, 1
              s_waitcnt lgkmcnt(0)
              v_readfirstlane_b32 s34, v109
              s_cmp_gt_u32 s60, 0x400000
              s_cbranch_scc1 L_cwok_{tag}
              s_cmp_ge_u32 s34, 16
              s_cbranch_scc1 L_cwok_{tag}
              s_sleep 2
              s_branch L_cw_{tag}
              L_cwok_{tag}:""")
    k(f"""L_k2_give:
          s_load_dwordx2 s[4:5], s[0:1], 0""")
    if PT:
        k(f"""v_and_b32 v110, 7, v1
              v_lshlrev_b32 v110, 7, v110
              s_mov_b64 exec, 0xff
              s_add_u32 s34, s46, {OF}
              buffer_load_dword v117, v110, s[24:27], s34 offen
              s_lshl_b32 s34, s29, 2
              s_add_u32 s34, s34, s3
              s_lshl_b32 s34, s34, 4
              s_lshl_b32 s35, s30, 1
              s_add_u32 s34, s34, s35
              s_lshr_b32 s35, s28, 2
              s_add_u32 s34, s34, s35
              s_lshl_b32 s35, s34, 10
              s_add_u32 s35, s35, {HF}
              buffer_load_dword v117, v110, s[24:27], s35 offen
              s_mov_b64 exec, 1
              s_lshl_b32 s35, s34, 7
              s_add_u32 s35, s35, {HSTAT}
              buffer_load_dword v117, v110, s[24:27], s35 offen
              s_mov_b64 exec, -1""")
    k(f"""s_cmp_eq_u32 s28, 4
          s_cbranch_scc0 L_kb_nochk
          v_and_b32 v110, 15, v1
          v_lshlrev_b32 v110, 7, v110
          s_mov_b32 s60, 0
          L_xc_b:
          buffer_load_dwordx2 v[108:109], v110, s[24:27], s63 offen sc1
          s_add_u32 s60, s60, 1
          s_waitcnt vmcnt(0)
          v_subrev_u32 v109, s59, v109
          v_xor_b32 v108, s58, v108
          v_lshrrev_b32 v106, 4, v109
          v_or_b32 v108, v108, v106
          v_cmp_ne_u32 vcc, 0, v108
          s_cmp_gt_u32 s60, 0x40000
          s_cbranch_scc1 L_xcok_b
          s_cbranch_vccnz L_xc_b
          L_xcok_b:
          v_readfirstlane_b32 s60, v109
          v_cmp_ne_u32 vcc, s60, v109
          s_cmp_eq_u64 vcc, 0
          s_cselect_b32 s60, {FAST}, 0
          v_mov_b32 v106, s60
          ds_write_b32 v107, v106
          L_kb_nochk:
          s_and_b32 s31, s29, 1
          s_lshl_b32 s31, s31, 3
          s_add_u32 s31, s31, s30
          s_mul_i32 s31, s31, 3
          s_min_u32 s31, s31, 40           ; u0
          s_lshl_b32 s34, s31, 1
          s_lshl_b32 s35, s30, 3
          s_add_u32 s35, s35, 172
          s_mul_i32 s37, s30, 12
          s_add_u32 s37, s37, {236-20}
          s_sub_u32 s34, s34, 8
          v_and_b32 v108, 31, v1
          v_add_u32 v109, s35, v108
          v_add_u32 v110, s34, v108
          v_cmp_lt_u32 vcc, 7, v108
          v_cndmask_b32 v109, v109, v110, vcc
          v_add_u32 v110, {86-6}, v110
          v_cmp_lt_u32 vcc, 13, v108
          v_cndmask_b32 v109, v109, v110, vcc
          v_add_u32 v110, s37, v108
          v_cmp_lt_u32 vcc, 19, v108
          v_cndmask_b32 v109, v109, v110, vcc
          v_lshlrev_b32 v15, 7, v109
          s_mov_b32 s37, {PFLAG}
          s_mov_b32 exec_hi, 0""")
    pollN(k, "s37", "p")
    k(f"""s_lshl_b32 s40, s31, 14
          s_add_u32 s40, s40, {WPK}        ; z1 base
          s_cmp_ge_u32 s28, 4
          s_cbranch_scc1 L_gv_pf
          s_mul_i32 s35, s28, 3072
          s_add_u32 m0, s35, {148*1024}
          s_add_u32 s35, s35, s40""")
    for j in range(3): k(f"buffer_load_dwordx4 v2, s[24:27], s35 offen offset:{1024*j} lds")
    k(f"""s_mul_i32 s35, s28, 12288
          s_add_u32 s35, s35, s40
          s_add_u32 s35, s35, {43*16384}
          v_lshlrev_b32 v108, 7, v1
          buffer_load_dword v117, v108, s[24:27], s35 offen
          v_and_b32 v109, 31, v1
          v_lshlrev_b32 v109, 7, v109
          s_add_u32 s35, s35, 8192
          buffer_load_dword v117, v109, s[24:27], s35 offen
          s_mul_i32 s35, s28, 9216
          s_add_u32 s35, s35, s40
          s_add_u32 s35, s35, 12288
          buffer_load_dword v117, v108, s[24:27], s35 offen
          v_and_b32 v109, 7, v1
          v_lshlrev_b32 v109, 7, v109
          s_add_u32 s35, s35, 8192
          buffer_load_dword v117, v109, s[24:27], s35 offen""")
    k(f"""s_branch L_gv_c6
          L_gv_pf:
          s_lshr_b32 s35, s2, 3
          s_lshl_b32 s35, s35, 2
          s_add_u32 s35, s35, s3
          s_mul_i32 s35, s35, 6144
          s_add_u32 s35, s35, {WUP}
          v_min_u32 v108, 47, v1
          v_lshlrev_b32 v108, 7, v108
          buffer_load_dword v117, v108, s[24:27], s35 offen
          L_gv_c6:""")
    waitcnt_lds(0, "6")
    k(f"""ds_write_b128 v103, {vr(O)}
          ds_write_b128 v103, {vr(O+4)} offset:1024
          ds_write_b32 v104, v{O+8} offset:2048
          ds_write_b32 v102, v119
          s_lshl_b32 s35, s30, 16
          s_lshl_b32 s37, s28, 13
          s_add_u32 s35, s35, s37
          s_add_u32 s35, s35, {WOP}
          s_lshr_b32 s37, s28, 1
          s_lshl_b32 s37, s37, 15
          s_lshl_b32 s41, s32, 13
          s_add_u32 s41, s41, s37
          s_mov_b32 m0, s41""")
    for j in range(4): k(f"buffer_load_dwordx4 v2, s[24:27], s35 offen offset:{1024*j} lds")
    k("s_add_u32 m0, s41, 4096\ns_add_u32 s35, s35, 4096")
    for j in range(4): k(f"buffer_load_dwordx4 v2, s[24:27], s35 offen offset:{1024*j} lds")
    lane_fields(k)
    waitcnt_lds(4, "7")
    k(f"""s_lshl_b32 s35, s28, 12
          s_add_u32 s35, s35, s40
          s_add_u32 s35, s35, {43*16384}
          s_lshl_b32 s41, s32, 12
          s_add_u32 s41, s41, s37
          s_add_u32 m0, s41, 16384""")
    for j in range(4): k(f"buffer_load_dwordx4 v2, s[24:27], s35 offen offset:{1024*j} lds")
    k(f"""s_lshl_b32 s33, s29, 13
          s_add_u32 s33, s33, {OFLAG}
          s_and_b32 s35, s28, 2
          s_lshl_b32 s35, s35, 11
          s_add_u32 s33, s33, s35
          s_and_b32 s35, s28, 4
          s_lshl_b32 s35, s35, 9
          s_add_u32 s33, s33, s35""")
    k(f"""s_lshr_b32 s61, s28, 2           ; kh
          s_lshl_b32 s36, s29, 2
          s_add_u32 s36, s36, s3           ; rb16
          s_lshl_b32 s37, s30, 1
          s_add_u32 s37, s37, s61
          v_and_b32 v14, 15, v1
          v_lshlrev_b32 v3, 10, v14
          v_lshl_add_u32 v3, v8, 3, v3
          s_lshl_b32 s44, s36, 14
          s_lshl_b32 s45, s37, 6
          s_add_u32 s44, s44, s45""")
    srd(k, 16, 4, 5, 2048 * 1024)
    k("""buffer_load_dwordx2 v[96:97], v3, s[16:19], s44 offen
         buffer_load_dwordx2 v[98:99], v3, s[16:19], s44 offen offset:32
         s_lshl_b32 s45, s61, 13
         v_add_u32 v4, s45, v2
         v_add_u32 v5, 65536, v4""")
    act32_voff(k, 3, "s32")
    k(f"""s_lshr_b32 s46, s36, 1
          s_lshl_b32 s46, s46, 15
          s_lshl_b32 s47, s61, 14
          s_add_u32 s46, s46, s47
          s_add_u32 s46, s46, {OF}""")
    for r in range(16): k(f"v_mov_b32 v{16+r}, 0")
    woff = lambda s, u: (4 + (u >> 1), (u & 1) * 32768 + s * 1024)
    k.stamp(3)
    k(f"""s_mov_b32 s60, 0
          L_gv_fw:
          ds_read_b32 v106, v107
          s_add_u32 s60, s60, 1
          s_waitcnt lgkmcnt(0)
          v_readfirstlane_b32 s63, v106
          s_cmp_gt_u32 s60, 0x400000
          s_cbranch_scc1 L_gv_fok
          s_cmp_eq_u32 s63, 2
          s_cbranch_scc1 L_gv_fw
          L_gv_fok:
          s_waitcnt vmcnt(0)
          s_barrier""")
    gemm64_reads(k, 0, woff)
    pollN(k, "s33", "o", 16)
    k.stamp(4)
    for s in range(8):
        if s % 2 == 0: k(f"s_add_u32 s47, s46, {s*2048}")
        k(f"buffer_load_dwordx4 {vr(64+4*s)}, v3, s[24:27], s47 offen offset:{2048*(s&1)} {LSC}")
    if OLB: k("s_barrier")
    gemm64(k, 8, woff, 64)
    k.stamp(5)
    k("s_barrier")
    ksplit_exchange(k, 0, "s28", tag="b")
    k(f"""v_lshlrev_b32 v40, 16, v96
          v_and_b32 v41, 0xffff0000, v96
          v_lshlrev_b32 v42, 16, v97
          v_and_b32 v43, 0xffff0000, v97
          v_lshlrev_b32 v44, 16, v98
          v_and_b32 v45, 0xffff0000, v98
          v_lshlrev_b32 v46, 16, v99
          v_and_b32 v47, 0xffff0000, v99
          s_lshl_b32 s47, s36, 4
          s_add_u32 s47, s47, s37
          s_lshl_b32 s46, s47, 7
          s_add_u32 s33, s46, {HFLAG}
          s_add_u32 s46, s46, {HSTAT}
          s_lshl_b32 s47, s47, 10
          s_add_u32 s47, s47, {HF}""")
    for i in range(8): k(f"v_add_f32 v{16+i}, v{16+i}, v{40+i}")
    k("s_waitcnt lgkmcnt(0)")
    for i in range(8): k(f"v_add_f32 v{16+i}, v{16+i}, v{32+i}")
    for i in range(4): k(f"v_cvt_pk_bf16_f32 v{48+i}, v{16+2*i}, v{17+2*i}")
    hstore(k, "buffer_store_dwordx4 v[48:51], v2, s[24:27], s47 offen")
    k("""v_mov_b32 v54, 0x3f803f80
         v_dot2_f32_bf16 v52, v48, v54, 0
         v_dot2_f32_bf16 v53, v48, v48, 0""")
    for i in range(1, 4):
        k(f"""v_dot2_f32_bf16 v52, v{48+i}, v54, v52
              v_dot2_f32_bf16 v53, v{48+i}, v{48+i}, v53""")
    xhalf_add(k, 52, 12); xhalf_add(k, 53, 13)
    x16_add(k, 52, 12); x16_add(k, 53, 13)
    k("""v_lshlrev_b32 v12, 3, v14
         s_mov_b64 exec, 0xffff""")
    hstore(k, "buffer_store_dwordx2 v[52:53], v12, s[24:27], s46 offen")
    k(f"""s_mov_b64 exec, -1
          s_and_b32 s31, s29, 1
          s_lshl_b32 s31, s31, 3
          s_add_u32 s30, s30, s31          ; g
          s_lshr_b32 s29, s29, 1           ; rb128
          s_mul_i32 s31, s30, 3
          s_min_u32 s31, s31, 40           ; u0
          s_lshl_b32 s36, s29, 3
          s_add_u32 s36, s36, s28
          s_lshl_b32 s62, s36, 11
          s_add_u32 s62, s62, {HFLAG}
          s_lshl_b32 s47, s36, 11
          s_add_u32 s47, s47, {ZSTAT}""")
    ACC, WF, H = 16, 40, 64
    k(f"""v_mov_b32 v4, v2
          v_add_u32 v5, 65536, v4
          v_add_u32 v6, 131072, v4
          v_lshlrev_b32 v7, 3, v14
          v_lshl_add_u32 v7, v8, 9, v7      ; n*8 + g*512""")
    set_flagN(k, "s33")
    k.stamp(6)
    if OLB: k("s_barrier")
    k(f"""s_cmp_eq_u32 s30, 15
          s_cbranch_scc0 L_k4_work
          v_mov_b32 v16, 0
          v_mov_b32 v17, 0
          v_lshlrev_b32 v12, 3, v14
          s_add_u32 s47, s47, {15*128}
          buffer_store_dwordx2 v[16:17], v12, s[24:27], s47 offen sc1
          s_barrier
          s_branch L_z_done
          L_k4_work:""")
    def WA(i):
        if i < 32: return (i >> 3) * 32768 + 16384 + (i & 7) * 1024
        if i < 48: return ((i - 32) >> 2) * 32768 + 24576 + (i & 3) * 1024
        if i < 60: return 148 * 1024 + (i - 48) * 1024
        l, j = divmod(i - 60, 9)
        return l * 32768 + 28672 + j * 1024 if j < 4 else 128 * 1024 + (5 * l + j - 4) * 1024
    def wreads(s, half):
        for u in range(3):
            a_ = WA((3*half + u) * 16 + s); f = WF + 12*half + 4*u
            k(f"ds_read_b128 {vr(f)}, v{4 + (a_ >> 16)} offset:{a_ & 0xffff}")
    for r in range(24): k(f"v_mov_b32 v{ACC+r}, 0")
    wreads(0, 0)
    k(f"""s_lshl_b32 s46, s36, 14
          s_add_u32 s46, s46, {HF}
          s_lshl_b32 s45, s36, 11
          s_add_u32 s45, s45, {HSTAT}
          """)
    pollN(k, "s62", "h", 16)
    k.stamp(7)
    q = VQ(k); hl = []
    for s in range(16):
        def f(s=s):
            if s % 4 == 0: k(f"s_add_u32 s44, s46, {s*1024}")
            k(f"buffer_load_dwordx4 {vr(H+4*s)}, v2, s[24:27], s44 offen offset:{1024*(s&3)} {LSC}")
        hl.append(f)
    for s in range(HW): q.issue(f"h{s}", 1, hl[s])
    def sl():
        for i in range(4):
            k(f"buffer_load_dwordx2 v[{8+2*i}:{9+2*i}], v7, s[24:27], s45 offen offset:{128*i} {LSC}")
    CS2, CS1, MR = 64, 72, 96
    for s in range(16):
        if WPR == 1: k(f"s_setprio {3 - (s & 3)}")
        if WPR == 2 and s % 4 == 0: k(f"s_setprio {3 - s // 4}")
        wreads(s, 1)
        q.wait(f"h{s}", extra=" lgkmcnt(3)")
        for u in range(3):
            k(f"v_mfma_f32_16x16x32_bf16 {vr(ACC+4*u)}, {vr(H+4*s)}, {vr(WF+4*u)}, {vr(ACC+4*u)}")
        if s + HW < 16: q.issue(f"h{s+HW}", 1, hl[s+HW])
        if s == 7: q.issue("st", 4, sl)
        if s < 15:
            wreads(s + 1, 0); k("s_waitcnt lgkmcnt(3)")
        else:
            k("s_waitcnt lgkmcnt(0)")
        for u in range(3):
            k(f"v_mfma_f32_16x16x32_bf16 {vr(ACC+12+4*u)}, {vr(WF+12+4*u)}, {vr(H+4*s)}, {vr(ACC+12+4*u)}")
        if s == 6:
            k.stamp(8)
        if s == 8:
            def cs():
                k(f"""v_and_b32 v3, 15, v1
                      v_lshlrev_b32 v3, 2, v3
                      s_lshl_b32 s38, s31, 6
                      s_add_u32 s38, s38, {CSUM}
                      s_add_u32 s39, s38, {688*4}""")
                for p in range(2):
                    for u in range(3):
                        k(f"buffer_load_dword v{CS2+3*p+u}, v3, s[24:27], s39 offen offset:{64*u}")
                    k("s_add_u32 s39, s39, 8192")
                k("v_lshrrev_b32 v3, 4, v1\nv_lshlrev_b32 v3, 4, v3")
                for p in range(2):
                    for u in range(3):
                        k(f"buffer_load_dwordx4 {vr(CS1+12*p+4*u)}, v3, s[24:27], s38 offen offset:{64*u}")
                    k("s_add_u32 s38, s38, 8192")
            q.issue("cs", 12, cs)
        if s == 12:
            q.wait("st")
            k("""v_add_f32 v8, v8, v10
                 v_add_f32 v9, v9, v11
                 v_add_f32 v12, v12, v14
                 v_add_f32 v13, v13, v15
                 v_add_f32 v8, v8, v12
                 v_add_f32 v9, v9, v13""")
            xhalf_add(k, 8, 12); xhalf_add(k, 9, 13)
        if s == 13:
            x16_add(k, 8, 12); x16_add(k, 9, 13)
            ln_stats(k, 8, 9, 512, 12)
        if s == 15:
            for r in range(4):
                k(f"""v_add_u32 v12, {4*r}, v3
                      ds_bpermute_b32 v{MR+r}, v12, v8
                      ds_bpermute_b32 v{MR+4+r}, v12, v9""")
    k.stamp(9)
    k("s_setprio 0\ns_barrier")
    T = 40; z2r = [ACC + i for i in range(12)]; z1r = [ACC + 12 + i for i in range(12)]
    k(f"""v_mov_b32 v15, {f32(GC2)}
          v_and_b32 v14, 15, v1
          s_waitcnt vmcnt(0)""")
    for u in range(3): k(f"v_add_f32 v{CS2+u}, v{CS2+u}, v{CS2+3+u}")
    k("s_waitcnt lgkmcnt(0)")
    for i, a in enumerate(z2r): k(f"v_fma_f32 v{a}, -v{MR+i%4}, v{CS2+i//4}, v{a}")
    for i, a in enumerate(z2r): k(f"v_mul_f32 v{a}, v{MR+4+i%4}, v{a}")
    for i, a in enumerate(z2r): k(f"v_mul_f32 v{T+i}, v{a}, v{a}")
    for i, a in enumerate(z2r): k(f"v_fmaak_f32 v{T+i}, v15, v{T+i}, {f32(GC1)}")
    for i, a in enumerate(z2r): k(f"v_mul_f32 v{T+i}, v{T+i}, v{a}")
    for i, a in enumerate(z2r): k(f"v_exp_f32 v{T+i}, v{T+i}")
    for i, a in enumerate(z2r): k(f"v_add_f32 v{T+i}, 1.0, v{T+i}")
    for i, a in enumerate(z2r): k(f"v_rcp_f32 v{T+i}, v{T+i}")
    for i, a in enumerate(z2r): k(f"v_mul_f32 v{a}, v{a}, v{T+i}")
    SQ = 52
    for r in range(4):
        k(f"v_mov_b32 v{SQ+2*r}, v{ACC+8+r}\nv_mul_f32 v{SQ+2*r+1}, v{ACC+8+r}, v{ACC+8+r}")
    k("""s_cmp_eq_u32 s30, 14
         s_cbranch_scc1 L_k4_red""")
    for u in range(2):
        for r in range(4):
            a = ACC + 4*u + r
            k(f"v_add_f32 v{SQ+2*r}, v{SQ+2*r}, v{a}\nv_fmac_f32 v{SQ+2*r+1}, v{a}, v{a}")
    k("s_nop 0\nL_k4_red:")
    for i in range(4): k(f"v_add_f32_dpp v{SQ+i}, v{SQ+i}, v{SQ+i} row_ror:8 row_mask:0xf bank_mask:0x3")
    for i in range(4): k(f"v_add_f32_dpp v{SQ+i}, v{SQ+4+i}, v{SQ+4+i} row_ror:8 row_mask:0xf bank_mask:0xc")
    for m_ in ("row_half_mirror", "quad_perm:[1,0,3,2]", "quad_perm:[2,3,0,1]"):
        for i in range(4): k(f"v_add_f32_dpp v{SQ+i}, v{SQ+i}, v{SQ+i} {m_} row_mask:0xf bank_mask:0xf")
    k(f"""s_mov_b32 s49, -2
          s_lshl_b32 s48, s30, 7
          s_add_u32 s48, s48, s47
          v_lshlrev_b32 v12, 1, v1           ; (l>>3)*16 for lanes l%8==0""")
    for j in range(4): k(f"v_min_u32 v{SQ+j}, s49, v{SQ+j}")
    k(f"""s_mov_b32 s50, 0x01010101
          s_mov_b32 s51, 0x01010101
          s_mov_b64 exec, s[50:51]""")
    hstore(k, f"buffer_store_dwordx4 {vr(SQ)}, v12, s[24:27], s48 offen")
    k("s_mov_b64 exec, -1")
    k.stamp(10)
    k(f"""v_mul_f32 v10, {f32(GC1)}, v9
          v_mul_f32 v11, v9, v9
          v_mul_f32 v11, v11, v9
          v_mul_f32 v11, {f32(GC2)}, v11
          v_rcp_f32 v13, v9""")
    for i in range(12): k(f"v_add_f32 v{CS1+i}, v{CS1+i}, v{CS1+12+i}")
    for i, a in enumerate(z1r): k(f"v_fma_f32 v{a}, -v8, v{CS1+i}, v{a}")
    for i, a in enumerate(z1r): k(f"v_mul_f32 v{T+i}, v{a}, v{a}")
    for i, a in enumerate(z1r): k(f"v_fma_f32 v{T+i}, v{T+i}, v11, v10")
    for i, a in enumerate(z1r): k(f"v_mul_f32 v{T+i}, v{T+i}, v{a}")
    for i, a in enumerate(z1r): k(f"v_exp_f32 v{T+i}, v{T+i}")
    for i, a in enumerate(z1r): k(f"v_fma_f32 v{T+i}, v{T+i}, v13, v13")
    for i, a in enumerate(z1r): k(f"v_rcp_f32 v{T+i}, v{T+i}")
    for i, a in enumerate(z1r): k(f"v_mul_f32 v{a}, v{a}, v{T+i}")
    k(f"""v_lshrrev_b32 v10, 4, v1           ; g
          v_and_b32 v11, 1, v10
          v_lshrrev_b32 v10, 1, v10
          v_lshlrev_b32 v12, 9, v11
          v_lshl_add_u32 v12, v14, 4, v12
          v_lshl_add_u32 v12, v10, 3, v12
          v_lshlrev_b32 v6, 9, v10
          v_lshl_add_u32 v6, v14, 4, v6
          v_lshl_add_u32 v6, v11, 3, v6
          s_lshr_b32 s44, s36, 1
          s_mul_i32 s44, s44, 44
          s_add_u32 s44, s44, s31
          s_lshl_b32 s44, s44, 10
          s_and_b32 s45, s36, 1
          s_lshl_b32 s45, s45, 8
          s_add_u32 s44, s44, s45
          s_add_u32 s44, s44, {Z1}
          s_mov_b32 s54, 0""")
    def zpoll():
        for i in range(4):
            k(f"buffer_load_dwordx2 v[{72+2*i}:{73+2*i}], v7, s[24:27], s47 offen offset:{128*i} sc1")
    zpoll()
    for u in range(3):
        a = ACC + 12 + 4*u; p = 64 + 2*u
        k(f"""v_cvt_pk_bf16_f32 v{p}, v{a}, v{a+1}
              v_cvt_pk_bf16_f32 v{p+1}, v{a+2}, v{a+3}
              buffer_store_dwordx2 v[{p}:{p+1}], v12, s[24:27], s44 offen offset:{1024*u} {ZSC}""")
    k("s_waitcnt vmcnt(3)\ns_branch L_k4_chk\nL_k4_poll:")
    zpoll()
    k(f"""s_waitcnt vmcnt(0)
          L_k4_chk:
          v_max3_u32 v12, v72, v73, v74
          v_max3_u32 v13, v75, v76, v77
          v_max3_u32 v12, v12, v78, v79
          v_max_u32 v12, v12, v13
          v_cmp_eq_u32 vcc, -1, v12
          s_add_u32 s54, s54, 1
          s_cmp_gt_u32 s54, 0x40000
          s_cbranch_scc1 L_k4_go
          s_cbranch_vccz L_k4_go
          s_sleep {SLEEP}
          s_branch L_k4_poll
          L_k4_go:""")
    k.stamp(11)
    k("""v_add_f32 v72, v72, v74
         v_add_f32 v73, v73, v75
         v_add_f32 v76, v76, v78
         v_add_f32 v77, v77, v79
         v_add_f32 v72, v72, v76
         v_add_f32 v73, v73, v77""")
    xhalf_add(k, 72, 12); xhalf_add(k, 73, 13)
    x16_add(k, 72, 12); x16_add(k, 73, 13)
    ln_stats(k, 72, 73, 688, 12)
    k("v_mul_f32 v72, -v72, v73")
    for r in range(4):
        k(f"""v_add_u32 v12, {4*r}, v3
              ds_bpermute_b32 v{MR+r}, v12, v72
              ds_bpermute_b32 v{MR+4+r}, v12, v73""")
    k(f"""s_lshl_b32 s45, s36, 10
          s_add_u32 s45, s45, {Z2F}
          s_waitcnt lgkmcnt(0)""")
    for i, a in enumerate(z2r): k(f"v_fma_f32 v{a}, v{a}, v{MR+4+i%4}, v{MR+i%4}")
    for u in range(3):
        a = ACC + 4*u; p = 80 + 2*u
        k(f"""s_add_u32 s44, s31, {u}
              s_lshr_b32 s46, s44, 1
              s_lshl_b32 s46, s46, 17
              s_and_b32 s44, s44, 1
              s_lshl_b32 s44, s44, 8
              s_add_u32 s44, s44, s46
              s_add_u32 s44, s44, s45
              v_cvt_pk_bf16_f32 v{p}, v{a}, v{a+1}
              v_cvt_pk_bf16_f32 v{p+1}, v{a+2}, v{a+3}
              buffer_store_dwordx2 v[{p}:{p+1}], v6, s[24:27], s44 offen {ZSC}""")
    k("L_z_done:")
    AD, NS, WOL = 3, 6, 65536
    ORD = [((p & 14) << 1) + (p & 1) + ((p >> 4) << 1) for p in range(32)] if PROG else list(range(32))
    ACC, BF, A = 16, 48, 80
    k(f"""s_load_dwordx2 s[6:7], s[0:1], 64
          s_load_dwordx2 s[10:11], s[0:1], 80
          s_mul_i32 s34, s57, 3
          s_min_u32 s34, s34, 19
          s_add_u32 s34, s34, s28
          s_lshl_b32 s62, s56, 12
          s_add_u32 s62, s62, {YFLAG}
          s_lshl_b32 s52, s34, 7
          s_add_u32 s52, s52, s62
          s_mul_i32 s53, s61, {11*128}
          s_add_u32 s62, s62, s53
          s_lshl_b32 s40, s34, 17
          s_add_u32 s41, s40, {Z2F}
          s_mov_b32 s40, s41
          s_mov_b32 s45, 0
          s_mul_i32 s39, s56, 88
          s_lshl_b32 s42, s34, 1
          s_add_u32 s39, s39, s42
          s_lshl_b32 s39, s39, 10
          v_and_b32 v15, 31, v1
          v_lshlrev_b32 v12, 1, v15
          s_lshl_b32 s43, s56, 7
          s_waitcnt vmcnt(0) lgkmcnt(0)
          s_barrier""")
    k.stamp(12)
    k(f"""s_cmp_lt_u32 s28, 3
          s_cbranch_scc1 L_k5_comp
          s_cmp_eq_u32 s28, 3
          s_cbranch_scc0 L_k5_idle
          s_lshl_b32 s44, s29, 4
          s_add_u32 s44, s44, s30
          s_lshl_b32 s44, s44, 7
          s_add_u32 s44, s44, {XIDC}""")
    set_flagN(k, "s44", drain=False, fast=False)
    k(f"""s_lshl_b32 s44, s57, 1
          s_min_u32 s44, s44, 12
          s_lshl_b32 s44, s44, 7
          s_add_u32 s44, s44, {XIDC}
          v_and_b32 v15, 7, v1
          v_lshlrev_b32 v15, 12, v15
          v_lshrrev_b32 v12, 3, v1
          v_min_u32 v12, 2, v12
          v_lshl_add_u32 v15, v12, 7, v15""")
    pollN(k, "s44", "z")
    k("s_barrier\n" * (6 if PROG else 0) + "s_add_u32 s44, s44, 2048")
    pollN(k, "s44", "z2")
    k(f"""s_mov_b32 s55, {6 if PROG else 0}
          s_branch L_k5_ib
          L_k5_idle:""")
    if PT:
        k(f"""s_cmp_eq_u32 s28, 4
              s_cbranch_scc0 L_k5_i2
              s_sub_u32 s44, s39, 8192
              s_add_u32 s44, s44, {YF}
              s_add_u32 s45, s44, {44*1024}
              v_min_u32 v12, 47, v1
              v_lshlrev_b32 v12, 7, v12
              buffer_load_dword v127, v12, s[24:27], s44 offen
              buffer_load_dword v127, v12, s[24:27], s45 offen
              L_k5_i2:""")
    k(f"""s_mov_b32 s55, 0
          L_k5_ib:
          s_barrier
          s_add_u32 s55, s55, 1
          s_cmp_lt_u32 s55, 17
          s_cbranch_scc1 L_k5_ib
          s_branch L_k6""")
    k("L_k5_comp:")
    srd(k, 20, 6, 7, 4096)
    k(f"""buffer_load_ushort v8, v12, s[20:23], s43 offen
          buffer_load_ushort v9, v12, s[20:23], s43 offen offset:64
          v_lshrrev_b32 v13, 1, v15
          v_and_b32 v13, 7, v13
          v_lshlrev_b32 v12, 7, v15
          v_lshrrev_b32 v10, 5, v1""")
    for qq in range(4):
        k(f"""v_add_u32 v14, {2*qq}, v10
              v_xor_b32 v14, v14, v13
              v_lshl_add_u32 v{4+qq}, v14, 4, v12""")
    k(f"""s_cmp_eq_u32 s34, 21
          s_cselect_b32 s44, {0x3ff & ~256}, -1
          v_and_b32 v3, s44, v2
          s_mov_b32 s55, 0
          s_mov_b32 s54, 24576
          s_waitcnt vmcnt(0)
          v_lshlrev_b32 v8, 16, v8
          v_lshlrev_b32 v9, 16, v9""")
    for r in range(16): k(f"v_mov_b32 v{ACC+r}, v8\nv_mov_b32 v{ACC+16+r}, v9")
    k("s_barrier")
    k.stamp(13 if False else 8)
    for i in range(AD):
        for j in range(4):
            k(f"buffer_load_dwordx4 {vr(A+16*i+4*j)}, v3, s[24:27], s40 offen offset:{1024*j}")
        k(f"s_add_u32 s40, s40, {(ORD[i+1]-ORD[i])*4096}")
    k(f"s_add_u32 s41, s41, 8192\ns_add_u32 s45, s39, {Z1}")
    def breads(half, slotoff):
        for j in range(2):
            for th in range(2):
                k(f"ds_read_b128 {vr(BF+16*half+8*j+4*th)}, v{4+2*half+j} offset:{slotoff+4096*th}")
    def mf(half, slot, ld):
        for j in range(2):
            for th in range(2):
                k(f"v_mfma_f32_32x32x16_bf16 {vr(ACC+16*th,16)}, {vr(A+16*slot+8*half+4*j)}, {vr(BF+16*half+8*j+4*th)}, {vr(ACC+16*th,16)}")
            if ld: ld(2*half + j)
    def ald(slot): return lambda jj: k(f"buffer_load_dwordx4 {vr(A+16*slot+4*jj)}, v3, s[24:27], s40 offen offset:{1024*jj}")
    k("s_barrier")
    breads(0, 0)
    k("L_k5_loop:")
    for i in range(6):
        sl = i % AD
        breads(1, i * 8192)
        k(f"s_waitcnt vmcnt({4*AD-2}) lgkmcnt(4)")
        mf(0, sl, ald(sl))
        if i & 1:
            k(f"s_waitcnt vmcnt({4*AD-2}) lgkmcnt(0)\ns_barrier")
            breads(0, ((i + 1) % 6) * 8192)
        else:
            breads(0, (i + 1) * 8192)
            k(f"s_waitcnt vmcnt({4*AD-2}) lgkmcnt(4)")
        mf(1, sl, ald(sl))
        k(f"s_add_u32 s40, s40, {12288 if i % 2 == 0 else 4096}" if PROG else "s_add_u32 s40, s40, 4096")
        if i == 0 and PROG:
            k(f"""s_cmp_eq_u32 s55, 2
                  s_cselect_b32 s40, s41, s40""")
        if i == 4:
            k(f"""s_add_u32 s55, s55, 1
                  s_cmp_eq_u32 s55, 5
                  s_cselect_b32 s40, s45, s40
                  s_cselect_b32 s44, -1, 0
                  v_and_or_b32 v3, s44, v2, v3""")
    k("""s_cmp_lt_u32 s55, 5
         s_cbranch_scc1 L_k5_loop""")
    k(f"s_add_u32 s43, s39, {Z1 + 44*1024}")
    breads(1, 0)
    k("s_waitcnt vmcnt(10) lgkmcnt(4)")
    mf(0, 0, lambda jj: k(f"buffer_load_dwordx4 {vr(A+4*jj)}, v2, s[24:27], s43 offen offset:{1024*jj}"))
    breads(0, 8192)
    k("s_waitcnt vmcnt(10) lgkmcnt(4)")
    mf(1, 0, None)
    breads(1, 8192)
    k("s_waitcnt vmcnt(8) lgkmcnt(4)")
    mf(0, 1, None)
    k("s_waitcnt vmcnt(6) lgkmcnt(0)")
    mf(1, 1, None)
    k.stamp(9)
    Zs = [A + 32 + i for i in range(8)] + [A + i for i in range(8)]
    k(f"""s_add_u32 s42, s39, {YF}
          s_add_u32 s43, s42, {44*1024}
          s_waitcnt vmcnt(0)""")
    for i in range(16):
        k(f"""v_lshlrev_b32 v{48+2*i}, 16, v{Zs[i]}
              v_and_b32 v{49+2*i}, 0xffff0000, v{Zs[i]}""")
    for i in range(32): k(f"v_mul_f32 v{ACC+i}, v{ACC+i}, v{48+i}")
    for i in range(16): k(f"v_cvt_pk_bf16_f32 v{A+i}, v{ACC+2*i}, v{ACC+2*i+1}")
    hstore(k, [f"buffer_store_dwordx4 {vr(A+8*th+4*f)}, v2, s[24:27], {'s43' if th else 's42'} offen offset:{1024*f}" for th in range(2) for f in range(2)])
    set_flagN(k, "s52")
    k.stamp(10)
    k("L_k6:")
    lane_fields(k)
    k(f"""s_lshl_b32 s36, s56, 2
          s_add_u32 s36, s36, s3           ; rb16
          s_lshl_b32 s37, s57, 1
          s_add_u32 s37, s37, s61
          s_lshl_b32 s47, s36, 4
          s_add_u32 s47, s47, s37
          s_lshl_b32 s47, s47, 10
          s_add_u32 s47, s47, {HF}
          buffer_load_dwordx4 v[112:115], v2, s[24:27], s47 offen
          s_mul_i32 s45, s61, {11*1024}
          s_add_u32 s45, s45, {WOL}
          v_add_u32 v4, s45, v2
          v_add_u32 v5, {2*22528}, v4""")
    act32_voff(k, 3, "s32")
    k(f"""s_lshr_b32 s46, s36, 1
          s_mul_i32 s46, s46, {44*1024}
          s_mul_i32 s47, s61, {22*1024}
          s_add_u32 s46, s46, s47
          s_add_u32 s46, s46, {YF}
          s_cmp_eq_u32 s61, 0
          s_cselect_b32 s49, -1, 0""")
    srd(k, 16, 10, 11, 2048 * 1024)
    for r in range(16): k(f"v_mov_b32 v{16+r}, 0")
    for r in range(4): k(f"v_mov_b32 v{64+40+r}, 0")
    woff = lambda s, u: (4 + (u >> 1), (u & 1) * 22528 + s * 1024)
    if WOT != 'tail': gemm64_reads(k, 0, woff)
    pollN(k, "s62", "y", 11)
    k.stamp(11)
    for s in range(11):
        if s % 2 == 0: k(f"s_add_u32 s47, s46, {s*2048}")
        if s == 10: k("s_mov_b32 exec_hi, s49")
        k(f"buffer_load_dwordx4 {vr(64+4*s)}, v3, s[24:27], s47 offen offset:{2048*(s&1)}")
    k("s_mov_b32 exec_hi, -1")
    if WOT == 'tail':
        k("s_barrier")
        gemm64_reads(k, 0, woff)
    gemm64(k, 11, woff, 64)
    ksplit_exchange(k, 49152, "s28", tag="c")
    for i in range(4):
        k(f"""v_lshlrev_b32 v{40+2*i}, 16, v{112+i}
              v_and_b32 v{41+2*i}, 0xffff0000, v{112+i}""")
    for i in range(8): k(f"v_add_f32 v{16+i}, v{16+i}, v{40+i}")
    k(f"""v_and_b32 v12, 15, v1
          v_lshlrev_b32 v12, 10, v12
          v_and_b32 v13, 1, v8
          v_lshl_add_u32 v12, v13, 5, v12
          v_lshl_add_u32 v12, v9, 4, v12
          s_lshl_b32 s46, s36, 14
          s_lshl_b32 s47, s37, 6
          s_add_u32 s46, s46, s47
          s_waitcnt lgkmcnt(0)""")
    for i in range(8): k(f"v_add_f32 v{16+i}, v{16+i}, v{32+i}")
    for i in range(4): k(f"v_cvt_pk_bf16_f32 v{48+i}, v{16+2*i}, v{17+2*i}")
    k("""v_permlane16_swap_b32 v48, v50
         v_permlane16_swap_b32 v49, v51
         buffer_store_dwordx4 v[48:51], v12, s[16:19], s46 offen
         s_endpgm""")
    k(f"""L_kb_loader:
          s_and_b32 s31, s29, 1
          s_lshl_b32 s31, s31, 3
          s_add_u32 s30, s30, s31          ; g
          s_mul_i32 s31, s30, 3
          s_min_u32 s31, s31, 40           ; u0
          s_lshl_b32 s40, s31, 14
          s_lshl_b32 s38, s3, 12
          s_add_u32 s41, s40, s38
          s_add_u32 s41, s41, {WPK + 43*16384 + 32768}
          s_mul_i32 s38, s3, 9216
          s_add_u32 s40, s40, s38
          s_add_u32 s40, s40, {WPK + 12*1024}
          s_lshl_b32 s42, s3, 15
          s_add_u32 m0, s42, 24576
          s_mul_i32 s38, s3, 5120
          s_barrier""")
    if OLB: k("s_barrier")
    for j in range(4): k(f"buffer_load_dwordx4 v2, s[24:27], s41 offen offset:{1024*j} lds")
    k("s_add_u32 m0, s42, 28672")
    for j in range(4): k(f"buffer_load_dwordx4 v2, s[24:27], s40 offen offset:{1024*j} lds")
    k(f"s_add_u32 m0, s38, {128*1024}\ns_add_u32 s40, s40, 4096")
    for j in range(4): k(f"buffer_load_dwordx4 v2, s[24:27], s40 offen offset:{1024*j} lds")
    k(f"s_add_u32 m0, s38, {128*1024+4096}\ns_add_u32 s40, s40, 4096\nbuffer_load_dwordx4 v2, s[24:27], s40 offen lds")
    k.stamp(3)
    k(f"""s_load_dwordx2 s[16:17], s[0:1], 56
          s_lshl_b32 s35, s56, 6
          s_lshl_b32 s36, s3, 4
          s_add_u32 s35, s35, s36
          v_lshrrev_b32 v12, 3, v1
          v_add_u32 v5, s35, v12
          v_lshlrev_b32 v5, 12, v5
          v_and_b32 v13, 7, v1
          v_lshrrev_b32 v14, 4, v1
          v_xor_b32 v14, v13, v14
          v_lshl_add_u32 v5, v14, 4, v5
          v_xor_b32 v6, 64, v5
          v_add_u32 v6, {8*4096}, v6
          s_lshl_b32 s37, s3, 11
          s_lshl_b32 s36, s57, 2
          s_add_u32 s36, s36, s3
          s_mul_i32 s36, s36, 24576
          s_add_u32 s36, s36, {WUP}
          s_mul_i32 s35, s3, 22528
          s_add_u32 s35, s35, {WOL}
          s_mov_b32 s18, {2048*4096}
          s_mov_b32 s19, 0x00020000
          s_waitcnt {'' if OLB else 'vmcnt(0)'} lgkmcnt(0)""")
    k.stamp(4)
    k("s_barrier\ns_barrier")
    if OLB: k("s_waitcnt vmcnt(0)\ns_barrier")
    k("s_barrier")
    q = VQ(k)
    def bi(c):
        q.issue(f"b{c}", 2, lambda: k(f"""s_add_u32 m0, s37, {(c % NS)*8192}
              s_movk_i32 s41, {ORD[c]*128}
              buffer_load_dwordx4 v5, s[16:19], s41 offen lds
              s_add_u32 m0, s37, {(c % NS)*8192 + 1024}
              buffer_load_dwordx4 v6, s[16:19], s41 offen lds"""))
    def wi(c):
        q.issue(f"w{c}", 2, lambda: k(f"""s_add_u32 m0, s35, {c*2048}
              s_add_u32 s39, s36, {c*2048}
              buffer_load_dwordx4 v2, s[24:27], s39 offen lds
              s_sleep {WSL2}
              buffer_load_dwordx4 v2, s[24:27], s39 offen offset:1024 lds
              s_sleep {WSL2}"""))
    if WOT == 'kl':
        for c in range(11): wi(c)
    nxt = 0
    for _ in range(NS): bi(nxt); nxt += 1
    k.stamp(5)
    k("s_barrier")
    if WOT == 'zb':
        for c in range(11): wi(c)
    k("s_barrier")
    for b in range(16):
        q.wait(f"b{2*b+1}"); k("s_barrier")
        while nxt < 32 and nxt - NS <= 2*b - 1: bi(nxt); nxt += 1
    k("s_waitcnt vmcnt(0)\ns_endpgm")
    k(f"L_{k.name}_end:\ns_endpgm")
    return k, (256, 1024, 163840)
```

```python
from common import *
from k3 import *
from g16 import *
from k4 import GC1, GC2
import os
LSC = os.environ.get('LSC', '')
MAPC = int(os.environ.get('MAPC', 0))
ZSC = os.environ.get('ZSC', 'sc1')
PT = int(os.environ.get('PT', 0))
HW = int(os.environ.get('HW', 6))
PF2 = int(os.environ.get('PF2', 1))
WSL = int(os.environ.get('WSL', 1))
WSL2 = int(os.environ.get('WSL2', 0))
KVROT = int(os.environ.get('KVROT', 1))
WOT = os.environ.get('WOT', 'kl')
PROG = int(os.environ.get('PROG', 1))
WB = int(os.environ.get('WB', 28))
PRIO = int(os.environ.get('K2_PRIO', 1))
PFQ = int(os.environ.get('PFQ', 1))
TLBW = int(os.environ.get('TLBW', 0))
OLB = int(os.environ.get('OLB', 0))
WPR = int(os.environ.get('WPR', 0))
EPB = int(os.environ.get('EPB', 0))
ZSL = int(os.environ.get('ZSL', 2))
ZPRE = int(os.environ.get('ZPRE', 0))
KSL = int(os.environ.get('KSL', 2))
KSTR = int(os.environ.get('KSTR', 4))
C0 = int(os.environ.get('C0', 0))
SCH = int(os.environ.get('SCH', 0))
SMF = int(os.environ.get('SMF', 3))
P1 = int(os.environ.get('P1', 1))
PFM = int(os.environ.get('PFM', 15))
PFSC = os.environ.get('PFSC', '')

FUSEC = int(os.environ.get('FUSEC', 1))
def build_kall():
    k = Kern("sequential_preLN__grouped_kv_mqa__mixer_gmlp__prompt_kernel", nvgpr=128)
    NW = 16
    KL, VL, XL = 0, 65536, 131072
    Q = 4; KFR = 8; VFR = [[12, 16], [20, 24]]; P = 28; S = [36, 52]; O = 68; C = 84
    vK, vV = 100, 101
    NCH, NIT = 4, 8
    prologue_ids(k, 256)
    k("""s_load_dwordx8 s[4:11], s[0:1], 0
         s_load_dwordx4 s[12:15], s[0:1], 88""")
    k("""s_and_b32 s29, s2, 7
         s_lshr_b32 s30, s2, 3
         s_lshl_b32 s29, s29, 2
         s_lshr_b32 s31, s30, 3
         s_add_u32 s29, s29, s31          ; rb64
         s_and_b32 s30, s30, 7            ; cg
         s_and_b32 s3, s28, 3
         s_and_b32 s32, s28, 1            ; rh
         s_mov_b32 s56, s29
         s_mov_b32 s57, s30""")
    XL0, WL0, KVL, SX, QL = 0, 65536, 131072, 147456, 131072
    CSX = SX + 1024
    FASTW, CNT = 146 * 1024 + 512, 146 * 1024 + 576
    k("""s_lshl_b32 s46, s31, 1
         s_add_u32 s46, s46, s30
         s_and_b32 s46, s46, 7
         s_lshr_b32 s33, s3, 1            ; ch
         s_mov_b32 s62, 0
         s_mov_b32 s20, 0
         s_mov_b32 s21, 0
         s_mov_b32 s22, 0
         s_mov_b32 s23, 0x00020000
         v_mov_b32 v108, 0
         v_mov_b32 v109, 0
         v_mov_b32 v113, 0
         v_lshlrev_b32 v2, 4, v1""")
    lane_fields(k)
    k(f"""s_cmp_ge_u32 s28, 12
          s_cbranch_scc1 L_p0_st
          s_cmp_ge_u32 s28, 8
          s_cbranch_scc1 L_p0_q
          s_cmp_eq_u32 s28, 2
          s_cbranch_scc1 L_p0_kv
          s_cmp_eq_u32 s28, 3
          s_cbranch_scc1 L_p0_n
          s_cmp_lt_u32 s28, 2
          s_cbranch_scc1 L_p0_pack""")
    def att_ids():
        k(f"""s_and_b32 s38, s28, 7            ; q idx
              s_lshr_b32 s39, s28, 3
              s_lshl_b32 s44, s39, 15          ; half*32768
              s_lshl_b32 s47, s38, 10
              s_add_u32 s47, s47, s44
              v_add_u32 v3, s47, v2""")
    def kvdma(c):
        k(f"""s_add_u32 m0, s47, {KL + 8192*c}
              s_add_u32 s34, s57, {c}
              s_and_b32 s34, s34, {3 if KVROT else 0}
              s_lshl_b32 s34, s34, 13
              s_add_u32 s34, s34, {KF + (0 if KVROT else 8192*c)}
              s_add_u32 s35, s34, {VF - KF}
              buffer_load_dwordx4 v3, s[24:27], s34 offen lds
              s_add_u32 m0, s47, {VL + 8192*c}
              buffer_load_dwordx4 v3, s[24:27], s35 offen lds""")
    def att_init():
        k(f"""s_lshl_b32 s33, s29, 1
              s_add_u32 s33, s33, s32
              s_lshl_b32 s33, s33, 5
              s_lshl_b32 s34, s30, 2
              s_add_u32 s33, s33, s34
              s_lshr_b32 s34, s38, 1
              s_add_u32 s33, s33, s34
              s_lshl_b32 s46, s33, 10
              s_lshl_b32 s34, s38, 10
              s_add_u32 s34, s34, {QL}
              v_add_u32 v102, s34, v2
              v_mov_b32 v112, 0
              s_lshr_b32 s63, s29, 1
              s_lshl_b32 s63, s63, 11
              s_add_u32 s63, s63, {XID}
              v_add_u32 v{vK}, s44, v2
              v_lshrrev_b32 v103, 5, v1
              v_and_b32 v106, 15, v1
              v_lshl_add_u32 v103, v103, 4, v106
              v_lshlrev_b32 v103, 4, v103
              v_add_u32 v103, s44, v103
              v_add_u32 v{vV}, {VL}, v103
              v_mov_b32 v103, {SX + 768}
              s_mov_b32 s40, 0x0000ffff
              s_mov_b32 s41, 0x0000ffff
              v_and_b32 v106, 31, v1
              v_cmp_eq_u32 vcc, 16, v106
              v_mov_b32 v107, 0x3f803f80
              v_cndmask_b32 v107, 0, v107, vcc
              s_mov_b32 s42, 1
              s_mov_b32 s36, 0
              s_movk_i32 s31, {0x56 if PRIO == 3 else 0x52}
              s_cmp_eq_u32 s28, 4
              s_cselect_b32 s31, {0x5e if PRIO == 3 else 0x5a}, s31
              s_cmp_lg_u32 s62, 0
              s_cselect_b32 s31, {0x5e if PRIO == 3 else 0x5a}, s31
              v_mov_b32 v118, {CNT}
              v_mov_b32 v119, 1""")
        for i in range(16): k(f"v_mov_b32 v{12+i}, v107")
        for i in range(16): k(f"v_mov_b32 v{O+i}, 0")
        if SMF:
            k(f"v_mov_b32 v{P}, 0xdddddddd")
            for i in range(8): k(f"v_mov_b32 v{S[1]+8+i}, 0")
        k(f"v_mov_b32 v107, {f32(3500.0)}")
    k(f"""s_lshl_b32 s34, s29, 6
          s_lshl_b32 s35, s3, 4
          s_add_u32 s34, s34, s35
          v_lshrrev_b32 v12, 3, v1
          v_add_u32 v6, s34, v12
          v_lshlrev_b32 v6, 10, v6
          v_and_b32 v13, 7, v1
          v_xor_b32 v14, v13, v8
          v_lshl_add_u32 v6, v14, 4, v6
          v_xor_b32 v7, 64, v6
          v_add_u32 v7, 8192, v7
          s_lshl_b32 s36, s30, 7
          s_lshl_b32 s37, s3, 11
          s_mov_b32 s45, s46""")
    wt_dma_addr(k, 4, 5, "s35", "s36")
    k("s_waitcnt lgkmcnt(0)")
    srd(k, 16, 4, 5, 2048 * 1024); srd(k, 20, 6, 7, 512 * 1024); srd(k, 24, 14, 15, WS_USED)
    q = VQ(k)
    def xi(c):
        q.issue(f"x{c}", 2, lambda: k(f"""s_add_u32 m0, s37, {XL0 + c*8192}
              s_lshl_b32 s38, s46, 7
              s_add_u32 s46, s46, 1
              buffer_load_dwordx4 v6, s[16:19], s38 offen lds
              s_add_u32 m0, s37, {XL0 + c*8192 + 1024}
              s_and_b32 s46, s46, 7
              buffer_load_dwordx4 v7, s[16:19], s38 offen lds"""))
    def wqi(c):
        q.issue(f"w{c}", 2, lambda: k(f"""s_add_u32 m0, s37, {WL0 + c*8192}
              s_lshl_b32 s38, s45, 16
              s_add_u32 s45, s45, 1
              buffer_load_dwordx4 v4, s[20:23], s38 offen lds
              s_add_u32 m0, s37, {WL0 + c*8192 + 1024}
              s_and_b32 s45, s45, 7
              buffer_load_dwordx4 v5, s[20:23], s38 offen lds"""))
    for c in range(6): xi(c)
    k.stamp(2); q.wait("x1"); k.stamp(3); k("s_barrier"); k.stamp(4)
    xi(6); xi(7); wqi(0); wqi(1)
    q.wait("x3"); k("s_barrier")
    wqi(2); wqi(3); wqi(4)
    q.wait("x5"); k("s_barrier")
    wqi(5); wqi(6); wqi(7)
    q.wait("x7"); k.stamp(5); k("s_barrier\ns_barrier")
    for i in range(4):
        q.wait(f"w{2*i+1}"); k("s_barrier")
    k.stamp(6)
    k("s_branch L_att")
    k(f"""L_p0_q:
          v_mov_b32 v64, 0x3f803f80
          v_mov_b32 v65, 0x3f803f80
          v_mov_b32 v66, 0x3f803f80
          v_mov_b32 v67, 0x3f803f80
          v_lshl_add_u32 v6, v9, 3, v10
          v_lshlrev_b32 v6, 7, v6
          v_lshrrev_b32 v12, 1, v10
          v_xor_b32 v12, s33, v12
          v_lshl_add_u32 v6, v12, 6, v6
          v_and_b32 v12, 1, v8
          v_lshl_add_u32 v6, v12, 5, v6
          v_lshl_add_u32 v6, v11, 3, v6
          v_add_u32 v6, {WL0}, v6
          v_and_b32 v12, 31, v1
          s_lshl_b32 s40, s32, 5
          v_add_u32 v12, s40, v12
          v_lshlrev_b32 v76, 3, v12
          v_add_u32 v76, {SX}, v76
          v_lshlrev_b32 v77, 4, v9
          s_lshl_b32 s41, s3, 7
          s_add_u32 s41, s41, {CSX}
          v_add_u32 v77, s41, v77
          v_xor_b32 v78, 128, v77
          v_lshrrev_b32 v13, 1, v12
          v_and_b32 v13, 7, v13
          v_lshlrev_b32 v12, 7, v12""")
    for qq in range(4):
        k(f"""v_add_u32 v14, {2*qq}, v9
              v_xor_b32 v14, v14, v13
              v_lshl_add_u32 v{72+qq}, v14, 4, v12""")
    for r in range(32): k(f"v_mov_b32 v{32+r}, 0")
    k("s_waitcnt lgkmcnt(0)")
    srd(k, 24, 14, 15, WS_USED)
    k("s_barrier\n" * 5)
    k.stamp(4)
    def qreads(c):
        s = c & 1
        for qq in range(4):
            st = 4*c + qq
            k(f"""ds_read_b64_tr_b16 v[{FA(s,qq)}:{FA(s,qq)+1}], v6 offset:{2048*st}
                  ds_read_b64_tr_b16 v[{FA(s,qq)+2}:{FA(s,qq)+3}], v6 offset:{2048*st+512}
                  ds_read_b128 {vr(FB(s,qq))}, v{72+qq} offset:{XL0 + 8192*c}""")
    def qloop(cs):
        def step(c, qq):
            s = c & 1
            k(f"v_mfma_f32_32x32x16_bf16 v[32:47], {vr(FA(s,qq))}, {vr(FB(s,qq))}, v[32:47]")
            if (qq & 1) == cs: k(f"v_mfma_f32_32x32x16_bf16 v[48:63], {vr(FA(s,qq))}, v[64:67], v[48:63]")
        k("s_barrier")
        k.stamp(5)
        qreads(0)
        for c in range(8):
            for qq in range(3):
                k(f"s_waitcnt lgkmcnt({9-3*qq})"); step(c, qq)
            k("s_waitcnt lgkmcnt(0)")
            if c < 7:
                if c & 1: k("s_barrier")
                qreads(c + 1)
            step(c, 3)
    k("""s_cmp_eq_u32 s32, 0
         s_cbranch_scc0 L_p0_qcs""")
    qloop(0)
    k("s_branch L_p0_qfin\nL_p0_qcs:")
    qloop(1)
    k("L_p0_qfin:\ns_nop 7")
    for gq in range(4): k(f"ds_write_b128 v77, {vr(48+4*gq)} offset:{32*gq}")
    k(f"""s_lshl_b32 s34, s33, 12
          s_lshl_b32 s35, s32, 10
          s_add_u32 s34, s34, s35
          s_add_u32 s34, s34, {QL}
          v_add_u32 v70, s34, v2""")
    att_ids()
    k("s_waitcnt lgkmcnt(0)\ns_barrier")
    k.stamp(6)
    k("ds_read_b64 v[68:69], v76")
    for gq in range(4): k(f"ds_read_b128 {vr(80+4*gq)}, v78 offset:{32*gq}")
    kvdma(0)
    k(f"""s_waitcnt lgkmcnt(0)
          v_mul_f32 v69, {f32(0.25*1.4426950408889634)}, v69""")
    for r in range(16): k(f"v_add_f32 v{48+r}, v{48+r}, v{80+r}")
    for r in range(16): k(f"v_fma_f32 v{32+r}, -v68, v{48+r}, v{32+r}")
    for r in range(16): k(f"v_mul_f32 v{32+r}, v69, v{32+r}")
    for r in range(8): k(f"v_cvt_pk_bf16_f32 v{48+r}, v{32+2*r}, v{33+2*r}")
    k("""ds_write_b128 v70, v[48:51]
         ds_write_b128 v70, v[52:55] offset:2048""")
    att_init()
    k("s_branch L_att2")
    k(f"""L_p0_st:
          v_lshrrev_b32 v12, 2, v1
          s_lshl_b32 s34, s3, 4
          v_add_u32 v12, s34, v12           ; row
          v_lshlrev_b32 v7, 3, v12
          v_add_u32 v7, {SX}, v7
          v_lshrrev_b32 v13, 1, v12
          v_and_b32 v13, 7, v13
          v_lshlrev_b32 v12, 7, v12
          v_lshlrev_b32 v14, 1, v11
          v_xor_b32 v14, v14, v13
          v_lshl_add_u32 v4, v14, 4, v12
          v_xor_b32 v5, 16, v4
          v_mov_b32 v64, 0x3f803f80""")
    for i in range(4): k(f"v_mov_b32 v{48+i}, 0")
    k("s_waitcnt lgkmcnt(0)")
    srd(k, 24, 14, 15, WS_USED)
    for gi_ in range(4):
        k("s_barrier")
        for c in range(2):
            k(f"""ds_read_b128 {vr(16+8*c)}, v4 offset:{XL0 + 8192*(2*gi_+c)}
                  ds_read_b128 {vr(20+8*c)}, v5 offset:{XL0 + 8192*(2*gi_+c)}""")
        k("s_waitcnt lgkmcnt(0)")
        for d in range(16):
            k(f"""v_dot2_f32_bf16 v{48+(d&1)}, v{16+d}, v64, v{48+(d&1)}
                  v_dot2_f32_bf16 v{50+(d&1)}, v{16+d}, v{16+d}, v{50+(d&1)}""")
    k("v_add_f32 v48, v48, v49\nv_add_f32 v49, v50, v51")
    for qp in ("[1,0,3,2]", "[2,3,0,1]"):
        for i in range(2): k(f"v_add_f32_dpp v{48+i}, v{48+i}, v{48+i} quad_perm:{qp} row_mask:0xf bank_mask:0xf")
    ln_stats(k, 48, 49, 512, 12)
    k("ds_write_b64 v7, v[48:49]\ns_waitcnt lgkmcnt(0)")
    k("s_barrier\n" * 5 + "s_branch L_att")
    k(f"""L_p0_n:
          v_mov_b32 v20, 0
          s_memrealtime s[58:59]
          s_waitcnt lgkmcnt(0)""")
    srd(k, 24, 14, 15, WS_USED); srd(k, 16, 12, 13, 256)
    if PFQ:
        srd(k, 20, 6, 7, 512 * 1024)
        k(f"""s_lshr_b32 s34, s2, 3
              s_lshl_b32 s34, s34, 14
              s_add_u32 s35, s34, 8192
              v_lshlrev_b32 v24, 7, v1
              buffer_load_dword v25, v24, s[20:23], s34 offen
              buffer_load_dword v25, v24, s[20:23], s35 offen""")
    k(f"""s_mov_b64 exec, 1
          s_cmp_eq_u32 s2, 0
          s_cbranch_scc0 L_p0_n1
          s_or_b32 s59, s59, 0x40000000
          v_mov_b32 v22, s58
          v_mov_b32 v23, s59
          buffer_store_dwordx2 v[22:23], v20, s[16:19], 0 offen sc1
          L_p0_n1:
          s_barrier
          s_barrier
          s_mov_b32 s60, 0
          L_p0_np:
          buffer_load_dwordx2 v[22:23], v20, s[16:19], 0 offen sc1
          s_add_u32 s60, s60, 1
          s_cmp_eq_u32 s60, 1
          s_cbranch_scc0 L_p0_nw
          s_barrier
          s_barrier
          L_p0_nw:
          s_waitcnt vmcnt(0)
          v_cmp_eq_u32 vcc, 0, v23
          s_cmp_gt_u32 s60, 0x40000
          s_cbranch_scc1 L_p0_n2
          s_cbranch_vccnz L_p0_np
          L_p0_n2:
          v_mov_b32 v21, {SX + 768}
          ds_write_b64 v21, v[22:23]
          v_readfirstlane_b32 s58, v22
          v_readfirstlane_b32 s59, v23
          s_mov_b64 exec, -1
          v_lshlrev_b32 v21, 2, v1
          v_add_u32 v21, {FASTW}, v21
          v_cmp_eq_u32 vcc, 0, v1
          v_cndmask_b32 v22, 0, 2, vcc
          ds_write_b32 v21, v22
          v_mov_b32 v21, {SX + 768}
          v_lshlrev_b32 v26, {KSTR}, v1
          s_waitcnt lgkmcnt(0)""")
    k.stamp(4)
    k("s_barrier\n" * (5 - EPB))
    k.stamp(5)
    k(f"""s_mov_b32 s60, 0
          L_p0_gp:""")
    for i in range(4): k(f"s_mov_b32 s34, {KVFLAG + (64 << KSTR) * i}\nbuffer_load_dwordx3 v[{28+4*i}:{30+4*i}], v26, s[24:27], s34 offen sc1")
    if EPB:
        k("s_cmp_eq_u32 s60, 0\ns_cbranch_scc0 L_p0_gw\n" + "s_barrier\n" * EPB + "L_p0_gw:")
    k("s_add_u32 s60, s60, 1\ns_waitcnt vmcnt(0)")
    for i in range(4):
        k(f"v_xor_b32 v{28+4*i}, s58, v{28+4*i}\nv_xor_b32 v{29+4*i}, s59, v{29+4*i}")
    k(f"""v_or3_b32 v28, v28, v29, v32
          v_or3_b32 v33, v33, v36, v37
          v_or3_b32 v28, v28, v40, v41
          v_or_b32 v28, v28, v33
          v_cmp_ne_u32 vcc, 0, v28
          s_cmp_gt_u32 s60, 0x40000
          s_cbranch_scc1 L_p0_g2
          s_cbranch_vccz L_p0_g2
          s_sleep {KSL}
          s_branch L_p0_gp
          L_p0_g2:
          v_max3_f32 v30, v30, v34, v38
          v_max_f32 v30, v30, v42""")
    for sh in (1, 2, 4, 8):
        k(f"v_max_f32_dpp v30, v30, v30 row_ror:{sh} row_mask:0xf bank_mask:0xf")
    k("""v_mov_b32 v31, v30
         v_permlane16_swap_b32 v30, v31
         v_max_f32 v30, v30, v31
         v_mov_b32 v31, v30
         v_permlane32_swap_b32 v30, v31
         v_max_f32 v30, v30, v31
         ds_write_b32 v21, v30 offset:8
         s_branch L_att""")
    k(f"""L_p0_kv:
          s_lshr_b32 s40, s30, 2           ; kv
          s_and_b32 s41, s30, 3            ; rq
          s_waitcnt lgkmcnt(0)
          s_cmp_eq_u32 s40, 0
          s_cselect_b32 s20, s8, s10
          s_cselect_b32 s21, s9, s11
          s_mov_b32 s22, 16384
          s_mov_b32 s23, 0x00020000""")
    srd(k, 24, 14, 15, WS_USED)
    for c in range(8):
        k(f"""s_mov_b32 m0, {KVL + 2048*c}
              s_lshl_b32 s38, s46, 11
              s_add_u32 s46, s46, 1
              buffer_load_dwordx4 v2, s[20:23], s38 offen lds
              buffer_load_dwordx4 v2, s[20:23], s38 offen offset:1024 lds
              s_and_b32 s46, s46, 7""")
    k(f"""v_mov_b32 v64, 0x3f803f80
          v_mov_b32 v65, 0x3f803f80
          v_mov_b32 v66, 0x3f803f80
          v_mov_b32 v67, 0x3f803f80
          v_and_b32 v15, 15, v1
          s_lshl_b32 s34, s41, 4
          v_add_u32 v12, s34, v15
          v_lshlrev_b32 v74, 3, v12
          v_add_u32 v74, {SX}, v74
          v_lshl_add_u32 v75, v8, 2, s34
          v_lshlrev_b32 v75, 3, v75
          v_add_u32 v75, {SX}, v75
          v_lshrrev_b32 v13, 1, v12
          v_and_b32 v13, 7, v13
          v_lshlrev_b32 v12, 7, v12
          v_xor_b32 v14, v8, v13
          v_lshl_add_u32 v72, v14, 4, v12
          v_add_u32 v14, 4, v8
          v_xor_b32 v14, v14, v13
          v_lshl_add_u32 v73, v14, 4, v12
          v_lshl_add_u32 v6, v8, 3, v10
          v_lshlrev_b32 v6, 5, v6
          v_lshl_add_u32 v6, v11, 3, v6
          v_add_u32 v6, {KVL}, v6
          s_lshl_b32 s34, s29, 2
          s_add_u32 s34, s34, s41          ; t16
          v_and_b32 v12, 1, v8             ; h
          v_lshrrev_b32 v13, 1, v8         ; piece
          v_mov_b32 v76, {SX + 768}
          s_and_b32 s37, s2, 7
          s_lshl_b32 s37, s37, {5 + KSTR}
          s_lshr_b32 s36, s2, 3
          s_lshl_b32 s36, s36, {KSTR}
          s_add_u32 s37, s37, s36
          s_add_u32 s37, s37, {KVFLAG}""")
    for r in range(8): k(f"v_mov_b32 v{32+r}, 0")
    def kvloop(isv):
        for gi_ in range(4):
            k(f"s_waitcnt vmcnt({4*(3-gi_)})\ns_barrier")
            for s in range(4):
                st = 4*gi_ + s; b = 80 + 8*s
                k(f"""ds_read_b64_tr_b16 v[{b}:{b+1}], v6 offset:{1024*st}
                      ds_read_b64_tr_b16 v[{b+2}:{b+3}], v6 offset:{1024*st+128}
                      ds_read_b128 {vr(b+4)}, v{72+(s&1)} offset:{XL0+8192*(st//2)}""")
            for s in range(4):
                W, X = 80 + 8*s, 84 + 8*s
                k(f"s_waitcnt lgkmcnt({9-3*s})")
                if isv:
                    k(f"""v_mfma_f32_16x16x32_bf16 v[32:35], {vr(X)}, {vr(W)}, v[32:35]
                          v_mfma_f32_16x16x32_bf16 v[36:39], v[64:67], {vr(W)}, v[36:39]""")
                else:
                    k(f"""v_mfma_f32_16x16x32_bf16 v[32:35], {vr(W)}, {vr(X)}, v[32:35]
                          v_mfma_f32_16x16x32_bf16 v[36:39], {vr(W)}, v[64:67], v[36:39]""")
        k("s_barrier\nds_read_b64 v[40:41], v76")
    k("""s_cmp_eq_u32 s40, 0
         s_cbranch_scc0 L_p0_v""")
    kvloop(False)
    k(f"""ds_read_b64 v[68:69], v74
          v_lshlrev_b32 v3, 9, v12
          v_lshl_add_u32 v3, v15, 4, v3
          v_lshl_add_u32 v3, v13, 3, v3
          s_lshr_b32 s35, s34, 1
          s_lshl_b32 s35, s35, 10
          s_and_b32 s36, s34, 1
          s_lshl_b32 s36, s36, 8
          s_add_u32 s35, s35, s36
          s_add_u32 s35, s35, {KF}
          s_waitcnt lgkmcnt(0)""")
    for r in range(4): k(f"v_fma_f32 v{32+r}, -v68, v{36+r}, v{32+r}")
    for r in range(4): k(f"v_mul_f32 v{32+r}, v69, v{32+r}")
    k(f"""v_cvt_pk_bf16_f32 v36, v32, v33
          v_cvt_pk_bf16_f32 v37, v34, v35
          buffer_store_dwordx2 v[36:37], v3, s[24:27], s35 offen sc1
          v_dot2_f32_bf16 v42, v36, v36, 0
          v_dot2_f32_bf16 v42, v37, v37, v42""")
    xhalf_add(k, 42, 12); x16_add(k, 42, 12)
    for sh in (1, 2, 4, 8):
        k(f"v_max_f32_dpp v42, v42, v42 row_ror:{sh} row_mask:0xf bank_mask:0xf")
    k("s_branch L_p0_kvf\nL_p0_v:")
    kvloop(True)
    k(f"""ds_read_b128 v[56:59], v75
          ds_read_b128 v[60:63], v75 offset:16
          v_lshlrev_b32 v3, 8, {'v13' if SMF else 'v12'}
          v_lshl_add_u32 v3, v15, 4, v3
          v_lshl_add_u32 v3, {'v12' if SMF else 'v13'}, 3, v3
          s_lshl_b32 s35, s34, 9
          s_add_u32 s35, s35, {VF}
          v_mov_b32 v42, 0
          s_waitcnt lgkmcnt(0)""")
    for r in range(4): k(f"v_fma_f32 v{32+r}, -v{56+2*r}, v{36+r}, v{32+r}")
    for r in range(4): k(f"v_mul_f32 v{32+r}, v{57+2*r}, v{32+r}")
    k(f"""v_cvt_pk_bf16_f32 v36, v32, v33
          v_cvt_pk_bf16_f32 v37, v34, v35
          buffer_store_dwordx2 v[36:37], v3, s[24:27], s35 offen sc1
          L_p0_kvf:
          v_mov_b32 v43, 0""")
    k.stamp(2)
    k("s_barrier")
    k.stamp(3)
    k("s_waitcnt vmcnt(0)")
    k.stamp(5)
    k(f"""s_mov_b64 exec, 1
          buffer_store_dwordx4 v[40:43], v43, s[24:27], s37 offen sc1
          s_mov_b64 exec, -1""")
    if STAMPS: k("s_waitcnt vmcnt(0)")
    k.stamp(4)
    k("s_barrier\n" * 3 + "s_branch L_att")
    k(f"""L_p0_pack:
          s_load_dwordx2 s[48:49], s[0:1], 48
          s_load_dwordx2 s[50:51], s[0:1], 32
          s_load_dwordx2 s[52:53], s[0:1], 72
          s_lshl_b32 s35, s28, 8
          s_add_u32 s35, s35, s2           ; J
          s_lshl_b32 s36, s28, 13
          s_add_u32 s36, s36, {128*1024}
          s_waitcnt lgkmcnt(0)""")
    srd(k, 24, 14, 15, WS_USED)
    if TLBW:
        k(f"""s_load_dwordx4 s[40:43], s[0:1], 56
              s_load_dwordx2 s[44:45], s[0:1], 80
              v_lshlrev_b32 v20, {TLBW}, v1
              buffer_load_dword v21, v20, s[24:27], 0 offen
              s_mov_b32 s18, {688*1024}
              s_mov_b32 s19, 0x00020000""")
        for lo, sz in ((48, 512*2752), (50, 512*1024), (52, 688*1024)):
            k(f"""s_mov_b32 s16, s{lo}
                  s_mov_b32 s17, s{lo+1}
                  s_mov_b32 s18, {sz}
                  buffer_load_dword v21, v20, s[16:19], 0 offen""")
        k("s_waitcnt lgkmcnt(0)")
        for lo, sz in ((40, 2048*4096), (42, 4096), (44, 2048*1024)):
            k(f"""s_mov_b32 s16, s{lo}
                  s_mov_b32 s17, s{lo+1}
                  s_mov_b32 s18, {sz}
                  buffer_load_dword v21, v20, s[16:19], 0 offen""")
    k(f"""s_cmp_lt_u32 s35, 332
          s_cbranch_scc1 L_pk_job""")
    k("L_pk_done:\n" + "s_barrier\n" * 9 + "s_branch L_att")
    k(f"""L_pk_job:
          s_lshl_b32 s62, s35, 7
          s_add_u32 s62, s62, {PFLAG}
          s_mov_b32 s23, 0x00020000
          s_cmp_lt_u32 s35, 172
          s_cbranch_scc1 L_pk_in
          s_movk_i32 s40, 1024
          s_cmp_lt_u32 s35, 236
          s_cbranch_scc1 L_pk_o
          s_sub_u32 s35, s35, 236
          s_mul_i32 s37, s35, 171
          s_lshr_b32 s37, s37, 9
          s_mul_i32 s38, s37, 3
          s_sub_u32 s38, s35, s38
          s_mov_b32 s20, s52
          s_mov_b32 s21, s53
          s_mov_b32 s22, {688*1024}
          s_mul_i32 s39, s37, 24576
          s_add_u32 s39, s39, {WUP}
          s_branch L_pk_d
          L_pk_o:
          s_sub_u32 s35, s35, 172
          s_lshr_b32 s37, s35, 1
          s_and_b32 s38, s35, 1
          s_mov_b32 s20, s50
          s_mov_b32 s21, s51
          s_mov_b32 s22, {512*1024}
          s_lshl_b32 s39, s37, 14
          s_add_u32 s39, s39, {WOP}
          L_pk_d:
          v_lshrrev_b32 v12, 1, v8
          v_lshlrev_b32 v6, 4, v12
          v_and_b32 v12, 1, v8
          v_lshl_add_u32 v6, v12, 2, v6
          s_movk_i32 s41, 256
          s_mov_b32 s42, 0
          s_branch L_pk_go
          L_pk_in:
          s_movk_i32 s40, 2752
          s_lshr_b32 s37, s35, 1
          s_and_b32 s38, s35, 1
          s_mov_b32 s20, s48
          s_mov_b32 s21, s49
          s_mov_b32 s22, {512*2752}
          s_lshl_b32 s39, s37, 14
          s_add_u32 s39, s39, {WPK}
          v_lshlrev_b32 v6, 2, v8
          s_movk_i32 s41, 512
          s_mov_b32 s42, 1
          L_pk_go:
          v_add_u32 v6, v6, v10
          v_lshlrev_b32 v6, 5, v6
          v_lshl_add_u32 v6, v11, 3, v6
          v_add_u32 v108, s36, v6
          v_add_u32 v109, s41, v108
          s_lshl_b32 s43, s38, 13
          s_add_u32 s48, s39, s43           ; dst
          v_lshrrev_b32 v113, 1, v1
          v_mul_lo_u32 v113, v113, s40
          v_and_b32 v12, 1, v1
          v_lshl_add_u32 v113, v12, 4, v113
          s_lshl_b32 s50, s40, 8
          s_mul_i32 s50, s50, s38
          s_lshl_b32 s44, s37, 5
          s_add_u32 s50, s50, s44           ; src
          s_lshl_b32 s51, s40, 5            ; 32 rows
          s_lshl_b32 s49, s37, 6
          s_add_u32 s49, s49, s43
          s_add_u32 s49, s49, {CSUM}
          s_mul_i32 s49, s49, s42
          s_mov_b32 s45, s36
          s_branch L_pk_done""")
    k("L_att:")
    att_ids(); att_init()
    k.stamp(8)
    k("s_waitcnt lgkmcnt(0)\ns_barrier")
    k.stamp(7)
    kvdma(0)
    k(f"""L_att2:
          s_waitcnt vmcnt(0) lgkmcnt(0)
          s_barrier
          ds_read_b128 {vr(Q)}, v102
          ds_read_b128 v[120:123], v103
          ds_read_b128 {vr(KFR)}, v{vK}""")
    kvdma(1)
    k(f"""s_waitcnt lgkmcnt(0)
          v_readfirstlane_b32 s58, v120
          v_readfirstlane_b32 s59, v121
          v_mov_b32 v104, v122
          v_dot2_f32_bf16 v106, v{Q}, v{Q}, 0
          v_dot2_f32_bf16 v106, v{Q+1}, v{Q+1}, v106
          v_dot2_f32_bf16 v106, v{Q+2}, v{Q+2}, v106
          v_dot2_f32_bf16 v106, v{Q+3}, v{Q+3}, v106""")
    xhalf_add(k, 106, 105)
    k(f"""v_mul_f32 v104, v104, v106
          v_cmp_nle_f32 vcc, v104, v107""")
    kvdma(2); kvdma(3)
    k("s_cbranch_vccnz L_k2_slow")
    k.stamp(1)
    if os.environ.get("STP0"): k.stamp = lambda i, real=False: None if i < 13 else Kern.stamp(k, i, real)
    def att_loop(sfx, cop):
        k(f"""L_k2_start{sfx}:
              s_waitcnt lgkmcnt(0)
              v_mfma_f32_32x32x16_bf16 {vr(S[0],16)}, {vr(KFR)}, {vr(Q)}, {cop}
              ds_read_b128 {vr(KFR)}, v{vK} offset:1024
              s_mov_b64 exec, s[40:41]
              ds_read_b128 {vr(VFR[0][0])}, v{vV}
              ds_read_b128 {vr(VFR[0][1])}, v{vV} offset:512
              s_mov_b64 exec, -1
              s_nop 7
              L_k2_loop{sfx}:
              s_bitcmp1_b32 s31, s36
              s_cbranch_scc1 L_k2_ev
              L_k2_body{sfx}:""")
        for u in range(4):
            s = S[u & 1]; sn = S[(u + 1) & 1]; vf = VFR[u & 1]; vn = VFR[(u + 1) & 1]
            k(f"s_setprio {3-u}")
            for i in range(16):
                if i == 3:
                    k(f"""v_smfmac_f32_32x32x32_bf16 {vr(O,16)}, {vr(vn[1])}, {vr(sn+8,8)}, v{P}
                          s_mov_b64 exec, s[40:41]
                          ds_read_b128 {vr(vn[0])}, v{vV} offset:{1024*(u+1)}
                          ds_read_b128 {vr(vn[1])}, v{vV} offset:{1024*(u+1)+512}
                          s_mov_b64 exec, -1""")
                if i == 8:
                    k(f"""s_waitcnt lgkmcnt(2)
                          v_mfma_f32_32x32x16_bf16 {vr(sn,16)}, {vr(KFR)}, {vr(Q)}, {cop}
                          ds_read_b128 {vr(KFR)}, v{vK} offset:{1024*(u+2)}""")
                if i == 13:
                    k(f"v_smfmac_f32_32x32x32_bf16 {vr(O,16)}, {vr(vf[0])}, {vr(s,8)}, v{P}")
                k(f"v_exp_f32 v{s+i}, v{s+i}")
        k(f"""v_add_u32 v{vK}, 4096, v{vK}
              v_add_u32 v{vV}, 4096, v{vV}
              s_add_u32 s36, s36, 1
              s_cmp_lt_u32 s36, {NIT}
              s_cbranch_scc1 L_k2_loop{sfx}""")
    att_loop("", "0")
    k("L_k2_done:")
    if SMF: k(f"v_smfmac_f32_32x32x32_bf16 {vr(O,16)}, {vr(VFR[1][1])}, {vr(S[1]+8,8)}, v{P}")
    else: k(f"v_mfma_f32_32x32x16_bf16 {vr(O,16)}, {vr(VFR[1][1])}, {vr(P+4)}, {vr(O,16)}")
    k("s_setprio 0")
    k.stamp(2)
    k(f"""s_mul_i32 s45, s38, 2304
          s_add_u32 s45, s45, {XL}
          v_add_u32 v103, s45, v2
          v_lshlrev_b32 v104, 2, v1
          v_add_u32 v104, s45, v104
          v_mov_b32 v107, {FASTW}
          s_lshl_b32 s35, s38, 2
          s_add_u32 s35, s35, {FASTW + 128}
          v_mov_b32 v102, s35
          s_cmp_eq_u32 s39, 0
          s_cbranch_scc1 L_k2_give
          s_mov_b32 s60, 0
          L_k2_mw:
          ds_read_b32 v105, v102
          ds_read_b32 v106, v107
          ds_read_b128 {vr(S[0])}, v103
          ds_read_b128 {vr(S[0]+4)}, v103 offset:1024
          ds_read_b32 v{S[0]+8}, v104 offset:2048
          s_lshl_b32 s34, s29, 13
          s_add_u32 s34, s34, {OFLAG}
          s_lshl_b32 s35, s32, 12
          s_add_u32 s34, s34, s35
          s_lshl_b32 s35, s30, 9
          s_add_u32 s34, s34, s35
          s_lshr_b32 s35, s38, 1
          s_lshl_b32 s35, s35, 7
          s_add_u32 s34, s34, s35
          s_add_u32 s33, s46, {OF}
          s_add_u32 s60, s60, 1
          s_waitcnt lgkmcnt(0)
          v_readfirstlane_b32 s63, v106
          v_readfirstlane_b32 s35, v105
          s_cmp_gt_u32 s60, 0x400000
          s_cbranch_scc1 L_k2_mok
          s_cmp_eq_u32 s63, 2
          s_cbranch_scc1 L_k2_mw
          s_cmp_eq_u32 s35, 0
          s_cbranch_scc1 L_k2_mw
          L_k2_mok:""")
    k.stamp(3)
    for r in range(9): k(f"v_add_f32 v{O+r}, v{O+r}, v{S[0]+r}")
    k(f"""v_mov_b32 v104, v{O+8}
          v_permlane32_swap_b32 v{O+8}, v104
          v_rcp_f32 v104, v{O+8}""")
    for r in range(8): k(f"v_mul_f32 v{O+r}, v104, v{O+r}")
    for r in range(4): k(f"v_cvt_pk_bf16_f32 v{P+r}, v{O+2*r}, v{O+2*r+1}")
    hstore(k, f"buffer_store_dwordx4 {vr(P)}, v2, s[24:27], s33 offen")
    k.stamp(4)
    if STAMPS: k("s_waitcnt vmcnt(0)")
    k.stamp(5)
    set_flagN(k, "s34")
    k.stamp(6)
    k("""s_cmp_lt_u32 s28, 12
         s_cbranch_scc1 L_kb_loader
         s_endpgm""")
    k(f"""L_k2_ev:
          s_cmp_ge_u32 s36, 6
          s_cbranch_scc1 L_k2_cnt
          s_cmp_eq_u32 s36, 4
          s_cbranch_scc1 L_k2_st4
          s_cmp_eq_u32 s36, 3
          s_cbranch_scc1 L_k2_st3
          s_cmp_eq_u32 s36, 1
          s_cbranch_scc1 L_k2_st1
          s_setprio 2
          s_branch L_k2_ret
          L_k2_st1:
          s_cmp_eq_u32 s42, 1
          s_cbranch_scc0 L_k2_st1c
          s_waitcnt vmcnt(0)
          s_barrier
          L_k2_st1c:
          s_cmp_eq_u32 s62, 0
          s_cbranch_scc1 L_nopk""")
    for i in range(8):
        k(f"""s_add_u32 m0, s45, {1024*i}
              buffer_load_dwordx4 v113, s[20:23], s50 offen lds
              s_add_u32 s50, s50, s51""")
    k(f"""s_branch L_k2_ret
          L_nopk:
          s_lshr_b32 s34, s28, 2
          s_cmp_eq_u32 s34, 1
          s_cbranch_scc0 L_k2_ret
          s_load_dwordx2 s[52:53], s[0:1], 56
          s_lshr_b32 s61, s2, 3
          s_lshl_b32 s61, s61, 2
          s_add_u32 s61, s61, s3
          v_lshlrev_b32 v108, 7, v1
          s_and_b32 s37, s2, 7
          s_lshl_b32 s37, s37, 20
          s_lshl_b32 s61, s61, 13
          s_add_u32 s37, s37, s61
          s_mov_b32 s54, {2048*4096}
          s_mov_b32 s55, 0x00020000
          s_waitcnt lgkmcnt(0)
          buffer_load_dword v120, v108, s[52:55], s37 offen
          s_cmp_eq_u32 s28, 4
          s_cbranch_scc0 L_k2_ret
          s_lshr_b32 s34, s29, 1
          s_lshl_b32 s34, s34, 7
          s_and_b32 s35, s29, 1
          s_lshl_b32 s35, s35, 3
          s_add_u32 s34, s34, s35
          s_add_u32 s34, s34, s30
          s_lshl_b32 s34, s34, 7
          s_add_u32 s34, s34, {ZSTAT}
          v_mov_b32 v112, -1
          v_mov_b32 v113, -1
          v_mov_b32 v114, -1
          v_mov_b32 v115, -1
          v_lshrrev_b32 v116, 3, v1
          v_lshlrev_b32 v116, 11, v116
          v_and_b32 v117, 7, v1
          v_lshl_add_u32 v116, v117, 4, v116
          buffer_store_dwordx4 v[112:115], v116, s[24:27], s34 offen sc1
          s_branch L_k2_ret
          L_k2_cnt:
          {'s_setprio 0' if PRIO == 3 else ''}
          L_k2_cnt2:
          s_waitcnt lgkmcnt(0)
          s_mov_b64 exec, 1
          ds_add_u32 v118, v119
          s_mov_b64 exec, -1
          v_add_u32 v118, 4, v118
          s_branch L_k2_ret
          L_k2_st4:
          {'s_setprio 1' if PRIO == 3 else ''}
          s_cmp_eq_u32 s62, 0
          s_cbranch_scc1 L_k2_cnt2
          v_mov_b32 v112, s58
          v_mov_b32 v113, s59
          v_mov_b32 v114, 0
          s_waitcnt vmcnt(0)
          s_mov_b64 exec, 1
          buffer_store_dwordx2 v[112:113], v114, s[24:27], s62 offen sc1
          s_mov_b64 exec, -1
          s_branch L_k2_cnt2
          L_k2_st3:
          s_waitcnt vmcnt(0)
          s_cmp_lg_u32 s62, 0
          s_cbranch_scc1 L_k2_pk
          s_and_b32 s34, s29, 1
          s_lshl_b32 s34, s34, 3
          s_add_u32 s34, s34, s30
          s_lshl_b32 s34, s34, 7
          s_add_u32 s34, s34, s63
          s_getreg_b32 s60, hwreg(HW_REG_XCC_ID, 0, 4)
          s_add_u32 s60, s60, s59
          v_mov_b32 v108, s58
          v_mov_b32 v109, s60
          v_mov_b32 v110, 0
          s_mov_b64 exec, 1
          buffer_store_dwordx2 v[108:109], v110, s[24:27], s34 offen sc1
          s_mov_b64 exec, -1
          s_branch L_k2_ret
          L_k2_pk:
          s_mov_b32 s34, 0x3f803f80
          s_add_u32 s35, s48, 4096
          v_mov_b32 v110, 0
          v_mov_b32 v111, 0""")
    for h in range(2):
        for i in range(2):
          for i2 in range(2):
            k(f"""ds_read_b64_tr_b16 v[{120+4*i2}:{121+4*i2}], v108 offset:{1024*(4*h+2*i+i2)}
                  ds_read_b64_tr_b16 v[{122+4*i2}:{123+4*i2}], v109 offset:{1024*(4*h+2*i+i2)}""")
          k("s_waitcnt lgkmcnt(0)")
          for i2 in range(2):
            k(f"buffer_store_dwordx4 {vr(120+4*i2)}, v2, s[24:27], {'s35' if h else 's48'} offen offset:{1024*(2*i+i2)} sc1")
          for i3 in range(8): k(f"v_dot2_f32_bf16 v{110+(i3&1)}, v{120+i3}, s34, v{110+(i3&1)}")
    k("""s_cmp_eq_u32 s49, 0
         s_cbranch_scc1 L_k2_ret
         v_add_f32 v110, v110, v111""")
    xhalf_add(k, 110, 111); x16_add(k, 110, 111)
    k(f"""v_lshlrev_b32 v111, 2, v1
          s_mov_b64 exec, 0xffff
          buffer_store_dword v110, v111, s[24:27], s49 offen sc1
          s_mov_b64 exec, -1
          s_branch L_k2_ret""")
    k("""L_k2_ret:
         s_cmp_eq_u32 s42, 1
         s_cbranch_scc1 L_k2_body
         s_branch L_k2_body_s""")
    k("L_k2_slow:")
    k(f"""s_waitcnt vmcnt(0)
          s_barrier
          s_mov_b32 s42, 99
          v_mov_b32 v104, 0xff800000
          v_mov_b32 v103, v2
          s_mov_b32 s37, 0
          L_k2_mx:
          ds_read_b128 {vr(KFR)}, v103
          s_waitcnt lgkmcnt(0)
          v_mfma_f32_32x32x16_bf16 {vr(S[0],16)}, {vr(KFR)}, {vr(Q)}, 0
          v_add_u32 v103, 1024, v103""")
    for i in range(8):
        k(f"v_max3_f32 v104, v{S[0]+2*i}, v{S[0]+2*i+1}, v104")
    k(f"""s_add_u32 s37, s37, 1
          s_cmp_lt_u32 s37, 64
          s_cbranch_scc1 L_k2_mx
          v_mov_b32 v105, v104
          v_permlane32_swap_b32 v104, v105
          v_max_f32 v104, v104, v105""")
    for i in range(16): k(f"v_sub_f32 v{C+i}, 0, v104")
    k(f"ds_read_b128 {vr(KFR)}, v{vK}")
    att_loop("_s", vr(C, 16))
    k("s_nop 1\ns_branch L_k2_done")
    def waitcnt_lds(off, tag):
        k(f"""v_mov_b32 v108, {CNT + off}
              s_mov_b32 s60, 0
              L_cw_{tag}:
              ds_read_b32 v109, v108
              s_add_u32 s60, s60, 1
              s_waitcnt lgkmcnt(0)
              v_readfirstlane_b32 s34, v109
              s_cmp_gt_u32 s60, 0x400000
              s_cbranch_scc1 L_cwok_{tag}
              s_cmp_ge_u32 s34, 16
              s_cbranch_scc1 L_cwok_{tag}
              s_sleep 2
              s_branch L_cw_{tag}
              L_cwok_{tag}:""")
    k(f"""L_k2_give:
          s_load_dwordx2 s[4:5], s[0:1], 0""")
    if PT:
        k(f"""v_and_b32 v110, 7, v1
              v_lshlrev_b32 v110, 7, v110
              s_mov_b64 exec, 0xff
              s_add_u32 s34, s46, {OF}
              buffer_load_dword v117, v110, s[24:27], s34 offen
              s_lshl_b32 s34, s29, 2
              s_add_u32 s34, s34, s3
              s_lshl_b32 s34, s34, 4
              s_lshl_b32 s35, s30, 1
              s_add_u32 s34, s34, s35
              s_lshr_b32 s35, s28, 2
              s_add_u32 s34, s34, s35
              s_lshl_b32 s35, s34, 10
              s_add_u32 s35, s35, {HF}
              buffer_load_dword v117, v110, s[24:27], s35 offen
              s_mov_b64 exec, 1
              s_lshl_b32 s35, s34, 7
              s_add_u32 s35, s35, {HSTAT}
              buffer_load_dword v117, v110, s[24:27], s35 offen
              s_mov_b64 exec, -1""")
    k(f"""s_cmp_eq_u32 s28, 4
          s_cbranch_scc0 L_kb_nochk
          v_and_b32 v110, 15, v1
          v_lshlrev_b32 v110, 7, v110
          s_mov_b32 s60, 0
          L_xc_b:
          buffer_load_dwordx2 v[108:109], v110, s[24:27], s63 offen sc1
          s_add_u32 s60, s60, 1
          s_waitcnt vmcnt(0)
          v_subrev_u32 v109, s59, v109
          v_xor_b32 v108, s58, v108
          v_lshrrev_b32 v106, 4, v109
          v_or_b32 v108, v108, v106
          v_cmp_ne_u32 vcc, 0, v108
          s_cmp_gt_u32 s60, 0x40000
          s_cbranch_scc1 L_xcok_b
          s_cbranch_vccnz L_xc_b
          L_xcok_b:
          v_readfirstlane_b32 s60, v109
          v_cmp_ne_u32 vcc, s60, v109
          s_cmp_eq_u64 vcc, 0
          s_cselect_b32 s60, {FAST}, 0
          v_mov_b32 v106, s60
          ds_write_b32 v107, v106
          L_kb_nochk:
          s_and_b32 s31, s29, 1
          s_lshl_b32 s31, s31, 3
          s_add_u32 s31, s31, s30
          s_mul_i32 s31, s31, 3
          s_min_u32 s31, s31, 40           ; u0
          s_lshl_b32 s34, s31, 1
          s_lshl_b32 s35, s30, 3
          s_add_u32 s35, s35, 172
          s_mul_i32 s37, s30, 12
          s_add_u32 s37, s37, {236-20}
          s_sub_u32 s34, s34, 8
          v_and_b32 v108, 31, v1
          v_add_u32 v109, s35, v108
          v_add_u32 v110, s34, v108
          v_cmp_lt_u32 vcc, 7, v108
          v_cndmask_b32 v109, v109, v110, vcc
          v_add_u32 v110, {86-6}, v110
          v_cmp_lt_u32 vcc, 13, v108
          v_cndmask_b32 v109, v109, v110, vcc
          v_add_u32 v110, s37, v108
          v_cmp_lt_u32 vcc, 19, v108
          v_cndmask_b32 v109, v109, v110, vcc
          v_lshlrev_b32 v15, 7, v109
          s_mov_b32 s37, {PFLAG}
          s_mov_b32 exec_hi, 0""")
    pollN(k, "s37", "p")
    k(f"""s_lshl_b32 s40, s31, 14
          s_add_u32 s40, s40, {WPK}        ; z1 base
          s_cmp_ge_u32 s28, 4
          s_cbranch_scc1 L_gv_pf
          s_mul_i32 s35, s28, 3072
          s_add_u32 m0, s35, {148*1024}
          s_add_u32 s35, s35, s40""")
    for j in range(3): k(f"buffer_load_dwordx4 v2, s[24:27], s35 offen offset:{1024*j} lds")
    k(f"""s_mul_i32 s35, s28, 12288
          s_add_u32 s35, s35, s40
          s_add_u32 s35, s35, {43*16384}
          v_lshlrev_b32 v108, 7, v1
          buffer_load_dword v117, v108, s[24:27], s35 offen
          v_and_b32 v109, 31, v1
          v_lshlrev_b32 v109, 7, v109
          s_add_u32 s35, s35, 8192
          buffer_load_dword v117, v109, s[24:27], s35 offen
          s_mul_i32 s35, s28, 9216
          s_add_u32 s35, s35, s40
          s_add_u32 s35, s35, 12288
          buffer_load_dword v117, v108, s[24:27], s35 offen
          v_and_b32 v109, 7, v1
          v_lshlrev_b32 v109, 7, v109
          s_add_u32 s35, s35, 8192
          buffer_load_dword v117, v109, s[24:27], s35 offen""")
    k(f"""s_branch L_gv_c6
          L_gv_pf:
          s_lshr_b32 s35, s2, 3
          s_lshl_b32 s35, s35, 2
          s_add_u32 s35, s35, s3
          s_mul_i32 s35, s35, 6144
          s_add_u32 s35, s35, {WUP}
          v_min_u32 v108, 47, v1
          v_lshlrev_b32 v108, 7, v108
          buffer_load_dword v117, v108, s[24:27], s35 offen
          L_gv_c6:""")
    waitcnt_lds(0, "6")
    k(f"""ds_write_b128 v103, {vr(O)}
          ds_write_b128 v103, {vr(O+4)} offset:1024
          ds_write_b32 v104, v{O+8} offset:2048
          ds_write_b32 v102, v119
          s_lshl_b32 s35, s30, 16
          s_lshl_b32 s37, s28, 13
          s_add_u32 s35, s35, s37
          s_add_u32 s35, s35, {WOP}
          s_lshr_b32 s37, s28, 1
          s_lshl_b32 s37, s37, 15
          s_lshl_b32 s41, s32, 13
          s_add_u32 s41, s41, s37
          s_mov_b32 m0, s41""")
    for j in range(4): k(f"buffer_load_dwordx4 v2, s[24:27], s35 offen offset:{1024*j} lds")
    k("s_add_u32 m0, s41, 4096\ns_add_u32 s35, s35, 4096")
    for j in range(4): k(f"buffer_load_dwordx4 v2, s[24:27], s35 offen offset:{1024*j} lds")
    lane_fields(k)
    if P1:
        waitcnt_lds(4, "7")
        k(f"""s_lshl_b32 s35, s28, 12
              s_add_u32 s35, s35, s40
              s_add_u32 s35, s35, {43*16384}
              s_lshl_b32 s41, s32, 12
              s_add_u32 s41, s41, s37
              s_add_u32 m0, s41, 16384""")
        for j in range(4): k(f"buffer_load_dwordx4 v2, s[24:27], s35 offen offset:{1024*j} lds")
    k(f"""s_lshl_b32 s33, s29, 13
          s_add_u32 s33, s33, {OFLAG}
          s_and_b32 s35, s28, 2
          s_lshl_b32 s35, s35, 11
          s_add_u32 s33, s33, s35
          s_and_b32 s35, s28, 4
          s_lshl_b32 s35, s35, 9
          s_add_u32 s33, s33, s35""")
    k(f"""s_lshr_b32 s61, s28, 2           ; kh
          s_lshl_b32 s36, s29, 2
          s_add_u32 s36, s36, s3           ; rb16
          s_lshl_b32 s37, s30, 1
          s_add_u32 s37, s37, s61
          v_and_b32 v14, 15, v1
          v_lshlrev_b32 v3, 10, v14
          v_lshl_add_u32 v3, v8, 3, v3
          s_lshl_b32 s44, s36, 14
          s_lshl_b32 s45, s37, 6
          s_add_u32 s44, s44, s45""")
    srd(k, 16, 4, 5, 2048 * 1024)
    k("""buffer_load_dwordx2 v[96:97], v3, s[16:19], s44 offen
         buffer_load_dwordx2 v[98:99], v3, s[16:19], s44 offen offset:32
         s_lshl_b32 s45, s61, 13
         v_add_u32 v4, s45, v2
         v_add_u32 v5, 65536, v4""")
    act32_voff(k, 3, "s32")
    k(f"""s_lshr_b32 s46, s36, 1
          s_lshl_b32 s46, s46, 15
          s_lshl_b32 s47, s61, 14
          s_add_u32 s46, s46, s47
          s_add_u32 s46, s46, {OF}""")
    for r in range(16): k(f"v_mov_b32 v{16+r}, 0")
    woff = lambda s, u: (4 + (u >> 1), (u & 1) * 32768 + s * 1024)
    k.stamp(3)
    k(f"""s_mov_b32 s60, 0
          L_gv_fw:
          ds_read_b32 v106, v107
          s_add_u32 s60, s60, 1
          s_waitcnt lgkmcnt(0)
          v_readfirstlane_b32 s63, v106
          s_cmp_gt_u32 s60, 0x400000
          s_cbranch_scc1 L_gv_fok
          s_cmp_eq_u32 s63, 2
          s_cbranch_scc1 L_gv_fw
          L_gv_fok:
          s_waitcnt vmcnt(0)
          s_barrier""")
    gemm64_reads(k, 0, woff)
    pollN(k, "s33", "o", 16)
    k.stamp(4)
    for s in range(8):
        if s % 2 == 0: k(f"s_add_u32 s47, s46, {s*2048}")
        k(f"buffer_load_dwordx4 {vr(64+4*s)}, v3, s[24:27], s47 offen offset:{2048*(s&1)} {LSC}")
    if OLB: k("s_barrier")
    gemm64(k, 8, woff, 64)
    k.stamp(5)
    k("s_barrier")
    ksplit_exchange(k, 0, "s28", tag="b")
    k(f"""v_lshlrev_b32 v40, 16, v96
          v_and_b32 v41, 0xffff0000, v96
          v_lshlrev_b32 v42, 16, v97
          v_and_b32 v43, 0xffff0000, v97
          v_lshlrev_b32 v44, 16, v98
          v_and_b32 v45, 0xffff0000, v98
          v_lshlrev_b32 v46, 16, v99
          v_and_b32 v47, 0xffff0000, v99
          s_lshl_b32 s47, s36, 4
          s_add_u32 s47, s47, s37
          s_lshl_b32 s46, s47, 7
          s_add_u32 s33, s46, {HFLAG}
          s_add_u32 s46, s46, {HSTAT}
          s_lshl_b32 s47, s47, 10
          s_add_u32 s47, s47, {HF}""")
    for i in range(8): k(f"v_add_f32 v{16+i}, v{16+i}, v{40+i}")
    k("s_waitcnt lgkmcnt(0)")
    for i in range(8): k(f"v_add_f32 v{16+i}, v{16+i}, v{32+i}")
    for i in range(4): k(f"v_cvt_pk_bf16_f32 v{48+i}, v{16+2*i}, v{17+2*i}")
    hstore(k, "buffer_store_dwordx4 v[48:51], v2, s[24:27], s47 offen")
    k("""v_mov_b32 v54, 0x3f803f80
         v_dot2_f32_bf16 v52, v48, v54, 0
         v_dot2_f32_bf16 v53, v48, v48, 0""")
    for i in range(1, 4):
        k(f"""v_dot2_f32_bf16 v52, v{48+i}, v54, v52
              v_dot2_f32_bf16 v53, v{48+i}, v{48+i}, v53""")
    xhalf_add(k, 52, 12); xhalf_add(k, 53, 13)
    x16_add(k, 52, 12); x16_add(k, 53, 13)
    k("""v_lshlrev_b32 v12, 3, v14
         s_mov_b64 exec, 0xffff""")
    hstore(k, "buffer_store_dwordx2 v[52:53], v12, s[24:27], s46 offen")
    k(f"""s_mov_b64 exec, -1
          s_and_b32 s31, s29, 1
          s_lshl_b32 s31, s31, 3
          s_add_u32 s30, s30, s31          ; g
          s_lshr_b32 s29, s29, 1           ; rb128
          s_mul_i32 s31, s30, 3
          s_min_u32 s31, s31, 40           ; u0
          s_lshl_b32 s36, s29, 3
          s_add_u32 s36, s36, s28
          s_lshl_b32 s62, s36, 11
          s_add_u32 s62, s62, {HFLAG}
          s_lshl_b32 s47, s36, 11
          s_add_u32 s47, s47, {ZSTAT}""")
    ACC, WF, H = 16, 40, 64
    k(f"""v_mov_b32 v4, v2
          v_add_u32 v5, 65536, v4
          v_add_u32 v6, 131072, v4
          v_lshlrev_b32 v7, 3, v14
          v_lshl_add_u32 v7, v8, 9, v7      ; n*8 + g*512""")
    set_flagN(k, "s33")
    k.stamp(6)
    if OLB: k("s_barrier")
    k(f"""s_cmp_eq_u32 s30, 15
          s_cbranch_scc0 L_k4_work
          v_mov_b32 v16, 0
          v_mov_b32 v17, 0
          v_lshlrev_b32 v12, 3, v14
          s_add_u32 s47, s47, {15*128}
          buffer_store_dwordx2 v[16:17], v12, s[24:27], s47 offen sc1
          s_barrier
          s_branch L_z_done
          L_k4_work:""")
    def WA(i):
        if i < 32: return (i >> 3) * 32768 + 16384 + (i & 7) * 1024
        if i < 48: return ((i - 32) >> 2) * 32768 + 24576 + (i & 3) * 1024
        if i < 60: return 148 * 1024 + (i - 48) * 1024
        l, j = divmod(i - 60, 9)
        return l * 32768 + 28672 + j * 1024 if j < 4 else 128 * 1024 + (5 * l + j - 4) * 1024
    def wreads(s, half):
        for u in range(3):
            a_ = WA((3*half + u) * 16 + s); f = WF + 12*half + 4*u
            k(f"ds_read_b128 {vr(f)}, v{4 + (a_ >> 16)} offset:{a_ & 0xffff}")
    for r in range(24): k(f"v_mov_b32 v{ACC+r}, 0")
    wreads(0, 0)
    k(f"""s_lshl_b32 s46, s36, 14
          s_add_u32 s46, s46, {HF}
          s_lshl_b32 s45, s36, 11
          s_add_u32 s45, s45, {HSTAT}
          """)
    pollN(k, "s62", "h", 16)
    k.stamp(7)
    q = VQ(k); hl = []
    for s in range(16):
        def f(s=s):
            if s % 4 == 0: k(f"s_add_u32 s44, s46, {s*1024}")
            k(f"buffer_load_dwordx4 {vr(H+4*s)}, v2, s[24:27], s44 offen offset:{1024*(s&3)} {LSC}")
        hl.append(f)
    for s in range(HW): q.issue(f"h{s}", 1, hl[s])
    def sl():
        for i in range(4):
            k(f"buffer_load_dwordx2 v[{8+2*i}:{9+2*i}], v7, s[24:27], s45 offen offset:{128*i} {LSC}")
    CS2, CS1, MR = 64, 72, 96
    for s in range(16):
        if WPR == 1: k(f"s_setprio {3 - (s & 3)}")
        if WPR == 2 and s % 4 == 0: k(f"s_setprio {3 - s // 4}")
        wreads(s, 1)
        q.wait(f"h{s}", extra=" lgkmcnt(3)")
        for u in range(3):
            k(f"v_mfma_f32_16x16x32_bf16 {vr(ACC+4*u)}, {vr(H+4*s)}, {vr(WF+4*u)}, {vr(ACC+4*u)}")
        if s + HW < 16: q.issue(f"h{s+HW}", 1, hl[s+HW])
        if s == 7: q.issue("st", 4, sl)
        if s < 15:
            wreads(s + 1, 0); k("s_waitcnt lgkmcnt(3)")
        else:
            k("s_waitcnt lgkmcnt(0)")
        for u in range(3):
            k(f"v_mfma_f32_16x16x32_bf16 {vr(ACC+12+4*u)}, {vr(WF+12+4*u)}, {vr(H+4*s)}, {vr(ACC+12+4*u)}")
        if s == 6:
            k.stamp(8)
        if s == 8:
            def cs():
                k(f"""v_and_b32 v3, 15, v1
                      v_lshlrev_b32 v3, 2, v3
                      s_lshl_b32 s38, s31, 6
                      s_add_u32 s38, s38, {CSUM}
                      s_add_u32 s39, s38, {688*4}""")
                for p in range(2):
                    for u in range(3):
                        k(f"buffer_load_dword v{CS2+3*p+u}, v3, s[24:27], s39 offen offset:{64*u}")
                    k("s_add_u32 s39, s39, 8192")
                k("v_lshrrev_b32 v3, 4, v1\nv_lshlrev_b32 v3, 4, v3")
                for p in range(2):
                    for u in range(3):
                        k(f"buffer_load_dwordx4 {vr(CS1+12*p+4*u)}, v3, s[24:27], s38 offen offset:{64*u}")
                    k("s_add_u32 s38, s38, 8192")
            q.issue("cs", 12, cs)
        if s == 12:
            q.wait("st")
            k("""v_add_f32 v8, v8, v10
                 v_add_f32 v9, v9, v11
                 v_add_f32 v12, v12, v14
                 v_add_f32 v13, v13, v15
                 v_add_f32 v8, v8, v12
                 v_add_f32 v9, v9, v13""")
            xhalf_add(k, 8, 12); xhalf_add(k, 9, 13)
        if s == 13:
            x16_add(k, 8, 12); x16_add(k, 9, 13)
            ln_stats(k, 8, 9, 512, 12)
        if s == 15:
            for r in range(4):
                k(f"""v_add_u32 v12, {4*r}, v3
                      ds_bpermute_b32 v{MR+r}, v12, v8
                      ds_bpermute_b32 v{MR+4+r}, v12, v9""")
    k.stamp(9)
    k("s_setprio 0\ns_barrier")
    T = 40; z2r = [ACC + i for i in range(12)]; z1r = [ACC + 12 + i for i in range(12)]
    k(f"""v_mov_b32 v15, {f32(GC2)}
          v_and_b32 v14, 15, v1
          s_waitcnt vmcnt(0)""")
    for u in range(3): k(f"v_add_f32 v{CS2+u}, v{CS2+u}, v{CS2+3+u}")
    k("s_waitcnt lgkmcnt(0)")
    for i, a in enumerate(z2r): k(f"v_fma_f32 v{a}, -v{MR+i%4}, v{CS2+i//4}, v{a}")
    for i, a in enumerate(z2r): k(f"v_mul_f32 v{a}, v{MR+4+i%4}, v{a}")
    for i, a in enumerate(z2r): k(f"v_mul_f32 v{T+i}, v{a}, v{a}")
    for i, a in enumerate(z2r): k(f"v_fmaak_f32 v{T+i}, v15, v{T+i}, {f32(GC1)}")
    for i, a in enumerate(z2r): k(f"v_mul_f32 v{T+i}, v{T+i}, v{a}")
    for i, a in enumerate(z2r): k(f"v_exp_f32 v{T+i}, v{T+i}")
    for i, a in enumerate(z2r): k(f"v_add_f32 v{T+i}, 1.0, v{T+i}")
    for i, a in enumerate(z2r): k(f"v_rcp_f32 v{T+i}, v{T+i}")
    for i, a in enumerate(z2r): k(f"v_mul_f32 v{a}, v{a}, v{T+i}")
    SQ = 52
    for r in range(4):
        k(f"v_mov_b32 v{SQ+2*r}, v{ACC+8+r}\nv_mul_f32 v{SQ+2*r+1}, v{ACC+8+r}, v{ACC+8+r}")
    k("""s_cmp_eq_u32 s30, 14
         s_cbranch_scc1 L_k4_red""")
    for u in range(2):
        for r in range(4):
            a = ACC + 4*u + r
            k(f"v_add_f32 v{SQ+2*r}, v{SQ+2*r}, v{a}\nv_fmac_f32 v{SQ+2*r+1}, v{a}, v{a}")
    k("s_nop 0\nL_k4_red:")
    for i in range(4): k(f"v_add_f32_dpp v{SQ+i}, v{SQ+i}, v{SQ+i} row_ror:8 row_mask:0xf bank_mask:0x3")
    for i in range(4): k(f"v_add_f32_dpp v{SQ+i}, v{SQ+4+i}, v{SQ+4+i} row_ror:8 row_mask:0xf bank_mask:0xc")
    for m_ in ("row_half_mirror", "quad_perm:[1,0,3,2]", "quad_perm:[2,3,0,1]"):
        for i in range(4): k(f"v_add_f32_dpp v{SQ+i}, v{SQ+i}, v{SQ+i} {m_} row_mask:0xf bank_mask:0xf")
    k(f"""s_mov_b32 s49, -2
          s_lshl_b32 s48, s30, 7
          s_add_u32 s48, s48, s47
          v_lshlrev_b32 v12, 1, v1           ; (l>>3)*16 for lanes l%8==0""")
    for j in range(4): k(f"v_min_u32 v{SQ+j}, s49, v{SQ+j}")
    k(f"""s_mov_b32 s50, 0x01010101
          s_mov_b32 s51, 0x01010101
          s_mov_b64 exec, s[50:51]""")
    hstore(k, f"buffer_store_dwordx4 {vr(SQ)}, v12, s[24:27], s48 offen")
    k("s_mov_b64 exec, -1")
    k.stamp(10)
    k(f"""v_mul_f32 v10, {f32(GC1)}, v9
          v_mul_f32 v11, v9, v9
          v_mul_f32 v11, v11, v9
          v_mul_f32 v11, {f32(GC2)}, v11
          v_rcp_f32 v13, v9""")
    for i in range(12): k(f"v_add_f32 v{CS1+i}, v{CS1+i}, v{CS1+12+i}")
    for i, a in enumerate(z1r): k(f"v_fma_f32 v{a}, -v8, v{CS1+i}, v{a}")
    for i, a in enumerate(z1r): k(f"v_mul_f32 v{T+i}, v{a}, v{a}")
    for i, a in enumerate(z1r): k(f"v_fma_f32 v{T+i}, v{T+i}, v11, v10")
    for i, a in enumerate(z1r): k(f"v_mul_f32 v{T+i}, v{T+i}, v{a}")
    for i, a in enumerate(z1r): k(f"v_exp_f32 v{T+i}, v{T+i}")
    for i, a in enumerate(z1r): k(f"v_fma_f32 v{T+i}, v{T+i}, v13, v13")
    for i, a in enumerate(z1r): k(f"v_rcp_f32 v{T+i}, v{T+i}")
    for i, a in enumerate(z1r): k(f"v_mul_f32 v{a}, v{a}, v{T+i}")
    k(f"""v_lshrrev_b32 v10, 4, v1           ; g
          v_and_b32 v11, 1, v10
          v_lshrrev_b32 v10, 1, v10
          v_lshlrev_b32 v12, 9, v11
          v_lshl_add_u32 v12, v14, 4, v12
          v_lshl_add_u32 v12, v10, 3, v12
          v_lshlrev_b32 v6, 9, v10
          v_lshl_add_u32 v6, v14, 4, v6
          v_lshl_add_u32 v6, v11, 3, v6
          s_lshr_b32 s44, s36, 1
          s_mul_i32 s44, s44, 44
          s_add_u32 s44, s44, s31
          s_lshl_b32 s44, s44, 10
          s_and_b32 s45, s36, 1
          s_lshl_b32 s45, s45, 8
          s_add_u32 s44, s44, s45
          s_add_u32 s44, s44, {Z1}
          s_mov_b32 s54, 0""")
    def zpoll():
        for i in range(4):
            k(f"buffer_load_dwordx2 v[{72+2*i}:{73+2*i}], v7, s[24:27], s47 offen offset:{128*i} sc1")
    zpoll()
    for u in range(3):
        a = ACC + 12 + 4*u; p = 64 + 2*u
        k(f"""v_cvt_pk_bf16_f32 v{p}, v{a}, v{a+1}
              v_cvt_pk_bf16_f32 v{p+1}, v{a+2}, v{a+3}
              buffer_store_dwordx2 v[{p}:{p+1}], v12, s[24:27], s44 offen offset:{1024*u} {ZSC}""")
    k("s_waitcnt vmcnt(3)\ns_branch L_k4_chk\nL_k4_poll:")
    zpoll()
    k(f"""s_waitcnt vmcnt(0)
          L_k4_chk:
          v_max3_u32 v12, v72, v73, v74
          v_max3_u32 v13, v75, v76, v77
          v_max3_u32 v12, v12, v78, v79
          v_max_u32 v12, v12, v13
          v_cmp_eq_u32 vcc, -1, v12
          s_add_u32 s54, s54, 1
          s_cmp_gt_u32 s54, 0x40000
          s_cbranch_scc1 L_k4_go
          s_cbranch_vccz L_k4_go
          s_sleep {SLEEP}
          s_branch L_k4_poll
          L_k4_go:""")
    k.stamp(11)
    k("""v_add_f32 v72, v72, v74
         v_add_f32 v73, v73, v75
         v_add_f32 v76, v76, v78
         v_add_f32 v77, v77, v79
         v_add_f32 v72, v72, v76
         v_add_f32 v73, v73, v77""")
    xhalf_add(k, 72, 12); xhalf_add(k, 73, 13)
    x16_add(k, 72, 12); x16_add(k, 73, 13)
    ln_stats(k, 72, 73, 688, 12)
    k("v_mul_f32 v72, -v72, v73")
    for r in range(4):
        k(f"""v_add_u32 v12, {4*r}, v3
              ds_bpermute_b32 v{MR+r}, v12, v72
              ds_bpermute_b32 v{MR+4+r}, v12, v73""")
    k(f"""s_lshl_b32 s45, s36, 10
          s_add_u32 s45, s45, {Z2F}
          s_waitcnt lgkmcnt(0)""")
    for i, a in enumerate(z2r): k(f"v_fma_f32 v{a}, v{a}, v{MR+4+i%4}, v{MR+i%4}")
    for u in range(3):
        a = ACC + 4*u; p = 80 + 2*u
        k(f"""s_add_u32 s44, s31, {u}
              s_lshr_b32 s46, s44, 1
              s_lshl_b32 s46, s46, 17
              s_and_b32 s44, s44, 1
              s_lshl_b32 s44, s44, 8
              s_add_u32 s44, s44, s46
              s_add_u32 s44, s44, s45
              v_cvt_pk_bf16_f32 v{p}, v{a}, v{a+1}
              v_cvt_pk_bf16_f32 v{p+1}, v{a+2}, v{a+3}
              buffer_store_dwordx2 v[{p}:{p+1}], v6, s[24:27], s44 offen {ZSC}""")
    k("L_z_done:")
    AD, NS, WOL = 3, 6, 65536
    ORD = [((p & 14) << 1) + (p & 1) + ((p >> 4) << 1) for p in range(32)] if PROG else list(range(32))
    ACC, BF, A = 16, 48, 80
    k(f"""s_load_dwordx2 s[6:7], s[0:1], 64
          s_load_dwordx2 s[10:11], s[0:1], 80
          s_mul_i32 s34, s57, 3
          s_min_u32 s34, s34, 19
          s_add_u32 s34, s34, s28
          s_lshl_b32 s62, s56, 12
          s_add_u32 s62, s62, {YFLAG}
          s_lshl_b32 s52, s34, 7
          s_add_u32 s52, s52, s62
          s_mul_i32 s53, s61, {11*128}
          s_add_u32 s62, s62, s53
          s_lshl_b32 s40, s34, 17
          s_add_u32 s41, s40, {Z2F}
          s_mov_b32 s40, s41
          s_mov_b32 s45, 0
          s_mul_i32 s39, s56, 88
          s_lshl_b32 s42, s34, 1
          s_add_u32 s39, s39, s42
          s_lshl_b32 s39, s39, 10
          v_and_b32 v15, 31, v1
          v_lshlrev_b32 v12, 1, v15
          s_lshl_b32 s43, s56, 7
          s_waitcnt vmcnt(0) lgkmcnt(0)
          s_barrier""")
    k.stamp(12)
    k(f"""s_cmp_lt_u32 s28, 3
          s_cbranch_scc1 L_k5_comp
          s_cmp_eq_u32 s28, 3
          s_cbranch_scc0 L_k5_idle
          s_lshl_b32 s44, s29, 4
          s_add_u32 s44, s44, s30
          s_lshl_b32 s44, s44, 7
          s_add_u32 s44, s44, {XIDC}""")
    set_flagN(k, "s44", drain=False, fast=False)
    k(f"""s_lshl_b32 s44, s57, 1
          s_min_u32 s44, s44, 12
          s_lshl_b32 s44, s44, 7
          s_add_u32 s44, s44, {XIDC}
          v_and_b32 v15, 7, v1
          v_lshlrev_b32 v15, 12, v15
          v_lshrrev_b32 v12, 3, v1
          v_min_u32 v12, 2, v12
          v_lshl_add_u32 v15, v12, 7, v15""")
    pollN(k, "s44", "z", sl=ZSL, pre=ZPRE)
    k("s_barrier\n" * (6 if PROG else 0) + "s_add_u32 s44, s44, 2048")
    pollN(k, "s44", "z2")
    k(f"""s_mov_b32 s55, {6 if PROG else 0}
          s_branch L_k5_ib
          L_k5_idle:""")
    if PT:
        k(f"""s_cmp_eq_u32 s28, 4
              s_cbranch_scc0 L_k5_i2
              s_sub_u32 s44, s39, 8192
              s_add_u32 s44, s44, {YF}
              s_add_u32 s45, s44, {44*1024}
              v_min_u32 v12, 47, v1
              v_lshlrev_b32 v12, 7, v12
              buffer_load_dword v127, v12, s[24:27], s44 offen
              buffer_load_dword v127, v12, s[24:27], s45 offen
              L_k5_i2:""")
    k(f"""s_mov_b32 s55, 0
          L_k5_ib:
          s_barrier
          s_add_u32 s55, s55, 1
          s_cmp_lt_u32 s55, 17
          s_cbranch_scc1 L_k5_ib
          s_branch L_k6""")
    k("L_k5_comp:")
    srd(k, 20, 6, 7, 4096)
    k(f"""buffer_load_ushort v8, v12, s[20:23], s43 offen
          buffer_load_ushort v9, v12, s[20:23], s43 offen offset:64
          v_lshrrev_b32 v13, 1, v15
          v_and_b32 v13, 7, v13
          v_lshlrev_b32 v12, 7, v15
          v_lshrrev_b32 v10, 5, v1""")
    for qq in range(4):
        k(f"""v_add_u32 v14, {2*qq}, v10
              v_xor_b32 v14, v14, v13
              v_lshl_add_u32 v{4+qq}, v14, 4, v12""")
    k(f"""s_cmp_eq_u32 s34, 21
          s_cselect_b32 s44, {0x3ff & ~256}, -1
          v_and_b32 v3, s44, v2
          s_mov_b32 s55, 0
          s_mov_b32 s54, 24576
          s_waitcnt vmcnt(0)
          v_lshlrev_b32 v8, 16, v8
          v_lshlrev_b32 v9, 16, v9""")
    for r in range(16): k(f"v_mov_b32 v{ACC+r}, v8\nv_mov_b32 v{ACC+16+r}, v9")
    k("s_barrier")
    k.stamp(13 if False else 8)
    for i in range(AD):
        for j in range(4):
            k(f"buffer_load_dwordx4 {vr(A+16*i+4*j)}, v3, s[24:27], s40 offen offset:{1024*j}")
        k(f"s_add_u32 s40, s40, {(ORD[i+1]-ORD[i])*4096}")
    k(f"s_add_u32 s41, s41, 8192\ns_add_u32 s45, s39, {Z1}")
    def breads(half, slotoff):
        for j in range(2):
            for th in range(2):
                k(f"ds_read_b128 {vr(BF+16*half+8*j+4*th)}, v{4+2*half+j} offset:{slotoff+4096*th}")
    def mf(half, slot, ld):
        for j in range(2):
            for th in range(2):
                k(f"v_mfma_f32_32x32x16_bf16 {vr(ACC+16*th,16)}, {vr(A+16*slot+8*half+4*j)}, {vr(BF+16*half+8*j+4*th)}, {vr(ACC+16*th,16)}")
            if ld: ld(2*half + j)
    def ald(slot): return lambda jj: k(f"buffer_load_dwordx4 {vr(A+16*slot+4*jj)}, v3, s[24:27], s40 offen offset:{1024*jj}")
    k("s_barrier")
    breads(0, 0)
    k("L_k5_loop:")
    for i in range(6):
        sl = i % AD
        breads(1, i * 8192)
        k(f"s_waitcnt vmcnt({4*AD-2}) lgkmcnt(4)")
        mf(0, sl, ald(sl))
        if i & 1:
            k(f"s_waitcnt vmcnt({4*AD-2}) lgkmcnt(0)\ns_barrier")
            breads(0, ((i + 1) % 6) * 8192)
        else:
            breads(0, (i + 1) * 8192)
            k(f"s_waitcnt vmcnt({4*AD-2}) lgkmcnt(4)")
        mf(1, sl, ald(sl))
        k(f"s_add_u32 s40, s40, {12288 if i % 2 == 0 else 4096}" if PROG else "s_add_u32 s40, s40, 4096")
        if i == 0 and PROG:
            k(f"""s_cmp_eq_u32 s55, 2
                  s_cselect_b32 s40, s41, s40""")
        if i == 4:
            k(f"""s_add_u32 s55, s55, 1
                  s_cmp_eq_u32 s55, 5
                  s_cselect_b32 s40, s45, s40
                  s_cselect_b32 s44, -1, 0
                  v_and_or_b32 v3, s44, v2, v3""")
    k("""s_cmp_lt_u32 s55, 5
         s_cbranch_scc1 L_k5_loop""")
    k(f"s_add_u32 s43, s39, {Z1 + 44*1024}")
    breads(1, 0)
    k("s_waitcnt vmcnt(10) lgkmcnt(4)")
    mf(0, 0, lambda jj: k(f"buffer_load_dwordx4 {vr(A+4*jj)}, v2, s[24:27], s43 offen offset:{1024*jj}"))
    breads(0, 8192)
    k("s_waitcnt vmcnt(10) lgkmcnt(4)")
    mf(1, 0, None)
    breads(1, 8192)
    k("s_waitcnt vmcnt(8) lgkmcnt(4)")
    mf(0, 1, None)
    k("s_waitcnt vmcnt(6) lgkmcnt(0)")
    mf(1, 1, None)
    k.stamp(9)
    Zs = [A + 32 + i for i in range(8)] + [A + i for i in range(8)]
    k(f"""s_add_u32 s42, s39, {YF}
          s_add_u32 s43, s42, {44*1024}
          s_waitcnt vmcnt(0)""")
    for i in range(16):
        k(f"""v_lshlrev_b32 v{48+2*i}, 16, v{Zs[i]}
              v_and_b32 v{49+2*i}, 0xffff0000, v{Zs[i]}""")
    for i in range(32): k(f"v_mul_f32 v{ACC+i}, v{ACC+i}, v{48+i}")
    for i in range(16): k(f"v_cvt_pk_bf16_f32 v{A+i}, v{ACC+2*i}, v{ACC+2*i+1}")
    hstore(k, [f"buffer_store_dwordx4 {vr(A+8*th+4*f)}, v2, s[24:27], {'s43' if th else 's42'} offen offset:{1024*f}" for th in range(2) for f in range(2)])
    set_flagN(k, "s52")
    k.stamp(10)
    k("L_k6:")
    lane_fields(k)
    k(f"""s_lshl_b32 s36, s56, 2
          s_add_u32 s36, s36, s3           ; rb16
          s_lshl_b32 s37, s57, 1
          s_add_u32 s37, s37, s61
          s_lshl_b32 s47, s36, 4
          s_add_u32 s47, s47, s37
          s_lshl_b32 s47, s47, 10
          s_add_u32 s47, s47, {HF}
          buffer_load_dwordx4 v[112:115], v2, s[24:27], s47 offen
          s_mul_i32 s45, s61, {11*1024}
          s_add_u32 s45, s45, {WOL}
          v_add_u32 v4, s45, v2
          v_add_u32 v5, {2*22528}, v4""")
    act32_voff(k, 3, "s32")
    k(f"""s_lshr_b32 s46, s36, 1
          s_mul_i32 s46, s46, {44*1024}
          s_mul_i32 s47, s61, {22*1024}
          s_add_u32 s46, s46, s47
          s_add_u32 s46, s46, {YF}
          s_cmp_eq_u32 s61, 0
          s_cselect_b32 s49, -1, 0""")
    srd(k, 16, 10, 11, 2048 * 1024)
    for r in range(16): k(f"v_mov_b32 v{16+r}, 0")
    for r in range(4): k(f"v_mov_b32 v{64+40+r}, 0")
    woff = lambda s, u: (4 + (u >> 1), (u & 1) * 22528 + s * 1024)
    if WOT != 'tail': gemm64_reads(k, 0, woff)
    pollN(k, "s62", "y", 11)
    k.stamp(11)
    for s in range(11):
        if s % 2 == 0: k(f"s_add_u32 s47, s46, {s*2048}")
        if s == 10: k("s_mov_b32 exec_hi, s49")
        k(f"buffer_load_dwordx4 {vr(64+4*s)}, v3, s[24:27], s47 offen offset:{2048*(s&1)}")
    k("s_mov_b32 exec_hi, -1")
    if WOT == 'tail':
        k("s_barrier")
        gemm64_reads(k, 0, woff)
    gemm64(k, 11, woff, 64)
    ksplit_exchange(k, 49152, "s28", tag="c")
    for i in range(4):
        k(f"""v_lshlrev_b32 v{40+2*i}, 16, v{112+i}
              v_and_b32 v{41+2*i}, 0xffff0000, v{112+i}""")
    for i in range(8): k(f"v_add_f32 v{16+i}, v{16+i}, v{40+i}")
    k(f"""v_and_b32 v12, 15, v1
          v_lshlrev_b32 v12, 10, v12
          v_and_b32 v13, 1, v8
          v_lshl_add_u32 v12, v13, 5, v12
          v_lshl_add_u32 v12, v9, 4, v12
          s_lshl_b32 s46, s36, 14
          s_lshl_b32 s47, s37, 6
          s_add_u32 s46, s46, s47
          s_waitcnt lgkmcnt(0)""")
    for i in range(8): k(f"v_add_f32 v{16+i}, v{16+i}, v{32+i}")
    for i in range(4): k(f"v_cvt_pk_bf16_f32 v{48+i}, v{16+2*i}, v{17+2*i}")
    k("""v_permlane16_swap_b32 v48, v50
         v_permlane16_swap_b32 v49, v51
         buffer_store_dwordx4 v[48:51], v12, s[16:19], s46 offen
         s_endpgm""")
    k(f"""L_kb_loader:
          s_and_b32 s31, s29, 1
          s_lshl_b32 s31, s31, 3
          s_add_u32 s30, s30, s31          ; g
          s_mul_i32 s31, s30, 3
          s_min_u32 s31, s31, 40           ; u0
          s_lshl_b32 s40, s31, 14
          s_lshl_b32 s38, s3, 12
          s_add_u32 s41, s40, s38
          s_add_u32 s41, s41, {WPK + 43*16384 + 32768}
          s_mul_i32 s38, s3, 9216
          s_add_u32 s40, s40, s38
          s_add_u32 s40, s40, {WPK + 12*1024}
          s_lshl_b32 s42, s3, 15
          s_add_u32 m0, s42, 24576
          s_mul_i32 s38, s3, 5120
          s_barrier""")
    if OLB: k("s_barrier")
    for j in range(4): k(f"buffer_load_dwordx4 v2, s[24:27], s41 offen offset:{1024*j} lds")
    if not P1:
        k("""s_mul_i32 s43, s3, 4096
             s_add_u32 s41, s41, s43
             s_sub_u32 s41, s41, 32768""")
        for h_ in range(2):
            k(f"s_add_u32 m0, s42, {16384 + 4096*h_}")
            for j in range(4): k(f"buffer_load_dwordx4 v2, s[24:27], s41 offen offset:{1024*j} lds")
            k("s_add_u32 s41, s41, 4096")
    k("s_add_u32 m0, s42, 28672")
    for j in range(4): k(f"buffer_load_dwordx4 v2, s[24:27], s40 offen offset:{1024*j} lds")
    k(f"s_add_u32 m0, s38, {128*1024}\ns_add_u32 s40, s40, 4096")
    for j in range(4): k(f"buffer_load_dwordx4 v2, s[24:27], s40 offen offset:{1024*j} lds")
    k(f"s_add_u32 m0, s38, {128*1024+4096}\ns_add_u32 s40, s40, 4096\nbuffer_load_dwordx4 v2, s[24:27], s40 offen lds")
    k.stamp(3)
    k(f"""s_load_dwordx2 s[16:17], s[0:1], 56
          s_lshl_b32 s35, s56, 6
          s_lshl_b32 s36, s3, 4
          s_add_u32 s35, s35, s36
          v_lshrrev_b32 v12, 3, v1
          v_add_u32 v5, s35, v12
          v_lshlrev_b32 v5, 12, v5
          v_and_b32 v13, 7, v1
          v_lshrrev_b32 v14, 4, v1
          v_xor_b32 v14, v13, v14
          v_lshl_add_u32 v5, v14, 4, v5
          v_xor_b32 v6, 64, v5
          v_add_u32 v6, {8*4096}, v6
          s_lshl_b32 s37, s3, 11
          s_lshl_b32 s36, s57, 2
          s_add_u32 s36, s36, s3
          s_mul_i32 s36, s36, 24576
          s_add_u32 s36, s36, {WUP}
          s_mul_i32 s35, s3, 22528
          s_add_u32 s35, s35, {WOL}
          s_mov_b32 s18, {2048*4096}
          s_mov_b32 s19, 0x00020000
          s_waitcnt {'' if OLB else 'vmcnt(0)'} lgkmcnt(0)""")
    k.stamp(4)
    k("s_barrier\ns_barrier")
    if OLB: k("s_waitcnt vmcnt(0)\ns_barrier")
    k("s_barrier")
    q = VQ(k)
    def bi(c):
        q.issue(f"b{c}", 2, lambda: k(f"""s_add_u32 m0, s37, {(c % NS)*8192}
              s_movk_i32 s41, {ORD[c]*128}
              buffer_load_dwordx4 v5, s[16:19], s41 offen lds
              s_add_u32 m0, s37, {(c % NS)*8192 + 1024}
              buffer_load_dwordx4 v6, s[16:19], s41 offen lds"""))
    def wi(c):
        q.issue(f"w{c}", 2, lambda: k(f"""s_add_u32 m0, s35, {c*2048}
              s_add_u32 s39, s36, {c*2048}
              buffer_load_dwordx4 v2, s[24:27], s39 offen lds
              {'s_sleep %d' % WSL2 if WSL2 else ''}
              buffer_load_dwordx4 v2, s[24:27], s39 offen offset:1024 lds
              {'s_sleep %d' % WSL2 if WSL2 else ''}"""))
    if WOT == 'kl':
        for c in range(11): wi(c)
    nxt = 0
    for _ in range(NS): bi(nxt); nxt += 1
    k.stamp(5)
    k("s_barrier")
    if WOT == 'zb':
        for c in range(11): wi(c)
    k("s_barrier")
    for b in range(16):
        q.wait(f"b{2*b+1}"); k("s_barrier")
        while nxt < 32 and nxt - NS <= 2*b - 1: bi(nxt); nxt += 1
    k("s_waitcnt vmcnt(0)\ns_endpgm")
    k(f"L_{k.name}_end:\ns_endpgm")
    return k, (256, 1024, 163840)
```

```python
from common import *
from k3 import *
from g16 import *
from k4 import GC1, GC2
import os
LSC = os.environ.get('LSC', '')
MAPC = int(os.environ.get('MAPC', 0))
ZSC = os.environ.get('ZSC', 'sc1')
PT = int(os.environ.get('PT', 0))
HW = int(os.environ.get('HW', 6))
PF2 = int(os.environ.get('PF2', 1))
WSL = int(os.environ.get('WSL', 1))
WSL2 = int(os.environ.get('WSL2', 0))
KVROT = int(os.environ.get('KVROT', 1))
WOT = os.environ.get('WOT', 'kl')
PROG = int(os.environ.get('PROG', 1))
WB = int(os.environ.get('WB', 28))
PRIO = int(os.environ.get('K2_PRIO', 1))
PFQ = int(os.environ.get('PFQ', 1))
TLBW = int(os.environ.get('TLBW', 0))
OLB = int(os.environ.get('OLB', 0))
WPR = int(os.environ.get('WPR', 0))
EPB = int(os.environ.get('EPB', 0))
ZSL = int(os.environ.get('ZSL', 2))
ZPRE = int(os.environ.get('ZPRE', 0))
KSL = int(os.environ.get('KSL', 2))
KSTR = int(os.environ.get('KSTR', 4))
C0 = int(os.environ.get('C0', 0))
SCH = int(os.environ.get('SCH', 0))
SMF = int(os.environ.get('SMF', 3))
P1 = int(os.environ.get('P1', 1))
PFO = int(os.environ.get('PFO', 0))
PTY = int(os.environ.get('PTY', 12))
PFM = int(os.environ.get('PFM', 15))
PFSC = os.environ.get('PFSC', '')

FUSEC = int(os.environ.get('FUSEC', 1))
def build_kall():
    k = Kern("sequential_preLN__grouped_kv_mqa__mixer_gmlp__prompt_kernel", nvgpr=128)
    NW = 16
    KL, VL, XL = 0, 65536, 131072
    Q = 4; KFR = 8; VFR = [[12, 16], [20, 24]]; P = 28; S = [36, 52]; O = 68; C = 84
    vK, vV = 100, 101
    NCH, NIT = 4, 8
    prologue_ids(k, 256)
    k("""s_load_dwordx8 s[4:11], s[0:1], 0
         s_load_dwordx4 s[12:15], s[0:1], 88""")
    k("""s_and_b32 s29, s2, 7
         s_lshr_b32 s30, s2, 3
         s_lshl_b32 s29, s29, 2
         s_lshr_b32 s31, s30, 3
         s_add_u32 s29, s29, s31          ; rb64
         s_and_b32 s30, s30, 7            ; cg
         s_and_b32 s3, s28, 3
         s_and_b32 s32, s28, 1            ; rh
         s_mov_b32 s56, s29
         s_mov_b32 s57, s30""")
    XL0, WL0, KVL, SX, QL = 0, 65536, 131072, 147456, 131072
    CSX = SX + 1024
    FASTW, CNT = 146 * 1024 + 512, 146 * 1024 + 576
    k("""s_lshl_b32 s46, s31, 1
         s_add_u32 s46, s46, s30
         s_and_b32 s46, s46, 7
         s_lshr_b32 s33, s3, 1            ; ch
         s_mov_b32 s62, 0
         s_mov_b32 s20, 0
         s_mov_b32 s21, 0
         s_mov_b32 s22, 0
         s_mov_b32 s23, 0x00020000
         v_mov_b32 v108, 0
         v_mov_b32 v109, 0
         v_mov_b32 v113, 0
         v_lshlrev_b32 v2, 4, v1""")
    lane_fields(k)
    k(f"""s_cmp_ge_u32 s28, 12
          s_cbranch_scc1 L_p0_st
          s_cmp_ge_u32 s28, 8
          s_cbranch_scc1 L_p0_q
          s_cmp_eq_u32 s28, 2
          s_cbranch_scc1 L_p0_kv
          s_cmp_eq_u32 s28, 3
          s_cbranch_scc1 L_p0_n
          s_cmp_lt_u32 s28, 2
          s_cbranch_scc1 L_p0_pack""")
    def att_ids():
        k(f"""s_and_b32 s38, s28, 7            ; q idx
              s_lshr_b32 s39, s28, 3
              s_lshl_b32 s44, s39, 15          ; half*32768
              s_lshl_b32 s47, s38, 10
              s_add_u32 s47, s47, s44
              v_add_u32 v3, s47, v2""")
    def kvdma(c):
        k(f"""s_add_u32 m0, s47, {KL + 8192*c}
              s_add_u32 s34, s57, {c}
              s_and_b32 s34, s34, {3 if KVROT else 0}
              s_lshl_b32 s34, s34, 13
              s_add_u32 s34, s34, {KF + (0 if KVROT else 8192*c)}
              s_add_u32 s35, s34, {VF - KF}
              buffer_load_dwordx4 v3, s[24:27], s34 offen lds
              s_add_u32 m0, s47, {VL + 8192*c}
              buffer_load_dwordx4 v3, s[24:27], s35 offen lds""")
    def att_init():
        k(f"""s_lshl_b32 s33, s29, 1
              s_add_u32 s33, s33, s32
              s_lshl_b32 s33, s33, 5
              s_lshl_b32 s34, s30, 2
              s_add_u32 s33, s33, s34
              s_lshr_b32 s34, s38, 1
              s_add_u32 s33, s33, s34
              s_lshl_b32 s46, s33, 10
              s_lshl_b32 s34, s38, 10
              s_add_u32 s34, s34, {QL}
              v_add_u32 v102, s34, v2
              v_mov_b32 v112, 0
              s_lshr_b32 s63, s29, 1
              s_lshl_b32 s63, s63, 11
              s_add_u32 s63, s63, {XID}
              v_add_u32 v{vK}, s44, v2
              v_lshrrev_b32 v103, 5, v1
              v_and_b32 v106, 15, v1
              v_lshl_add_u32 v103, v103, 4, v106
              v_lshlrev_b32 v103, 4, v103
              v_add_u32 v103, s44, v103
              v_add_u32 v{vV}, {VL}, v103
              v_mov_b32 v103, {SX + 768}
              s_mov_b32 s40, 0x0000ffff
              s_mov_b32 s41, 0x0000ffff
              v_and_b32 v106, 31, v1
              v_cmp_eq_u32 vcc, 16, v106
              v_mov_b32 v107, 0x3f803f80
              v_cndmask_b32 v107, 0, v107, vcc
              s_mov_b32 s42, 1
              s_mov_b32 s36, 0
              s_movk_i32 s31, {0x56 if PRIO == 3 else 0x52}
              s_cmp_eq_u32 s28, 4
              s_cselect_b32 s31, {0x5e if PRIO == 3 else 0x5a}, s31
              s_cmp_lg_u32 s62, 0
              s_cselect_b32 s31, {0x5e if PRIO == 3 else 0x5a}, s31
              v_mov_b32 v118, {CNT}
              v_mov_b32 v119, 1""")
        for i in range(16): k(f"v_mov_b32 v{12+i}, v107")
        for i in range(16): k(f"v_mov_b32 v{O+i}, 0")
        if SMF:
            k(f"v_mov_b32 v{P}, 0xdddddddd")
            for i in range(8): k(f"v_mov_b32 v{S[1]+8+i}, 0")
        k(f"v_mov_b32 v107, {f32(3500.0)}")
    k(f"""s_lshl_b32 s34, s29, 6
          s_lshl_b32 s35, s3, 4
          s_add_u32 s34, s34, s35
          v_lshrrev_b32 v12, 3, v1
          v_add_u32 v6, s34, v12
          v_lshlrev_b32 v6, 10, v6
          v_and_b32 v13, 7, v1
          v_xor_b32 v14, v13, v8
          v_lshl_add_u32 v6, v14, 4, v6
          v_xor_b32 v7, 64, v6
          v_add_u32 v7, 8192, v7
          s_lshl_b32 s36, s30, 7
          s_lshl_b32 s37, s3, 11
          s_mov_b32 s45, s46""")
    wt_dma_addr(k, 4, 5, "s35", "s36")
    k("s_waitcnt lgkmcnt(0)")
    srd(k, 16, 4, 5, 2048 * 1024); srd(k, 20, 6, 7, 512 * 1024); srd(k, 24, 14, 15, WS_USED)
    q = VQ(k)
    def xi(c):
        q.issue(f"x{c}", 2, lambda: k(f"""s_add_u32 m0, s37, {XL0 + c*8192}
              s_lshl_b32 s38, s46, 7
              s_add_u32 s46, s46, 1
              buffer_load_dwordx4 v6, s[16:19], s38 offen lds
              s_add_u32 m0, s37, {XL0 + c*8192 + 1024}
              s_and_b32 s46, s46, 7
              buffer_load_dwordx4 v7, s[16:19], s38 offen lds"""))
    def wqi(c):
        q.issue(f"w{c}", 2, lambda: k(f"""s_add_u32 m0, s37, {WL0 + c*8192}
              s_lshl_b32 s38, s45, 16
              s_add_u32 s45, s45, 1
              buffer_load_dwordx4 v4, s[20:23], s38 offen lds
              s_add_u32 m0, s37, {WL0 + c*8192 + 1024}
              s_and_b32 s45, s45, 7
              buffer_load_dwordx4 v5, s[20:23], s38 offen lds"""))
    for c in range(6): xi(c)
    k.stamp(2); q.wait("x1"); k.stamp(3); k("s_barrier"); k.stamp(4)
    xi(6); xi(7); wqi(0); wqi(1)
    q.wait("x3"); k("s_barrier")
    wqi(2); wqi(3); wqi(4)
    q.wait("x5"); k("s_barrier")
    wqi(5); wqi(6); wqi(7)
    q.wait("x7"); k.stamp(5); k("s_barrier\ns_barrier")
    for i in range(4):
        q.wait(f"w{2*i+1}"); k("s_barrier")
    k.stamp(6)
    k("s_branch L_att")
    k(f"""L_p0_q:
          v_mov_b32 v64, 0x3f803f80
          v_mov_b32 v65, 0x3f803f80
          v_mov_b32 v66, 0x3f803f80
          v_mov_b32 v67, 0x3f803f80
          v_lshl_add_u32 v6, v9, 3, v10
          v_lshlrev_b32 v6, 7, v6
          v_lshrrev_b32 v12, 1, v10
          v_xor_b32 v12, s33, v12
          v_lshl_add_u32 v6, v12, 6, v6
          v_and_b32 v12, 1, v8
          v_lshl_add_u32 v6, v12, 5, v6
          v_lshl_add_u32 v6, v11, 3, v6
          v_add_u32 v6, {WL0}, v6
          v_and_b32 v12, 31, v1
          s_lshl_b32 s40, s32, 5
          v_add_u32 v12, s40, v12
          v_lshlrev_b32 v76, 3, v12
          v_add_u32 v76, {SX}, v76
          v_lshlrev_b32 v77, 4, v9
          s_lshl_b32 s41, s3, 7
          s_add_u32 s41, s41, {CSX}
          v_add_u32 v77, s41, v77
          v_xor_b32 v78, 128, v77
          v_lshrrev_b32 v13, 1, v12
          v_and_b32 v13, 7, v13
          v_lshlrev_b32 v12, 7, v12""")
    for qq in range(4):
        k(f"""v_add_u32 v14, {2*qq}, v9
              v_xor_b32 v14, v14, v13
              v_lshl_add_u32 v{72+qq}, v14, 4, v12""")
    for r in range(32): k(f"v_mov_b32 v{32+r}, 0")
    k("s_waitcnt lgkmcnt(0)")
    srd(k, 24, 14, 15, WS_USED)
    k("s_barrier\n" * 5)
    k.stamp(4)
    def qreads(c):
        s = c & 1
        for qq in range(4):
            st = 4*c + qq
            k(f"""ds_read_b64_tr_b16 v[{FA(s,qq)}:{FA(s,qq)+1}], v6 offset:{2048*st}
                  ds_read_b64_tr_b16 v[{FA(s,qq)+2}:{FA(s,qq)+3}], v6 offset:{2048*st+512}
                  ds_read_b128 {vr(FB(s,qq))}, v{72+qq} offset:{XL0 + 8192*c}""")
    def qloop(cs):
        def step(c, qq):
            s = c & 1
            k(f"v_mfma_f32_32x32x16_bf16 v[32:47], {vr(FA(s,qq))}, {vr(FB(s,qq))}, v[32:47]")
            if (qq & 1) == cs: k(f"v_mfma_f32_32x32x16_bf16 v[48:63], {vr(FA(s,qq))}, v[64:67], v[48:63]")
        k("s_barrier")
        k.stamp(5)
        qreads(0)
        for c in range(8):
            for qq in range(3):
                k(f"s_waitcnt lgkmcnt({9-3*qq})"); step(c, qq)
            k("s_waitcnt lgkmcnt(0)")
            if c < 7:
                if c & 1: k("s_barrier")
                qreads(c + 1)
            step(c, 3)
    k("""s_cmp_eq_u32 s32, 0
         s_cbranch_scc0 L_p0_qcs""")
    qloop(0)
    k("s_branch L_p0_qfin\nL_p0_qcs:")
    qloop(1)
    k("L_p0_qfin:\ns_nop 7")
    for gq in range(4): k(f"ds_write_b128 v77, {vr(48+4*gq)} offset:{32*gq}")
    k(f"""s_lshl_b32 s34, s33, 12
          s_lshl_b32 s35, s32, 10
          s_add_u32 s34, s34, s35
          s_add_u32 s34, s34, {QL}
          v_add_u32 v70, s34, v2""")
    att_ids()
    k("s_waitcnt lgkmcnt(0)\ns_barrier")
    k.stamp(6)
    k("ds_read_b64 v[68:69], v76")
    for gq in range(4): k(f"ds_read_b128 {vr(80+4*gq)}, v78 offset:{32*gq}")
    kvdma(0)
    k(f"""s_waitcnt lgkmcnt(0)
          v_mul_f32 v69, {f32(0.25*1.4426950408889634)}, v69""")
    for r in range(16): k(f"v_add_f32 v{48+r}, v{48+r}, v{80+r}")
    for r in range(16): k(f"v_fma_f32 v{32+r}, -v68, v{48+r}, v{32+r}")
    for r in range(16): k(f"v_mul_f32 v{32+r}, v69, v{32+r}")
    for r in range(8): k(f"v_cvt_pk_bf16_f32 v{48+r}, v{32+2*r}, v{33+2*r}")
    k("""ds_write_b128 v70, v[48:51]
         ds_write_b128 v70, v[52:55] offset:2048""")
    att_init()
    k("s_branch L_att2")
    k(f"""L_p0_st:
          v_lshrrev_b32 v12, 2, v1
          s_lshl_b32 s34, s3, 4
          v_add_u32 v12, s34, v12           ; row
          v_lshlrev_b32 v7, 3, v12
          v_add_u32 v7, {SX}, v7
          v_lshrrev_b32 v13, 1, v12
          v_and_b32 v13, 7, v13
          v_lshlrev_b32 v12, 7, v12
          v_lshlrev_b32 v14, 1, v11
          v_xor_b32 v14, v14, v13
          v_lshl_add_u32 v4, v14, 4, v12
          v_xor_b32 v5, 16, v4
          v_mov_b32 v64, 0x3f803f80""")
    for i in range(4): k(f"v_mov_b32 v{48+i}, 0")
    k("s_waitcnt lgkmcnt(0)")
    srd(k, 24, 14, 15, WS_USED)
    for gi_ in range(4):
        k("s_barrier")
        for c in range(2):
            k(f"""ds_read_b128 {vr(16+8*c)}, v4 offset:{XL0 + 8192*(2*gi_+c)}
                  ds_read_b128 {vr(20+8*c)}, v5 offset:{XL0 + 8192*(2*gi_+c)}""")
        k("s_waitcnt lgkmcnt(0)")
        for d in range(16):
            k(f"""v_dot2_f32_bf16 v{48+(d&1)}, v{16+d}, v64, v{48+(d&1)}
                  v_dot2_f32_bf16 v{50+(d&1)}, v{16+d}, v{16+d}, v{50+(d&1)}""")
    k("v_add_f32 v48, v48, v49\nv_add_f32 v49, v50, v51")
    for qp in ("[1,0,3,2]", "[2,3,0,1]"):
        for i in range(2): k(f"v_add_f32_dpp v{48+i}, v{48+i}, v{48+i} quad_perm:{qp} row_mask:0xf bank_mask:0xf")
    ln_stats(k, 48, 49, 512, 12)
    k("ds_write_b64 v7, v[48:49]\ns_waitcnt lgkmcnt(0)")
    k("s_barrier\n" * 5 + "s_branch L_att")
    k(f"""L_p0_n:
          v_mov_b32 v20, 0
          s_memrealtime s[58:59]
          s_waitcnt lgkmcnt(0)""")
    srd(k, 24, 14, 15, WS_USED); srd(k, 16, 12, 13, 256)
    if PFQ:
        srd(k, 20, 6, 7, 512 * 1024)
        k(f"""s_lshr_b32 s34, s2, 3
              s_lshl_b32 s34, s34, 14
              s_add_u32 s35, s34, 8192
              v_lshlrev_b32 v24, 7, v1
              buffer_load_dword v25, v24, s[20:23], s34 offen
              buffer_load_dword v25, v24, s[20:23], s35 offen""")
    k(f"""s_mov_b64 exec, 1
          s_cmp_eq_u32 s2, 0
          s_cbranch_scc0 L_p0_n1
          s_or_b32 s59, s59, 0x40000000
          v_mov_b32 v22, s58
          v_mov_b32 v23, s59
          buffer_store_dwordx2 v[22:23], v20, s[16:19], 0 offen sc1
          L_p0_n1:
          s_barrier
          s_barrier
          s_mov_b32 s60, 0
          L_p0_np:
          buffer_load_dwordx2 v[22:23], v20, s[16:19], 0 offen sc1
          s_add_u32 s60, s60, 1
          s_cmp_eq_u32 s60, 1
          s_cbranch_scc0 L_p0_nw
          s_barrier
          s_barrier
          L_p0_nw:
          s_waitcnt vmcnt(0)
          v_cmp_eq_u32 vcc, 0, v23
          s_cmp_gt_u32 s60, 0x40000
          s_cbranch_scc1 L_p0_n2
          s_cbranch_vccnz L_p0_np
          L_p0_n2:
          v_mov_b32 v21, {SX + 768}
          ds_write_b64 v21, v[22:23]
          v_readfirstlane_b32 s58, v22
          v_readfirstlane_b32 s59, v23
          s_mov_b64 exec, -1
          v_lshlrev_b32 v21, 2, v1
          v_add_u32 v21, {FASTW}, v21
          v_cmp_eq_u32 vcc, 0, v1
          v_cndmask_b32 v22, 0, 2, vcc
          ds_write_b32 v21, v22
          v_mov_b32 v21, {SX + 768}
          v_lshlrev_b32 v26, {KSTR}, v1
          s_waitcnt lgkmcnt(0)""")
    k.stamp(4)
    k("s_barrier\n" * (5 - EPB))
    k.stamp(5)
    k(f"""s_mov_b32 s60, 0
          L_p0_gp:""")
    for i in range(4): k(f"s_mov_b32 s34, {KVFLAG + (64 << KSTR) * i}\nbuffer_load_dwordx3 v[{28+4*i}:{30+4*i}], v26, s[24:27], s34 offen sc1")
    if EPB:
        k("s_cmp_eq_u32 s60, 0\ns_cbranch_scc0 L_p0_gw\n" + "s_barrier\n" * EPB + "L_p0_gw:")
    k("s_add_u32 s60, s60, 1\ns_waitcnt vmcnt(0)")
    for i in range(4):
        k(f"v_xor_b32 v{28+4*i}, s58, v{28+4*i}\nv_xor_b32 v{29+4*i}, s59, v{29+4*i}")
    k(f"""v_or3_b32 v28, v28, v29, v32
          v_or3_b32 v33, v33, v36, v37
          v_or3_b32 v28, v28, v40, v41
          v_or_b32 v28, v28, v33
          v_cmp_ne_u32 vcc, 0, v28
          s_cmp_gt_u32 s60, 0x40000
          s_cbranch_scc1 L_p0_g2
          s_cbranch_vccz L_p0_g2
          s_sleep {KSL}
          s_branch L_p0_gp
          L_p0_g2:
          v_max3_f32 v30, v30, v34, v38
          v_max_f32 v30, v30, v42""")
    for sh in (1, 2, 4, 8):
        k(f"v_max_f32_dpp v30, v30, v30 row_ror:{sh} row_mask:0xf bank_mask:0xf")
    k("""v_mov_b32 v31, v30
         v_permlane16_swap_b32 v30, v31
         v_max_f32 v30, v30, v31
         v_mov_b32 v31, v30
         v_permlane32_swap_b32 v30, v31
         v_max_f32 v30, v30, v31
         ds_write_b32 v21, v30 offset:8
         s_branch L_att""")
    k(f"""L_p0_kv:
          s_lshr_b32 s40, s30, 2           ; kv
          s_and_b32 s41, s30, 3            ; rq
          s_waitcnt lgkmcnt(0)
          s_cmp_eq_u32 s40, 0
          s_cselect_b32 s20, s8, s10
          s_cselect_b32 s21, s9, s11
          s_mov_b32 s22, 16384
          s_mov_b32 s23, 0x00020000""")
    srd(k, 24, 14, 15, WS_USED)
    for c in range(8):
        k(f"""s_mov_b32 m0, {KVL + 2048*c}
              s_lshl_b32 s38, s46, 11
              s_add_u32 s46, s46, 1
              buffer_load_dwordx4 v2, s[20:23], s38 offen lds
              buffer_load_dwordx4 v2, s[20:23], s38 offen offset:1024 lds
              s_and_b32 s46, s46, 7""")
    k(f"""v_mov_b32 v64, 0x3f803f80
          v_mov_b32 v65, 0x3f803f80
          v_mov_b32 v66, 0x3f803f80
          v_mov_b32 v67, 0x3f803f80
          v_and_b32 v15, 15, v1
          s_lshl_b32 s34, s41, 4
          v_add_u32 v12, s34, v15
          v_lshlrev_b32 v74, 3, v12
          v_add_u32 v74, {SX}, v74
          v_lshl_add_u32 v75, v8, 2, s34
          v_lshlrev_b32 v75, 3, v75
          v_add_u32 v75, {SX}, v75
          v_lshrrev_b32 v13, 1, v12
          v_and_b32 v13, 7, v13
          v_lshlrev_b32 v12, 7, v12
          v_xor_b32 v14, v8, v13
          v_lshl_add_u32 v72, v14, 4, v12
          v_add_u32 v14, 4, v8
          v_xor_b32 v14, v14, v13
          v_lshl_add_u32 v73, v14, 4, v12
          v_lshl_add_u32 v6, v8, 3, v10
          v_lshlrev_b32 v6, 5, v6
          v_lshl_add_u32 v6, v11, 3, v6
          v_add_u32 v6, {KVL}, v6
          s_lshl_b32 s34, s29, 2
          s_add_u32 s34, s34, s41          ; t16
          v_and_b32 v12, 1, v8             ; h
          v_lshrrev_b32 v13, 1, v8         ; piece
          v_mov_b32 v76, {SX + 768}
          s_and_b32 s37, s2, 7
          s_lshl_b32 s37, s37, {5 + KSTR}
          s_lshr_b32 s36, s2, 3
          s_lshl_b32 s36, s36, {KSTR}
          s_add_u32 s37, s37, s36
          s_add_u32 s37, s37, {KVFLAG}""")
    for r in range(8): k(f"v_mov_b32 v{32+r}, 0")
    def kvloop(isv):
        for gi_ in range(4):
            k(f"s_waitcnt vmcnt({4*(3-gi_)})\ns_barrier")
            for s in range(4):
                st = 4*gi_ + s; b = 80 + 8*s
                k(f"""ds_read_b64_tr_b16 v[{b}:{b+1}], v6 offset:{1024*st}
                      ds_read_b64_tr_b16 v[{b+2}:{b+3}], v6 offset:{1024*st+128}
                      ds_read_b128 {vr(b+4)}, v{72+(s&1)} offset:{XL0+8192*(st//2)}""")
            for s in range(4):
                W, X = 80 + 8*s, 84 + 8*s
                k(f"s_waitcnt lgkmcnt({9-3*s})")
                if isv:
                    k(f"""v_mfma_f32_16x16x32_bf16 v[32:35], {vr(X)}, {vr(W)}, v[32:35]
                          v_mfma_f32_16x16x32_bf16 v[36:39], v[64:67], {vr(W)}, v[36:39]""")
                else:
                    k(f"""v_mfma_f32_16x16x32_bf16 v[32:35], {vr(W)}, {vr(X)}, v[32:35]
                          v_mfma_f32_16x16x32_bf16 v[36:39], {vr(W)}, v[64:67], v[36:39]""")
        k("s_barrier\nds_read_b64 v[40:41], v76")
    k("""s_cmp_eq_u32 s40, 0
         s_cbranch_scc0 L_p0_v""")
    kvloop(False)
    k(f"""ds_read_b64 v[68:69], v74
          v_lshlrev_b32 v3, 9, v12
          v_lshl_add_u32 v3, v15, 4, v3
          v_lshl_add_u32 v3, v13, 3, v3
          s_lshr_b32 s35, s34, 1
          s_lshl_b32 s35, s35, 10
          s_and_b32 s36, s34, 1
          s_lshl_b32 s36, s36, 8
          s_add_u32 s35, s35, s36
          s_add_u32 s35, s35, {KF}
          s_waitcnt lgkmcnt(0)""")
    for r in range(4): k(f"v_fma_f32 v{32+r}, -v68, v{36+r}, v{32+r}")
    for r in range(4): k(f"v_mul_f32 v{32+r}, v69, v{32+r}")
    k(f"""v_cvt_pk_bf16_f32 v36, v32, v33
          v_cvt_pk_bf16_f32 v37, v34, v35
          buffer_store_dwordx2 v[36:37], v3, s[24:27], s35 offen sc1
          v_dot2_f32_bf16 v42, v36, v36, 0
          v_dot2_f32_bf16 v42, v37, v37, v42""")
    xhalf_add(k, 42, 12); x16_add(k, 42, 12)
    for sh in (1, 2, 4, 8):
        k(f"v_max_f32_dpp v42, v42, v42 row_ror:{sh} row_mask:0xf bank_mask:0xf")
    k("s_branch L_p0_kvf\nL_p0_v:")
    kvloop(True)
    k(f"""ds_read_b128 v[56:59], v75
          ds_read_b128 v[60:63], v75 offset:16
          v_lshlrev_b32 v3, 8, {'v13' if SMF else 'v12'}
          v_lshl_add_u32 v3, v15, 4, v3
          v_lshl_add_u32 v3, {'v12' if SMF else 'v13'}, 3, v3
          s_lshl_b32 s35, s34, 9
          s_add_u32 s35, s35, {VF}
          v_mov_b32 v42, 0
          s_waitcnt lgkmcnt(0)""")
    for r in range(4): k(f"v_fma_f32 v{32+r}, -v{56+2*r}, v{36+r}, v{32+r}")
    for r in range(4): k(f"v_mul_f32 v{32+r}, v{57+2*r}, v{32+r}")
    k(f"""v_cvt_pk_bf16_f32 v36, v32, v33
          v_cvt_pk_bf16_f32 v37, v34, v35
          buffer_store_dwordx2 v[36:37], v3, s[24:27], s35 offen sc1
          L_p0_kvf:
          v_mov_b32 v43, 0""")
    k.stamp(2)
    k("s_barrier")
    k.stamp(3)
    k("s_waitcnt vmcnt(0)")
    k.stamp(5)
    k(f"""s_mov_b64 exec, 1
          buffer_store_dwordx4 v[40:43], v43, s[24:27], s37 offen sc1
          s_mov_b64 exec, -1""")
    if STAMPS: k("s_waitcnt vmcnt(0)")
    k.stamp(4)
    k("s_barrier\n" * 3 + "s_branch L_att")
    k(f"""L_p0_pack:
          s_load_dwordx2 s[48:49], s[0:1], 48
          s_load_dwordx2 s[50:51], s[0:1], 32
          s_load_dwordx2 s[52:53], s[0:1], 72
          s_lshl_b32 s35, s28, 8
          s_add_u32 s35, s35, s2           ; J
          s_lshl_b32 s36, s28, 13
          s_add_u32 s36, s36, {128*1024}
          s_waitcnt lgkmcnt(0)""")
    srd(k, 24, 14, 15, WS_USED)
    if TLBW:
        k(f"""s_load_dwordx4 s[40:43], s[0:1], 56
              s_load_dwordx2 s[44:45], s[0:1], 80
              v_lshlrev_b32 v20, {TLBW}, v1
              buffer_load_dword v21, v20, s[24:27], 0 offen
              s_mov_b32 s18, {688*1024}
              s_mov_b32 s19, 0x00020000""")
        for lo, sz in ((48, 512*2752), (50, 512*1024), (52, 688*1024)):
            k(f"""s_mov_b32 s16, s{lo}
                  s_mov_b32 s17, s{lo+1}
                  s_mov_b32 s18, {sz}
                  buffer_load_dword v21, v20, s[16:19], 0 offen""")
        k("s_waitcnt lgkmcnt(0)")
        for lo, sz in ((40, 2048*4096), (42, 4096), (44, 2048*1024)):
            k(f"""s_mov_b32 s16, s{lo}
                  s_mov_b32 s17, s{lo+1}
                  s_mov_b32 s18, {sz}
                  buffer_load_dword v21, v20, s[16:19], 0 offen""")
    k(f"""s_cmp_lt_u32 s35, 332
          s_cbranch_scc1 L_pk_job""")
    k("L_pk_done:\n" + "s_barrier\n" * 9 + "s_branch L_att")
    k(f"""L_pk_job:
          s_lshl_b32 s62, s35, 7
          s_add_u32 s62, s62, {PFLAG}
          s_mov_b32 s23, 0x00020000
          s_cmp_lt_u32 s35, 172
          s_cbranch_scc1 L_pk_in
          s_movk_i32 s40, 1024
          s_cmp_lt_u32 s35, 236
          s_cbranch_scc1 L_pk_o
          s_sub_u32 s35, s35, 236
          s_mul_i32 s37, s35, 171
          s_lshr_b32 s37, s37, 9
          s_mul_i32 s38, s37, 3
          s_sub_u32 s38, s35, s38
          s_mov_b32 s20, s52
          s_mov_b32 s21, s53
          s_mov_b32 s22, {688*1024}
          s_mul_i32 s39, s37, 24576
          s_add_u32 s39, s39, {WUP}
          s_branch L_pk_d
          L_pk_o:
          s_sub_u32 s35, s35, 172
          s_lshr_b32 s37, s35, 1
          s_and_b32 s38, s35, 1
          s_mov_b32 s20, s50
          s_mov_b32 s21, s51
          s_mov_b32 s22, {512*1024}
          s_lshl_b32 s39, s37, 14
          s_add_u32 s39, s39, {WOP}
          L_pk_d:
          v_lshrrev_b32 v12, 1, v8
          v_lshlrev_b32 v6, 4, v12
          v_and_b32 v12, 1, v8
          v_lshl_add_u32 v6, v12, 2, v6
          s_movk_i32 s41, 256
          s_mov_b32 s42, 0
          s_branch L_pk_go
          L_pk_in:
          s_movk_i32 s40, 2752
          s_lshr_b32 s37, s35, 1
          s_and_b32 s38, s35, 1
          s_mov_b32 s20, s48
          s_mov_b32 s21, s49
          s_mov_b32 s22, {512*2752}
          s_lshl_b32 s39, s37, 14
          s_add_u32 s39, s39, {WPK}
          v_lshlrev_b32 v6, 2, v8
          s_movk_i32 s41, 512
          s_mov_b32 s42, 1
          L_pk_go:
          v_add_u32 v6, v6, v10
          v_lshlrev_b32 v6, 5, v6
          v_lshl_add_u32 v6, v11, 3, v6
          v_add_u32 v108, s36, v6
          v_add_u32 v109, s41, v108
          s_lshl_b32 s43, s38, 13
          s_add_u32 s48, s39, s43           ; dst
          v_lshrrev_b32 v113, 1, v1
          v_mul_lo_u32 v113, v113, s40
          v_and_b32 v12, 1, v1
          v_lshl_add_u32 v113, v12, 4, v113
          s_lshl_b32 s50, s40, 8
          s_mul_i32 s50, s50, s38
          s_lshl_b32 s44, s37, 5
          s_add_u32 s50, s50, s44           ; src
          s_lshl_b32 s51, s40, 5            ; 32 rows
          s_lshl_b32 s49, s37, 6
          s_add_u32 s49, s49, s43
          s_add_u32 s49, s49, {CSUM}
          s_mul_i32 s49, s49, s42
          s_mov_b32 s45, s36
          s_branch L_pk_done""")
    k("L_att:")
    att_ids(); att_init()
    k.stamp(8)
    k("s_waitcnt lgkmcnt(0)\ns_barrier")
    k.stamp(7)
    kvdma(0)
    k(f"""L_att2:
          s_waitcnt vmcnt(0) lgkmcnt(0)
          s_barrier
          ds_read_b128 {vr(Q)}, v102
          ds_read_b128 v[120:123], v103
          ds_read_b128 {vr(KFR)}, v{vK}""")
    kvdma(1)
    k(f"""s_waitcnt lgkmcnt(0)
          v_readfirstlane_b32 s58, v120
          v_readfirstlane_b32 s59, v121
          v_mov_b32 v104, v122
          v_dot2_f32_bf16 v106, v{Q}, v{Q}, 0
          v_dot2_f32_bf16 v106, v{Q+1}, v{Q+1}, v106
          v_dot2_f32_bf16 v106, v{Q+2}, v{Q+2}, v106
          v_dot2_f32_bf16 v106, v{Q+3}, v{Q+3}, v106""")
    xhalf_add(k, 106, 105)
    k(f"""v_mul_f32 v104, v104, v106
          v_cmp_nle_f32 vcc, v104, v107""")
    kvdma(2); kvdma(3)
    k("s_cbranch_vccnz L_k2_slow")
    k.stamp(1)
    if os.environ.get("STP0"): k.stamp = lambda i, real=False: None if i < 13 else Kern.stamp(k, i, real)
    def att_loop(sfx, cop):
        k(f"""L_k2_start{sfx}:
              s_waitcnt lgkmcnt(0)
              v_mfma_f32_32x32x16_bf16 {vr(S[0],16)}, {vr(KFR)}, {vr(Q)}, {cop}
              ds_read_b128 {vr(KFR)}, v{vK} offset:1024
              s_mov_b64 exec, s[40:41]
              ds_read_b128 {vr(VFR[0][0])}, v{vV}
              ds_read_b128 {vr(VFR[0][1])}, v{vV} offset:512
              s_mov_b64 exec, -1
              s_nop 7
              L_k2_loop{sfx}:
              s_bitcmp1_b32 s31, s36
              s_cbranch_scc1 L_k2_ev
              L_k2_body{sfx}:""")
        for u in range(4):
            s = S[u & 1]; sn = S[(u + 1) & 1]; vf = VFR[u & 1]; vn = VFR[(u + 1) & 1]
            k(f"s_setprio {3-u}")
            for i in range(16):
                if i == 3:
                    k(f"""v_smfmac_f32_32x32x32_bf16 {vr(O,16)}, {vr(vn[1])}, {vr(sn+8,8)}, v{P}
                          s_mov_b64 exec, s[40:41]
                          ds_read_b128 {vr(vn[0])}, v{vV} offset:{1024*(u+1)}
                          ds_read_b128 {vr(vn[1])}, v{vV} offset:{1024*(u+1)+512}
                          s_mov_b64 exec, -1""")
                if i == 8:
                    k(f"""s_waitcnt lgkmcnt(2)
                          v_mfma_f32_32x32x16_bf16 {vr(sn,16)}, {vr(KFR)}, {vr(Q)}, {cop}
                          ds_read_b128 {vr(KFR)}, v{vK} offset:{1024*(u+2)}""")
                if i == 13:
                    k(f"v_smfmac_f32_32x32x32_bf16 {vr(O,16)}, {vr(vf[0])}, {vr(s,8)}, v{P}")
                k(f"v_exp_f32 v{s+i}, v{s+i}")
        k(f"""v_add_u32 v{vK}, 4096, v{vK}
              v_add_u32 v{vV}, 4096, v{vV}
              s_add_u32 s36, s36, 1
              s_cmp_lt_u32 s36, {NIT}
              s_cbranch_scc1 L_k2_loop{sfx}""")
    att_loop("", "0")
    k("L_k2_done:")
    if SMF: k(f"v_smfmac_f32_32x32x32_bf16 {vr(O,16)}, {vr(VFR[1][1])}, {vr(S[1]+8,8)}, v{P}")
    else: k(f"v_mfma_f32_32x32x16_bf16 {vr(O,16)}, {vr(VFR[1][1])}, {vr(P+4)}, {vr(O,16)}")
    k("s_setprio 0")
    k.stamp(2)
    k(f"""s_mul_i32 s45, s38, 2304
          s_add_u32 s45, s45, {XL}
          v_add_u32 v103, s45, v2
          v_lshlrev_b32 v104, 2, v1
          v_add_u32 v104, s45, v104
          v_mov_b32 v107, {FASTW}
          s_lshl_b32 s35, s38, 2
          s_add_u32 s35, s35, {FASTW + 128}
          v_mov_b32 v102, s35
          s_cmp_eq_u32 s39, 0
          s_cbranch_scc1 L_k2_give
          s_mov_b32 s60, 0
          L_k2_mw:
          ds_read_b32 v105, v102
          ds_read_b32 v106, v107
          ds_read_b128 {vr(S[0])}, v103
          ds_read_b128 {vr(S[0]+4)}, v103 offset:1024
          ds_read_b32 v{S[0]+8}, v104 offset:2048
          s_lshl_b32 s34, s29, 13
          s_add_u32 s34, s34, {OFLAG}
          s_lshl_b32 s35, s32, 12
          s_add_u32 s34, s34, s35
          s_lshl_b32 s35, s30, 9
          s_add_u32 s34, s34, s35
          s_lshr_b32 s35, s38, 1
          s_lshl_b32 s35, s35, 7
          s_add_u32 s34, s34, s35
          s_add_u32 s33, s46, {OF}
          s_add_u32 s60, s60, 1
          s_waitcnt lgkmcnt(0)
          v_readfirstlane_b32 s63, v106
          v_readfirstlane_b32 s35, v105
          s_cmp_gt_u32 s60, 0x400000
          s_cbranch_scc1 L_k2_mok
          s_cmp_eq_u32 s63, 2
          s_cbranch_scc1 L_k2_mw
          s_cmp_eq_u32 s35, 0
          s_cbranch_scc1 L_k2_mw
          L_k2_mok:""")
    k.stamp(3)
    for r in range(9): k(f"v_add_f32 v{O+r}, v{O+r}, v{S[0]+r}")
    k(f"""v_mov_b32 v104, v{O+8}
          v_permlane32_swap_b32 v{O+8}, v104
          v_rcp_f32 v104, v{O+8}""")
    for r in range(8): k(f"v_mul_f32 v{O+r}, v104, v{O+r}")
    for r in range(4): k(f"v_cvt_pk_bf16_f32 v{P+r}, v{O+2*r}, v{O+2*r+1}")
    hstore(k, f"buffer_store_dwordx4 {vr(P)}, v2, s[24:27], s33 offen")
    k.stamp(4)
    if STAMPS: k("s_waitcnt vmcnt(0)")
    k.stamp(5)
    set_flagN(k, "s34")
    k.stamp(6)
    k("""s_cmp_lt_u32 s28, 12
         s_cbranch_scc1 L_kb_loader
         s_endpgm""")
    k(f"""L_k2_ev:
          s_cmp_ge_u32 s36, 6
          s_cbranch_scc1 L_k2_cnt
          s_cmp_eq_u32 s36, 4
          s_cbranch_scc1 L_k2_st4
          s_cmp_eq_u32 s36, 3
          s_cbranch_scc1 L_k2_st3
          s_cmp_eq_u32 s36, 1
          s_cbranch_scc1 L_k2_st1
          s_setprio 2
          s_branch L_k2_ret
          L_k2_st1:
          s_cmp_eq_u32 s42, 1
          s_cbranch_scc0 L_k2_st1c
          s_waitcnt vmcnt(0)
          s_barrier
          L_k2_st1c:
          s_cmp_eq_u32 s62, 0
          s_cbranch_scc1 L_nopk""")
    for i in range(8):
        k(f"""s_add_u32 m0, s45, {1024*i}
              buffer_load_dwordx4 v113, s[20:23], s50 offen lds
              s_add_u32 s50, s50, s51""")
    k(f"""s_branch L_k2_ret
          L_nopk:
          s_lshr_b32 s34, s28, 2
          s_cmp_eq_u32 s34, 1
          s_cbranch_scc0 L_k2_ret
          s_load_dwordx2 s[52:53], s[0:1], 56
          s_lshr_b32 s61, s2, 3
          s_lshl_b32 s61, s61, 2
          s_add_u32 s61, s61, s3
          v_lshlrev_b32 v108, 7, v1
          s_and_b32 s37, s2, 7
          s_lshl_b32 s37, s37, 20
          s_lshl_b32 s61, s61, 13
          s_add_u32 s37, s37, s61
          s_mov_b32 s54, {2048*4096}
          s_mov_b32 s55, 0x00020000
          s_waitcnt lgkmcnt(0)
          buffer_load_dword v120, v108, s[52:55], s37 offen
          s_cmp_eq_u32 s28, 4
          s_cbranch_scc0 L_k2_ret
          s_lshr_b32 s34, s29, 1
          s_lshl_b32 s34, s34, 7
          s_and_b32 s35, s29, 1
          s_lshl_b32 s35, s35, 3
          s_add_u32 s34, s34, s35
          s_add_u32 s34, s34, s30
          s_lshl_b32 s34, s34, 7
          s_add_u32 s34, s34, {ZSTAT}
          v_mov_b32 v112, -1
          v_mov_b32 v113, -1
          v_mov_b32 v114, -1
          v_mov_b32 v115, -1
          v_lshrrev_b32 v116, 3, v1
          v_lshlrev_b32 v116, 11, v116
          v_and_b32 v117, 7, v1
          v_lshl_add_u32 v116, v117, 4, v116
          buffer_store_dwordx4 v[112:115], v116, s[24:27], s34 offen sc1
          s_branch L_k2_ret
          L_k2_cnt:
          {'s_setprio 0' if PRIO == 3 else ''}
          L_k2_cnt2:
          s_waitcnt lgkmcnt(0)
          s_mov_b64 exec, 1
          ds_add_u32 v118, v119
          s_mov_b64 exec, -1
          v_add_u32 v118, 4, v118
          s_branch L_k2_ret
          L_k2_st4:
          {'s_setprio 1' if PRIO == 3 else ''}
          s_cmp_eq_u32 s62, 0
          s_cbranch_scc1 L_k2_cnt2
          v_mov_b32 v112, s58
          v_mov_b32 v113, s59
          v_mov_b32 v114, 0
          s_waitcnt vmcnt(0)
          s_mov_b64 exec, 1
          buffer_store_dwordx2 v[112:113], v114, s[24:27], s62 offen sc1
          s_mov_b64 exec, -1
          s_branch L_k2_cnt2
          L_k2_st3:
          s_waitcnt vmcnt(0)
          s_cmp_lg_u32 s62, 0
          s_cbranch_scc1 L_k2_pk
          s_and_b32 s34, s29, 1
          s_lshl_b32 s34, s34, 3
          s_add_u32 s34, s34, s30
          s_lshl_b32 s34, s34, 7
          s_add_u32 s34, s34, s63
          s_getreg_b32 s60, hwreg(HW_REG_XCC_ID, 0, 4)
          s_add_u32 s60, s60, s59
          v_mov_b32 v108, s58
          v_mov_b32 v109, s60
          v_mov_b32 v110, 0
          s_mov_b64 exec, 1
          buffer_store_dwordx2 v[108:109], v110, s[24:27], s34 offen sc1
          s_mov_b64 exec, -1
          s_branch L_k2_ret
          L_k2_pk:
          s_mov_b32 s34, 0x3f803f80
          s_add_u32 s35, s48, 4096
          v_mov_b32 v110, 0
          v_mov_b32 v111, 0""")
    for h in range(2):
        for i in range(2):
          for i2 in range(2):
            k(f"""ds_read_b64_tr_b16 v[{120+4*i2}:{121+4*i2}], v108 offset:{1024*(4*h+2*i+i2)}
                  ds_read_b64_tr_b16 v[{122+4*i2}:{123+4*i2}], v109 offset:{1024*(4*h+2*i+i2)}""")
          k("s_waitcnt lgkmcnt(0)")
          for i2 in range(2):
            k(f"buffer_store_dwordx4 {vr(120+4*i2)}, v2, s[24:27], {'s35' if h else 's48'} offen offset:{1024*(2*i+i2)} sc1")
          for i3 in range(8): k(f"v_dot2_f32_bf16 v{110+(i3&1)}, v{120+i3}, s34, v{110+(i3&1)}")
    k("""s_cmp_eq_u32 s49, 0
         s_cbranch_scc1 L_k2_ret
         v_add_f32 v110, v110, v111""")
    xhalf_add(k, 110, 111); x16_add(k, 110, 111)
    k(f"""v_lshlrev_b32 v111, 2, v1
          s_mov_b64 exec, 0xffff
          buffer_store_dword v110, v111, s[24:27], s49 offen sc1
          s_mov_b64 exec, -1
          s_branch L_k2_ret""")
    k("""L_k2_ret:
         s_cmp_eq_u32 s42, 1
         s_cbranch_scc1 L_k2_body
         s_branch L_k2_body_s""")
    k("L_k2_slow:")
    k(f"""s_waitcnt vmcnt(0)
          s_barrier
          s_mov_b32 s42, 99
          v_mov_b32 v104, 0xff800000
          v_mov_b32 v103, v2
          s_mov_b32 s37, 0
          L_k2_mx:
          ds_read_b128 {vr(KFR)}, v103
          s_waitcnt lgkmcnt(0)
          v_mfma_f32_32x32x16_bf16 {vr(S[0],16)}, {vr(KFR)}, {vr(Q)}, 0
          v_add_u32 v103, 1024, v103""")
    for i in range(8):
        k(f"v_max3_f32 v104, v{S[0]+2*i}, v{S[0]+2*i+1}, v104")
    k(f"""s_add_u32 s37, s37, 1
          s_cmp_lt_u32 s37, 64
          s_cbranch_scc1 L_k2_mx
          v_mov_b32 v105, v104
          v_permlane32_swap_b32 v104, v105
          v_max_f32 v104, v104, v105""")
    for i in range(16): k(f"v_sub_f32 v{C+i}, 0, v104")
    k(f"ds_read_b128 {vr(KFR)}, v{vK}")
    att_loop("_s", vr(C, 16))
    k("s_nop 1\ns_branch L_k2_done")
    def waitcnt_lds(off, tag):
        k(f"""v_mov_b32 v108, {CNT + off}
              s_mov_b32 s60, 0
              L_cw_{tag}:
              ds_read_b32 v109, v108
              s_add_u32 s60, s60, 1
              s_waitcnt lgkmcnt(0)
              v_readfirstlane_b32 s34, v109
              s_cmp_gt_u32 s60, 0x400000
              s_cbranch_scc1 L_cwok_{tag}
              s_cmp_ge_u32 s34, 16
              s_cbranch_scc1 L_cwok_{tag}
              s_sleep 2
              s_branch L_cw_{tag}
              L_cwok_{tag}:""")
    k(f"""L_k2_give:
          s_load_dwordx2 s[4:5], s[0:1], 0""")
    if PT:
        k(f"""v_and_b32 v110, 7, v1
              v_lshlrev_b32 v110, 7, v110
              s_mov_b64 exec, 0xff
              s_add_u32 s34, s46, {OF}
              buffer_load_dword v117, v110, s[24:27], s34 offen
              s_lshl_b32 s34, s29, 2
              s_add_u32 s34, s34, s3
              s_lshl_b32 s34, s34, 4
              s_lshl_b32 s35, s30, 1
              s_add_u32 s34, s34, s35
              s_lshr_b32 s35, s28, 2
              s_add_u32 s34, s34, s35
              s_lshl_b32 s35, s34, 10
              s_add_u32 s35, s35, {HF}
              buffer_load_dword v117, v110, s[24:27], s35 offen
              s_mov_b64 exec, 1
              s_lshl_b32 s35, s34, 7
              s_add_u32 s35, s35, {HSTAT}
              buffer_load_dword v117, v110, s[24:27], s35 offen
              s_mov_b64 exec, -1""")
    k(f"""s_cmp_eq_u32 s28, 4
          s_cbranch_scc0 L_kb_nochk
          v_and_b32 v110, 15, v1
          v_lshlrev_b32 v110, 7, v110
          s_mov_b32 s60, 0
          L_xc_b:
          buffer_load_dwordx2 v[108:109], v110, s[24:27], s63 offen sc1
          s_add_u32 s60, s60, 1
          s_waitcnt vmcnt(0)
          v_subrev_u32 v109, s59, v109
          v_xor_b32 v108, s58, v108
          v_lshrrev_b32 v106, 4, v109
          v_or_b32 v108, v108, v106
          v_cmp_ne_u32 vcc, 0, v108
          s_cmp_gt_u32 s60, 0x40000
          s_cbranch_scc1 L_xcok_b
          s_cbranch_vccnz L_xc_b
          L_xcok_b:
          v_readfirstlane_b32 s60, v109
          v_cmp_ne_u32 vcc, s60, v109
          s_cmp_eq_u64 vcc, 0
          s_cselect_b32 s60, {FAST}, 0
          v_mov_b32 v106, s60
          ds_write_b32 v107, v106
          L_kb_nochk:
          s_and_b32 s31, s29, 1
          s_lshl_b32 s31, s31, 3
          s_add_u32 s31, s31, s30
          s_mul_i32 s31, s31, 3
          s_min_u32 s31, s31, 40           ; u0
          s_lshl_b32 s34, s31, 1
          s_lshl_b32 s35, s30, 3
          s_add_u32 s35, s35, 172
          s_mul_i32 s37, s30, 12
          s_add_u32 s37, s37, {236-20}
          s_sub_u32 s34, s34, 8
          v_and_b32 v108, 31, v1
          v_add_u32 v109, s35, v108
          v_add_u32 v110, s34, v108
          v_cmp_lt_u32 vcc, 7, v108
          v_cndmask_b32 v109, v109, v110, vcc
          v_add_u32 v110, {86-6}, v110
          v_cmp_lt_u32 vcc, 13, v108
          v_cndmask_b32 v109, v109, v110, vcc
          v_add_u32 v110, s37, v108
          v_cmp_lt_u32 vcc, 19, v108
          v_cndmask_b32 v109, v109, v110, vcc
          v_lshlrev_b32 v15, 7, v109
          s_mov_b32 s37, {PFLAG}
          s_mov_b32 exec_hi, 0""")
    pollN(k, "s37", "p")
    k(f"""s_lshl_b32 s40, s31, 14
          s_add_u32 s40, s40, {WPK}        ; z1 base
          s_cmp_ge_u32 s28, 4
          s_cbranch_scc1 L_gv_pf
          s_mul_i32 s35, s28, 3072
          s_add_u32 m0, s35, {148*1024}
          s_add_u32 s35, s35, s40""")
    for j in range(3): k(f"buffer_load_dwordx4 v2, s[24:27], s35 offen offset:{1024*j} lds")
    k(f"""s_mul_i32 s35, s28, 12288
          s_add_u32 s35, s35, s40
          s_add_u32 s35, s35, {43*16384}
          v_lshlrev_b32 v108, 7, v1
          buffer_load_dword v117, v108, s[24:27], s35 offen
          v_and_b32 v109, 31, v1
          v_lshlrev_b32 v109, 7, v109
          s_add_u32 s35, s35, 8192
          buffer_load_dword v117, v109, s[24:27], s35 offen
          s_mul_i32 s35, s28, 9216
          s_add_u32 s35, s35, s40
          s_add_u32 s35, s35, 12288
          buffer_load_dword v117, v108, s[24:27], s35 offen
          v_and_b32 v109, 7, v1
          v_lshlrev_b32 v109, 7, v109
          s_add_u32 s35, s35, 8192
          buffer_load_dword v117, v109, s[24:27], s35 offen""")
    k(f"""s_branch L_gv_c6
          L_gv_pf:""")
    if PFO:
        k(f"""s_lshl_b32 s35, s30, 2
              s_add_u32 s35, s35, s3
              s_mul_i32 s35, s35, 24576
              s_add_u32 s35, s35, {WUP}
              v_lshlrev_b32 v108, 7, v1""")
        for j in range(3):
            k(f"buffer_load_dword v117, v108, s[24:27], s35 offen\ns_add_u32 s35, s35, 8192")
    k(f"""
          L_gv_c6:""")
    waitcnt_lds(0, "6")
    k(f"""ds_write_b128 v103, {vr(O)}
          ds_write_b128 v103, {vr(O+4)} offset:1024
          ds_write_b32 v104, v{O+8} offset:2048
          ds_write_b32 v102, v119
          s_lshl_b32 s35, s30, 16
          s_lshl_b32 s37, s28, 13
          s_add_u32 s35, s35, s37
          s_add_u32 s35, s35, {WOP}
          s_lshr_b32 s37, s28, 1
          s_lshl_b32 s37, s37, 15
          s_lshl_b32 s41, s32, 13
          s_add_u32 s41, s41, s37
          s_mov_b32 m0, s41""")
    for j in range(4): k(f"buffer_load_dwordx4 v2, s[24:27], s35 offen offset:{1024*j} lds")
    k("s_add_u32 m0, s41, 4096\ns_add_u32 s35, s35, 4096")
    for j in range(4): k(f"buffer_load_dwordx4 v2, s[24:27], s35 offen offset:{1024*j} lds")
    lane_fields(k)
    if P1:
        waitcnt_lds(4, "7")
        k(f"""s_lshl_b32 s35, s28, 12
              s_add_u32 s35, s35, s40
              s_add_u32 s35, s35, {43*16384}
              s_lshl_b32 s41, s32, 12
              s_add_u32 s41, s41, s37
              s_add_u32 m0, s41, 16384""")
        for j in range(4): k(f"buffer_load_dwordx4 v2, s[24:27], s35 offen offset:{1024*j} lds")
    k(f"""s_lshl_b32 s33, s29, 13
          s_add_u32 s33, s33, {OFLAG}
          s_and_b32 s35, s28, 2
          s_lshl_b32 s35, s35, 11
          s_add_u32 s33, s33, s35
          s_and_b32 s35, s28, 4
          s_lshl_b32 s35, s35, 9
          s_add_u32 s33, s33, s35""")
    k(f"""s_lshr_b32 s61, s28, 2           ; kh
          s_lshl_b32 s36, s29, 2
          s_add_u32 s36, s36, s3           ; rb16
          s_lshl_b32 s37, s30, 1
          s_add_u32 s37, s37, s61
          v_and_b32 v14, 15, v1
          v_lshlrev_b32 v3, 10, v14
          v_lshl_add_u32 v3, v8, 3, v3
          s_lshl_b32 s44, s36, 14
          s_lshl_b32 s45, s37, 6
          s_add_u32 s44, s44, s45""")
    srd(k, 16, 4, 5, 2048 * 1024)
    k("""buffer_load_dwordx2 v[96:97], v3, s[16:19], s44 offen
         buffer_load_dwordx2 v[98:99], v3, s[16:19], s44 offen offset:32
         s_lshl_b32 s45, s61, 13
         v_add_u32 v4, s45, v2
         v_add_u32 v5, 65536, v4""")
    act32_voff(k, 3, "s32")
    k(f"""s_lshr_b32 s46, s36, 1
          s_lshl_b32 s46, s46, 15
          s_lshl_b32 s47, s61, 14
          s_add_u32 s46, s46, s47
          s_add_u32 s46, s46, {OF}""")
    for r in range(16): k(f"v_mov_b32 v{16+r}, 0")
    woff = lambda s, u: (4 + (u >> 1), (u & 1) * 32768 + s * 1024)
    k.stamp(3)
    k(f"""s_mov_b32 s60, 0
          L_gv_fw:
          ds_read_b32 v106, v107
          s_add_u32 s60, s60, 1
          s_waitcnt lgkmcnt(0)
          v_readfirstlane_b32 s63, v106
          s_cmp_gt_u32 s60, 0x400000
          s_cbranch_scc1 L_gv_fok
          s_cmp_eq_u32 s63, 2
          s_cbranch_scc1 L_gv_fw
          L_gv_fok:
          s_waitcnt vmcnt(0)
          s_barrier""")
    gemm64_reads(k, 0, woff)
    pollN(k, "s33", "o", 16)
    k.stamp(4)
    for s in range(8):
        if s % 2 == 0: k(f"s_add_u32 s47, s46, {s*2048}")
        k(f"buffer_load_dwordx4 {vr(64+4*s)}, v3, s[24:27], s47 offen offset:{2048*(s&1)} {LSC}")
    if OLB: k("s_barrier")
    gemm64(k, 8, woff, 64)
    k.stamp(5)
    k("s_barrier")
    ksplit_exchange(k, 0, "s28", tag="b")
    k(f"""v_lshlrev_b32 v40, 16, v96
          v_and_b32 v41, 0xffff0000, v96
          v_lshlrev_b32 v42, 16, v97
          v_and_b32 v43, 0xffff0000, v97
          v_lshlrev_b32 v44, 16, v98
          v_and_b32 v45, 0xffff0000, v98
          v_lshlrev_b32 v46, 16, v99
          v_and_b32 v47, 0xffff0000, v99
          s_lshl_b32 s47, s36, 4
          s_add_u32 s47, s47, s37
          s_lshl_b32 s46, s47, 7
          s_add_u32 s33, s46, {HFLAG}
          s_add_u32 s46, s46, {HSTAT}
          s_lshl_b32 s47, s47, 10
          s_add_u32 s47, s47, {HF}""")
    for i in range(8): k(f"v_add_f32 v{16+i}, v{16+i}, v{40+i}")
    k("s_waitcnt lgkmcnt(0)")
    for i in range(8): k(f"v_add_f32 v{16+i}, v{16+i}, v{32+i}")
    for i in range(4): k(f"v_cvt_pk_bf16_f32 v{48+i}, v{16+2*i}, v{17+2*i}")
    hstore(k, "buffer_store_dwordx4 v[48:51], v2, s[24:27], s47 offen")
    k("""v_mov_b32 v54, 0x3f803f80
         v_dot2_f32_bf16 v52, v48, v54, 0
         v_dot2_f32_bf16 v53, v48, v48, 0""")
    for i in range(1, 4):
        k(f"""v_dot2_f32_bf16 v52, v{48+i}, v54, v52
              v_dot2_f32_bf16 v53, v{48+i}, v{48+i}, v53""")
    xhalf_add(k, 52, 12); xhalf_add(k, 53, 13)
    x16_add(k, 52, 12); x16_add(k, 53, 13)
    k("""v_lshlrev_b32 v12, 3, v14
         s_mov_b64 exec, 0xffff""")
    hstore(k, "buffer_store_dwordx2 v[52:53], v12, s[24:27], s46 offen")
    k(f"""s_mov_b64 exec, -1
          s_and_b32 s31, s29, 1
          s_lshl_b32 s31, s31, 3
          s_add_u32 s30, s30, s31          ; g
          s_lshr_b32 s29, s29, 1           ; rb128
          s_mul_i32 s31, s30, 3
          s_min_u32 s31, s31, 40           ; u0
          s_lshl_b32 s36, s29, 3
          s_add_u32 s36, s36, s28
          s_lshl_b32 s62, s36, 11
          s_add_u32 s62, s62, {HFLAG}
          s_lshl_b32 s47, s36, 11
          s_add_u32 s47, s47, {ZSTAT}""")
    ACC, WF, H = 16, 40, 64
    k(f"""v_mov_b32 v4, v2
          v_add_u32 v5, 65536, v4
          v_add_u32 v6, 131072, v4
          v_lshlrev_b32 v7, 3, v14
          v_lshl_add_u32 v7, v8, 9, v7      ; n*8 + g*512""")
    set_flagN(k, "s33")
    k.stamp(6)
    if OLB: k("s_barrier")
    k(f"""s_cmp_eq_u32 s30, 15
          s_cbranch_scc0 L_k4_work
          v_mov_b32 v16, 0
          v_mov_b32 v17, 0
          v_lshlrev_b32 v12, 3, v14
          s_add_u32 s47, s47, {15*128}
          buffer_store_dwordx2 v[16:17], v12, s[24:27], s47 offen sc1
          s_barrier
          s_branch L_z_done
          L_k4_work:""")
    def WA(i):
        if i < 32: return (i >> 3) * 32768 + 16384 + (i & 7) * 1024
        if i < 48: return ((i - 32) >> 2) * 32768 + 24576 + (i & 3) * 1024
        if i < 60: return 148 * 1024 + (i - 48) * 1024
        l, j = divmod(i - 60, 9)
        return l * 32768 + 28672 + j * 1024 if j < 4 else 128 * 1024 + (5 * l + j - 4) * 1024
    def wreads(s, half):
        for u in range(3):
            a_ = WA((3*half + u) * 16 + s); f = WF + 12*half + 4*u
            k(f"ds_read_b128 {vr(f)}, v{4 + (a_ >> 16)} offset:{a_ & 0xffff}")
    for r in range(24): k(f"v_mov_b32 v{ACC+r}, 0")
    wreads(0, 0)
    k(f"""s_lshl_b32 s46, s36, 14
          s_add_u32 s46, s46, {HF}
          s_lshl_b32 s45, s36, 11
          s_add_u32 s45, s45, {HSTAT}
          """)
    pollN(k, "s62", "h", 16)
    k.stamp(7)
    q = VQ(k); hl = []
    for s in range(16):
        def f(s=s):
            if s % 4 == 0: k(f"s_add_u32 s44, s46, {s*1024}")
            k(f"buffer_load_dwordx4 {vr(H+4*s)}, v2, s[24:27], s44 offen offset:{1024*(s&3)} {LSC}")
        hl.append(f)
    for s in range(HW): q.issue(f"h{s}", 1, hl[s])
    def sl():
        for i in range(4):
            k(f"buffer_load_dwordx2 v[{8+2*i}:{9+2*i}], v7, s[24:27], s45 offen offset:{128*i} {LSC}")
    CS2, CS1, MR = 64, 72, 96
    for s in range(16):
        if WPR == 1: k(f"s_setprio {3 - (s & 3)}")
        if WPR == 2 and s % 4 == 0: k(f"s_setprio {3 - s // 4}")
        wreads(s, 1)
        q.wait(f"h{s}", extra=" lgkmcnt(3)")
        for u in range(3):
            k(f"v_mfma_f32_16x16x32_bf16 {vr(ACC+4*u)}, {vr(H+4*s)}, {vr(WF+4*u)}, {vr(ACC+4*u)}")
        if s + HW < 16: q.issue(f"h{s+HW}", 1, hl[s+HW])
        if s == 7: q.issue("st", 4, sl)
        if s < 15:
            wreads(s + 1, 0); k("s_waitcnt lgkmcnt(3)")
        else:
            k("s_waitcnt lgkmcnt(0)")
        for u in range(3):
            k(f"v_mfma_f32_16x16x32_bf16 {vr(ACC+12+4*u)}, {vr(WF+12+4*u)}, {vr(H+4*s)}, {vr(ACC+12+4*u)}")
        if s == 6:
            k.stamp(8)
        if s == 8:
            def cs():
                k(f"""v_and_b32 v3, 15, v1
                      v_lshlrev_b32 v3, 2, v3
                      s_lshl_b32 s38, s31, 6
                      s_add_u32 s38, s38, {CSUM}
                      s_add_u32 s39, s38, {688*4}""")
                for p in range(2):
                    for u in range(3):
                        k(f"buffer_load_dword v{CS2+3*p+u}, v3, s[24:27], s39 offen offset:{64*u}")
                    k("s_add_u32 s39, s39, 8192")
                k("v_lshrrev_b32 v3, 4, v1\nv_lshlrev_b32 v3, 4, v3")
                for p in range(2):
                    for u in range(3):
                        k(f"buffer_load_dwordx4 {vr(CS1+12*p+4*u)}, v3, s[24:27], s38 offen offset:{64*u}")
                    k("s_add_u32 s38, s38, 8192")
            q.issue("cs", 12, cs)
        if s == 12:
            q.wait("st")
            k("""v_add_f32 v8, v8, v10
                 v_add_f32 v9, v9, v11
                 v_add_f32 v12, v12, v14
                 v_add_f32 v13, v13, v15
                 v_add_f32 v8, v8, v12
                 v_add_f32 v9, v9, v13""")
            xhalf_add(k, 8, 12); xhalf_add(k, 9, 13)
        if s == 13:
            x16_add(k, 8, 12); x16_add(k, 9, 13)
            ln_stats(k, 8, 9, 512, 12)
        if s == 15:
            for r in range(4):
                k(f"""v_add_u32 v12, {4*r}, v3
                      ds_bpermute_b32 v{MR+r}, v12, v8
                      ds_bpermute_b32 v{MR+4+r}, v12, v9""")
    k.stamp(9)
    k("s_setprio 0\ns_barrier")
    T = 40; z2r = [ACC + i for i in range(12)]; z1r = [ACC + 12 + i for i in range(12)]
    k(f"""v_mov_b32 v15, {f32(GC2)}
          v_and_b32 v14, 15, v1
          s_waitcnt vmcnt(0)""")
    for u in range(3): k(f"v_add_f32 v{CS2+u}, v{CS2+u}, v{CS2+3+u}")
    k("s_waitcnt lgkmcnt(0)")
    for i, a in enumerate(z2r): k(f"v_fma_f32 v{a}, -v{MR+i%4}, v{CS2+i//4}, v{a}")
    for i, a in enumerate(z2r): k(f"v_mul_f32 v{a}, v{MR+4+i%4}, v{a}")
    for i, a in enumerate(z2r): k(f"v_mul_f32 v{T+i}, v{a}, v{a}")
    for i, a in enumerate(z2r): k(f"v_fmaak_f32 v{T+i}, v15, v{T+i}, {f32(GC1)}")
    for i, a in enumerate(z2r): k(f"v_mul_f32 v{T+i}, v{T+i}, v{a}")
    for i, a in enumerate(z2r): k(f"v_exp_f32 v{T+i}, v{T+i}")
    for i, a in enumerate(z2r): k(f"v_add_f32 v{T+i}, 1.0, v{T+i}")
    for i, a in enumerate(z2r): k(f"v_rcp_f32 v{T+i}, v{T+i}")
    for i, a in enumerate(z2r): k(f"v_mul_f32 v{a}, v{a}, v{T+i}")
    SQ = 52
    for r in range(4):
        k(f"v_mov_b32 v{SQ+2*r}, v{ACC+8+r}\nv_mul_f32 v{SQ+2*r+1}, v{ACC+8+r}, v{ACC+8+r}")
    k("""s_cmp_eq_u32 s30, 14
         s_cbranch_scc1 L_k4_red""")
    for u in range(2):
        for r in range(4):
            a = ACC + 4*u + r
            k(f"v_add_f32 v{SQ+2*r}, v{SQ+2*r}, v{a}\nv_fmac_f32 v{SQ+2*r+1}, v{a}, v{a}")
    k("s_nop 0\nL_k4_red:")
    for i in range(4): k(f"v_add_f32_dpp v{SQ+i}, v{SQ+i}, v{SQ+i} row_ror:8 row_mask:0xf bank_mask:0x3")
    for i in range(4): k(f"v_add_f32_dpp v{SQ+i}, v{SQ+4+i}, v{SQ+4+i} row_ror:8 row_mask:0xf bank_mask:0xc")
    for m_ in ("row_half_mirror", "quad_perm:[1,0,3,2]", "quad_perm:[2,3,0,1]"):
        for i in range(4): k(f"v_add_f32_dpp v{SQ+i}, v{SQ+i}, v{SQ+i} {m_} row_mask:0xf bank_mask:0xf")
    k(f"""s_mov_b32 s49, -2
          s_lshl_b32 s48, s30, 7
          s_add_u32 s48, s48, s47
          v_lshlrev_b32 v12, 1, v1           ; (l>>3)*16 for lanes l%8==0""")
    for j in range(4): k(f"v_min_u32 v{SQ+j}, s49, v{SQ+j}")
    k(f"""s_mov_b32 s50, 0x01010101
          s_mov_b32 s51, 0x01010101
          s_mov_b64 exec, s[50:51]""")
    hstore(k, f"buffer_store_dwordx4 {vr(SQ)}, v12, s[24:27], s48 offen")
    k("s_mov_b64 exec, -1")
    k.stamp(10)
    k(f"""v_mul_f32 v10, {f32(GC1)}, v9
          v_mul_f32 v11, v9, v9
          v_mul_f32 v11, v11, v9
          v_mul_f32 v11, {f32(GC2)}, v11
          v_rcp_f32 v13, v9""")
    for i in range(12): k(f"v_add_f32 v{CS1+i}, v{CS1+i}, v{CS1+12+i}")
    for i, a in enumerate(z1r): k(f"v_fma_f32 v{a}, -v8, v{CS1+i}, v{a}")
    for i, a in enumerate(z1r): k(f"v_mul_f32 v{T+i}, v{a}, v{a}")
    for i, a in enumerate(z1r): k(f"v_fma_f32 v{T+i}, v{T+i}, v11, v10")
    for i, a in enumerate(z1r): k(f"v_mul_f32 v{T+i}, v{T+i}, v{a}")
    for i, a in enumerate(z1r): k(f"v_exp_f32 v{T+i}, v{T+i}")
    for i, a in enumerate(z1r): k(f"v_fma_f32 v{T+i}, v{T+i}, v13, v13")
    for i, a in enumerate(z1r): k(f"v_rcp_f32 v{T+i}, v{T+i}")
    for i, a in enumerate(z1r): k(f"v_mul_f32 v{a}, v{a}, v{T+i}")
    k(f"""v_lshrrev_b32 v10, 4, v1           ; g
          v_and_b32 v11, 1, v10
          v_lshrrev_b32 v10, 1, v10
          v_lshlrev_b32 v12, 9, v11
          v_lshl_add_u32 v12, v14, 4, v12
          v_lshl_add_u32 v12, v10, 3, v12
          v_lshlrev_b32 v6, 9, v10
          v_lshl_add_u32 v6, v14, 4, v6
          v_lshl_add_u32 v6, v11, 3, v6
          s_lshr_b32 s44, s36, 1
          s_mul_i32 s44, s44, 44
          s_add_u32 s44, s44, s31
          s_lshl_b32 s44, s44, 10
          s_and_b32 s45, s36, 1
          s_lshl_b32 s45, s45, 8
          s_add_u32 s44, s44, s45
          s_add_u32 s44, s44, {Z1}
          s_mov_b32 s54, 0""")
    def zpoll():
        for i in range(4):
            k(f"buffer_load_dwordx2 v[{72+2*i}:{73+2*i}], v7, s[24:27], s47 offen offset:{128*i} sc1")
    zpoll()
    for u in range(3):
        a = ACC + 12 + 4*u; p = 64 + 2*u
        k(f"""v_cvt_pk_bf16_f32 v{p}, v{a}, v{a+1}
              v_cvt_pk_bf16_f32 v{p+1}, v{a+2}, v{a+3}
              buffer_store_dwordx2 v[{p}:{p+1}], v12, s[24:27], s44 offen offset:{1024*u} {ZSC}""")
    k("s_waitcnt vmcnt(3)\ns_branch L_k4_chk\nL_k4_poll:")
    zpoll()
    k(f"""s_waitcnt vmcnt(0)
          L_k4_chk:
          v_max3_u32 v12, v72, v73, v74
          v_max3_u32 v13, v75, v76, v77
          v_max3_u32 v12, v12, v78, v79
          v_max_u32 v12, v12, v13
          v_cmp_eq_u32 vcc, -1, v12
          s_add_u32 s54, s54, 1
          s_cmp_gt_u32 s54, 0x40000
          s_cbranch_scc1 L_k4_go
          s_cbranch_vccz L_k4_go
          s_sleep {SLEEP}
          s_branch L_k4_poll
          L_k4_go:""")
    k.stamp(11)
    k("""v_add_f32 v72, v72, v74
         v_add_f32 v73, v73, v75
         v_add_f32 v76, v76, v78
         v_add_f32 v77, v77, v79
         v_add_f32 v72, v72, v76
         v_add_f32 v73, v73, v77""")
    xhalf_add(k, 72, 12); xhalf_add(k, 73, 13)
    x16_add(k, 72, 12); x16_add(k, 73, 13)
    ln_stats(k, 72, 73, 688, 12)
    k("v_mul_f32 v72, -v72, v73")
    for r in range(4):
        k(f"""v_add_u32 v12, {4*r}, v3
              ds_bpermute_b32 v{MR+r}, v12, v72
              ds_bpermute_b32 v{MR+4+r}, v12, v73""")
    k(f"""s_lshl_b32 s45, s36, 10
          s_add_u32 s45, s45, {Z2F}
          s_waitcnt lgkmcnt(0)""")
    for i, a in enumerate(z2r): k(f"v_fma_f32 v{a}, v{a}, v{MR+4+i%4}, v{MR+i%4}")
    for u in range(3):
        a = ACC + 4*u; p = 80 + 2*u
        k(f"""s_add_u32 s44, s31, {u}
              s_lshr_b32 s46, s44, 1
              s_lshl_b32 s46, s46, 17
              s_and_b32 s44, s44, 1
              s_lshl_b32 s44, s44, 8
              s_add_u32 s44, s44, s46
              s_add_u32 s44, s44, s45
              v_cvt_pk_bf16_f32 v{p}, v{a}, v{a+1}
              v_cvt_pk_bf16_f32 v{p+1}, v{a+2}, v{a+3}
              buffer_store_dwordx2 v[{p}:{p+1}], v6, s[24:27], s44 offen {ZSC}""")
    k("L_z_done:")
    AD, NS, WOL = 3, 6, 65536
    ORD = [((p & 14) << 1) + (p & 1) + ((p >> 4) << 1) for p in range(32)] if PROG else list(range(32))
    ACC, BF, A = 16, 48, 80
    k(f"""s_load_dwordx2 s[6:7], s[0:1], 64
          s_load_dwordx2 s[10:11], s[0:1], 80
          s_mul_i32 s34, s57, 3
          s_min_u32 s34, s34, 19
          s_add_u32 s34, s34, s28
          s_lshl_b32 s62, s56, 12
          s_add_u32 s62, s62, {YFLAG}
          s_lshl_b32 s52, s34, 7
          s_add_u32 s52, s52, s62
          s_mul_i32 s53, s61, {11*128}
          s_add_u32 s62, s62, s53
          s_lshl_b32 s40, s34, 17
          s_add_u32 s41, s40, {Z2F}
          s_mov_b32 s40, s41
          s_mov_b32 s45, 0
          s_mul_i32 s39, s56, 88
          s_lshl_b32 s42, s34, 1
          s_add_u32 s39, s39, s42
          s_lshl_b32 s39, s39, 10
          v_and_b32 v15, 31, v1
          v_lshlrev_b32 v12, 1, v15
          s_lshl_b32 s43, s56, 7
          s_waitcnt vmcnt(0) lgkmcnt(0)
          s_barrier""")
    k.stamp(12)
    k(f"""s_cmp_lt_u32 s28, 3
          s_cbranch_scc1 L_k5_comp
          s_cmp_eq_u32 s28, 3
          s_cbranch_scc0 L_k5_idle
          s_lshl_b32 s44, s29, 4
          s_add_u32 s44, s44, s30
          s_lshl_b32 s44, s44, 7
          s_add_u32 s44, s44, {XIDC}""")
    set_flagN(k, "s44", drain=False, fast=False)
    k(f"""s_lshl_b32 s44, s57, 1
          s_min_u32 s44, s44, 12
          s_lshl_b32 s44, s44, 7
          s_add_u32 s44, s44, {XIDC}
          v_and_b32 v15, 7, v1
          v_lshlrev_b32 v15, 12, v15
          v_lshrrev_b32 v12, 3, v1
          v_min_u32 v12, 2, v12
          v_lshl_add_u32 v15, v12, 7, v15""")
    pollN(k, "s44", "z", sl=ZSL, pre=ZPRE)
    k("s_barrier\n" * (6 if PROG else 0) + "s_add_u32 s44, s44, 2048")
    pollN(k, "s44", "z2")
    k(f"""s_mov_b32 s55, {6 if PROG else 0}
          s_branch L_k5_ib
          L_k5_idle:""")
    k(f"""s_mov_b32 s55, 0
          L_k5_ib:
          s_barrier
          s_add_u32 s55, s55, 1""")
    if PTY:
        k(f"""s_cmp_eq_u32 s55, {PTY}
              s_cbranch_scc0 L_k5_i2
              s_cmp_eq_u32 s28, 4
              s_cbranch_scc0 L_k5_i2
              s_sub_u32 s44, s39, 8192
              s_add_u32 s44, s44, {YF}
              s_add_u32 s45, s44, {44*1024}
              s_cmp_eq_u32 s57, 7
              s_cselect_b32 s46, 32, 0
              v_min_u32 v12, 47, v1
              v_max_u32 v12, s46, v12
              v_lshlrev_b32 v12, 7, v12
              buffer_load_dword v127, v12, s[24:27], s44 offen
              buffer_load_dword v127, v12, s[24:27], s45 offen
              L_k5_i2:""")
    k(f"""
          s_cmp_lt_u32 s55, 17
          s_cbranch_scc1 L_k5_ib
          s_branch L_k6""")
    k("L_k5_comp:")
    srd(k, 20, 6, 7, 4096)
    k(f"""buffer_load_ushort v8, v12, s[20:23], s43 offen
          buffer_load_ushort v9, v12, s[20:23], s43 offen offset:64
          v_lshrrev_b32 v13, 1, v15
          v_and_b32 v13, 7, v13
          v_lshlrev_b32 v12, 7, v15
          v_lshrrev_b32 v10, 5, v1""")
    for qq in range(4):
        k(f"""v_add_u32 v14, {2*qq}, v10
              v_xor_b32 v14, v14, v13
              v_lshl_add_u32 v{4+qq}, v14, 4, v12""")
    k(f"""s_cmp_eq_u32 s34, 21
          s_cselect_b32 s44, {0x3ff & ~256}, -1
          v_and_b32 v3, s44, v2
          s_mov_b32 s55, 0
          s_mov_b32 s54, 24576
          s_waitcnt vmcnt(0)
          v_lshlrev_b32 v8, 16, v8
          v_lshlrev_b32 v9, 16, v9""")
    for r in range(16): k(f"v_mov_b32 v{ACC+r}, v8\nv_mov_b32 v{ACC+16+r}, v9")
    k("s_barrier")
    k.stamp(13 if False else 8)
    for i in range(AD):
        for j in range(4):
            k(f"buffer_load_dwordx4 {vr(A+16*i+4*j)}, v3, s[24:27], s40 offen offset:{1024*j}")
        k(f"s_add_u32 s40, s40, {(ORD[i+1]-ORD[i])*4096}")
    k(f"s_add_u32 s41, s41, 8192\ns_add_u32 s45, s39, {Z1}")
    def breads(half, slotoff):
        for j in range(2):
            for th in range(2):
                k(f"ds_read_b128 {vr(BF+16*half+8*j+4*th)}, v{4+2*half+j} offset:{slotoff+4096*th}")
    def mf(half, slot, ld):
        for j in range(2):
            for th in range(2):
                k(f"v_mfma_f32_32x32x16_bf16 {vr(ACC+16*th,16)}, {vr(A+16*slot+8*half+4*j)}, {vr(BF+16*half+8*j+4*th)}, {vr(ACC+16*th,16)}")
            if ld: ld(2*half + j)
    def ald(slot): return lambda jj: k(f"buffer_load_dwordx4 {vr(A+16*slot+4*jj)}, v3, s[24:27], s40 offen offset:{1024*jj}")
    k("s_barrier")
    breads(0, 0)
    k("L_k5_loop:")
    for i in range(6):
        sl = i % AD
        breads(1, i * 8192)
        k(f"s_waitcnt vmcnt({4*AD-2}) lgkmcnt(4)")
        mf(0, sl, ald(sl))
        if i & 1:
            k(f"s_waitcnt vmcnt({4*AD-2}) lgkmcnt(0)\ns_barrier")
            breads(0, ((i + 1) % 6) * 8192)
        else:
            breads(0, (i + 1) * 8192)
            k(f"s_waitcnt vmcnt({4*AD-2}) lgkmcnt(4)")
        mf(1, sl, ald(sl))
        k(f"s_add_u32 s40, s40, {12288 if i % 2 == 0 else 4096}" if PROG else "s_add_u32 s40, s40, 4096")
        if i == 0 and PROG:
            k(f"""s_cmp_eq_u32 s55, 2
                  s_cselect_b32 s40, s41, s40""")
        if i == 4:
            k(f"""s_add_u32 s55, s55, 1
                  s_cmp_eq_u32 s55, 5
                  s_cselect_b32 s40, s45, s40
                  s_cselect_b32 s44, -1, 0
                  v_and_or_b32 v3, s44, v2, v3""")
    k("""s_cmp_lt_u32 s55, 5
         s_cbranch_scc1 L_k5_loop""")
    k(f"s_add_u32 s43, s39, {Z1 + 44*1024}")
    breads(1, 0)
    k("s_waitcnt vmcnt(10) lgkmcnt(4)")
    mf(0, 0, lambda jj: k(f"buffer_load_dwordx4 {vr(A+4*jj)}, v2, s[24:27], s43 offen offset:{1024*jj}"))
    breads(0, 8192)
    k("s_waitcnt vmcnt(10) lgkmcnt(4)")
    mf(1, 0, None)
    breads(1, 8192)
    k("s_waitcnt vmcnt(8) lgkmcnt(4)")
    mf(0, 1, None)
    k("s_waitcnt vmcnt(6) lgkmcnt(0)")
    mf(1, 1, None)
    k.stamp(9)
    k("""s_cmp_eq_u32 s57, 7
         s_cselect_b32 s44, 2, 0
         s_cmp_lt_u32 s28, s44
         s_cbranch_scc1 L_k6_exit""")
    Zs = [A + 32 + i for i in range(8)] + [A + i for i in range(8)]
    k(f"""s_add_u32 s42, s39, {YF}
          s_add_u32 s43, s42, {44*1024}
          s_waitcnt vmcnt(0)""")
    for i in range(16):
        k(f"""v_lshlrev_b32 v{48+2*i}, 16, v{Zs[i]}
              v_and_b32 v{49+2*i}, 0xffff0000, v{Zs[i]}""")
    for i in range(32): k(f"v_mul_f32 v{ACC+i}, v{ACC+i}, v{48+i}")
    for i in range(16): k(f"v_cvt_pk_bf16_f32 v{A+i}, v{ACC+2*i}, v{ACC+2*i+1}")
    hstore(k, [f"buffer_store_dwordx4 {vr(A+8*th+4*f)}, v2, s[24:27], {'s43' if th else 's42'} offen offset:{1024*f}" for th in range(2) for f in range(2)])
    set_flagN(k, "s52")
    k.stamp(10)
    k("s_endpgm")
    k(f"""L_k6:
          s_cmp_eq_u32 s28, 3
          s_cbranch_scc1 L_k6_exit
          s_load_dwordx2 s[10:11], s[0:1], 80
          s_lshr_b32 s61, s28, 3           ; kh
          s_sub_u32 s48, s28, 4
          s_lshl_b32 s62, s56, 12
          s_add_u32 s62, s62, {YFLAG}
          s_mul_i32 s53, s61, {11*128}
          s_add_u32 s62, s62, s53""")
    lane_fields(k)
    k(f"""s_lshl_b32 s36, s56, 2
          s_add_u32 s36, s36, s3           ; rb16
          s_lshl_b32 s37, s57, 1
          s_add_u32 s37, s37, s61
          s_lshl_b32 s47, s36, 4
          s_add_u32 s47, s47, s37
          s_lshl_b32 s47, s47, 10
          s_add_u32 s47, s47, {HF}
          buffer_load_dwordx4 v[112:115], v2, s[24:27], s47 offen
          s_mul_i32 s45, s61, {11*1024}
          s_add_u32 s45, s45, {WOL}
          v_add_u32 v4, s45, v2
          v_add_u32 v5, {2*22528}, v4""")
    act32_voff(k, 3, "s32")
    k(f"""s_lshr_b32 s46, s36, 1
          s_mul_i32 s46, s46, {44*1024}
          s_mul_i32 s47, s61, {22*1024}
          s_add_u32 s46, s46, s47
          s_add_u32 s46, s46, {YF}
          s_cmp_eq_u32 s61, 0
          s_cselect_b32 s49, -1, 0
          s_waitcnt lgkmcnt(0)""")
    srd(k, 16, 10, 11, 2048 * 1024)
    for r in range(16): k(f"v_mov_b32 v{16+r}, 0")
    for r in range(4): k(f"v_mov_b32 v{64+40+r}, 0")
    woff = lambda s, u: (4 + (u >> 1), (u & 1) * 22528 + s * 1024)
    if WOT != 'tail': gemm64_reads(k, 0, woff)
    pollN(k, "s62", "y", 11)
    k.stamp(11)
    for s in range(11):
        if s % 2 == 0: k(f"s_add_u32 s47, s46, {s*2048}")
        if s == 10: k("s_mov_b32 exec_hi, s49")
        k(f"buffer_load_dwordx4 {vr(64+4*s)}, v3, s[24:27], s47 offen offset:{2048*(s&1)}")
    k("s_mov_b32 exec_hi, -1")
    if WOT == 'tail':
        k("s_barrier")
        gemm64_reads(k, 0, woff)
    k.stamp(8)
    if STAMPS: k("s_waitcnt vmcnt(10)")
    k.stamp(7)
    gemm64(k, 11, woff, 64)
    k.stamp(9)
    ksplit_exchange(k, 49152, "s48", tag="c")
    k.stamp(10)
    for i in range(4):
        k(f"""v_lshlrev_b32 v{40+2*i}, 16, v{112+i}
              v_and_b32 v{41+2*i}, 0xffff0000, v{112+i}""")
    for i in range(8): k(f"v_add_f32 v{16+i}, v{16+i}, v{40+i}")
    k(f"""v_and_b32 v12, 15, v1
          v_lshlrev_b32 v12, 10, v12
          v_and_b32 v13, 1, v8
          v_lshl_add_u32 v12, v13, 5, v12
          v_lshl_add_u32 v12, v9, 4, v12
          s_lshl_b32 s46, s36, 14
          s_lshl_b32 s47, s37, 6
          s_add_u32 s46, s46, s47
          s_waitcnt lgkmcnt(0)""")
    for i in range(8): k(f"v_add_f32 v{16+i}, v{16+i}, v{32+i}")
    for i in range(4): k(f"v_cvt_pk_bf16_f32 v{48+i}, v{16+2*i}, v{17+2*i}")
    k("""v_permlane16_swap_b32 v48, v50
         v_permlane16_swap_b32 v49, v51
         buffer_store_dwordx4 v[48:51], v12, s[16:19], s46 offen
         L_k6_exit:
         s_endpgm""")
    k(f"""L_kb_loader:
          s_and_b32 s31, s29, 1
          s_lshl_b32 s31, s31, 3
          s_add_u32 s30, s30, s31          ; g
          s_mul_i32 s31, s30, 3
          s_min_u32 s31, s31, 40           ; u0
          s_lshl_b32 s40, s31, 14
          s_lshl_b32 s38, s3, 12
          s_add_u32 s41, s40, s38
          s_add_u32 s41, s41, {WPK + 43*16384 + 32768}
          s_mul_i32 s38, s3, 9216
          s_add_u32 s40, s40, s38
          s_add_u32 s40, s40, {WPK + 12*1024}
          s_lshl_b32 s42, s3, 15
          s_add_u32 m0, s42, 24576
          s_mul_i32 s38, s3, 5120
          s_barrier""")
    if OLB: k("s_barrier")
    for j in range(4): k(f"buffer_load_dwordx4 v2, s[24:27], s41 offen offset:{1024*j} lds")
    if not P1:
        k("""s_mul_i32 s43, s3, 4096
             s_add_u32 s41, s41, s43
             s_sub_u32 s41, s41, 32768""")
        for h_ in range(2):
            k(f"s_add_u32 m0, s42, {16384 + 4096*h_}")
            for j in range(4): k(f"buffer_load_dwordx4 v2, s[24:27], s41 offen offset:{1024*j} lds")
            k("s_add_u32 s41, s41, 4096")
    k("s_add_u32 m0, s42, 28672")
    for j in range(4): k(f"buffer_load_dwordx4 v2, s[24:27], s40 offen offset:{1024*j} lds")
    k(f"s_add_u32 m0, s38, {128*1024}\ns_add_u32 s40, s40, 4096")
    for j in range(4): k(f"buffer_load_dwordx4 v2, s[24:27], s40 offen offset:{1024*j} lds")
    k(f"s_add_u32 m0, s38, {128*1024+4096}\ns_add_u32 s40, s40, 4096\nbuffer_load_dwordx4 v2, s[24:27], s40 offen lds")
    k.stamp(3)
    k(f"""s_load_dwordx2 s[16:17], s[0:1], 56
          s_lshl_b32 s35, s56, 6
          s_lshl_b32 s36, s3, 4
          s_add_u32 s35, s35, s36
          v_lshrrev_b32 v12, 3, v1
          v_add_u32 v5, s35, v12
          v_lshlrev_b32 v5, 12, v5
          v_and_b32 v13, 7, v1
          v_lshrrev_b32 v14, 4, v1
          v_xor_b32 v14, v13, v14
          v_lshl_add_u32 v5, v14, 4, v5
          v_xor_b32 v6, 64, v5
          v_add_u32 v6, {8*4096}, v6
          s_lshl_b32 s37, s3, 11
          s_lshl_b32 s36, s57, 2
          s_add_u32 s36, s36, s3
          s_mul_i32 s36, s36, 24576
          s_add_u32 s36, s36, {WUP}
          s_mul_i32 s35, s3, 22528
          s_add_u32 s35, s35, {WOL}
          s_mov_b32 s18, {2048*4096}
          s_mov_b32 s19, 0x00020000
          s_waitcnt {'' if OLB else 'vmcnt(0)'} lgkmcnt(0)""")
    k.stamp(4)
    k("s_barrier\ns_barrier")
    if OLB: k("s_waitcnt vmcnt(0)\ns_barrier")
    k("s_barrier")
    q = VQ(k)
    def bi(c):
        q.issue(f"b{c}", 2, lambda: k(f"""s_add_u32 m0, s37, {(c % NS)*8192}
              s_movk_i32 s41, {ORD[c]*128}
              buffer_load_dwordx4 v5, s[16:19], s41 offen lds
              s_add_u32 m0, s37, {(c % NS)*8192 + 1024}
              buffer_load_dwordx4 v6, s[16:19], s41 offen lds"""))
    def wi(c):
        q.issue(f"w{c}", 2, lambda: k(f"""s_add_u32 m0, s35, {c*2048}
              s_add_u32 s39, s36, {c*2048}
              buffer_load_dwordx4 v2, s[24:27], s39 offen lds
              {'s_sleep %d' % WSL2 if WSL2 else ''}
              buffer_load_dwordx4 v2, s[24:27], s39 offen offset:1024 lds
              {'s_sleep %d' % WSL2 if WSL2 else ''}"""))
    if WOT == 'kl':
        for c in range(11): wi(c)
    nxt = 0
    for _ in range(NS): bi(nxt); nxt += 1
    k.stamp(5)
    k("s_barrier")
    if WOT == 'zb':
        for c in range(11): wi(c)
    k("s_barrier")
    for b in range(16):
        q.wait(f"b{2*b+1}"); k("s_barrier")
        while nxt < 32 and nxt - NS <= 2*b - 1: bi(nxt); nxt += 1
    k("s_branch L_k6")
    k(f"L_{k.name}_end:\ns_endpgm")
    return k, (256, 1024, 163840)
```

```python
from common import *
from k3 import *
from g16 import *
from k4 import GC1, GC2
import os
LSC = os.environ.get('LSC', '')
MAPC = int(os.environ.get('MAPC', 0))
ZSC = os.environ.get('ZSC', 'sc1')
PT = int(os.environ.get('PT', 0))
HW = int(os.environ.get('HW', 6))
PF2 = int(os.environ.get('PF2', 1))
WSL = int(os.environ.get('WSL', 1))
WSL2 = int(os.environ.get('WSL2', 0))
KVROT = int(os.environ.get('KVROT', 1))
WOT = os.environ.get('WOT', 'zb')
RP = int(os.environ.get('RP', 2))
PROG = int(os.environ.get('PROG', 1))
WB = int(os.environ.get('WB', 28))
PRIO = int(os.environ.get('K2_PRIO', 1))
PFQ = int(os.environ.get('PFQ', 1))
TLBW = int(os.environ.get('TLBW', 0))
OLB = int(os.environ.get('OLB', 0))
WPR = int(os.environ.get('WPR', 0))
EPB = int(os.environ.get('EPB', 0))
ZSL = int(os.environ.get('ZSL', 2))
ZPRE = int(os.environ.get('ZPRE', 0))
KSL = int(os.environ.get('KSL', 2))
KSTR = int(os.environ.get('KSTR', 4))
C0 = int(os.environ.get('C0', 0))
SCH = int(os.environ.get('SCH', 0))
SMF = int(os.environ.get('SMF', 3))
P1 = int(os.environ.get('P1', 1))
PFO = int(os.environ.get('PFO', 0))
PTY = int(os.environ.get('PTY', 12))
KLC = int(os.environ.get('KLC', 1))
PFM = int(os.environ.get('PFM', 15))
PFSC = os.environ.get('PFSC', '')

FUSEC = int(os.environ.get('FUSEC', 1))
def build_kall():
    k = Kern("sequential_preLN__grouped_kv_mqa__mixer_gmlp__prompt_kernel", nvgpr=128)
    NW = 16
    KL, VL, XL = 0, 65536, 131072
    Q = 4; KFR = 8; VFR = [[12, 16], [20, 24]]; P = 28; S = [36, 52]; O = 68; C = 84
    vK, vV = 100, 101
    NCH, NIT = 4, 8
    prologue_ids(k, 256)
    k("""s_load_dwordx8 s[4:11], s[0:1], 0
         s_load_dwordx4 s[12:15], s[0:1], 88""")
    k("""s_and_b32 s29, s2, 7
         s_lshr_b32 s30, s2, 3
         s_lshl_b32 s29, s29, 2
         s_lshr_b32 s31, s30, 3
         s_add_u32 s29, s29, s31          ; rb64
         s_and_b32 s30, s30, 7            ; cg
         s_and_b32 s3, s28, 3
         s_and_b32 s32, s28, 1            ; rh
         s_mov_b32 s56, s29
         s_mov_b32 s57, s30""")
    XL0, WL0, KVL, SX, QL = 0, 65536, 131072, 147456, 131072
    CSX = SX + 1024
    FASTW, CNT = 146 * 1024 + 512, 146 * 1024 + 576
    k("""s_lshl_b32 s46, s31, 1
         s_add_u32 s46, s46, s30
         s_and_b32 s46, s46, 7
         s_lshr_b32 s33, s3, 1            ; ch
         s_mov_b32 s62, 0
         s_mov_b32 s20, 0
         s_mov_b32 s21, 0
         s_mov_b32 s22, 0
         s_mov_b32 s23, 0x00020000
         v_mov_b32 v108, 0
         v_mov_b32 v109, 0
         v_mov_b32 v113, 0
         v_lshlrev_b32 v2, 4, v1""")
    lane_fields(k)
    k(f"""s_cmp_ge_u32 s28, 12
          s_cbranch_scc1 L_p0_st
          s_cmp_ge_u32 s28, 8
          s_cbranch_scc1 L_p0_q
          s_cmp_eq_u32 s28, 2
          s_cbranch_scc1 L_p0_kv
          s_cmp_eq_u32 s28, 3
          s_cbranch_scc1 L_p0_n
          s_cmp_lt_u32 s28, 2
          s_cbranch_scc1 L_p0_pack""")
    def att_ids():
        k(f"""s_and_b32 s38, s28, 7            ; q idx
              s_lshr_b32 s39, s28, 3
              s_lshl_b32 s44, s39, 15          ; half*32768
              s_lshl_b32 s47, s38, 10
              s_add_u32 s47, s47, s44
              v_add_u32 v3, s47, v2""")
    def kvdma(c):
        k(f"""s_add_u32 m0, s47, {KL + 8192*c}
              s_add_u32 s34, s57, {c}
              s_and_b32 s34, s34, {3 if KVROT else 0}
              s_lshl_b32 s34, s34, 13
              s_add_u32 s34, s34, {KF + (0 if KVROT else 8192*c)}
              s_add_u32 s35, s34, {VF - KF}
              buffer_load_dwordx4 v3, s[24:27], s34 offen lds
              s_add_u32 m0, s47, {VL + 8192*c}
              buffer_load_dwordx4 v3, s[24:27], s35 offen lds""")
    def att_init():
        k(f"""s_lshl_b32 s33, s29, 1
              s_add_u32 s33, s33, s32
              s_lshl_b32 s33, s33, 5
              s_lshl_b32 s34, s30, 2
              s_add_u32 s33, s33, s34
              s_lshr_b32 s34, s38, 1
              s_add_u32 s33, s33, s34
              s_lshl_b32 s46, s33, 10
              s_lshl_b32 s34, s38, 10
              s_add_u32 s34, s34, {QL}
              v_add_u32 v102, s34, v2
              v_mov_b32 v112, 0
              s_lshr_b32 s63, s29, 1
              s_lshl_b32 s63, s63, 11
              s_add_u32 s63, s63, {XID}
              v_add_u32 v{vK}, s44, v2
              v_lshrrev_b32 v103, 5, v1
              v_and_b32 v106, 15, v1
              v_lshl_add_u32 v103, v103, 4, v106
              v_lshlrev_b32 v103, 4, v103
              v_add_u32 v103, s44, v103
              v_add_u32 v{vV}, {VL}, v103
              v_mov_b32 v103, {SX + 768}
              s_mov_b32 s40, 0x0000ffff
              s_mov_b32 s41, 0x0000ffff
              v_and_b32 v106, 31, v1
              v_cmp_eq_u32 vcc, 16, v106
              v_mov_b32 v107, 0x3f803f80
              v_cndmask_b32 v107, 0, v107, vcc
              s_mov_b32 s42, 1
              s_mov_b32 s36, 0
              s_movk_i32 s31, {0x56 if PRIO == 3 else 0x52}
              s_cmp_eq_u32 s28, 4
              s_cselect_b32 s31, {0x5e if PRIO == 3 else 0x5a}, s31
              s_cmp_lg_u32 s62, 0
              s_cselect_b32 s31, {0x5e if PRIO == 3 else 0x5a}, s31
              v_mov_b32 v118, {CNT}
              v_mov_b32 v119, 1""")
        for i in range(16): k(f"v_mov_b32 v{12+i}, v107")
        for i in range(16): k(f"v_mov_b32 v{O+i}, 0")
        if SMF:
            k(f"v_mov_b32 v{P}, 0xdddddddd")
            for i in range(8): k(f"v_mov_b32 v{S[1]+8+i}, 0")
        k(f"v_mov_b32 v107, {f32(3500.0)}")
    k(f"""s_lshl_b32 s34, s29, 6
          s_lshl_b32 s35, s3, 4
          s_add_u32 s34, s34, s35
          v_lshrrev_b32 v12, 3, v1
          v_add_u32 v6, s34, v12
          v_lshlrev_b32 v6, 10, v6
          v_and_b32 v13, 7, v1
          v_xor_b32 v14, v13, v8
          v_lshl_add_u32 v6, v14, 4, v6
          v_xor_b32 v7, 64, v6
          v_add_u32 v7, 8192, v7
          s_lshl_b32 s36, s30, 7
          s_lshl_b32 s37, s3, 11
          s_mov_b32 s45, s46""")
    wt_dma_addr(k, 4, 5, "s35", "s36")
    k("s_waitcnt lgkmcnt(0)")
    srd(k, 16, 4, 5, 2048 * 1024); srd(k, 20, 6, 7, 512 * 1024); srd(k, 24, 14, 15, WS_USED)
    q = VQ(k)
    def xi(c):
        q.issue(f"x{c}", 2, lambda: k(f"""s_add_u32 m0, s37, {XL0 + c*8192}
              s_lshl_b32 s38, s46, 7
              s_add_u32 s46, s46, 1
              buffer_load_dwordx4 v6, s[16:19], s38 offen lds
              s_add_u32 m0, s37, {XL0 + c*8192 + 1024}
              s_and_b32 s46, s46, 7
              buffer_load_dwordx4 v7, s[16:19], s38 offen lds"""))
    def wqi(c):
        q.issue(f"w{c}", 2, lambda: k(f"""s_add_u32 m0, s37, {WL0 + c*8192}
              s_lshl_b32 s38, s45, 16
              s_add_u32 s45, s45, 1
              buffer_load_dwordx4 v4, s[20:23], s38 offen lds
              s_add_u32 m0, s37, {WL0 + c*8192 + 1024}
              s_and_b32 s45, s45, 7
              buffer_load_dwordx4 v5, s[20:23], s38 offen lds"""))
    for c in range(6): xi(c)
    k.stamp(2); q.wait("x1"); k.stamp(3); k("s_barrier"); k.stamp(4)
    xi(6); xi(7); wqi(0); wqi(1)
    q.wait("x3"); k("s_barrier")
    wqi(2); wqi(3); wqi(4)
    q.wait("x5"); k("s_barrier")
    wqi(5); wqi(6); wqi(7)
    q.wait("x7"); k.stamp(5); k("s_barrier\ns_barrier")
    for i in range(4):
        q.wait(f"w{2*i+1}"); k("s_barrier")
    k.stamp(6)
    k("s_branch L_att")
    k(f"""L_p0_q:
          v_mov_b32 v64, 0x3f803f80
          v_mov_b32 v65, 0x3f803f80
          v_mov_b32 v66, 0x3f803f80
          v_mov_b32 v67, 0x3f803f80
          v_lshl_add_u32 v6, v9, 3, v10
          v_lshlrev_b32 v6, 7, v6
          v_lshrrev_b32 v12, 1, v10
          v_xor_b32 v12, s33, v12
          v_lshl_add_u32 v6, v12, 6, v6
          v_and_b32 v12, 1, v8
          v_lshl_add_u32 v6, v12, 5, v6
          v_lshl_add_u32 v6, v11, 3, v6
          v_add_u32 v6, {WL0}, v6
          v_and_b32 v12, 31, v1
          s_lshl_b32 s40, s32, 5
          v_add_u32 v12, s40, v12
          v_lshlrev_b32 v76, 3, v12
          v_add_u32 v76, {SX}, v76
          v_lshlrev_b32 v77, 4, v9
          s_lshl_b32 s41, s3, 7
          s_add_u32 s41, s41, {CSX}
          v_add_u32 v77, s41, v77
          v_xor_b32 v78, 128, v77
          v_lshrrev_b32 v13, 1, v12
          v_and_b32 v13, 7, v13
          v_lshlrev_b32 v12, 7, v12""")
    for qq in range(4):
        k(f"""v_add_u32 v14, {2*qq}, v9
              v_xor_b32 v14, v14, v13
              v_lshl_add_u32 v{72+qq}, v14, 4, v12""")
    for r in range(32): k(f"v_mov_b32 v{32+r}, 0")
    k("s_waitcnt lgkmcnt(0)")
    srd(k, 24, 14, 15, WS_USED)
    k("s_barrier\n" * 5)
    k.stamp(4)
    def qreads(c):
        s = c & 1
        for qq in range(4):
            st = 4*c + qq
            k(f"""ds_read_b64_tr_b16 v[{FA(s,qq)}:{FA(s,qq)+1}], v6 offset:{2048*st}
                  ds_read_b64_tr_b16 v[{FA(s,qq)+2}:{FA(s,qq)+3}], v6 offset:{2048*st+512}
                  ds_read_b128 {vr(FB(s,qq))}, v{72+qq} offset:{XL0 + 8192*c}""")
    def qloop(cs):
        def step(c, qq):
            s = c & 1
            k(f"v_mfma_f32_32x32x16_bf16 v[32:47], {vr(FA(s,qq))}, {vr(FB(s,qq))}, v[32:47]")
            if (qq & 1) == cs: k(f"v_mfma_f32_32x32x16_bf16 v[48:63], {vr(FA(s,qq))}, v[64:67], v[48:63]")
        k("s_barrier")
        k.stamp(5)
        qreads(0)
        for c in range(8):
            for qq in range(3):
                k(f"s_waitcnt lgkmcnt({9-3*qq})"); step(c, qq)
            k("s_waitcnt lgkmcnt(0)")
            if c < 7:
                if c & 1: k("s_barrier")
                qreads(c + 1)
            step(c, 3)
    k("""s_cmp_eq_u32 s32, 0
         s_cbranch_scc0 L_p0_qcs""")
    qloop(0)
    k("s_branch L_p0_qfin\nL_p0_qcs:")
    qloop(1)
    k("L_p0_qfin:\ns_nop 7")
    for gq in range(4): k(f"ds_write_b128 v77, {vr(48+4*gq)} offset:{32*gq}")
    k(f"""s_lshl_b32 s34, s33, 12
          s_lshl_b32 s35, s32, 10
          s_add_u32 s34, s34, s35
          s_add_u32 s34, s34, {QL}
          v_add_u32 v70, s34, v2""")
    att_ids()
    k("s_waitcnt lgkmcnt(0)\ns_barrier")
    k.stamp(6)
    k("ds_read_b64 v[68:69], v76")
    for gq in range(4): k(f"ds_read_b128 {vr(80+4*gq)}, v78 offset:{32*gq}")
    kvdma(0)
    k(f"""s_waitcnt lgkmcnt(0)
          v_mul_f32 v69, {f32(0.25*1.4426950408889634)}, v69""")
    for r in range(16): k(f"v_add_f32 v{48+r}, v{48+r}, v{80+r}")
    for r in range(16): k(f"v_fma_f32 v{32+r}, -v68, v{48+r}, v{32+r}")
    for r in range(16): k(f"v_mul_f32 v{32+r}, v69, v{32+r}")
    for r in range(8): k(f"v_cvt_pk_bf16_f32 v{48+r}, v{32+2*r}, v{33+2*r}")
    k("""ds_write_b128 v70, v[48:51]
         ds_write_b128 v70, v[52:55] offset:2048""")
    att_init()
    k("s_branch L_att2")
    k(f"""L_p0_st:
          v_lshrrev_b32 v12, 2, v1
          s_lshl_b32 s34, s3, 4
          v_add_u32 v12, s34, v12           ; row
          v_lshlrev_b32 v7, 3, v12
          v_add_u32 v7, {SX}, v7
          v_lshrrev_b32 v13, 1, v12
          v_and_b32 v13, 7, v13
          v_lshlrev_b32 v12, 7, v12
          v_lshlrev_b32 v14, 1, v11
          v_xor_b32 v14, v14, v13
          v_lshl_add_u32 v4, v14, 4, v12
          v_xor_b32 v5, 16, v4
          v_mov_b32 v64, 0x3f803f80""")
    for i in range(4): k(f"v_mov_b32 v{48+i}, 0")
    k("s_waitcnt lgkmcnt(0)")
    srd(k, 24, 14, 15, WS_USED)
    for gi_ in range(4):
        k("s_barrier")
        for c in range(2):
            k(f"""ds_read_b128 {vr(16+8*c)}, v4 offset:{XL0 + 8192*(2*gi_+c)}
                  ds_read_b128 {vr(20+8*c)}, v5 offset:{XL0 + 8192*(2*gi_+c)}""")
        k("s_waitcnt lgkmcnt(0)")
        for d in range(16):
            k(f"""v_dot2_f32_bf16 v{48+(d&1)}, v{16+d}, v64, v{48+(d&1)}
                  v_dot2_f32_bf16 v{50+(d&1)}, v{16+d}, v{16+d}, v{50+(d&1)}""")
    k("v_add_f32 v48, v48, v49\nv_add_f32 v49, v50, v51")
    for qp in ("[1,0,3,2]", "[2,3,0,1]"):
        for i in range(2): k(f"v_add_f32_dpp v{48+i}, v{48+i}, v{48+i} quad_perm:{qp} row_mask:0xf bank_mask:0xf")
    ln_stats(k, 48, 49, 512, 12)
    k("ds_write_b64 v7, v[48:49]\ns_waitcnt lgkmcnt(0)")
    k("s_barrier\n" * 5 + "s_branch L_att")
    k(f"""L_p0_n:
          v_mov_b32 v20, 0
          s_memrealtime s[58:59]
          s_waitcnt lgkmcnt(0)""")
    srd(k, 24, 14, 15, WS_USED); srd(k, 16, 12, 13, 256)
    if PFQ:
        srd(k, 20, 6, 7, 512 * 1024)
        k(f"""s_lshr_b32 s34, s2, 3
              s_lshl_b32 s34, s34, 14
              s_add_u32 s35, s34, 8192
              v_lshlrev_b32 v24, 7, v1
              buffer_load_dword v25, v24, s[20:23], s34 offen
              buffer_load_dword v25, v24, s[20:23], s35 offen""")
    k(f"""s_mov_b64 exec, 1
          s_cmp_eq_u32 s2, 0
          s_cbranch_scc0 L_p0_n1
          s_or_b32 s59, s59, 0x40000000
          v_mov_b32 v22, s58
          v_mov_b32 v23, s59
          buffer_store_dwordx2 v[22:23], v20, s[16:19], 0 offen sc1
          L_p0_n1:
          s_barrier
          s_barrier
          s_mov_b32 s60, 0
          L_p0_np:
          buffer_load_dwordx2 v[22:23], v20, s[16:19], 0 offen sc1
          s_add_u32 s60, s60, 1
          s_cmp_eq_u32 s60, 1
          s_cbranch_scc0 L_p0_nw
          s_barrier
          s_barrier
          L_p0_nw:
          s_waitcnt vmcnt(0)
          v_cmp_eq_u32 vcc, 0, v23
          s_cmp_gt_u32 s60, 0x40000
          s_cbranch_scc1 L_p0_n2
          s_cbranch_vccnz L_p0_np
          L_p0_n2:
          v_mov_b32 v21, {SX + 768}
          ds_write_b64 v21, v[22:23]
          v_readfirstlane_b32 s58, v22
          v_readfirstlane_b32 s59, v23
          s_mov_b64 exec, -1
          v_lshlrev_b32 v21, 2, v1
          v_add_u32 v21, {FASTW}, v21
          v_cmp_eq_u32 vcc, 0, v1
          v_cndmask_b32 v22, 0, 2, vcc
          ds_write_b32 v21, v22
          v_mov_b32 v21, {SX + 768}
          v_lshlrev_b32 v26, {KSTR}, v1
          s_waitcnt lgkmcnt(0)""")
    k.stamp(4)
    k("s_barrier\n" * (5 - EPB))
    k.stamp(5)
    k(f"""s_mov_b32 s60, 0
          L_p0_gp:""")
    for i in range(4): k(f"s_mov_b32 s34, {KVFLAG + (64 << KSTR) * i}\nbuffer_load_dwordx3 v[{28+4*i}:{30+4*i}], v26, s[24:27], s34 offen sc1")
    if EPB:
        k("s_cmp_eq_u32 s60, 0\ns_cbranch_scc0 L_p0_gw\n" + "s_barrier\n" * EPB + "L_p0_gw:")
    k("s_add_u32 s60, s60, 1\ns_waitcnt vmcnt(0)")
    for i in range(4):
        k(f"v_xor_b32 v{28+4*i}, s58, v{28+4*i}\nv_xor_b32 v{29+4*i}, s59, v{29+4*i}")
    k(f"""v_or3_b32 v28, v28, v29, v32
          v_or3_b32 v33, v33, v36, v37
          v_or3_b32 v28, v28, v40, v41
          v_or_b32 v28, v28, v33
          v_cmp_ne_u32 vcc, 0, v28
          s_cmp_gt_u32 s60, 0x40000
          s_cbranch_scc1 L_p0_g2
          s_cbranch_vccz L_p0_g2
          s_sleep {KSL}
          s_branch L_p0_gp
          L_p0_g2:
          v_max3_f32 v30, v30, v34, v38
          v_max_f32 v30, v30, v42""")
    for sh in (1, 2, 4, 8):
        k(f"v_max_f32_dpp v30, v30, v30 row_ror:{sh} row_mask:0xf bank_mask:0xf")
    k("""v_mov_b32 v31, v30
         v_permlane16_swap_b32 v30, v31
         v_max_f32 v30, v30, v31
         v_mov_b32 v31, v30
         v_permlane32_swap_b32 v30, v31
         v_max_f32 v30, v30, v31
         ds_write_b32 v21, v30 offset:8
         s_branch L_att""")
    k(f"""L_p0_kv:
          s_lshr_b32 s40, s30, 2           ; kv
          s_and_b32 s41, s30, 3            ; rq
          s_waitcnt lgkmcnt(0)
          s_cmp_eq_u32 s40, 0
          s_cselect_b32 s20, s8, s10
          s_cselect_b32 s21, s9, s11
          s_mov_b32 s22, 16384
          s_mov_b32 s23, 0x00020000""")
    srd(k, 24, 14, 15, WS_USED)
    for c in range(8):
        k(f"""s_mov_b32 m0, {KVL + 2048*c}
              s_lshl_b32 s38, s46, 11
              s_add_u32 s46, s46, 1
              buffer_load_dwordx4 v2, s[20:23], s38 offen lds
              buffer_load_dwordx4 v2, s[20:23], s38 offen offset:1024 lds
              s_and_b32 s46, s46, 7""")
    k(f"""v_mov_b32 v64, 0x3f803f80
          v_mov_b32 v65, 0x3f803f80
          v_mov_b32 v66, 0x3f803f80
          v_mov_b32 v67, 0x3f803f80
          v_and_b32 v15, 15, v1
          s_lshl_b32 s34, s41, 4
          v_add_u32 v12, s34, v15
          v_lshlrev_b32 v74, 3, v12
          v_add_u32 v74, {SX}, v74
          v_lshl_add_u32 v75, v8, 2, s34
          v_lshlrev_b32 v75, 3, v75
          v_add_u32 v75, {SX}, v75
          v_lshrrev_b32 v13, 1, v12
          v_and_b32 v13, 7, v13
          v_lshlrev_b32 v12, 7, v12
          v_xor_b32 v14, v8, v13
          v_lshl_add_u32 v72, v14, 4, v12
          v_add_u32 v14, 4, v8
          v_xor_b32 v14, v14, v13
          v_lshl_add_u32 v73, v14, 4, v12
          v_lshl_add_u32 v6, v8, 3, v10
          v_lshlrev_b32 v6, 5, v6
          v_lshl_add_u32 v6, v11, 3, v6
          v_add_u32 v6, {KVL}, v6
          s_lshl_b32 s34, s29, 2
          s_add_u32 s34, s34, s41          ; t16
          v_and_b32 v12, 1, v8             ; h
          v_lshrrev_b32 v13, 1, v8         ; piece
          v_mov_b32 v76, {SX + 768}
          s_and_b32 s37, s2, 7
          s_lshl_b32 s37, s37, {5 + KSTR}
          s_lshr_b32 s36, s2, 3
          s_lshl_b32 s36, s36, {KSTR}
          s_add_u32 s37, s37, s36
          s_add_u32 s37, s37, {KVFLAG}""")
    for r in range(8): k(f"v_mov_b32 v{32+r}, 0")
    def kvloop(isv):
        for gi_ in range(4):
            k(f"s_waitcnt vmcnt({4*(3-gi_)})\ns_barrier")
            for s in range(4):
                st = 4*gi_ + s; b = 80 + 8*s
                k(f"""ds_read_b64_tr_b16 v[{b}:{b+1}], v6 offset:{1024*st}
                      ds_read_b64_tr_b16 v[{b+2}:{b+3}], v6 offset:{1024*st+128}
                      ds_read_b128 {vr(b+4)}, v{72+(s&1)} offset:{XL0+8192*(st//2)}""")
            for s in range(4):
                W, X = 80 + 8*s, 84 + 8*s
                k(f"s_waitcnt lgkmcnt({9-3*s})")
                if isv:
                    k(f"""v_mfma_f32_16x16x32_bf16 v[32:35], {vr(X)}, {vr(W)}, v[32:35]
                          v_mfma_f32_16x16x32_bf16 v[36:39], v[64:67], {vr(W)}, v[36:39]""")
                else:
                    k(f"""v_mfma_f32_16x16x32_bf16 v[32:35], {vr(W)}, {vr(X)}, v[32:35]
                          v_mfma_f32_16x16x32_bf16 v[36:39], {vr(W)}, v[64:67], v[36:39]""")
        k("s_barrier\nds_read_b64 v[40:41], v76")
    k("""s_cmp_eq_u32 s40, 0
         s_cbranch_scc0 L_p0_v""")
    kvloop(False)
    k(f"""ds_read_b64 v[68:69], v74
          v_lshlrev_b32 v3, 9, v12
          v_lshl_add_u32 v3, v15, 4, v3
          v_lshl_add_u32 v3, v13, 3, v3
          s_lshr_b32 s35, s34, 1
          s_lshl_b32 s35, s35, 10
          s_and_b32 s36, s34, 1
          s_lshl_b32 s36, s36, 8
          s_add_u32 s35, s35, s36
          s_add_u32 s35, s35, {KF}
          s_waitcnt lgkmcnt(0)""")
    for r in range(4): k(f"v_fma_f32 v{32+r}, -v68, v{36+r}, v{32+r}")
    for r in range(4): k(f"v_mul_f32 v{32+r}, v69, v{32+r}")
    k(f"""v_cvt_pk_bf16_f32 v36, v32, v33
          v_cvt_pk_bf16_f32 v37, v34, v35
          buffer_store_dwordx2 v[36:37], v3, s[24:27], s35 offen sc1
          v_dot2_f32_bf16 v42, v36, v36, 0
          v_dot2_f32_bf16 v42, v37, v37, v42""")
    xhalf_add(k, 42, 12); x16_add(k, 42, 12)
    for sh in (1, 2, 4, 8):
        k(f"v_max_f32_dpp v42, v42, v42 row_ror:{sh} row_mask:0xf bank_mask:0xf")
    k("s_branch L_p0_kvf\nL_p0_v:")
    kvloop(True)
    k(f"""ds_read_b128 v[56:59], v75
          ds_read_b128 v[60:63], v75 offset:16
          v_lshlrev_b32 v3, 8, {'v13' if SMF else 'v12'}
          v_lshl_add_u32 v3, v15, 4, v3
          v_lshl_add_u32 v3, {'v12' if SMF else 'v13'}, 3, v3
          s_lshl_b32 s35, s34, 9
          s_add_u32 s35, s35, {VF}
          v_mov_b32 v42, 0
          s_waitcnt lgkmcnt(0)""")
    for r in range(4): k(f"v_fma_f32 v{32+r}, -v{56+2*r}, v{36+r}, v{32+r}")
    for r in range(4): k(f"v_mul_f32 v{32+r}, v{57+2*r}, v{32+r}")
    k(f"""v_cvt_pk_bf16_f32 v36, v32, v33
          v_cvt_pk_bf16_f32 v37, v34, v35
          buffer_store_dwordx2 v[36:37], v3, s[24:27], s35 offen sc1
          L_p0_kvf:
          v_mov_b32 v43, 0""")
    k.stamp(2)
    k("s_barrier")
    k.stamp(3)
    k("s_waitcnt vmcnt(0)")
    k.stamp(5)
    k(f"""s_mov_b64 exec, 1
          buffer_store_dwordx4 v[40:43], v43, s[24:27], s37 offen sc1
          s_mov_b64 exec, -1""")
    if STAMPS: k("s_waitcnt vmcnt(0)")
    k.stamp(4)
    k("s_barrier\n" * 3 + "s_branch L_att")
    k(f"""L_p0_pack:
          s_load_dwordx2 s[48:49], s[0:1], 48
          s_load_dwordx2 s[50:51], s[0:1], 32
          s_load_dwordx2 s[52:53], s[0:1], 72
          s_lshl_b32 s35, s28, 8
          s_add_u32 s35, s35, s2           ; J
          s_lshl_b32 s36, s28, 13
          s_add_u32 s36, s36, {128*1024}
          s_waitcnt lgkmcnt(0)""")
    srd(k, 24, 14, 15, WS_USED)
    if TLBW:
        k(f"""s_load_dwordx4 s[40:43], s[0:1], 56
              s_load_dwordx2 s[44:45], s[0:1], 80
              v_lshlrev_b32 v20, {TLBW}, v1
              buffer_load_dword v21, v20, s[24:27], 0 offen
              s_mov_b32 s18, {688*1024}
              s_mov_b32 s19, 0x00020000""")
        for lo, sz in ((48, 512*2752), (50, 512*1024), (52, 688*1024)):
            k(f"""s_mov_b32 s16, s{lo}
                  s_mov_b32 s17, s{lo+1}
                  s_mov_b32 s18, {sz}
                  buffer_load_dword v21, v20, s[16:19], 0 offen""")
        k("s_waitcnt lgkmcnt(0)")
        for lo, sz in ((40, 2048*4096), (42, 4096), (44, 2048*1024)):
            k(f"""s_mov_b32 s16, s{lo}
                  s_mov_b32 s17, s{lo+1}
                  s_mov_b32 s18, {sz}
                  buffer_load_dword v21, v20, s[16:19], 0 offen""")
    k(f"""s_cmp_lt_u32 s35, 332
          s_cbranch_scc1 L_pk_job""")
    k("L_pk_done:\n" + "s_barrier\n" * 9 + "s_branch L_att")
    k(f"""L_pk_job:
          s_lshl_b32 s62, s35, 7
          s_add_u32 s62, s62, {PFLAG}
          s_mov_b32 s23, 0x00020000
          s_cmp_lt_u32 s35, 172
          s_cbranch_scc1 L_pk_in
          s_movk_i32 s40, 1024
          s_cmp_lt_u32 s35, 236
          s_cbranch_scc1 L_pk_o
          s_sub_u32 s35, s35, 236
          s_mul_i32 s37, s35, 171
          s_lshr_b32 s37, s37, 9
          s_mul_i32 s38, s37, 3
          s_sub_u32 s38, s35, s38
          s_mov_b32 s20, s52
          s_mov_b32 s21, s53
          s_mov_b32 s22, {688*1024}
          s_mul_i32 s39, s37, 24576
          s_add_u32 s39, s39, {WUP}
          s_branch L_pk_d
          L_pk_o:
          s_sub_u32 s35, s35, 172
          s_lshr_b32 s37, s35, 1
          s_and_b32 s38, s35, 1
          s_mov_b32 s20, s50
          s_mov_b32 s21, s51
          s_mov_b32 s22, {512*1024}
          s_lshl_b32 s39, s37, 14
          s_add_u32 s39, s39, {WOP}
          L_pk_d:
          v_lshrrev_b32 v12, 1, v8
          v_lshlrev_b32 v6, 4, v12
          v_and_b32 v12, 1, v8
          v_lshl_add_u32 v6, v12, 2, v6
          s_movk_i32 s41, 256
          s_mov_b32 s42, 0
          s_branch L_pk_go
          L_pk_in:
          s_movk_i32 s40, 2752
          s_lshr_b32 s37, s35, 1
          s_and_b32 s38, s35, 1
          s_mov_b32 s20, s48
          s_mov_b32 s21, s49
          s_mov_b32 s22, {512*2752}
          s_lshl_b32 s39, s37, 14
          s_add_u32 s39, s39, {WPK}
          v_lshlrev_b32 v6, 2, v8
          s_movk_i32 s41, 512
          s_mov_b32 s42, 1
          L_pk_go:
          v_add_u32 v6, v6, v10
          v_lshlrev_b32 v6, 5, v6
          v_lshl_add_u32 v6, v11, 3, v6
          v_add_u32 v108, s36, v6
          v_add_u32 v109, s41, v108
          s_lshl_b32 s43, s38, 13
          s_add_u32 s48, s39, s43           ; dst
          v_lshrrev_b32 v113, 1, v1
          v_mul_lo_u32 v113, v113, s40
          v_and_b32 v12, 1, v1
          v_lshl_add_u32 v113, v12, 4, v113
          s_lshl_b32 s50, s40, 8
          s_mul_i32 s50, s50, s38
          s_lshl_b32 s44, s37, 5
          s_add_u32 s50, s50, s44           ; src
          s_lshl_b32 s51, s40, 5            ; 32 rows
          s_lshl_b32 s49, s37, 6
          s_add_u32 s49, s49, s43
          s_add_u32 s49, s49, {CSUM}
          s_mul_i32 s49, s49, s42
          s_mov_b32 s45, s36
          s_branch L_pk_done""")
    k("L_att:")
    att_ids(); att_init()
    k.stamp(8)
    k("s_waitcnt lgkmcnt(0)\ns_barrier")
    k.stamp(7)
    kvdma(0)
    k(f"""L_att2:
          s_waitcnt vmcnt(0) lgkmcnt(0)
          s_barrier
          ds_read_b128 {vr(Q)}, v102
          ds_read_b128 v[120:123], v103
          ds_read_b128 {vr(KFR)}, v{vK}""")
    kvdma(1)
    k(f"""s_waitcnt lgkmcnt(0)
          v_readfirstlane_b32 s58, v120
          v_readfirstlane_b32 s59, v121
          v_mov_b32 v104, v122
          v_dot2_f32_bf16 v106, v{Q}, v{Q}, 0
          v_dot2_f32_bf16 v106, v{Q+1}, v{Q+1}, v106
          v_dot2_f32_bf16 v106, v{Q+2}, v{Q+2}, v106
          v_dot2_f32_bf16 v106, v{Q+3}, v{Q+3}, v106""")
    xhalf_add(k, 106, 105)
    k(f"""v_mul_f32 v104, v104, v106
          v_cmp_nle_f32 vcc, v104, v107""")
    kvdma(2); kvdma(3)
    k("s_cbranch_vccnz L_k2_slow")
    k.stamp(1)
    if os.environ.get("STP0"): k.stamp = lambda i, real=False: None if i < 13 else Kern.stamp(k, i, real)
    def att_loop(sfx, cop):
        k(f"""L_k2_start{sfx}:
              s_waitcnt lgkmcnt(0)
              v_mfma_f32_32x32x16_bf16 {vr(S[0],16)}, {vr(KFR)}, {vr(Q)}, {cop}
              ds_read_b128 {vr(KFR)}, v{vK} offset:1024
              s_mov_b64 exec, s[40:41]
              ds_read_b128 {vr(VFR[0][0])}, v{vV}
              ds_read_b128 {vr(VFR[0][1])}, v{vV} offset:512
              s_mov_b64 exec, -1
              s_nop 7
              L_k2_loop{sfx}:
              s_bitcmp1_b32 s31, s36
              s_cbranch_scc1 L_k2_ev
              L_k2_body{sfx}:""")
        for u in range(4):
            s = S[u & 1]; sn = S[(u + 1) & 1]; vf = VFR[u & 1]; vn = VFR[(u + 1) & 1]
            k(f"s_setprio {3-u}")
            for i in range(16):
                if i == 3:
                    k(f"""v_smfmac_f32_32x32x32_bf16 {vr(O,16)}, {vr(vn[1])}, {vr(sn+8,8)}, v{P}
                          s_mov_b64 exec, s[40:41]
                          ds_read_b128 {vr(vn[0])}, v{vV} offset:{1024*(u+1)}
                          ds_read_b128 {vr(vn[1])}, v{vV} offset:{1024*(u+1)+512}
                          s_mov_b64 exec, -1""")
                if i == 8:
                    k(f"""s_waitcnt lgkmcnt(2)
                          v_mfma_f32_32x32x16_bf16 {vr(sn,16)}, {vr(KFR)}, {vr(Q)}, {cop}
                          ds_read_b128 {vr(KFR)}, v{vK} offset:{1024*(u+2)}""")
                if i == 13:
                    k(f"v_smfmac_f32_32x32x32_bf16 {vr(O,16)}, {vr(vf[0])}, {vr(s,8)}, v{P}")
                k(f"v_exp_f32 v{s+i}, v{s+i}")
        k(f"""v_add_u32 v{vK}, 4096, v{vK}
              v_add_u32 v{vV}, 4096, v{vV}
              s_add_u32 s36, s36, 1
              s_cmp_lt_u32 s36, {NIT}
              s_cbranch_scc1 L_k2_loop{sfx}""")
    att_loop("", "0")
    k("L_k2_done:")
    if SMF: k(f"v_smfmac_f32_32x32x32_bf16 {vr(O,16)}, {vr(VFR[1][1])}, {vr(S[1]+8,8)}, v{P}")
    else: k(f"v_mfma_f32_32x32x16_bf16 {vr(O,16)}, {vr(VFR[1][1])}, {vr(P+4)}, {vr(O,16)}")
    k("s_setprio 0")
    k.stamp(2)
    k(f"""s_mul_i32 s45, s38, 2304
          s_add_u32 s45, s45, {XL}
          v_add_u32 v103, s45, v2
          v_lshlrev_b32 v104, 2, v1
          v_add_u32 v104, s45, v104
          v_mov_b32 v107, {FASTW}
          s_lshl_b32 s35, s38, 2
          s_add_u32 s35, s35, {FASTW + 128}
          v_mov_b32 v102, s35
          s_cmp_eq_u32 s39, 0
          s_cbranch_scc1 L_k2_give
          s_mov_b32 s60, 0
          L_k2_mw:
          ds_read_b32 v105, v102
          ds_read_b32 v106, v107
          ds_read_b128 {vr(S[0])}, v103
          ds_read_b128 {vr(S[0]+4)}, v103 offset:1024
          ds_read_b32 v{S[0]+8}, v104 offset:2048
          s_lshl_b32 s34, s29, 13
          s_add_u32 s34, s34, {OFLAG}
          s_lshl_b32 s35, s32, 12
          s_add_u32 s34, s34, s35
          s_lshl_b32 s35, s30, 9
          s_add_u32 s34, s34, s35
          s_lshr_b32 s35, s38, 1
          s_lshl_b32 s35, s35, 7
          s_add_u32 s34, s34, s35
          s_add_u32 s33, s46, {OF}
          s_add_u32 s60, s60, 1
          s_waitcnt lgkmcnt(0)
          v_readfirstlane_b32 s63, v106
          v_readfirstlane_b32 s35, v105
          s_cmp_gt_u32 s60, 0x400000
          s_cbranch_scc1 L_k2_mok
          s_cmp_eq_u32 s63, 2
          s_cbranch_scc1 L_k2_mw
          s_cmp_eq_u32 s35, 0
          s_cbranch_scc1 L_k2_mw
          L_k2_mok:""")
    k.stamp(3)
    for r in range(9): k(f"v_add_f32 v{O+r}, v{O+r}, v{S[0]+r}")
    k(f"""v_mov_b32 v104, v{O+8}
          v_permlane32_swap_b32 v{O+8}, v104
          v_rcp_f32 v104, v{O+8}""")
    for r in range(8): k(f"v_mul_f32 v{O+r}, v104, v{O+r}")
    for r in range(4): k(f"v_cvt_pk_bf16_f32 v{P+r}, v{O+2*r}, v{O+2*r+1}")
    hstore(k, f"buffer_store_dwordx4 {vr(P)}, v2, s[24:27], s33 offen")
    k.stamp(4)
    if STAMPS: k("s_waitcnt vmcnt(0)")
    k.stamp(5)
    set_flagN(k, "s34")
    k.stamp(6)
    k("""s_cmp_lt_u32 s28, 12
         s_cbranch_scc1 L_kb_loader
         s_endpgm""")
    k(f"""L_k2_ev:
          s_cmp_ge_u32 s36, 6
          s_cbranch_scc1 L_k2_cnt
          s_cmp_eq_u32 s36, 4
          s_cbranch_scc1 L_k2_st4
          s_cmp_eq_u32 s36, 3
          s_cbranch_scc1 L_k2_st3
          s_cmp_eq_u32 s36, 1
          s_cbranch_scc1 L_k2_st1
          s_setprio 2
          s_branch L_k2_ret
          L_k2_st1:
          s_cmp_eq_u32 s42, 1
          s_cbranch_scc0 L_k2_st1c
          s_waitcnt vmcnt(0)
          s_barrier
          L_k2_st1c:
          s_cmp_eq_u32 s62, 0
          s_cbranch_scc1 L_nopk""")
    for i in range(8):
        k(f"""s_add_u32 m0, s45, {1024*i}
              buffer_load_dwordx4 v113, s[20:23], s50 offen lds
              s_add_u32 s50, s50, s51""")
    k(f"""s_branch L_k2_ret
          L_nopk:
          s_lshr_b32 s34, s28, 2
          s_cmp_eq_u32 s34, 1
          s_cbranch_scc0 L_k2_ret
          s_load_dwordx2 s[52:53], s[0:1], 56
          s_lshr_b32 s61, s2, 3
          s_lshl_b32 s61, s61, 2
          s_add_u32 s61, s61, s3
          v_lshlrev_b32 v108, 7, v1
          s_and_b32 s37, s2, 7
          s_lshl_b32 s37, s37, 20
          s_lshl_b32 s61, s61, 13
          s_add_u32 s37, s37, s61
          s_mov_b32 s54, {2048*4096}
          s_mov_b32 s55, 0x00020000
          s_waitcnt lgkmcnt(0)
          buffer_load_dword v120, v108, s[52:55], s37 offen
          s_cmp_eq_u32 s28, 4
          s_cbranch_scc0 L_k2_ret
          s_lshr_b32 s34, s29, 1
          s_lshl_b32 s34, s34, 7
          s_and_b32 s35, s29, 1
          s_lshl_b32 s35, s35, 3
          s_add_u32 s34, s34, s35
          s_add_u32 s34, s34, s30
          s_lshl_b32 s34, s34, 7
          s_add_u32 s34, s34, {ZSTAT}
          v_mov_b32 v112, -1
          v_mov_b32 v113, -1
          v_mov_b32 v114, -1
          v_mov_b32 v115, -1
          v_lshrrev_b32 v116, 3, v1
          v_lshlrev_b32 v116, 11, v116
          v_and_b32 v117, 7, v1
          v_lshl_add_u32 v116, v117, 4, v116
          buffer_store_dwordx4 v[112:115], v116, s[24:27], s34 offen sc1
          s_branch L_k2_ret
          L_k2_cnt:
          {'s_setprio 0' if PRIO == 3 else ''}
          L_k2_cnt2:
          s_waitcnt lgkmcnt(0)
          s_mov_b64 exec, 1
          ds_add_u32 v118, v119
          s_mov_b64 exec, -1
          v_add_u32 v118, 4, v118
          s_branch L_k2_ret
          L_k2_st4:
          {'s_setprio 1' if PRIO == 3 else ''}
          s_cmp_eq_u32 s62, 0
          s_cbranch_scc1 L_k2_cnt2
          v_mov_b32 v112, s58
          v_mov_b32 v113, s59
          v_mov_b32 v114, 0
          s_waitcnt vmcnt(0)
          s_mov_b64 exec, 1
          buffer_store_dwordx2 v[112:113], v114, s[24:27], s62 offen sc1
          s_mov_b64 exec, -1
          s_branch L_k2_cnt2
          L_k2_st3:
          s_waitcnt vmcnt(0)
          s_cmp_lg_u32 s62, 0
          s_cbranch_scc1 L_k2_pk
          s_and_b32 s34, s29, 1
          s_lshl_b32 s34, s34, 3
          s_add_u32 s34, s34, s30
          s_lshl_b32 s34, s34, 7
          s_add_u32 s34, s34, s63
          s_getreg_b32 s60, hwreg(HW_REG_XCC_ID, 0, 4)
          s_add_u32 s60, s60, s59
          v_mov_b32 v108, s58
          v_mov_b32 v109, s60
          v_mov_b32 v110, 0
          s_mov_b64 exec, 1
          buffer_store_dwordx2 v[108:109], v110, s[24:27], s34 offen sc1
          s_mov_b64 exec, -1
          s_branch L_k2_ret
          L_k2_pk:
          s_mov_b32 s34, 0x3f803f80
          s_add_u32 s35, s48, 4096
          v_mov_b32 v110, 0
          v_mov_b32 v111, 0""")
    for h in range(2):
        for i in range(2):
          for i2 in range(2):
            k(f"""ds_read_b64_tr_b16 v[{120+4*i2}:{121+4*i2}], v108 offset:{1024*(4*h+2*i+i2)}
                  ds_read_b64_tr_b16 v[{122+4*i2}:{123+4*i2}], v109 offset:{1024*(4*h+2*i+i2)}""")
          k("s_waitcnt lgkmcnt(0)")
          for i2 in range(2):
            k(f"buffer_store_dwordx4 {vr(120+4*i2)}, v2, s[24:27], {'s35' if h else 's48'} offen offset:{1024*(2*i+i2)} sc1")
          for i3 in range(8): k(f"v_dot2_f32_bf16 v{110+(i3&1)}, v{120+i3}, s34, v{110+(i3&1)}")
    k("""s_cmp_eq_u32 s49, 0
         s_cbranch_scc1 L_k2_ret
         v_add_f32 v110, v110, v111""")
    xhalf_add(k, 110, 111); x16_add(k, 110, 111)
    k(f"""v_lshlrev_b32 v111, 2, v1
          s_mov_b64 exec, 0xffff
          buffer_store_dword v110, v111, s[24:27], s49 offen sc1
          s_mov_b64 exec, -1
          s_branch L_k2_ret""")
    k("""L_k2_ret:
         s_cmp_eq_u32 s42, 1
         s_cbranch_scc1 L_k2_body
         s_branch L_k2_body_s""")
    k("L_k2_slow:")
    k(f"""s_waitcnt vmcnt(0)
          s_barrier
          s_mov_b32 s42, 99
          v_mov_b32 v104, 0xff800000
          v_mov_b32 v103, v2
          s_mov_b32 s37, 0
          L_k2_mx:
          ds_read_b128 {vr(KFR)}, v103
          s_waitcnt lgkmcnt(0)
          v_mfma_f32_32x32x16_bf16 {vr(S[0],16)}, {vr(KFR)}, {vr(Q)}, 0
          v_add_u32 v103, 1024, v103""")
    for i in range(8):
        k(f"v_max3_f32 v104, v{S[0]+2*i}, v{S[0]+2*i+1}, v104")
    k(f"""s_add_u32 s37, s37, 1
          s_cmp_lt_u32 s37, 64
          s_cbranch_scc1 L_k2_mx
          v_mov_b32 v105, v104
          v_permlane32_swap_b32 v104, v105
          v_max_f32 v104, v104, v105""")
    for i in range(16): k(f"v_sub_f32 v{C+i}, 0, v104")
    k(f"ds_read_b128 {vr(KFR)}, v{vK}")
    att_loop("_s", vr(C, 16))
    k("s_nop 1\ns_branch L_k2_done")
    def waitcnt_lds(off, tag):
        k(f"""v_mov_b32 v108, {CNT + off}
              s_mov_b32 s60, 0
              L_cw_{tag}:
              ds_read_b32 v109, v108
              s_add_u32 s60, s60, 1
              s_waitcnt lgkmcnt(0)
              v_readfirstlane_b32 s34, v109
              s_cmp_gt_u32 s60, 0x400000
              s_cbranch_scc1 L_cwok_{tag}
              s_cmp_ge_u32 s34, 16
              s_cbranch_scc1 L_cwok_{tag}
              s_sleep 2
              s_branch L_cw_{tag}
              L_cwok_{tag}:""")
    k(f"""L_k2_give:
          s_load_dwordx2 s[4:5], s[0:1], 0""")
    if PT:
        k(f"""v_and_b32 v110, 7, v1
              v_lshlrev_b32 v110, 7, v110
              s_mov_b64 exec, 0xff
              s_add_u32 s34, s46, {OF}
              buffer_load_dword v117, v110, s[24:27], s34 offen
              s_lshl_b32 s34, s29, 2
              s_add_u32 s34, s34, s3
              s_lshl_b32 s34, s34, 4
              s_lshl_b32 s35, s30, 1
              s_add_u32 s34, s34, s35
              s_lshr_b32 s35, s28, 2
              s_add_u32 s34, s34, s35
              s_lshl_b32 s35, s34, 10
              s_add_u32 s35, s35, {HF}
              buffer_load_dword v117, v110, s[24:27], s35 offen
              s_mov_b64 exec, 1
              s_lshl_b32 s35, s34, 7
              s_add_u32 s35, s35, {HSTAT}
              buffer_load_dword v117, v110, s[24:27], s35 offen
              s_mov_b64 exec, -1""")
    k(f"""s_cmp_eq_u32 s28, 4
          s_cbranch_scc0 L_kb_nochk
          v_and_b32 v110, 15, v1
          v_lshlrev_b32 v110, 7, v110
          s_mov_b32 s60, 0
          L_xc_b:
          buffer_load_dwordx2 v[108:109], v110, s[24:27], s63 offen sc1
          s_add_u32 s60, s60, 1
          s_waitcnt vmcnt(0)
          v_subrev_u32 v109, s59, v109
          v_xor_b32 v108, s58, v108
          v_lshrrev_b32 v106, 4, v109
          v_or_b32 v108, v108, v106
          v_cmp_ne_u32 vcc, 0, v108
          s_cmp_gt_u32 s60, 0x40000
          s_cbranch_scc1 L_xcok_b
          s_cbranch_vccnz L_xc_b
          L_xcok_b:
          v_readfirstlane_b32 s60, v109
          v_cmp_ne_u32 vcc, s60, v109
          s_cmp_eq_u64 vcc, 0
          s_cselect_b32 s60, {FAST}, 0
          v_mov_b32 v106, s60
          ds_write_b32 v107, v106
          L_kb_nochk:
          s_and_b32 s31, s29, 1
          s_lshl_b32 s31, s31, 3
          s_add_u32 s31, s31, s30
          s_mul_i32 s31, s31, 3
          s_min_u32 s31, s31, 40           ; u0
          s_lshl_b32 s34, s31, 1
          s_lshl_b32 s35, s30, 3
          s_add_u32 s35, s35, 172
          s_mul_i32 s37, s30, 12
          s_add_u32 s37, s37, {236-20}
          s_sub_u32 s34, s34, 8
          v_and_b32 v108, 31, v1
          v_add_u32 v109, s35, v108
          v_add_u32 v110, s34, v108
          v_cmp_lt_u32 vcc, 7, v108
          v_cndmask_b32 v109, v109, v110, vcc
          v_add_u32 v110, {86-6}, v110
          v_cmp_lt_u32 vcc, 13, v108
          v_cndmask_b32 v109, v109, v110, vcc
          v_add_u32 v110, s37, v108
          v_cmp_lt_u32 vcc, 19, v108
          v_cndmask_b32 v109, v109, v110, vcc
          v_lshlrev_b32 v15, 7, v109
          s_mov_b32 s37, {PFLAG}
          s_mov_b32 exec_hi, 0""")
    pollN(k, "s37", "p")
    k(f"""s_lshl_b32 s40, s31, 14
          s_add_u32 s40, s40, {WPK}        ; z1 base
          s_cmp_ge_u32 s28, 4
          s_cbranch_scc1 L_gv_pf
          s_mul_i32 s35, s28, 3072
          s_add_u32 m0, s35, {148*1024}
          s_add_u32 s35, s35, s40""")
    for j in range(3): k(f"buffer_load_dwordx4 v2, s[24:27], s35 offen offset:{1024*j} lds")
    k(f"""s_mul_i32 s35, s28, 12288
          s_add_u32 s35, s35, s40
          s_add_u32 s35, s35, {43*16384}
          v_lshlrev_b32 v108, 7, v1
          buffer_load_dword v117, v108, s[24:27], s35 offen
          v_and_b32 v109, 31, v1
          v_lshlrev_b32 v109, 7, v109
          s_add_u32 s35, s35, 8192
          buffer_load_dword v117, v109, s[24:27], s35 offen
          s_mul_i32 s35, s28, 9216
          s_add_u32 s35, s35, s40
          s_add_u32 s35, s35, 12288
          buffer_load_dword v117, v108, s[24:27], s35 offen
          v_and_b32 v109, 7, v1
          v_lshlrev_b32 v109, 7, v109
          s_add_u32 s35, s35, 8192
          buffer_load_dword v117, v109, s[24:27], s35 offen""")
    k(f"""s_branch L_gv_c6
          L_gv_pf:""")
    if PFO:
        k(f"""s_lshl_b32 s35, s30, 2
              s_add_u32 s35, s35, s3
              s_mul_i32 s35, s35, 24576
              s_add_u32 s35, s35, {WUP}
              v_lshlrev_b32 v108, 7, v1""")
        for j in range(3):
            k(f"buffer_load_dword v117, v108, s[24:27], s35 offen\ns_add_u32 s35, s35, 8192")
    k(f"""
          L_gv_c6:""")
    waitcnt_lds(0, "6")
    k(f"""ds_write_b128 v103, {vr(O)}
          ds_write_b128 v103, {vr(O+4)} offset:1024
          ds_write_b32 v104, v{O+8} offset:2048
          ds_write_b32 v102, v119
          s_lshl_b32 s35, s30, 16
          s_lshl_b32 s37, s28, 13
          s_add_u32 s35, s35, s37
          s_add_u32 s35, s35, {WOP}
          s_lshr_b32 s37, s28, 1
          s_lshl_b32 s37, s37, 15
          s_lshl_b32 s41, s32, 13
          s_add_u32 s41, s41, s37
          s_mov_b32 m0, s41""")
    for j in range(4): k(f"buffer_load_dwordx4 v2, s[24:27], s35 offen offset:{1024*j} lds")
    k("s_add_u32 m0, s41, 4096\ns_add_u32 s35, s35, 4096")
    for j in range(4): k(f"buffer_load_dwordx4 v2, s[24:27], s35 offen offset:{1024*j} lds")
    lane_fields(k)
    if P1:
        waitcnt_lds(4, "7")
        k(f"""s_lshl_b32 s35, s28, 12
              s_add_u32 s35, s35, s40
              s_add_u32 s35, s35, {43*16384}
              s_lshl_b32 s41, s32, 12
              s_add_u32 s41, s41, s37
              s_add_u32 m0, s41, 16384""")
        for j in range(4): k(f"buffer_load_dwordx4 v2, s[24:27], s35 offen offset:{1024*j} lds")
    k(f"""s_lshl_b32 s33, s29, 13
          s_add_u32 s33, s33, {OFLAG}
          s_and_b32 s35, s28, 2
          s_lshl_b32 s35, s35, 11
          s_add_u32 s33, s33, s35
          s_and_b32 s35, s28, 4
          s_lshl_b32 s35, s35, 9
          s_add_u32 s33, s33, s35""")
    k(f"""s_lshr_b32 s61, s28, 2           ; kh
          s_lshl_b32 s36, s29, 2
          s_add_u32 s36, s36, s3           ; rb16
          s_lshl_b32 s37, s30, 1
          s_add_u32 s37, s37, s61
          v_and_b32 v14, 15, v1
          v_lshlrev_b32 v3, 10, v14
          v_lshl_add_u32 v3, v8, 3, v3
          s_lshl_b32 s44, s36, 14
          s_lshl_b32 s45, s37, 6
          s_add_u32 s44, s44, s45""")
    srd(k, 16, 4, 5, 2048 * 1024)
    k("""buffer_load_dwordx2 v[96:97], v3, s[16:19], s44 offen
         buffer_load_dwordx2 v[98:99], v3, s[16:19], s44 offen offset:32
         s_lshl_b32 s45, s61, 13
         v_add_u32 v4, s45, v2
         v_add_u32 v5, 65536, v4""")
    act32_voff(k, 3, "s32")
    k(f"""s_lshr_b32 s46, s36, 1
          s_lshl_b32 s46, s46, 15
          s_lshl_b32 s47, s61, 14
          s_add_u32 s46, s46, s47
          s_add_u32 s46, s46, {OF}""")
    for r in range(16): k(f"v_mov_b32 v{16+r}, 0")
    woff = lambda s, u: (4 + (u >> 1), (u & 1) * 32768 + s * 1024)
    k.stamp(3)
    k(f"""s_mov_b32 s60, 0
          L_gv_fw:
          ds_read_b32 v106, v107
          s_add_u32 s60, s60, 1
          s_waitcnt lgkmcnt(0)
          v_readfirstlane_b32 s63, v106
          s_cmp_gt_u32 s60, 0x400000
          s_cbranch_scc1 L_gv_fok
          s_cmp_eq_u32 s63, 2
          s_cbranch_scc1 L_gv_fw
          L_gv_fok:
          s_waitcnt vmcnt(0)
          s_barrier""")
    gemm64_reads(k, 0, woff)
    pollN(k, "s33", "o", 16)
    k.stamp(4)
    for s in range(8):
        if s % 2 == 0: k(f"s_add_u32 s47, s46, {s*2048}")
        k(f"buffer_load_dwordx4 {vr(64+4*s)}, v3, s[24:27], s47 offen offset:{2048*(s&1)} {LSC}")
    if OLB: k("s_barrier")
    gemm64(k, 8, woff, 64)
    k.stamp(5)
    k("s_barrier")
    if KLC: k("v_mov_b32 v100, 66560\nv_mov_b32 v102, 0\nv_mov_b32 v103, 0\nds_write_b64 v100, v[102:103]")
    ksplit_exchange(k, 0, "s28", tag="b")
    k(f"""v_lshlrev_b32 v40, 16, v96
          v_and_b32 v41, 0xffff0000, v96
          v_lshlrev_b32 v42, 16, v97
          v_and_b32 v43, 0xffff0000, v97
          v_lshlrev_b32 v44, 16, v98
          v_and_b32 v45, 0xffff0000, v98
          v_lshlrev_b32 v46, 16, v99
          v_and_b32 v47, 0xffff0000, v99
          s_lshl_b32 s47, s36, 4
          s_add_u32 s47, s47, s37
          s_lshl_b32 s46, s47, 7
          s_add_u32 s33, s46, {HFLAG}
          s_add_u32 s46, s46, {HSTAT}
          s_lshl_b32 s47, s47, 10
          s_add_u32 s47, s47, {HF}""")
    for i in range(8): k(f"v_add_f32 v{16+i}, v{16+i}, v{40+i}")
    k("s_waitcnt lgkmcnt(0)")
    for i in range(8): k(f"v_add_f32 v{16+i}, v{16+i}, v{32+i}")
    for i in range(4): k(f"v_cvt_pk_bf16_f32 v{48+i}, v{16+2*i}, v{17+2*i}")
    hstore(k, "buffer_store_dwordx4 v[48:51], v2, s[24:27], s47 offen")
    k("""v_mov_b32 v54, 0x3f803f80
         v_dot2_f32_bf16 v52, v48, v54, 0
         v_dot2_f32_bf16 v53, v48, v48, 0""")
    for i in range(1, 4):
        k(f"""v_dot2_f32_bf16 v52, v{48+i}, v54, v52
              v_dot2_f32_bf16 v53, v{48+i}, v{48+i}, v53""")
    xhalf_add(k, 52, 12); xhalf_add(k, 53, 13)
    x16_add(k, 52, 12); x16_add(k, 53, 13)
    k("""v_lshlrev_b32 v12, 3, v14
         s_mov_b64 exec, 0xffff""")
    hstore(k, "buffer_store_dwordx2 v[52:53], v12, s[24:27], s46 offen")
    k(f"""s_mov_b64 exec, -1
          s_and_b32 s31, s29, 1
          s_lshl_b32 s31, s31, 3
          s_add_u32 s30, s30, s31          ; g
          s_lshr_b32 s29, s29, 1           ; rb128
          s_mul_i32 s31, s30, 3
          s_min_u32 s31, s31, 40           ; u0
          s_lshl_b32 s36, s29, 3
          s_add_u32 s36, s36, s28
          s_lshl_b32 s62, s36, 11
          s_add_u32 s62, s62, {HFLAG}
          s_lshl_b32 s47, s36, 11
          s_add_u32 s47, s47, {ZSTAT}""")
    ACC, WF, H = 16, 40, 64
    k(f"""v_mov_b32 v4, v2
          v_add_u32 v5, 65536, v4
          v_add_u32 v6, 131072, v4
          v_lshlrev_b32 v7, 3, v14
          v_lshl_add_u32 v7, v8, 9, v7      ; n*8 + g*512""")
    set_flagN(k, "s33")
    k.stamp(6)
    if OLB: k("s_barrier")
    k(f"""s_cmp_eq_u32 s30, 15
          s_cbranch_scc0 L_k4_work
          v_mov_b32 v16, 0
          v_mov_b32 v17, 0
          v_lshlrev_b32 v12, 3, v14
          s_add_u32 s47, s47, {15*128}
          buffer_store_dwordx2 v[16:17], v12, s[24:27], s47 offen sc1""")
    k("""v_mov_b32 v12, 66560
         v_mov_b32 v13, 1
         s_mov_b64 exec, 1
         ds_add_u32 v12, v13
         s_mov_b64 exec, -1""" if KLC else "s_barrier")
    k(f"""s_branch L_z_done
          L_k4_work:""")
    def WA(i):
        if i < 32: return (i >> 3) * 32768 + 16384 + (i & 7) * 1024
        if i < 48: return ((i - 32) >> 2) * 32768 + 24576 + (i & 3) * 1024
        if i < 60: return 148 * 1024 + (i - 48) * 1024
        l, j = divmod(i - 60, 9)
        return l * 32768 + 28672 + j * 1024 if j < 4 else 128 * 1024 + (5 * l + j - 4) * 1024
    def wreads(s, half):
        for u in range(3):
            a_ = WA((3*half + u) * 16 + s); f = WF + 12*half + 4*u
            k(f"ds_read_b128 {vr(f)}, v{4 + (a_ >> 16)} offset:{a_ & 0xffff}")
    for r in range(24): k(f"v_mov_b32 v{ACC+r}, 0")
    wreads(0, 0)
    k(f"""s_lshl_b32 s46, s36, 14
          s_add_u32 s46, s46, {HF}
          s_lshl_b32 s45, s36, 11
          s_add_u32 s45, s45, {HSTAT}
          """)
    pollN(k, "s62", "h", 16)
    k.stamp(7)
    q = VQ(k); hl = []
    for s in range(16):
        def f(s=s):
            if s % 4 == 0: k(f"s_add_u32 s44, s46, {s*1024}")
            k(f"buffer_load_dwordx4 {vr(H+4*s)}, v2, s[24:27], s44 offen offset:{1024*(s&3)} {LSC}")
        hl.append(f)
    for s in range(HW): q.issue(f"h{s}", 1, hl[s])
    def sl():
        for i in range(4):
            k(f"buffer_load_dwordx2 v[{8+2*i}:{9+2*i}], v7, s[24:27], s45 offen offset:{128*i} {LSC}")
    CS2, CS1, MR = 64, 72, 96
    for s in range(16):
        if WPR == 1: k(f"s_setprio {3 - (s & 3)}")
        if WPR == 2 and s % 4 == 0: k(f"s_setprio {3 - s // 4}")
        wreads(s, 1)
        q.wait(f"h{s}", extra=" lgkmcnt(3)")
        for u in range(3):
            k(f"v_mfma_f32_16x16x32_bf16 {vr(ACC+4*u)}, {vr(H+4*s)}, {vr(WF+4*u)}, {vr(ACC+4*u)}")
        if s + HW < 16: q.issue(f"h{s+HW}", 1, hl[s+HW])
        if s == 7: q.issue("st", 4, sl)
        if s < 15:
            wreads(s + 1, 0); k("s_waitcnt lgkmcnt(3)")
        else:
            k("s_waitcnt lgkmcnt(0)")
        for u in range(3):
            k(f"v_mfma_f32_16x16x32_bf16 {vr(ACC+12+4*u)}, {vr(WF+12+4*u)}, {vr(H+4*s)}, {vr(ACC+12+4*u)}")
        if s == 6:
            k.stamp(8)
        if s == 8:
            def cs():
                k(f"""v_and_b32 v3, 15, v1
                      v_lshlrev_b32 v3, 2, v3
                      s_lshl_b32 s38, s31, 6
                      s_add_u32 s38, s38, {CSUM}
                      s_add_u32 s39, s38, {688*4}""")
                for p in range(2):
                    for u in range(3):
                        k(f"buffer_load_dword v{CS2+3*p+u}, v3, s[24:27], s39 offen offset:{64*u}")
                    k("s_add_u32 s39, s39, 8192")
                k("v_lshrrev_b32 v3, 4, v1\nv_lshlrev_b32 v3, 4, v3")
                for p in range(2):
                    for u in range(3):
                        k(f"buffer_load_dwordx4 {vr(CS1+12*p+4*u)}, v3, s[24:27], s38 offen offset:{64*u}")
                    k("s_add_u32 s38, s38, 8192")
            q.issue("cs", 12, cs)
        if s == 12:
            q.wait("st")
            k("""v_add_f32 v8, v8, v10
                 v_add_f32 v9, v9, v11
                 v_add_f32 v12, v12, v14
                 v_add_f32 v13, v13, v15
                 v_add_f32 v8, v8, v12
                 v_add_f32 v9, v9, v13""")
            xhalf_add(k, 8, 12); xhalf_add(k, 9, 13)
        if s == 13:
            x16_add(k, 8, 12); x16_add(k, 9, 13)
            ln_stats(k, 8, 9, 512, 12)
        if s == 15:
            for r in range(4):
                k(f"""v_add_u32 v12, {4*r}, v3
                      ds_bpermute_b32 v{MR+r}, v12, v8
                      ds_bpermute_b32 v{MR+4+r}, v12, v9""")
    k.stamp(9)
    klsig = """v_mov_b32 v12, 66560
               v_mov_b32 v13, 1
               s_mov_b64 exec, 1
               ds_add_u32 v12, v13
               s_mov_b64 exec, -1"""
    k("s_setprio 0")
    k(klsig if KLC else "s_barrier")
    T = 40; z2r = [ACC + i for i in range(12)]; z1r = [ACC + 12 + i for i in range(12)]
    k(f"""v_mov_b32 v15, {f32(GC2)}
          v_and_b32 v14, 15, v1
          s_waitcnt vmcnt(0)""")
    for u in range(3): k(f"v_add_f32 v{CS2+u}, v{CS2+u}, v{CS2+3+u}")
    k("s_waitcnt lgkmcnt(0)")
    for i, a in enumerate(z2r): k(f"v_fma_f32 v{a}, -v{MR+i%4}, v{CS2+i//4}, v{a}")
    for i, a in enumerate(z2r): k(f"v_mul_f32 v{a}, v{MR+4+i%4}, v{a}")
    for i, a in enumerate(z2r): k(f"v_mul_f32 v{T+i}, v{a}, v{a}")
    for i, a in enumerate(z2r): k(f"v_fmaak_f32 v{T+i}, v15, v{T+i}, {f32(GC1)}")
    for i, a in enumerate(z2r): k(f"v_mul_f32 v{T+i}, v{T+i}, v{a}")
    for i, a in enumerate(z2r): k(f"v_exp_f32 v{T+i}, v{T+i}")
    for i, a in enumerate(z2r): k(f"v_add_f32 v{T+i}, 1.0, v{T+i}")
    for i, a in enumerate(z2r): k(f"v_rcp_f32 v{T+i}, v{T+i}")
    for i, a in enumerate(z2r): k(f"v_mul_f32 v{a}, v{a}, v{T+i}")
    SQ = 52
    for r in range(4):
        k(f"v_mov_b32 v{SQ+2*r}, v{ACC+8+r}\nv_mul_f32 v{SQ+2*r+1}, v{ACC+8+r}, v{ACC+8+r}")
    k("""s_cmp_eq_u32 s30, 14
         s_cbranch_scc1 L_k4_red""")
    for u in range(2):
        for r in range(4):
            a = ACC + 4*u + r
            k(f"v_add_f32 v{SQ+2*r}, v{SQ+2*r}, v{a}\nv_fmac_f32 v{SQ+2*r+1}, v{a}, v{a}")
    k("s_nop 0\nL_k4_red:")
    for i in range(4): k(f"v_add_f32_dpp v{SQ+i}, v{SQ+i}, v{SQ+i} row_ror:8 row_mask:0xf bank_mask:0x3")
    for i in range(4): k(f"v_add_f32_dpp v{SQ+i}, v{SQ+4+i}, v{SQ+4+i} row_ror:8 row_mask:0xf bank_mask:0xc")
    for m_ in ("row_half_mirror", "quad_perm:[1,0,3,2]", "quad_perm:[2,3,0,1]"):
        for i in range(4): k(f"v_add_f32_dpp v{SQ+i}, v{SQ+i}, v{SQ+i} {m_} row_mask:0xf bank_mask:0xf")
    k(f"""s_mov_b32 s49, -2
          s_lshl_b32 s48, s30, 7
          s_add_u32 s48, s48, s47
          v_lshlrev_b32 v12, 1, v1           ; (l>>3)*16 for lanes l%8==0""")
    for j in range(4): k(f"v_min_u32 v{SQ+j}, s49, v{SQ+j}")
    k(f"""s_mov_b32 s50, 0x01010101
          s_mov_b32 s51, 0x01010101
          s_mov_b64 exec, s[50:51]""")
    hstore(k, f"buffer_store_dwordx4 {vr(SQ)}, v12, s[24:27], s48 offen")
    k("s_mov_b64 exec, -1")
    k.stamp(10)
    k(f"""v_mul_f32 v10, {f32(GC1)}, v9
          v_mul_f32 v11, v9, v9
          v_mul_f32 v11, v11, v9
          v_mul_f32 v11, {f32(GC2)}, v11
          v_rcp_f32 v13, v9""")
    for i in range(12): k(f"v_add_f32 v{CS1+i}, v{CS1+i}, v{CS1+12+i}")
    for i, a in enumerate(z1r): k(f"v_fma_f32 v{a}, -v8, v{CS1+i}, v{a}")
    for i, a in enumerate(z1r): k(f"v_mul_f32 v{T+i}, v{a}, v{a}")
    for i, a in enumerate(z1r): k(f"v_fma_f32 v{T+i}, v{T+i}, v11, v10")
    for i, a in enumerate(z1r): k(f"v_mul_f32 v{T+i}, v{T+i}, v{a}")
    for i, a in enumerate(z1r): k(f"v_exp_f32 v{T+i}, v{T+i}")
    for i, a in enumerate(z1r): k(f"v_fma_f32 v{T+i}, v{T+i}, v13, v13")
    for i, a in enumerate(z1r): k(f"v_rcp_f32 v{T+i}, v{T+i}")
    for i, a in enumerate(z1r): k(f"v_mul_f32 v{a}, v{a}, v{T+i}")
    k(f"""v_lshrrev_b32 v10, 4, v1           ; g
          v_and_b32 v11, 1, v10
          v_lshrrev_b32 v10, 1, v10
          v_lshlrev_b32 v12, 9, v11
          v_lshl_add_u32 v12, v14, 4, v12
          v_lshl_add_u32 v12, v10, 3, v12
          v_lshlrev_b32 v6, 9, v10
          v_lshl_add_u32 v6, v14, 4, v6
          v_lshl_add_u32 v6, v11, 3, v6
          s_lshr_b32 s44, s36, 1
          s_mul_i32 s44, s44, 44
          s_add_u32 s44, s44, s31
          s_lshl_b32 s44, s44, 10
          s_and_b32 s45, s36, 1
          s_lshl_b32 s45, s45, 8
          s_add_u32 s44, s44, s45
          s_add_u32 s44, s44, {Z1}
          s_mov_b32 s54, 0""")
    def zpoll():
        for i in range(4):
            k(f"buffer_load_dwordx2 v[{72+2*i}:{73+2*i}], v7, s[24:27], s47 offen offset:{128*i} sc1")
    zpoll()
    for u in range(3):
        a = ACC + 12 + 4*u; p = 64 + 2*u
        k(f"""v_cvt_pk_bf16_f32 v{p}, v{a}, v{a+1}
              v_cvt_pk_bf16_f32 v{p+1}, v{a+2}, v{a+3}
              buffer_store_dwordx2 v[{p}:{p+1}], v12, s[24:27], s44 offen offset:{1024*u} {ZSC}""")
    k("s_waitcnt vmcnt(3)\ns_branch L_k4_chk\nL_k4_poll:")
    zpoll()
    k(f"""s_waitcnt vmcnt(0)
          L_k4_chk:
          v_max3_u32 v12, v72, v73, v74
          v_max3_u32 v13, v75, v76, v77
          v_max3_u32 v12, v12, v78, v79
          v_max_u32 v12, v12, v13
          v_cmp_eq_u32 vcc, -1, v12
          s_add_u32 s54, s54, 1
          s_cmp_gt_u32 s54, 0x40000
          s_cbranch_scc1 L_k4_go
          s_cbranch_vccz L_k4_go
          s_sleep {SLEEP}
          s_branch L_k4_poll
          L_k4_go:""")
    k.stamp(11)
    k("""v_add_f32 v72, v72, v74
         v_add_f32 v73, v73, v75
         v_add_f32 v76, v76, v78
         v_add_f32 v77, v77, v79
         v_add_f32 v72, v72, v76
         v_add_f32 v73, v73, v77""")
    xhalf_add(k, 72, 12); xhalf_add(k, 73, 13)
    x16_add(k, 72, 12); x16_add(k, 73, 13)
    ln_stats(k, 72, 73, 688, 12)
    k("v_mul_f32 v72, -v72, v73")
    for r in range(4):
        k(f"""v_add_u32 v12, {4*r}, v3
              ds_bpermute_b32 v{MR+r}, v12, v72
              ds_bpermute_b32 v{MR+4+r}, v12, v73""")
    k(f"""s_lshl_b32 s45, s36, 10
          s_add_u32 s45, s45, {Z2F}
          s_waitcnt lgkmcnt(0)""")
    for i, a in enumerate(z2r): k(f"v_fma_f32 v{a}, v{a}, v{MR+4+i%4}, v{MR+i%4}")
    for u in range(3):
        a = ACC + 4*u; p = 80 + 2*u
        k(f"""s_add_u32 s44, s31, {u}
              s_lshr_b32 s46, s44, 1
              s_lshl_b32 s46, s46, 17
              s_and_b32 s44, s44, 1
              s_lshl_b32 s44, s44, 8
              s_add_u32 s44, s44, s46
              s_add_u32 s44, s44, s45
              v_cvt_pk_bf16_f32 v{p}, v{a}, v{a+1}
              v_cvt_pk_bf16_f32 v{p+1}, v{a+2}, v{a+3}
              buffer_store_dwordx2 v[{p}:{p+1}], v6, s[24:27], s44 offen {ZSC}""")
    k("L_z_done:")
    AD, NS, WOL = 3, 6, 73728
    ORD = [((p & 14) << 1) + (p & 1) + ((p >> 4) << 1) for p in range(32)] if PROG else list(range(32))
    ACC, BF, A = 16, 48, 80
    k(f"""s_load_dwordx2 s[6:7], s[0:1], 64
          s_load_dwordx2 s[10:11], s[0:1], 80
          s_mul_i32 s34, s57, 3
          s_min_u32 s34, s34, 19
          s_add_u32 s34, s34, s28
          s_lshl_b32 s62, s56, 12
          s_add_u32 s62, s62, {YFLAG}
          s_lshl_b32 s52, s34, 7
          s_add_u32 s52, s52, s62
          s_mul_i32 s53, s61, {11*128}
          s_add_u32 s62, s62, s53
          s_lshl_b32 s40, s34, 17
          s_add_u32 s41, s40, {Z2F}
          s_mov_b32 s40, s41
          s_mov_b32 s45, 0
          s_mul_i32 s39, s56, 88
          s_lshl_b32 s42, s34, 1
          s_add_u32 s39, s39, s42
          s_lshl_b32 s39, s39, 10
          v_and_b32 v15, 31, v1
          v_lshlrev_b32 v12, 1, v15
          s_lshl_b32 s43, s56, 7
          s_waitcnt vmcnt(0) lgkmcnt(0)
          s_barrier""")
    k.stamp(12)
    if os.environ.get("STW"): k.stamp = lambda i, real=False: None if i < 13 else Kern.stamp(k, i, real)
    k(f"""s_cmp_lt_u32 s28, 3
          s_cbranch_scc1 L_k5_comp
          s_cmp_eq_u32 s28, 3
          s_cbranch_scc0 L_k5_idle
          s_lshl_b32 s44, s29, 4
          s_add_u32 s44, s44, s30
          s_lshl_b32 s44, s44, 7
          s_add_u32 s44, s44, {XIDC}""")
    set_flagN(k, "s44", drain=False, fast=False)
    k(f"""s_lshl_b32 s44, s57, 1
          s_min_u32 s44, s44, 12
          s_lshl_b32 s44, s44, 7
          s_add_u32 s44, s44, {XIDC}
          v_and_b32 v15, 7, v1
          v_lshlrev_b32 v15, 12, v15
          v_lshrrev_b32 v12, 3, v1
          v_min_u32 v12, 2, v12
          v_lshl_add_u32 v15, v12, 7, v15""")
    pollN(k, "s44", "z", sl=ZSL, pre=ZPRE)
    k("s_barrier\n" * (6 if PROG else 0) + "s_add_u32 s44, s44, 2048")
    pollN(k, "s44", "z2")
    k(f"""s_mov_b32 s55, {6 if PROG else 0}
          s_branch L_k5_ib
          L_k5_idle:""")
    k(f"""s_mov_b32 s55, 0
          L_k5_ib:
          s_barrier
          s_add_u32 s55, s55, 1""")
    if PTY:
        k(f"""s_cmp_eq_u32 s55, {PTY}
              s_cbranch_scc0 L_k5_i2
              s_cmp_eq_u32 s28, 4
              s_cbranch_scc0 L_k5_i2
              s_sub_u32 s44, s39, 8192
              s_add_u32 s44, s44, {YF}
              s_add_u32 s45, s44, {44*1024}
              s_cmp_eq_u32 s57, 7
              s_cselect_b32 s46, 32, 0
              v_min_u32 v12, 47, v1
              v_max_u32 v12, s46, v12
              v_lshlrev_b32 v12, 7, v12
              buffer_load_dword v127, v12, s[24:27], s44 offen
              buffer_load_dword v127, v12, s[24:27], s45 offen
              L_k5_i2:""")
    k(f"""
          s_cmp_lt_u32 s55, 17
          s_cbranch_scc1 L_k5_ib
          s_branch L_k6""")
    k("L_k5_comp:")
    srd(k, 20, 6, 7, 4096)
    k(f"""buffer_load_ushort v8, v12, s[20:23], s43 offen
          buffer_load_ushort v9, v12, s[20:23], s43 offen offset:64
          v_lshrrev_b32 v13, 1, v15
          v_and_b32 v13, 7, v13
          v_lshlrev_b32 v12, 7, v15
          v_lshrrev_b32 v10, 5, v1""")
    for qq in range(4):
        k(f"""v_add_u32 v14, {2*qq}, v10
              v_xor_b32 v14, v14, v13
              v_lshl_add_u32 v{4+qq}, v14, 4, v12""")
    k(f"""s_cmp_eq_u32 s34, 21
          s_cselect_b32 s44, {0x3ff & ~256}, -1
          v_and_b32 v3, s44, v2
          s_mov_b32 s55, 0
          s_mov_b32 s54, 24576
          s_waitcnt vmcnt(0)
          v_lshlrev_b32 v8, 16, v8
          v_lshlrev_b32 v9, 16, v9""")
    for r in range(16): k(f"v_mov_b32 v{ACC+r}, v8\nv_mov_b32 v{ACC+16+r}, v9")
    k("s_barrier")
    k.stamp(13 if False else 8)
    for i in range(AD):
        for j in range(4):
            k(f"buffer_load_dwordx4 {vr(A+16*i+4*j)}, v3, s[24:27], s40 offen offset:{1024*j}")
        k(f"s_add_u32 s40, s40, {(ORD[i+1]-ORD[i])*4096}")
    k(f"s_add_u32 s41, s41, 8192\ns_add_u32 s45, s39, {Z1}")
    def breads(half, slotoff):
        for j in range(2):
            for th in range(2):
                k(f"ds_read_b128 {vr(BF+16*half+8*j+4*th)}, v{4+2*half+j} offset:{slotoff+4096*th}")
    def mf(half, slot, ld):
        for j in range(2):
            for th in range(2):
                k(f"v_mfma_f32_32x32x16_bf16 {vr(ACC+16*th,16)}, {vr(A+16*slot+8*half+4*j)}, {vr(BF+16*half+8*j+4*th)}, {vr(ACC+16*th,16)}")
            if ld: ld(2*half + j)
    def ald(slot): return lambda jj: k(f"buffer_load_dwordx4 {vr(A+16*slot+4*jj)}, v3, s[24:27], s40 offen offset:{1024*jj}")
    k("s_barrier")
    breads(0, 0)
    k("L_k5_loop:")
    for i in range(6):
        sl = i % AD
        breads(1, i * 8192)
        k(f"s_waitcnt vmcnt({4*AD-2}) lgkmcnt(4)")
        mf(0, sl, ald(sl))
        if i & 1:
            k(f"s_waitcnt vmcnt({4*AD-2}) lgkmcnt(0)\ns_barrier")
            breads(0, ((i + 1) % 6) * 8192)
        else:
            breads(0, (i + 1) * 8192)
            k(f"s_waitcnt vmcnt({4*AD-2}) lgkmcnt(4)")
        mf(1, sl, ald(sl))
        k(f"s_add_u32 s40, s40, {12288 if i % 2 == 0 else 4096}" if PROG else "s_add_u32 s40, s40, 4096")
        if i == 0 and PROG:
            k(f"""s_cmp_eq_u32 s55, 2
                  s_cselect_b32 s40, s41, s40""")
        if i == 4:
            k(f"""s_add_u32 s55, s55, 1
                  s_cmp_eq_u32 s55, 5
                  s_cselect_b32 s40, s45, s40
                  s_cselect_b32 s44, -1, 0
                  v_and_or_b32 v3, s44, v2, v3""")
    k("""s_cmp_lt_u32 s55, 5
         s_cbranch_scc1 L_k5_loop""")
    k(f"s_add_u32 s43, s39, {Z1 + 44*1024}")
    breads(1, 0)
    k("s_waitcnt vmcnt(10) lgkmcnt(4)")
    mf(0, 0, lambda jj: k(f"buffer_load_dwordx4 {vr(A+4*jj)}, v2, s[24:27], s43 offen offset:{1024*jj}"))
    breads(0, 8192)
    k("s_waitcnt vmcnt(10) lgkmcnt(4)")
    mf(1, 0, None)
    breads(1, 8192)
    k("s_waitcnt vmcnt(8) lgkmcnt(4)")
    mf(0, 1, None)
    k("s_waitcnt vmcnt(6) lgkmcnt(0)")
    mf(1, 1, None)
    k.stamp(9)
    k("""s_cmp_eq_u32 s57, 7
         s_cselect_b32 s44, 2, 0
         s_cmp_lt_u32 s28, s44
         s_cbranch_scc1 L_k6_exit""")
    Zs = [A + 32 + i for i in range(8)] + [A + i for i in range(8)]
    k(f"""s_add_u32 s42, s39, {YF}
          s_add_u32 s43, s42, {44*1024}
          s_waitcnt vmcnt(0)""")
    for i in range(16):
        k(f"""v_lshlrev_b32 v{48+2*i}, 16, v{Zs[i]}
              v_and_b32 v{49+2*i}, 0xffff0000, v{Zs[i]}""")
    for i in range(32): k(f"v_mul_f32 v{ACC+i}, v{ACC+i}, v{48+i}")
    for i in range(16): k(f"v_cvt_pk_bf16_f32 v{A+i}, v{ACC+2*i}, v{ACC+2*i+1}")
    hstore(k, [f"buffer_store_dwordx4 {vr(A+8*th+4*f)}, v2, s[24:27], {'s43' if th else 's42'} offen offset:{1024*f}" for th in range(2) for f in range(2)])
    set_flagN(k, "s52")
    k.stamp(10)
    k("s_endpgm")
    k(f"""L_k6:
          s_cmp_eq_u32 s28, 3
          s_cbranch_scc1 L_k6_exit
          s_load_dwordx2 s[10:11], s[0:1], 80
          s_lshr_b32 s61, s28, 3           ; kh
          s_sub_u32 s48, s28, 4
          s_lshl_b32 s62, s56, 12
          s_add_u32 s62, s62, {YFLAG}
          s_mul_i32 s53, s61, {11*128}
          s_add_u32 s62, s62, s53""")
    lane_fields(k)
    k(f"""s_lshl_b32 s36, s56, 2
          s_add_u32 s36, s36, s3           ; rb16
          s_lshl_b32 s37, s57, 1
          s_add_u32 s37, s37, s61
          s_lshl_b32 s47, s36, 4
          s_add_u32 s47, s47, s37
          s_lshl_b32 s47, s47, 10
          s_add_u32 s47, s47, {HF}
          buffer_load_dwordx4 v[112:115], v2, s[24:27], s47 offen
          s_mul_i32 s45, s61, {11*1024}
          s_add_u32 s45, s45, {WOL}
          v_add_u32 v4, s45, v2
          v_add_u32 v5, {2*22528}, v4""")
    act32_voff(k, 3, "s32")
    k(f"""s_lshr_b32 s46, s36, 1
          s_mul_i32 s46, s46, {44*1024}
          s_mul_i32 s47, s61, {22*1024}
          s_add_u32 s46, s46, s47
          s_add_u32 s46, s46, {YF}
          s_cmp_eq_u32 s61, 0
          s_cselect_b32 s49, -1, 0
          s_waitcnt lgkmcnt(0)""")
    srd(k, 16, 10, 11, 2048 * 1024)
    for r in range(16): k(f"v_mov_b32 v{16+r}, 0")
    for r in range(4): k(f"v_mov_b32 v{64+40+r}, 0")
    woff = lambda s, u: (4 + (u >> 1), (u & 1) * 22528 + s * 1024)
    if WOT != 'tail': gemm64_reads(k, 0, woff)
    pollN(k, "s62", "y", 11)
    k.stamp(11)
    for s in range(11):
        if s % 2 == 0: k(f"s_add_u32 s47, s46, {s*2048}")
        if s == 10: k("s_mov_b32 exec_hi, s49")
        k(f"buffer_load_dwordx4 {vr(64+4*s)}, v3, s[24:27], s47 offen offset:{2048*(s&1)}")
    k("s_mov_b32 exec_hi, -1")
    if WOT == 'tail':
        k("s_barrier")
        gemm64_reads(k, 0, woff)
    k.stamp(8)
    if STAMPS: k("s_waitcnt vmcnt(10)")
    k.stamp(7)
    gemm64(k, 11, woff, 64)
    k.stamp(9)
    ksplit_exchange(k, 49152, "s48", tag="c")
    k.stamp(10)
    for i in range(4):
        k(f"""v_lshlrev_b32 v{40+2*i}, 16, v{112+i}
              v_and_b32 v{41+2*i}, 0xffff0000, v{112+i}""")
    for i in range(8): k(f"v_add_f32 v{16+i}, v{16+i}, v{40+i}")
    k(f"""v_and_b32 v12, 15, v1
          v_lshlrev_b32 v12, 10, v12
          v_and_b32 v13, 1, v8
          v_lshl_add_u32 v12, v13, 5, v12
          v_lshl_add_u32 v12, v9, 4, v12
          s_lshl_b32 s46, s36, 14
          s_lshl_b32 s47, s37, 6
          s_add_u32 s46, s46, s47
          s_waitcnt lgkmcnt(0)""")
    for i in range(8): k(f"v_add_f32 v{16+i}, v{16+i}, v{32+i}")
    for i in range(4): k(f"v_cvt_pk_bf16_f32 v{48+i}, v{16+2*i}, v{17+2*i}")
    k("""v_permlane16_swap_b32 v48, v50
         v_permlane16_swap_b32 v49, v51
         buffer_store_dwordx4 v[48:51], v12, s[16:19], s46 offen
         L_k6_exit:
         s_endpgm""")
    k(f"""L_kb_loader:
          s_and_b32 s31, s29, 1
          s_lshl_b32 s31, s31, 3
          s_add_u32 s30, s30, s31          ; g
          s_mul_i32 s31, s30, 3
          s_min_u32 s31, s31, 40           ; u0
          s_lshl_b32 s40, s31, 14
          s_lshl_b32 s38, s3, 12
          s_add_u32 s41, s40, s38
          s_add_u32 s41, s41, {WPK + 43*16384 + 32768}
          s_mul_i32 s38, s3, 9216
          s_add_u32 s40, s40, s38
          s_add_u32 s40, s40, {WPK + 12*1024}
          s_lshl_b32 s42, s3, 15
          s_add_u32 m0, s42, 24576
          s_mul_i32 s38, s3, 5120
          s_barrier""")
    if OLB: k("s_barrier")
    for j in range(4): k(f"buffer_load_dwordx4 v2, s[24:27], s41 offen offset:{1024*j} lds")
    if not P1:
        k("""s_mul_i32 s43, s3, 4096
             s_add_u32 s41, s41, s43
             s_sub_u32 s41, s41, 32768""")
        for h_ in range(2):
            k(f"s_add_u32 m0, s42, {16384 + 4096*h_}")
            for j in range(4): k(f"buffer_load_dwordx4 v2, s[24:27], s41 offen offset:{1024*j} lds")
            k("s_add_u32 s41, s41, 4096")
    k("s_add_u32 m0, s42, 28672")
    for j in range(4): k(f"buffer_load_dwordx4 v2, s[24:27], s40 offen offset:{1024*j} lds")
    k(f"s_add_u32 m0, s38, {128*1024}\ns_add_u32 s40, s40, 4096")
    for j in range(4): k(f"buffer_load_dwordx4 v2, s[24:27], s40 offen offset:{1024*j} lds")
    k(f"s_add_u32 m0, s38, {128*1024+4096}\ns_add_u32 s40, s40, 4096\nbuffer_load_dwordx4 v2, s[24:27], s40 offen lds")
    k.stamp(3)
    k(f"""s_load_dwordx2 s[16:17], s[0:1], 56
          s_lshl_b32 s35, s56, 6
          s_lshl_b32 s36, s3, 4
          s_add_u32 s35, s35, s36
          v_lshrrev_b32 v12, 3, v1
          v_add_u32 v5, s35, v12
          v_lshlrev_b32 v5, 12, v5
          v_and_b32 v13, 7, v1
          v_lshrrev_b32 v14, 4, v1
          v_xor_b32 v14, v13, v14
          v_lshl_add_u32 v5, v14, 4, v5
          v_xor_b32 v6, 64, v5
          v_add_u32 v6, {8*4096}, v6
          s_lshl_b32 s37, s3, 11
          s_lshl_b32 s36, s57, 2
          s_add_u32 s36, s36, s3
          s_mul_i32 s36, s36, 24576
          s_add_u32 s36, s36, {WUP}
          s_mul_i32 s35, s3, 22528
          s_add_u32 s35, s35, {WOL}
          s_mov_b32 s18, {2048*4096}
          s_mov_b32 s19, 0x00020000
          s_waitcnt {'' if OLB else 'vmcnt(0)'} lgkmcnt(0)""")
    k.stamp(4)
    k("s_barrier\ns_barrier")
    if OLB: k("s_waitcnt vmcnt(0)\ns_barrier")
    if KLC:
        k("""v_mov_b32 v12, 66560
             s_mov_b32 s60, 0
             L_ld_kl:
             ds_read_b32 v13, v12
             s_add_u32 s60, s60, 1
             s_waitcnt lgkmcnt(0)
             v_readfirstlane_b32 s43, v13
             s_cmp_gt_u32 s60, 0x400000
             s_cbranch_scc1 L_ld_klok
             s_cmp_ge_u32 s43, 8
             s_cbranch_scc1 L_ld_klok
             s_sleep 2
             s_branch L_ld_kl
             L_ld_klok:
             """)
    else: k("s_barrier")
    q = VQ(k)
    def bi(c):
        q.issue(f"b{c}", 2, lambda: k(f"""s_add_u32 m0, s37, {(c % NS)*8192}
              s_movk_i32 s41, {ORD[c]*128}
              buffer_load_dwordx4 v5, s[16:19], s41 offen lds
              s_add_u32 m0, s37, {(c % NS)*8192 + 1024}
              buffer_load_dwordx4 v6, s[16:19], s41 offen lds"""))
    def wi(c):
        q.issue(f"w{c}", 2, lambda: k(f"""s_add_u32 m0, s35, {c*2048}
              s_add_u32 s39, s36, {c*2048}
              buffer_load_dwordx4 v2, s[24:27], s39 offen lds
              {'s_sleep %d' % WSL2 if WSL2 else ''}
              buffer_load_dwordx4 v2, s[24:27], s39 offen offset:1024 lds
              {'s_sleep %d' % WSL2 if WSL2 else ''}"""))
    if WOT == 'kl':
        for c in range(11): wi(c)
    nxt = 0
    for _ in range(RP): bi(nxt); nxt += 1
    k.stamp(5)
    k("s_barrier")
    while nxt < NS: bi(nxt); nxt += 1
    if WOT == 'zb':
        for c in range(11): wi(c)
    k("s_barrier")
    for b in range(16):
        q.wait(f"b{2*b+1}"); k("s_barrier")
        while nxt < 32 and nxt - NS <= 2*b - 1: bi(nxt); nxt += 1
    k("s_branch L_k6")
    k(f"L_{k.name}_end:\ns_endpgm")
    return k, (256, 1024, 163840)
```

```python
from common import *
from k3 import *
from g16 import *
from k4 import GC1, GC2
import os
LSC = os.environ.get('LSC', 'sc1')
MAPC = int(os.environ.get('MAPC', 0))
ZSC = os.environ.get('ZSC', 'sc1')
PT = int(os.environ.get('PT', 0))
HW = int(os.environ.get('HW', 6))
PF2 = int(os.environ.get('PF2', 1))
WSL = int(os.environ.get('WSL', 1))
WSL2 = int(os.environ.get('WSL2', 0))
KVROT = int(os.environ.get('KVROT', 1))
WOT = os.environ.get('WOT', 'zb')
RP = int(os.environ.get('RP', 2))
PROG = int(os.environ.get('PROG', 1))
WB = int(os.environ.get('WB', 28))
PRIO = int(os.environ.get('K2_PRIO', 1))
PFQ = int(os.environ.get('PFQ', 1))
TLBW = int(os.environ.get('TLBW', 0))
OLB = int(os.environ.get('OLB', 0))
WPR = int(os.environ.get('WPR', 0))
EPB = int(os.environ.get('EPB', 0))
ZSL = int(os.environ.get('ZSL', 2))
ZPRE = int(os.environ.get('ZPRE', 0))
KSL = int(os.environ.get('KSL', 2))
KSTR = int(os.environ.get('KSTR', 4))
C0 = int(os.environ.get('C0', 0))
SCH = int(os.environ.get('SCH', 0))
SMF = int(os.environ.get('SMF', 3))
P1 = int(os.environ.get('P1', 1))
PFO = int(os.environ.get('PFO', 0))
PTY = int(os.environ.get('PTY', 0))
KLC = int(os.environ.get('KLC', 1))
DEEP = int(os.environ.get('DEEP', 0))
NOM2 = int(os.environ.get('NOM2', 0))
PFM = int(os.environ.get('PFM', 15))
PFSC = os.environ.get('PFSC', '')

FUSEC = int(os.environ.get('FUSEC', 1))
DSC = int(os.environ.get('DSC', 1))
def dstore(k, instrs):
    if not DSC: return hstore(k, instrs)
    for i in ([instrs] if isinstance(instrs, str) else instrs): k(i + " sc1")

def build_kall():
    k = Kern("sequential_preLN__grouped_kv_mqa__mixer_gmlp__prompt_kernel", nvgpr=128)
    NW = 16
    KL, VL, XL = 0, 65536, 131072
    Q = 4; KFR = 8; VFR = [[12, 16], [20, 24]]; P = 28; S = [36, 52]; O = 68; C = 84
    vK, vV = 100, 101
    NCH, NIT = 4, 8
    prologue_ids(k, 256)
    k("""s_load_dwordx8 s[4:11], s[0:1], 0
         s_load_dwordx4 s[12:15], s[0:1], 88""")
    k("""s_and_b32 s29, s2, 7
         s_lshr_b32 s30, s2, 3
         s_lshl_b32 s29, s29, 2
         s_lshr_b32 s31, s30, 3
         s_add_u32 s29, s29, s31          ; rb64
         s_and_b32 s30, s30, 7            ; cg
         s_and_b32 s3, s28, 3
         s_and_b32 s32, s28, 1            ; rh
         s_mov_b32 s56, s29
         s_mov_b32 s57, s30""")
    XL0, WL0, KVL, SX, QL = 0, 65536, 131072, 147456, 131072
    CSX = SX + 1024
    FASTW, CNT = 146 * 1024 + 512, 146 * 1024 + 576
    k("""s_lshl_b32 s46, s31, 1
         s_add_u32 s46, s46, s30
         s_and_b32 s46, s46, 7
         s_lshr_b32 s33, s3, 1            ; ch
         s_mov_b32 s62, 0
         s_mov_b32 s20, 0
         s_mov_b32 s21, 0
         s_mov_b32 s22, 0
         s_mov_b32 s23, 0x00020000
         v_mov_b32 v108, 0
         v_mov_b32 v109, 0
         v_mov_b32 v113, 0
         v_lshlrev_b32 v2, 4, v1""")
    lane_fields(k)
    k(f"""s_cmp_ge_u32 s28, 12
          s_cbranch_scc1 L_p0_st
          s_cmp_ge_u32 s28, 8
          s_cbranch_scc1 L_p0_q
          s_cmp_eq_u32 s28, 2
          s_cbranch_scc1 L_p0_kv
          s_cmp_eq_u32 s28, 3
          s_cbranch_scc1 L_p0_n
          s_cmp_lt_u32 s28, 2
          s_cbranch_scc1 L_p0_pack""")
    def att_ids():
        k(f"""s_and_b32 s38, s28, 7            ; q idx
              s_lshr_b32 s39, s28, 3
              s_lshl_b32 s44, s39, 15          ; half*32768
              s_lshl_b32 s47, s38, 10
              s_add_u32 s47, s47, s44
              v_add_u32 v3, s47, v2""")
    def kvdma(c):
        k(f"""s_add_u32 m0, s47, {KL + 8192*c}
              s_add_u32 s34, s57, {c}
              s_and_b32 s34, s34, {3 if KVROT else 0}
              s_lshl_b32 s34, s34, 13
              s_add_u32 s34, s34, {KF + (0 if KVROT else 8192*c)}
              s_add_u32 s35, s34, {VF - KF}
              buffer_load_dwordx4 v3, s[24:27], s34 offen lds
              s_add_u32 m0, s47, {VL + 8192*c}
              buffer_load_dwordx4 v3, s[24:27], s35 offen lds""")
    def att_init():
        k(f"""s_lshl_b32 s33, s29, 1
              s_add_u32 s33, s33, s32
              s_lshl_b32 s33, s33, 5
              s_lshl_b32 s34, s30, 2
              s_add_u32 s33, s33, s34
              s_lshr_b32 s34, s38, 1
              s_add_u32 s33, s33, s34
              s_lshl_b32 s46, s33, 10
              s_lshl_b32 s34, s38, 10
              s_add_u32 s34, s34, {QL}
              v_add_u32 v102, s34, v2
              v_mov_b32 v112, 0
              s_lshr_b32 s63, s29, 1
              s_lshl_b32 s63, s63, 11
              s_add_u32 s63, s63, {XID}
              v_add_u32 v{vK}, s44, v2
              v_lshrrev_b32 v103, 5, v1
              v_and_b32 v106, 15, v1
              v_lshl_add_u32 v103, v103, 4, v106
              v_lshlrev_b32 v103, 4, v103
              v_add_u32 v103, s44, v103
              v_add_u32 v{vV}, {VL}, v103
              v_mov_b32 v103, {SX + 768}
              s_mov_b32 s40, 0x0000ffff
              s_mov_b32 s41, 0x0000ffff
              v_and_b32 v106, 31, v1
              v_cmp_eq_u32 vcc, 16, v106
              v_mov_b32 v107, 0x3f803f80
              v_cndmask_b32 v107, 0, v107, vcc
              s_mov_b32 s42, 1
              s_mov_b32 s36, 0
              s_movk_i32 s31, {0x56 if PRIO == 3 else 0x52}
              s_cmp_eq_u32 s28, 4
              s_cselect_b32 s31, {0x5e if PRIO == 3 else 0x5a}, s31
              s_cmp_lg_u32 s62, 0
              s_cselect_b32 s31, {0x5e if PRIO == 3 else 0x5a}, s31
              v_mov_b32 v118, {CNT}
              v_mov_b32 v119, 1""")
        for i in range(16): k(f"v_mov_b32 v{12+i}, v107")
        for i in range(16): k(f"v_mov_b32 v{O+i}, 0")
        if SMF:
            k(f"v_mov_b32 v{P}, 0xdddddddd")
            for i in range(8): k(f"v_mov_b32 v{S[1]+8+i}, 0")
        k(f"v_mov_b32 v107, {f32(3500.0)}")
    k(f"""s_lshl_b32 s34, s29, 6
          s_lshl_b32 s35, s3, 4
          s_add_u32 s34, s34, s35
          v_lshrrev_b32 v12, 3, v1
          v_add_u32 v6, s34, v12
          v_lshlrev_b32 v6, 10, v6
          v_and_b32 v13, 7, v1
          v_xor_b32 v14, v13, v8
          v_lshl_add_u32 v6, v14, 4, v6
          v_xor_b32 v7, 64, v6
          v_add_u32 v7, 8192, v7
          s_lshl_b32 s36, s30, 7
          s_lshl_b32 s37, s3, 11
          s_mov_b32 s45, s46""")
    wt_dma_addr(k, 4, 5, "s35", "s36")
    k("s_waitcnt lgkmcnt(0)")
    srd(k, 16, 4, 5, 2048 * 1024); srd(k, 20, 6, 7, 512 * 1024); srd(k, 24, 14, 15, WS_USED)
    q = VQ(k)
    def xi(c):
        q.issue(f"x{c}", 2, lambda: k(f"""s_add_u32 m0, s37, {XL0 + c*8192}
              s_lshl_b32 s38, s46, 7
              s_add_u32 s46, s46, 1
              buffer_load_dwordx4 v6, s[16:19], s38 offen lds
              s_add_u32 m0, s37, {XL0 + c*8192 + 1024}
              s_and_b32 s46, s46, 7
              buffer_load_dwordx4 v7, s[16:19], s38 offen lds"""))
    def wqi(c):
        q.issue(f"w{c}", 2, lambda: k(f"""s_add_u32 m0, s37, {WL0 + c*8192}
              s_lshl_b32 s38, s45, 16
              s_add_u32 s45, s45, 1
              buffer_load_dwordx4 v4, s[20:23], s38 offen lds
              s_add_u32 m0, s37, {WL0 + c*8192 + 1024}
              s_and_b32 s45, s45, 7
              buffer_load_dwordx4 v5, s[20:23], s38 offen lds"""))
    for c in range(6): xi(c)
    k.stamp(2); q.wait("x1"); k.stamp(3); k("s_barrier"); k.stamp(4)
    xi(6); xi(7); wqi(0); wqi(1)
    q.wait("x3"); k("s_barrier")
    wqi(2); wqi(3); wqi(4)
    q.wait("x5"); k("s_barrier")
    wqi(5); wqi(6); wqi(7)
    q.wait("x7"); k.stamp(5); k("s_barrier\ns_barrier")
    for i in range(4):
        q.wait(f"w{2*i+1}"); k("s_barrier")
    k.stamp(6)
    k("s_branch L_att")
    k(f"""L_p0_q:
          v_mov_b32 v64, 0x3f803f80
          v_mov_b32 v65, 0x3f803f80
          v_mov_b32 v66, 0x3f803f80
          v_mov_b32 v67, 0x3f803f80
          v_lshl_add_u32 v6, v9, 3, v10
          v_lshlrev_b32 v6, 7, v6
          v_lshrrev_b32 v12, 1, v10
          v_xor_b32 v12, s33, v12
          v_lshl_add_u32 v6, v12, 6, v6
          v_and_b32 v12, 1, v8
          v_lshl_add_u32 v6, v12, 5, v6
          v_lshl_add_u32 v6, v11, 3, v6
          v_add_u32 v6, {WL0}, v6
          v_and_b32 v12, 31, v1
          s_lshl_b32 s40, s32, 5
          v_add_u32 v12, s40, v12
          v_lshlrev_b32 v76, 3, v12
          v_add_u32 v76, {SX}, v76
          v_lshlrev_b32 v77, 4, v9
          s_lshl_b32 s41, s3, 7
          s_add_u32 s41, s41, {CSX}
          v_add_u32 v77, s41, v77
          v_xor_b32 v78, 128, v77
          v_lshrrev_b32 v13, 1, v12
          v_and_b32 v13, 7, v13
          v_lshlrev_b32 v12, 7, v12""")
    for qq in range(4):
        k(f"""v_add_u32 v14, {2*qq}, v9
              v_xor_b32 v14, v14, v13
              v_lshl_add_u32 v{72+qq}, v14, 4, v12""")
    for r in range(32): k(f"v_mov_b32 v{32+r}, 0")
    k("s_waitcnt lgkmcnt(0)")
    srd(k, 24, 14, 15, WS_USED)
    k("s_barrier\n" * 5)
    k.stamp(4)
    def qreads(c):
        s = c & 1
        for qq in range(4):
            st = 4*c + qq
            k(f"""ds_read_b64_tr_b16 v[{FA(s,qq)}:{FA(s,qq)+1}], v6 offset:{2048*st}
                  ds_read_b64_tr_b16 v[{FA(s,qq)+2}:{FA(s,qq)+3}], v6 offset:{2048*st+512}
                  ds_read_b128 {vr(FB(s,qq))}, v{72+qq} offset:{XL0 + 8192*c}""")
    def qloop(cs):
        def step(c, qq):
            s = c & 1
            k(f"v_mfma_f32_32x32x16_bf16 v[32:47], {vr(FA(s,qq))}, {vr(FB(s,qq))}, v[32:47]")
            if (qq & 1) == cs: k(f"v_mfma_f32_32x32x16_bf16 v[48:63], {vr(FA(s,qq))}, v[64:67], v[48:63]")
        k("s_barrier")
        k.stamp(5)
        qreads(0)
        for c in range(8):
            for qq in range(3):
                k(f"s_waitcnt lgkmcnt({9-3*qq})"); step(c, qq)
            k("s_waitcnt lgkmcnt(0)")
            if c < 7:
                if c & 1: k("s_barrier")
                qreads(c + 1)
            step(c, 3)
    k("""s_cmp_eq_u32 s32, 0
         s_cbranch_scc0 L_p0_qcs""")
    qloop(0)
    k("s_branch L_p0_qfin\nL_p0_qcs:")
    qloop(1)
    k("L_p0_qfin:\ns_nop 7")
    for gq in range(4): k(f"ds_write_b128 v77, {vr(48+4*gq)} offset:{32*gq}")
    k(f"""s_lshl_b32 s34, s33, 12
          s_lshl_b32 s35, s32, 10
          s_add_u32 s34, s34, s35
          s_add_u32 s34, s34, {QL}
          v_add_u32 v70, s34, v2""")
    att_ids()
    k("s_waitcnt lgkmcnt(0)\ns_barrier")
    k.stamp(6)
    k("ds_read_b64 v[68:69], v76")
    for gq in range(4): k(f"ds_read_b128 {vr(80+4*gq)}, v78 offset:{32*gq}")
    kvdma(0)
    k(f"""s_waitcnt lgkmcnt(0)
          v_mul_f32 v69, {f32(0.25*1.4426950408889634)}, v69""")
    for r in range(16): k(f"v_add_f32 v{48+r}, v{48+r}, v{80+r}")
    for r in range(16): k(f"v_fma_f32 v{32+r}, -v68, v{48+r}, v{32+r}")
    for r in range(16): k(f"v_mul_f32 v{32+r}, v69, v{32+r}")
    for r in range(8): k(f"v_cvt_pk_bf16_f32 v{48+r}, v{32+2*r}, v{33+2*r}")
    k("""ds_write_b128 v70, v[48:51]
         ds_write_b128 v70, v[52:55] offset:2048""")
    att_init()
    k("s_branch L_att2")
    k(f"""L_p0_st:
          v_lshrrev_b32 v12, 2, v1
          s_lshl_b32 s34, s3, 4
          v_add_u32 v12, s34, v12           ; row
          v_lshlrev_b32 v7, 3, v12
          v_add_u32 v7, {SX}, v7
          v_lshrrev_b32 v13, 1, v12
          v_and_b32 v13, 7, v13
          v_lshlrev_b32 v12, 7, v12
          v_lshlrev_b32 v14, 1, v11
          v_xor_b32 v14, v14, v13
          v_lshl_add_u32 v4, v14, 4, v12
          v_xor_b32 v5, 16, v4
          v_mov_b32 v64, 0x3f803f80""")
    for i in range(4): k(f"v_mov_b32 v{48+i}, 0")
    k("s_waitcnt lgkmcnt(0)")
    srd(k, 24, 14, 15, WS_USED)
    for gi_ in range(4):
        k("s_barrier")
        for c in range(2):
            k(f"""ds_read_b128 {vr(16+8*c)}, v4 offset:{XL0 + 8192*(2*gi_+c)}
                  ds_read_b128 {vr(20+8*c)}, v5 offset:{XL0 + 8192*(2*gi_+c)}""")
        k("s_waitcnt lgkmcnt(0)")
        for d in range(16):
            k(f"""v_dot2_f32_bf16 v{48+(d&1)}, v{16+d}, v64, v{48+(d&1)}
                  v_dot2_f32_bf16 v{50+(d&1)}, v{16+d}, v{16+d}, v{50+(d&1)}""")
    k("v_add_f32 v48, v48, v49\nv_add_f32 v49, v50, v51")
    for qp in ("[1,0,3,2]", "[2,3,0,1]"):
        for i in range(2): k(f"v_add_f32_dpp v{48+i}, v{48+i}, v{48+i} quad_perm:{qp} row_mask:0xf bank_mask:0xf")
    ln_stats(k, 48, 49, 512, 12)
    k("ds_write_b64 v7, v[48:49]\ns_waitcnt lgkmcnt(0)")
    k("s_barrier\n" * 5 + "s_branch L_att")
    k(f"""L_p0_n:
          v_mov_b32 v20, 0
          s_memrealtime s[58:59]
          s_waitcnt lgkmcnt(0)""")
    srd(k, 24, 14, 15, WS_USED); srd(k, 16, 12, 13, 256)
    if PFQ:
        srd(k, 20, 6, 7, 512 * 1024)
        k(f"""s_lshr_b32 s34, s2, 3
              s_lshl_b32 s34, s34, 14
              s_add_u32 s35, s34, 8192
              v_lshlrev_b32 v24, 7, v1
              buffer_load_dword v25, v24, s[20:23], s34 offen
              buffer_load_dword v25, v24, s[20:23], s35 offen""")
    k(f"""s_mov_b64 exec, 1
          s_cmp_eq_u32 s2, 0
          s_cbranch_scc0 L_p0_n1
          s_or_b32 s59, s59, 0x40000000
          v_mov_b32 v22, s58
          v_mov_b32 v23, s59
          buffer_store_dwordx2 v[22:23], v20, s[16:19], 0 offen sc1
          L_p0_n1:
          s_barrier
          s_barrier
          s_mov_b32 s60, 0
          L_p0_np:
          buffer_load_dwordx2 v[22:23], v20, s[16:19], 0 offen sc1
          s_add_u32 s60, s60, 1
          s_cmp_eq_u32 s60, 1
          s_cbranch_scc0 L_p0_nw
          s_barrier
          s_barrier
          L_p0_nw:
          s_waitcnt vmcnt(0)
          v_cmp_eq_u32 vcc, 0, v23
          s_cmp_gt_u32 s60, 0x40000
          s_cbranch_scc1 L_p0_n2
          s_cbranch_vccnz L_p0_np
          L_p0_n2:
          v_mov_b32 v21, {SX + 768}
          ds_write_b64 v21, v[22:23]
          v_readfirstlane_b32 s58, v22
          v_readfirstlane_b32 s59, v23
          s_mov_b64 exec, -1
          v_lshlrev_b32 v21, 2, v1
          v_add_u32 v21, {FASTW}, v21
          v_cmp_eq_u32 vcc, 0, v1
          v_cndmask_b32 v22, 0, 2, vcc
          ds_write_b32 v21, v22
          v_mov_b32 v21, {SX + 768}
          v_lshlrev_b32 v26, {KSTR}, v1
          s_waitcnt lgkmcnt(0)""")
    k.stamp(4)
    k("s_barrier\n" * (5 - EPB))
    k.stamp(5)
    k(f"""s_mov_b32 s60, 0
          L_p0_gp:""")
    for i in range(4): k(f"s_mov_b32 s34, {KVFLAG + (64 << KSTR) * i}\nbuffer_load_dwordx3 v[{28+4*i}:{30+4*i}], v26, s[24:27], s34 offen sc1")
    if EPB:
        k("s_cmp_eq_u32 s60, 0\ns_cbranch_scc0 L_p0_gw\n" + "s_barrier\n" * EPB + "L_p0_gw:")
    k("s_add_u32 s60, s60, 1\ns_waitcnt vmcnt(0)")
    for i in range(4):
        k(f"v_xor_b32 v{28+4*i}, s58, v{28+4*i}\nv_xor_b32 v{29+4*i}, s59, v{29+4*i}")
    k(f"""v_or3_b32 v28, v28, v29, v32
          v_or3_b32 v33, v33, v36, v37
          v_or3_b32 v28, v28, v40, v41
          v_or_b32 v28, v28, v33
          v_cmp_ne_u32 vcc, 0, v28
          s_cmp_gt_u32 s60, 0x40000
          s_cbranch_scc1 L_p0_g2
          s_cbranch_vccz L_p0_g2
          s_sleep {KSL}
          s_branch L_p0_gp
          L_p0_g2:
          v_max3_f32 v30, v30, v34, v38
          v_max_f32 v30, v30, v42""")
    for sh in (1, 2, 4, 8):
        k(f"v_max_f32_dpp v30, v30, v30 row_ror:{sh} row_mask:0xf bank_mask:0xf")
    k("""v_mov_b32 v31, v30
         v_permlane16_swap_b32 v30, v31
         v_max_f32 v30, v30, v31
         v_mov_b32 v31, v30
         v_permlane32_swap_b32 v30, v31
         v_max_f32 v30, v30, v31
         ds_write_b32 v21, v30 offset:8
         s_branch L_att""")
    k(f"""L_p0_kv:
          s_lshr_b32 s40, s30, 2           ; kv
          s_and_b32 s41, s30, 3            ; rq
          s_waitcnt lgkmcnt(0)
          s_cmp_eq_u32 s40, 0
          s_cselect_b32 s20, s8, s10
          s_cselect_b32 s21, s9, s11
          s_mov_b32 s22, 16384
          s_mov_b32 s23, 0x00020000""")
    srd(k, 24, 14, 15, WS_USED)
    for c in range(8):
        k(f"""s_mov_b32 m0, {KVL + 2048*c}
              s_lshl_b32 s38, s46, 11
              s_add_u32 s46, s46, 1
              buffer_load_dwordx4 v2, s[20:23], s38 offen lds
              buffer_load_dwordx4 v2, s[20:23], s38 offen offset:1024 lds
              s_and_b32 s46, s46, 7""")
    k(f"""v_mov_b32 v64, 0x3f803f80
          v_mov_b32 v65, 0x3f803f80
          v_mov_b32 v66, 0x3f803f80
          v_mov_b32 v67, 0x3f803f80
          v_and_b32 v15, 15, v1
          s_lshl_b32 s34, s41, 4
          v_add_u32 v12, s34, v15
          v_lshlrev_b32 v74, 3, v12
          v_add_u32 v74, {SX}, v74
          v_lshl_add_u32 v75, v8, 2, s34
          v_lshlrev_b32 v75, 3, v75
          v_add_u32 v75, {SX}, v75
          v_lshrrev_b32 v13, 1, v12
          v_and_b32 v13, 7, v13
          v_lshlrev_b32 v12, 7, v12
          v_xor_b32 v14, v8, v13
          v_lshl_add_u32 v72, v14, 4, v12
          v_add_u32 v14, 4, v8
          v_xor_b32 v14, v14, v13
          v_lshl_add_u32 v73, v14, 4, v12
          v_lshl_add_u32 v6, v8, 3, v10
          v_lshlrev_b32 v6, 5, v6
          v_lshl_add_u32 v6, v11, 3, v6
          v_add_u32 v6, {KVL}, v6
          s_lshl_b32 s34, s29, 2
          s_add_u32 s34, s34, s41          ; t16
          v_and_b32 v12, 1, v8             ; h
          v_lshrrev_b32 v13, 1, v8         ; piece
          v_mov_b32 v76, {SX + 768}
          s_and_b32 s37, s2, 7
          s_lshl_b32 s37, s37, {5 + KSTR}
          s_lshr_b32 s36, s2, 3
          s_lshl_b32 s36, s36, {KSTR}
          s_add_u32 s37, s37, s36
          s_add_u32 s37, s37, {KVFLAG}""")
    for r in range(8): k(f"v_mov_b32 v{32+r}, 0")
    def kvloop(isv):
        for gi_ in range(4):
            k(f"s_waitcnt vmcnt({4*(3-gi_)})\ns_barrier")
            for s in range(4):
                st = 4*gi_ + s; b = 80 + 8*s
                k(f"""ds_read_b64_tr_b16 v[{b}:{b+1}], v6 offset:{1024*st}
                      ds_read_b64_tr_b16 v[{b+2}:{b+3}], v6 offset:{1024*st+128}
                      ds_read_b128 {vr(b+4)}, v{72+(s&1)} offset:{XL0+8192*(st//2)}""")
            for s in range(4):
                W, X = 80 + 8*s, 84 + 8*s
                k(f"s_waitcnt lgkmcnt({9-3*s})")
                if isv:
                    k(f"""v_mfma_f32_16x16x32_bf16 v[32:35], {vr(X)}, {vr(W)}, v[32:35]
                          v_mfma_f32_16x16x32_bf16 v[36:39], v[64:67], {vr(W)}, v[36:39]""")
                else:
                    k(f"""v_mfma_f32_16x16x32_bf16 v[32:35], {vr(W)}, {vr(X)}, v[32:35]
                          v_mfma_f32_16x16x32_bf16 v[36:39], {vr(W)}, v[64:67], v[36:39]""")
        k("s_barrier\nds_read_b64 v[40:41], v76")
    k("""s_cmp_eq_u32 s40, 0
         s_cbranch_scc0 L_p0_v""")
    kvloop(False)
    k(f"""ds_read_b64 v[68:69], v74
          v_lshlrev_b32 v3, 9, v12
          v_lshl_add_u32 v3, v15, 4, v3
          v_lshl_add_u32 v3, v13, 3, v3
          s_lshr_b32 s35, s34, 1
          s_lshl_b32 s35, s35, 10
          s_and_b32 s36, s34, 1
          s_lshl_b32 s36, s36, 8
          s_add_u32 s35, s35, s36
          s_add_u32 s35, s35, {KF}
          s_waitcnt lgkmcnt(0)""")
    for r in range(4): k(f"v_fma_f32 v{32+r}, -v68, v{36+r}, v{32+r}")
    for r in range(4): k(f"v_mul_f32 v{32+r}, v69, v{32+r}")
    k(f"""v_cvt_pk_bf16_f32 v36, v32, v33
          v_cvt_pk_bf16_f32 v37, v34, v35
          buffer_store_dwordx2 v[36:37], v3, s[24:27], s35 offen sc1
          v_dot2_f32_bf16 v42, v36, v36, 0
          v_dot2_f32_bf16 v42, v37, v37, v42""")
    xhalf_add(k, 42, 12); x16_add(k, 42, 12)
    for sh in (1, 2, 4, 8):
        k(f"v_max_f32_dpp v42, v42, v42 row_ror:{sh} row_mask:0xf bank_mask:0xf")
    k("s_branch L_p0_kvf\nL_p0_v:")
    kvloop(True)
    k(f"""ds_read_b128 v[56:59], v75
          ds_read_b128 v[60:63], v75 offset:16
          v_lshlrev_b32 v3, 8, {'v13' if SMF else 'v12'}
          v_lshl_add_u32 v3, v15, 4, v3
          v_lshl_add_u32 v3, {'v12' if SMF else 'v13'}, 3, v3
          s_lshl_b32 s35, s34, 9
          s_add_u32 s35, s35, {VF}
          v_mov_b32 v42, 0
          s_waitcnt lgkmcnt(0)""")
    for r in range(4): k(f"v_fma_f32 v{32+r}, -v{56+2*r}, v{36+r}, v{32+r}")
    for r in range(4): k(f"v_mul_f32 v{32+r}, v{57+2*r}, v{32+r}")
    k(f"""v_cvt_pk_bf16_f32 v36, v32, v33
          v_cvt_pk_bf16_f32 v37, v34, v35
          buffer_store_dwordx2 v[36:37], v3, s[24:27], s35 offen sc1
          L_p0_kvf:
          v_mov_b32 v43, 0""")
    k.stamp(2)
    k("s_barrier")
    k.stamp(3)
    k("s_waitcnt vmcnt(0)")
    k.stamp(5)
    k(f"""s_mov_b64 exec, 1
          buffer_store_dwordx4 v[40:43], v43, s[24:27], s37 offen sc1
          s_mov_b64 exec, -1""")
    if STAMPS: k("s_waitcnt vmcnt(0)")
    k.stamp(4)
    k("s_barrier\n" * 3 + "s_branch L_att")
    k(f"""L_p0_pack:
          s_load_dwordx2 s[48:49], s[0:1], 48
          s_load_dwordx2 s[50:51], s[0:1], 32
          s_load_dwordx2 s[52:53], s[0:1], 72
          s_lshl_b32 s35, s28, 8
          s_add_u32 s35, s35, s2           ; J
          s_lshl_b32 s36, s28, 13
          s_add_u32 s36, s36, {128*1024}
          s_waitcnt lgkmcnt(0)""")
    srd(k, 24, 14, 15, WS_USED)
    if TLBW:
        k(f"""s_load_dwordx4 s[40:43], s[0:1], 56
              s_load_dwordx2 s[44:45], s[0:1], 80
              v_lshlrev_b32 v20, {TLBW}, v1
              buffer_load_dword v21, v20, s[24:27], 0 offen
              s_mov_b32 s18, {688*1024}
              s_mov_b32 s19, 0x00020000""")
        for lo, sz in ((48, 512*2752), (50, 512*1024), (52, 688*1024)):
            k(f"""s_mov_b32 s16, s{lo}
                  s_mov_b32 s17, s{lo+1}
                  s_mov_b32 s18, {sz}
                  buffer_load_dword v21, v20, s[16:19], 0 offen""")
        k("s_waitcnt lgkmcnt(0)")
        for lo, sz in ((40, 2048*4096), (42, 4096), (44, 2048*1024)):
            k(f"""s_mov_b32 s16, s{lo}
                  s_mov_b32 s17, s{lo+1}
                  s_mov_b32 s18, {sz}
                  buffer_load_dword v21, v20, s[16:19], 0 offen""")
    k(f"""s_cmp_lt_u32 s35, 332
          s_cbranch_scc1 L_pk_job""")
    k("L_pk_done:\n" + "s_barrier\n" * 9 + "s_branch L_att")
    k(f"""L_pk_job:
          s_lshl_b32 s62, s35, 7
          s_add_u32 s62, s62, {PFLAG}
          s_mov_b32 s23, 0x00020000
          s_cmp_lt_u32 s35, 172
          s_cbranch_scc1 L_pk_in
          s_movk_i32 s40, 1024
          s_cmp_lt_u32 s35, 236
          s_cbranch_scc1 L_pk_o
          s_sub_u32 s35, s35, 236
          s_mul_i32 s37, s35, 171
          s_lshr_b32 s37, s37, 9
          s_mul_i32 s38, s37, 3
          s_sub_u32 s38, s35, s38
          s_mov_b32 s20, s52
          s_mov_b32 s21, s53
          s_mov_b32 s22, {688*1024}
          s_mul_i32 s39, s37, 24576
          s_add_u32 s39, s39, {WUP}
          s_branch L_pk_d
          L_pk_o:
          s_sub_u32 s35, s35, 172
          s_lshr_b32 s37, s35, 1
          s_and_b32 s38, s35, 1
          s_mov_b32 s20, s50
          s_mov_b32 s21, s51
          s_mov_b32 s22, {512*1024}
          s_lshl_b32 s39, s37, 14
          s_add_u32 s39, s39, {WOP}
          L_pk_d:
          v_lshrrev_b32 v12, 1, v8
          v_lshlrev_b32 v6, 4, v12
          v_and_b32 v12, 1, v8
          v_lshl_add_u32 v6, v12, 2, v6
          s_movk_i32 s41, 256
          s_mov_b32 s42, 0
          s_branch L_pk_go
          L_pk_in:
          s_movk_i32 s40, 2752
          s_lshr_b32 s37, s35, 1
          s_and_b32 s38, s35, 1
          s_mov_b32 s20, s48
          s_mov_b32 s21, s49
          s_mov_b32 s22, {512*2752}
          s_lshl_b32 s39, s37, 14
          s_add_u32 s39, s39, {WPK}
          v_lshlrev_b32 v6, 2, v8
          s_movk_i32 s41, 512
          s_mov_b32 s42, 1
          L_pk_go:
          v_add_u32 v6, v6, v10
          v_lshlrev_b32 v6, 5, v6
          v_lshl_add_u32 v6, v11, 3, v6
          v_add_u32 v108, s36, v6
          v_add_u32 v109, s41, v108
          s_lshl_b32 s43, s38, 13
          s_add_u32 s48, s39, s43           ; dst
          v_lshrrev_b32 v113, 1, v1
          v_mul_lo_u32 v113, v113, s40
          v_and_b32 v12, 1, v1
          v_lshl_add_u32 v113, v12, 4, v113
          s_lshl_b32 s50, s40, 8
          s_mul_i32 s50, s50, s38
          s_lshl_b32 s44, s37, 5
          s_add_u32 s50, s50, s44           ; src
          s_lshl_b32 s51, s40, 5            ; 32 rows
          s_lshl_b32 s49, s37, 6
          s_add_u32 s49, s49, s43
          s_add_u32 s49, s49, {CSUM}
          s_mul_i32 s49, s49, s42
          s_mov_b32 s45, s36
          s_branch L_pk_done""")
    k("L_att:")
    att_ids(); att_init()
    k.stamp(8)
    k("s_waitcnt lgkmcnt(0)\ns_barrier")
    k.stamp(7)
    kvdma(0)
    k(f"""L_att2:
          s_waitcnt vmcnt(0) lgkmcnt(0)
          s_barrier
          ds_read_b128 {vr(Q)}, v102
          ds_read_b128 v[120:123], v103
          ds_read_b128 {vr(KFR)}, v{vK}""")
    kvdma(1)
    k(f"""s_waitcnt lgkmcnt(0)
          v_readfirstlane_b32 s58, v120
          v_readfirstlane_b32 s59, v121
          v_mov_b32 v104, v122
          v_dot2_f32_bf16 v106, v{Q}, v{Q}, 0
          v_dot2_f32_bf16 v106, v{Q+1}, v{Q+1}, v106
          v_dot2_f32_bf16 v106, v{Q+2}, v{Q+2}, v106
          v_dot2_f32_bf16 v106, v{Q+3}, v{Q+3}, v106""")
    xhalf_add(k, 106, 105)
    k(f"""v_mul_f32 v104, v104, v106
          v_cmp_nle_f32 vcc, v104, v107""")
    kvdma(2); kvdma(3)
    k("s_cbranch_vccnz L_k2_slow")
    k.stamp(1)
    if os.environ.get("STP0"): k.stamp = lambda i, real=False: None if i < 13 else Kern.stamp(k, i, real)
    def att_loop(sfx, cop):
        k(f"""L_k2_start{sfx}:
              s_waitcnt lgkmcnt(0)
              v_mfma_f32_32x32x16_bf16 {vr(S[0],16)}, {vr(KFR)}, {vr(Q)}, {cop}
              ds_read_b128 {vr(KFR)}, v{vK} offset:1024
              s_mov_b64 exec, s[40:41]
              ds_read_b128 {vr(VFR[0][0])}, v{vV}
              ds_read_b128 {vr(VFR[0][1])}, v{vV} offset:512
              s_mov_b64 exec, -1
              s_nop 7
              L_k2_loop{sfx}:
              s_bitcmp1_b32 s31, s36
              s_cbranch_scc1 L_k2_ev
              L_k2_body{sfx}:""")
        for u in range(4):
            s = S[u & 1]; sn = S[(u + 1) & 1]; vf = VFR[u & 1]; vn = VFR[(u + 1) & 1]
            k(f"s_setprio {3-u}")
            for i in range(16):
                if i == 3:
                    k(f"""v_smfmac_f32_32x32x32_bf16 {vr(O,16)}, {vr(vn[1])}, {vr(sn+8,8)}, v{P}
                          s_mov_b64 exec, s[40:41]
                          ds_read_b128 {vr(vn[0])}, v{vV} offset:{1024*(u+1)}
                          ds_read_b128 {vr(vn[1])}, v{vV} offset:{1024*(u+1)+512}
                          s_mov_b64 exec, -1""")
                if i == 8:
                    k(f"""s_waitcnt lgkmcnt(2)
                          v_mfma_f32_32x32x16_bf16 {vr(sn,16)}, {vr(KFR)}, {vr(Q)}, {cop}
                          ds_read_b128 {vr(KFR)}, v{vK} offset:{1024*(u+2)}""")
                if i == 13:
                    k(f"v_smfmac_f32_32x32x32_bf16 {vr(O,16)}, {vr(vf[0])}, {vr(s,8)}, v{P}")
                k(f"v_exp_f32 v{s+i}, v{s+i}")
        k(f"""v_add_u32 v{vK}, 4096, v{vK}
              v_add_u32 v{vV}, 4096, v{vV}
              s_add_u32 s36, s36, 1
              s_cmp_lt_u32 s36, {NIT}
              s_cbranch_scc1 L_k2_loop{sfx}""")
    att_loop("", "0")
    k("L_k2_done:")
    if SMF: k(f"v_smfmac_f32_32x32x32_bf16 {vr(O,16)}, {vr(VFR[1][1])}, {vr(S[1]+8,8)}, v{P}")
    else: k(f"v_mfma_f32_32x32x16_bf16 {vr(O,16)}, {vr(VFR[1][1])}, {vr(P+4)}, {vr(O,16)}")
    k("s_setprio 0\ns_waitcnt lgkmcnt(0)")
    k.stamp(2)
    k(f"""s_mul_i32 s45, s38, 2304
          s_add_u32 s45, s45, {XL}
          v_add_u32 v103, s45, v2
          v_lshlrev_b32 v104, 2, v1
          v_add_u32 v104, s45, v104
          v_mov_b32 v107, {FASTW}
          s_lshl_b32 s35, s38, 2
          s_add_u32 s35, s35, {FASTW + 128}
          v_mov_b32 v102, s35
          s_cmp_eq_u32 s39, 0
          s_cbranch_scc1 L_k2_give
          s_mov_b32 s60, 0
          L_k2_mw:
          ds_read_b32 v105, v102
          ds_read_b32 v106, v107
          ds_read_b128 {vr(S[0])}, v103
          ds_read_b128 {vr(S[0]+4)}, v103 offset:1024
          ds_read_b32 v{S[0]+8}, v104 offset:2048
          s_lshl_b32 s34, s29, 13
          s_add_u32 s34, s34, {OFLAG}
          s_lshl_b32 s35, s32, 12
          s_add_u32 s34, s34, s35
          s_lshl_b32 s35, s30, 9
          s_add_u32 s34, s34, s35
          s_lshr_b32 s35, s38, 1
          s_lshl_b32 s35, s35, 7
          s_add_u32 s34, s34, s35
          s_add_u32 s33, s46, {OF}
          s_add_u32 s60, s60, 1
          s_waitcnt lgkmcnt(0)
          v_readfirstlane_b32 s63, v106
          v_readfirstlane_b32 s35, v105
          s_cmp_gt_u32 s60, 0x400000
          s_cbranch_scc1 L_k2_mok
          s_cmp_eq_u32 s63, 2
          s_cbranch_scc1 L_k2_mw
          s_cmp_eq_u32 s35, 0
          s_cbranch_scc1 L_k2_mw
          L_k2_mok:""")
    k.stamp(3)
    for r in range(9): k(f"v_add_f32 v{O+r}, v{O+r}, v{S[0]+r}")
    k(f"""v_mov_b32 v104, v{O+8}
          v_permlane32_swap_b32 v{O+8}, v104
          v_rcp_f32 v104, v{O+8}""")
    for r in range(8): k(f"v_mul_f32 v{O+r}, v104, v{O+r}")
    for r in range(4): k(f"v_cvt_pk_bf16_f32 v{P+r}, v{O+2*r}, v{O+2*r+1}")
    dstore(k, f"buffer_store_dwordx4 {vr(P)}, v2, s[24:27], s33 offen")
    k.stamp(4)
    if STAMPS: k("s_waitcnt vmcnt(0)")
    k.stamp(5)
    set_flagN(k, "s34")
    k.stamp(6)
    k("""s_cmp_lt_u32 s28, 12
         s_cbranch_scc1 L_kb_loader
         s_endpgm""")
    k(f"""L_k2_ev:
          s_cmp_ge_u32 s36, 6
          s_cbranch_scc1 L_k2_cnt
          s_cmp_eq_u32 s36, 4
          s_cbranch_scc1 L_k2_st4
          s_cmp_eq_u32 s36, 3
          s_cbranch_scc1 L_k2_st3
          s_cmp_eq_u32 s36, 1
          s_cbranch_scc1 L_k2_st1
          s_setprio 2
          s_branch L_k2_ret
          L_k2_st1:
          s_cmp_eq_u32 s42, 1
          s_cbranch_scc0 L_k2_st1c
          s_waitcnt vmcnt(0)
          s_barrier
          L_k2_st1c:
          s_cmp_eq_u32 s62, 0
          s_cbranch_scc1 L_nopk""")
    for i in range(8):
        k(f"""s_add_u32 m0, s45, {1024*i}
              buffer_load_dwordx4 v113, s[20:23], s50 offen lds
              s_add_u32 s50, s50, s51""")
    k(f"""s_branch L_k2_ret
          L_nopk:
          s_lshr_b32 s34, s28, 2
          s_cmp_eq_u32 s34, 1
          s_cbranch_scc0 L_k2_ret
          s_load_dwordx2 s[52:53], s[0:1], 56
          s_lshr_b32 s61, s2, 3
          s_lshl_b32 s61, s61, 2
          s_add_u32 s61, s61, s3
          v_lshlrev_b32 v108, 7, v1
          s_and_b32 s37, s2, 7
          s_lshl_b32 s37, s37, 20
          s_lshl_b32 s61, s61, 13
          s_add_u32 s37, s37, s61
          s_mov_b32 s54, {2048*4096}
          s_mov_b32 s55, 0x00020000
          s_waitcnt lgkmcnt(0)
          buffer_load_dword v120, v108, s[52:55], s37 offen
          s_cmp_eq_u32 s28, 4
          s_cbranch_scc0 L_k2_ret
          s_lshr_b32 s34, s29, 1
          s_lshl_b32 s34, s34, 7
          s_and_b32 s35, s29, 1
          s_lshl_b32 s35, s35, 3
          s_add_u32 s34, s34, s35
          s_add_u32 s34, s34, s30
          s_lshl_b32 s34, s34, 7
          s_add_u32 s34, s34, {ZSTAT}
          v_mov_b32 v112, -1
          v_mov_b32 v113, -1
          v_mov_b32 v114, -1
          v_mov_b32 v115, -1
          v_lshrrev_b32 v116, 3, v1
          v_lshlrev_b32 v116, 11, v116
          v_and_b32 v117, 7, v1
          v_lshl_add_u32 v116, v117, 4, v116
          buffer_store_dwordx4 v[112:115], v116, s[24:27], s34 offen sc1
          s_branch L_k2_ret
          L_k2_cnt:
          {'s_setprio 0' if PRIO == 3 else ''}
          L_k2_cnt2:
          s_waitcnt lgkmcnt(0)
          s_mov_b64 exec, 1
          ds_add_u32 v118, v119
          s_mov_b64 exec, -1
          v_add_u32 v118, 4, v118
          s_branch L_k2_ret
          L_k2_st4:
          {'s_setprio 1' if PRIO == 3 else ''}
          s_cmp_eq_u32 s62, 0
          s_cbranch_scc1 L_k2_cnt2
          v_mov_b32 v112, s58
          v_mov_b32 v113, s59
          v_mov_b32 v114, 0
          s_waitcnt vmcnt(0)
          s_mov_b64 exec, 1
          buffer_store_dwordx2 v[112:113], v114, s[24:27], s62 offen sc1
          s_mov_b64 exec, -1
          s_branch L_k2_cnt2
          L_k2_st3:
          s_waitcnt vmcnt(0)
          s_cmp_lg_u32 s62, 0
          s_cbranch_scc1 L_k2_pk
          s_and_b32 s34, s29, 1
          s_lshl_b32 s34, s34, 3
          s_add_u32 s34, s34, s30
          s_lshl_b32 s34, s34, 7
          s_add_u32 s34, s34, s63
          s_getreg_b32 s60, hwreg(HW_REG_XCC_ID, 0, 4)
          s_add_u32 s60, s60, s59
          v_mov_b32 v108, s58
          v_mov_b32 v109, s60
          v_mov_b32 v110, 0
          s_mov_b64 exec, 1
          buffer_store_dwordx2 v[108:109], v110, s[24:27], s34 offen sc1
          s_mov_b64 exec, -1
          s_branch L_k2_ret
          L_k2_pk:
          s_mov_b32 s34, 0x3f803f80
          s_add_u32 s35, s48, 4096
          v_mov_b32 v110, 0
          v_mov_b32 v111, 0""")
    for h in range(2):
        for i in range(2):
          for i2 in range(2):
            k(f"""ds_read_b64_tr_b16 v[{120+4*i2}:{121+4*i2}], v108 offset:{1024*(4*h+2*i+i2)}
                  ds_read_b64_tr_b16 v[{122+4*i2}:{123+4*i2}], v109 offset:{1024*(4*h+2*i+i2)}""")
          k("s_waitcnt lgkmcnt(0)")
          for i2 in range(2):
            k(f"buffer_store_dwordx4 {vr(120+4*i2)}, v2, s[24:27], {'s35' if h else 's48'} offen offset:{1024*(2*i+i2)} sc1")
          for i3 in range(8): k(f"v_dot2_f32_bf16 v{110+(i3&1)}, v{120+i3}, s34, v{110+(i3&1)}")
    k("""s_cmp_eq_u32 s49, 0
         s_cbranch_scc1 L_k2_ret
         v_add_f32 v110, v110, v111""")
    xhalf_add(k, 110, 111); x16_add(k, 110, 111)
    k(f"""v_lshlrev_b32 v111, 2, v1
          s_mov_b64 exec, 0xffff
          buffer_store_dword v110, v111, s[24:27], s49 offen sc1
          s_mov_b64 exec, -1
          s_branch L_k2_ret""")
    k("""L_k2_ret:
         s_cmp_eq_u32 s42, 1
         s_cbranch_scc1 L_k2_body
         s_branch L_k2_body_s""")
    k("L_k2_slow:")
    k(f"""s_waitcnt vmcnt(0)
          s_barrier
          s_mov_b32 s42, 99
          v_mov_b32 v104, 0xff800000
          v_mov_b32 v103, v2
          s_mov_b32 s37, 0
          L_k2_mx:
          ds_read_b128 {vr(KFR)}, v103
          s_waitcnt lgkmcnt(0)
          v_mfma_f32_32x32x16_bf16 {vr(S[0],16)}, {vr(KFR)}, {vr(Q)}, 0
          v_add_u32 v103, 1024, v103""")
    for i in range(8):
        k(f"v_max3_f32 v104, v{S[0]+2*i}, v{S[0]+2*i+1}, v104")
    k(f"""s_add_u32 s37, s37, 1
          s_cmp_lt_u32 s37, 64
          s_cbranch_scc1 L_k2_mx
          v_mov_b32 v105, v104
          v_permlane32_swap_b32 v104, v105
          v_max_f32 v104, v104, v105""")
    for i in range(16): k(f"v_sub_f32 v{C+i}, 0, v104")
    k(f"ds_read_b128 {vr(KFR)}, v{vK}")
    att_loop("_s", vr(C, 16))
    k("s_nop 1\ns_branch L_k2_done")
    def waitcnt_lds(off, tag):
        k(f"""v_mov_b32 v108, {CNT + off}
              s_mov_b32 s60, 0
              L_cw_{tag}:
              ds_read_b32 v109, v108
              s_add_u32 s60, s60, 1
              s_waitcnt lgkmcnt(0)
              v_readfirstlane_b32 s34, v109
              s_cmp_gt_u32 s60, 0x400000
              s_cbranch_scc1 L_cwok_{tag}
              s_cmp_ge_u32 s34, 16
              s_cbranch_scc1 L_cwok_{tag}
              s_sleep 2
              s_branch L_cw_{tag}
              L_cwok_{tag}:""")
    k(f"""L_k2_give:
          s_load_dwordx2 s[4:5], s[0:1], 0""")
    if PT:
        k(f"""v_and_b32 v110, 7, v1
              v_lshlrev_b32 v110, 7, v110
              s_mov_b64 exec, 0xff
              s_add_u32 s34, s46, {OF}
              buffer_load_dword v117, v110, s[24:27], s34 offen
              s_lshl_b32 s34, s29, 2
              s_add_u32 s34, s34, s3
              s_lshl_b32 s34, s34, 4
              s_lshl_b32 s35, s30, 1
              s_add_u32 s34, s34, s35
              s_lshr_b32 s35, s28, 2
              s_add_u32 s34, s34, s35
              s_lshl_b32 s35, s34, 10
              s_add_u32 s35, s35, {HF}
              buffer_load_dword v117, v110, s[24:27], s35 offen
              s_mov_b64 exec, 1
              s_lshl_b32 s35, s34, 7
              s_add_u32 s35, s35, {HSTAT}
              buffer_load_dword v117, v110, s[24:27], s35 offen
              s_mov_b64 exec, -1""")
    k(f"""s_cmp_eq_u32 s28, 4
          s_cbranch_scc0 L_kb_nochk
          v_and_b32 v110, 15, v1
          v_lshlrev_b32 v110, 7, v110
          s_mov_b32 s60, 0
          L_xc_b:
          buffer_load_dwordx2 v[108:109], v110, s[24:27], s63 offen sc1
          s_add_u32 s60, s60, 1
          s_waitcnt vmcnt(0)
          v_subrev_u32 v109, s59, v109
          v_xor_b32 v108, s58, v108
          v_lshrrev_b32 v106, 4, v109
          v_or_b32 v108, v108, v106
          v_cmp_ne_u32 vcc, 0, v108
          s_cmp_gt_u32 s60, 0x40000
          s_cbranch_scc1 L_xcok_b
          s_cbranch_vccnz L_xc_b
          L_xcok_b:
          v_readfirstlane_b32 s60, v109
          v_cmp_ne_u32 vcc, s60, v109
          s_cmp_eq_u64 vcc, 0
          s_cselect_b32 s60, {FAST}, 0
          v_mov_b32 v106, s60
          ds_write_b32 v107, v106
          L_kb_nochk:
          s_and_b32 s31, s29, 1
          s_lshl_b32 s31, s31, 3
          s_add_u32 s31, s31, s30
          s_mul_i32 s31, s31, 3
          s_min_u32 s31, s31, 40           ; u0
          s_lshl_b32 s34, s31, 1
          s_lshl_b32 s35, s30, 3
          s_add_u32 s35, s35, 172
          s_mul_i32 s37, s30, 12
          s_add_u32 s37, s37, {236-20}
          s_sub_u32 s34, s34, 8
          v_and_b32 v108, 31, v1
          v_add_u32 v109, s35, v108
          v_add_u32 v110, s34, v108
          v_cmp_lt_u32 vcc, 7, v108
          v_cndmask_b32 v109, v109, v110, vcc
          v_add_u32 v110, {86-6}, v110
          v_cmp_lt_u32 vcc, 13, v108
          v_cndmask_b32 v109, v109, v110, vcc
          v_add_u32 v110, s37, v108
          v_cmp_lt_u32 vcc, 19, v108
          v_cndmask_b32 v109, v109, v110, vcc
          v_lshlrev_b32 v15, 7, v109
          s_mov_b32 s37, {PFLAG}
          s_mov_b32 exec_hi, 0""")
    pollN(k, "s37", "p")
    k(f"""s_lshl_b32 s40, s31, 14
          s_add_u32 s40, s40, {WPK}        ; z1 base
          s_cmp_ge_u32 s28, 4
          s_cbranch_scc1 L_gv_pf
          s_mul_i32 s35, s28, 3072
          s_add_u32 m0, s35, {148*1024}
          s_add_u32 s35, s35, s40""")
    for j in range(3): k(f"buffer_load_dwordx4 v2, s[24:27], s35 offen offset:{1024*j} lds")
    k(f"""s_mul_i32 s35, s28, 12288
          s_add_u32 s35, s35, s40
          s_add_u32 s35, s35, {43*16384}
          v_lshlrev_b32 v108, 7, v1
          buffer_load_dword v117, v108, s[24:27], s35 offen
          v_and_b32 v109, 31, v1
          v_lshlrev_b32 v109, 7, v109
          s_add_u32 s35, s35, 8192
          buffer_load_dword v117, v109, s[24:27], s35 offen
          s_mul_i32 s35, s28, 9216
          s_add_u32 s35, s35, s40
          s_add_u32 s35, s35, 12288
          buffer_load_dword v117, v108, s[24:27], s35 offen
          v_and_b32 v109, 7, v1
          v_lshlrev_b32 v109, 7, v109
          s_add_u32 s35, s35, 8192
          buffer_load_dword v117, v109, s[24:27], s35 offen""")
    k(f"""s_branch L_gv_c6
          L_gv_pf:""")
    if PFO:
        k(f"""s_lshl_b32 s35, s30, 2
              s_add_u32 s35, s35, s3
              s_mul_i32 s35, s35, 24576
              s_add_u32 s35, s35, {WUP}
              v_lshlrev_b32 v108, 7, v1""")
        for j in range(3):
            k(f"buffer_load_dword v117, v108, s[24:27], s35 offen\ns_add_u32 s35, s35, 8192")
    k(f"""
          L_gv_c6:""")
    waitcnt_lds(0, "6")
    k(f"""ds_write_b128 v103, {vr(O)}
          ds_write_b128 v103, {vr(O+4)} offset:1024
          ds_write_b32 v104, v{O+8} offset:2048
          ds_write_b32 v102, v119
          s_lshl_b32 s35, s30, 16
          s_lshl_b32 s37, s28, 13
          s_add_u32 s35, s35, s37
          s_add_u32 s35, s35, {WOP}
          s_lshr_b32 s37, s28, 1
          s_lshl_b32 s37, s37, 15
          s_lshl_b32 s41, s32, 13
          s_add_u32 s41, s41, s37
          s_mov_b32 m0, s41""")
    for j in range(4): k(f"buffer_load_dwordx4 v2, s[24:27], s35 offen offset:{1024*j} lds")
    k("s_add_u32 m0, s41, 4096\ns_add_u32 s35, s35, 4096")
    for j in range(4): k(f"buffer_load_dwordx4 v2, s[24:27], s35 offen offset:{1024*j} lds")
    lane_fields(k)
    if P1:
        waitcnt_lds(4, "7")
        k(f"""s_lshl_b32 s35, s28, 12
              s_add_u32 s35, s35, s40
              s_add_u32 s35, s35, {43*16384}
              s_lshl_b32 s41, s32, 12
              s_add_u32 s41, s41, s37
              s_add_u32 m0, s41, 16384""")
        for j in range(4): k(f"buffer_load_dwordx4 v2, s[24:27], s35 offen offset:{1024*j} lds")
    k(f"""s_lshl_b32 s33, s29, 13
          s_add_u32 s33, s33, {OFLAG}
          s_and_b32 s35, s28, 2
          s_lshl_b32 s35, s35, 11
          s_add_u32 s33, s33, s35
          s_and_b32 s35, s28, 4
          s_lshl_b32 s35, s35, 9
          s_add_u32 s33, s33, s35""")
    k(f"""s_lshr_b32 s61, s28, 2           ; kh
          s_lshl_b32 s36, s29, 2
          s_add_u32 s36, s36, s3           ; rb16
          s_lshl_b32 s37, s30, 1
          s_add_u32 s37, s37, s61
          v_and_b32 v14, 15, v1
          v_lshlrev_b32 v3, 10, v14
          v_lshl_add_u32 v3, v8, 3, v3
          s_lshl_b32 s44, s36, 14
          s_lshl_b32 s45, s37, 6
          s_add_u32 s44, s44, s45""")
    srd(k, 16, 4, 5, 2048 * 1024)
    k("""buffer_load_dwordx2 v[96:97], v3, s[16:19], s44 offen
         buffer_load_dwordx2 v[98:99], v3, s[16:19], s44 offen offset:32
         s_lshl_b32 s45, s61, 13
         v_add_u32 v4, s45, v2
         v_add_u32 v5, 65536, v4""")
    act32_voff(k, 3, "s32")
    k(f"""s_lshr_b32 s46, s36, 1
          s_lshl_b32 s46, s46, 15
          s_lshl_b32 s47, s61, 14
          s_add_u32 s46, s46, s47
          s_add_u32 s46, s46, {OF}""")
    for r in range(16): k(f"v_mov_b32 v{16+r}, 0")
    woff = lambda s, u: (4 + (u >> 1), (u & 1) * 32768 + s * 1024)
    k.stamp(3)
    k(f"""s_mov_b32 s60, 0
          L_gv_fw:
          ds_read_b32 v106, v107
          s_add_u32 s60, s60, 1
          s_waitcnt lgkmcnt(0)
          v_readfirstlane_b32 s63, v106
          s_cmp_gt_u32 s60, 0x400000
          s_cbranch_scc1 L_gv_fok
          s_cmp_eq_u32 s63, 2
          s_cbranch_scc1 L_gv_fw
          L_gv_fok:""")
    if NOM2:
        k(f"""s_waitcnt vmcnt(0)
          v_mov_b32 v108, {CNT + 8}
          s_mov_b64 exec, 1
          ds_add_u32 v108, v119
          s_mov_b64 exec, -1
          v_mov_b32 v108, {CNT + 8}
          s_mov_b32 s60, 0
          L_sp_wo:
          ds_read_b32 v109, v108
          s_add_u32 s60, s60, 1
          s_waitcnt lgkmcnt(0)
          v_readfirstlane_b32 s34, v109
          s_cmp_gt_u32 s60, 0x400000
          s_cbranch_scc1 L_spok_wo
          s_cmp_ge_u32 s34, 8
          s_cbranch_scc0 L_sp_wo
          L_spok_wo:
          """)
    else: k("s_waitcnt vmcnt(0)\ns_barrier")
    gemm64_reads(k, 0, woff)
    pollN(k, "s33", "o", 16)
    k.stamp(4)
    for s in range(8):
        if s % 2 == 0: k(f"s_add_u32 s47, s46, {s*2048}")
        k(f"buffer_load_dwordx4 {vr(64+4*s)}, v3, s[24:27], s47 offen offset:{2048*(s&1)} {LSC}")
    if OLB or NOM2: k("s_barrier")
    gemm64(k, 8, woff, 64)
    k.stamp(5)
    k("s_barrier")
    if KLC: k("v_mov_b32 v100, 66560\nv_mov_b32 v102, 0\nv_mov_b32 v103, 0\nds_write_b64 v100, v[102:103]")
    ksplit_exchange(k, 0, "s28", tag="b")
    k(f"""v_lshlrev_b32 v40, 16, v96
          v_and_b32 v41, 0xffff0000, v96
          v_lshlrev_b32 v42, 16, v97
          v_and_b32 v43, 0xffff0000, v97
          v_lshlrev_b32 v44, 16, v98
          v_and_b32 v45, 0xffff0000, v98
          v_lshlrev_b32 v46, 16, v99
          v_and_b32 v47, 0xffff0000, v99
          s_lshl_b32 s47, s36, 4
          s_add_u32 s47, s47, s37
          s_lshl_b32 s46, s47, 7
          s_add_u32 s33, s46, {HFLAG}
          s_add_u32 s46, s46, {HSTAT}
          s_lshl_b32 s47, s47, 10
          s_add_u32 s47, s47, {HF}""")
    for i in range(8): k(f"v_add_f32 v{16+i}, v{16+i}, v{40+i}")
    k("s_waitcnt lgkmcnt(0)")
    for i in range(8): k(f"v_add_f32 v{16+i}, v{16+i}, v{32+i}")
    for i in range(4): k(f"v_cvt_pk_bf16_f32 v{48+i}, v{16+2*i}, v{17+2*i}")
    dstore(k, "buffer_store_dwordx4 v[48:51], v2, s[24:27], s47 offen")
    k("""v_mov_b32 v54, 0x3f803f80
         v_dot2_f32_bf16 v52, v48, v54, 0
         v_dot2_f32_bf16 v53, v48, v48, 0""")
    for i in range(1, 4):
        k(f"""v_dot2_f32_bf16 v52, v{48+i}, v54, v52
              v_dot2_f32_bf16 v53, v{48+i}, v{48+i}, v53""")
    xhalf_add(k, 52, 12); xhalf_add(k, 53, 13)
    x16_add(k, 52, 12); x16_add(k, 53, 13)
    k("""v_lshlrev_b32 v12, 3, v14
         s_mov_b64 exec, 0xffff""")
    dstore(k, "buffer_store_dwordx2 v[52:53], v12, s[24:27], s46 offen")
    k(f"""s_mov_b64 exec, -1
          s_and_b32 s31, s29, 1
          s_lshl_b32 s31, s31, 3
          s_add_u32 s30, s30, s31          ; g
          s_lshr_b32 s29, s29, 1           ; rb128
          s_mul_i32 s31, s30, 3
          s_min_u32 s31, s31, 40           ; u0
          s_lshl_b32 s36, s29, 3
          s_add_u32 s36, s36, s28
          s_lshl_b32 s62, s36, 11
          s_add_u32 s62, s62, {HFLAG}
          s_lshl_b32 s47, s36, 11
          s_add_u32 s47, s47, {ZSTAT}""")
    ACC, WF, H = 16, 40, 64
    k(f"""v_mov_b32 v4, v2
          v_add_u32 v5, 65536, v4
          v_add_u32 v6, 131072, v4
          v_lshlrev_b32 v7, 3, v14
          v_lshl_add_u32 v7, v8, 9, v7      ; n*8 + g*512""")
    set_flagN(k, "s33")
    k.stamp(6)
    if OLB: k("s_barrier")
    k(f"""s_cmp_eq_u32 s30, 15
          s_cbranch_scc0 L_k4_work
          v_mov_b32 v16, 0
          v_mov_b32 v17, 0
          v_lshlrev_b32 v12, 3, v14
          s_add_u32 s47, s47, {15*128}
          buffer_store_dwordx2 v[16:17], v12, s[24:27], s47 offen sc1""")
    k("""v_mov_b32 v12, 66560
         v_mov_b32 v13, 1
         s_mov_b64 exec, 1
         ds_add_u32 v12, v13
         s_mov_b64 exec, -1""" if KLC else "s_barrier")
    k(f"""s_branch L_z_done
          L_k4_work:""")
    def WA(i):
        if i < 32: return (i >> 3) * 32768 + 16384 + (i & 7) * 1024
        if i < 48: return ((i - 32) >> 2) * 32768 + 24576 + (i & 3) * 1024
        if i < 60: return 148 * 1024 + (i - 48) * 1024
        l, j = divmod(i - 60, 9)
        return l * 32768 + 28672 + j * 1024 if j < 4 else 128 * 1024 + (5 * l + j - 4) * 1024
    def wreads(s, half):
        for u in range(3):
            a_ = WA((3*half + u) * 16 + s); f = WF + 12*half + 4*u
            k(f"ds_read_b128 {vr(f)}, v{4 + (a_ >> 16)} offset:{a_ & 0xffff}")
    for r in range(24): k(f"v_mov_b32 v{ACC+r}, 0")
    wreads(0, 0)
    k(f"""s_lshl_b32 s46, s36, 14
          s_add_u32 s46, s46, {HF}
          s_lshl_b32 s45, s36, 11
          s_add_u32 s45, s45, {HSTAT}
          """)
    pollN(k, "s62", "h", 16)
    k.stamp(7)
    q = VQ(k); hl = []
    for s in range(16):
        def f(s=s):
            if s % 4 == 0: k(f"s_add_u32 s44, s46, {s*1024}")
            k(f"buffer_load_dwordx4 {vr(H+4*s)}, v2, s[24:27], s44 offen offset:{1024*(s&3)} {LSC}")
        hl.append(f)
    for s in range(HW): q.issue(f"h{s}", 1, hl[s])
    def sl():
        for i in range(4):
            k(f"buffer_load_dwordx2 v[{8+2*i}:{9+2*i}], v7, s[24:27], s45 offen offset:{128*i} {LSC}")
    CS2, CS1, MR = 64, 72, 96
    for s in range(16):
        if WPR == 1: k(f"s_setprio {3 - (s & 3)}")
        if WPR == 2 and s % 4 == 0: k(f"s_setprio {3 - s // 4}")
        wreads(s, 1)
        q.wait(f"h{s}", extra=" lgkmcnt(3)")
        for u in range(3):
            k(f"v_mfma_f32_16x16x32_bf16 {vr(ACC+4*u)}, {vr(H+4*s)}, {vr(WF+4*u)}, {vr(ACC+4*u)}")
        if s + HW < 16: q.issue(f"h{s+HW}", 1, hl[s+HW])
        if s == 7: q.issue("st", 4, sl)
        if s < 15:
            wreads(s + 1, 0); k("s_waitcnt lgkmcnt(3)")
        else:
            k("s_waitcnt lgkmcnt(0)")
        for u in range(3):
            k(f"v_mfma_f32_16x16x32_bf16 {vr(ACC+12+4*u)}, {vr(WF+12+4*u)}, {vr(H+4*s)}, {vr(ACC+12+4*u)}")
        if s == 6:
            k.stamp(8)
        if s == 8:
            def cs():
                k(f"""v_and_b32 v3, 15, v1
                      v_lshlrev_b32 v3, 2, v3
                      s_lshl_b32 s38, s31, 6
                      s_add_u32 s38, s38, {CSUM}
                      s_add_u32 s39, s38, {688*4}""")
                for p in range(2):
                    for u in range(3):
                        k(f"buffer_load_dword v{CS2+3*p+u}, v3, s[24:27], s39 offen offset:{64*u}")
                    k("s_add_u32 s39, s39, 8192")
                k("v_lshrrev_b32 v3, 4, v1\nv_lshlrev_b32 v3, 4, v3")
                for p in range(2):
                    for u in range(3):
                        k(f"buffer_load_dwordx4 {vr(CS1+12*p+4*u)}, v3, s[24:27], s38 offen offset:{64*u}")
                    k("s_add_u32 s38, s38, 8192")
            q.issue("cs", 12, cs)
        if s == 12:
            q.wait("st")
            k("""v_add_f32 v8, v8, v10
                 v_add_f32 v9, v9, v11
                 v_add_f32 v12, v12, v14
                 v_add_f32 v13, v13, v15
                 v_add_f32 v8, v8, v12
                 v_add_f32 v9, v9, v13""")
            xhalf_add(k, 8, 12); xhalf_add(k, 9, 13)
        if s == 13:
            x16_add(k, 8, 12); x16_add(k, 9, 13)
            ln_stats(k, 8, 9, 512, 12)
        if s == 15:
            for r in range(4):
                k(f"""v_add_u32 v12, {4*r}, v3
                      ds_bpermute_b32 v{MR+r}, v12, v8
                      ds_bpermute_b32 v{MR+4+r}, v12, v9""")
    k.stamp(9)
    klsig = """v_mov_b32 v12, 66560
               v_mov_b32 v13, 1
               s_mov_b64 exec, 1
               ds_add_u32 v12, v13
               s_mov_b64 exec, -1"""
    k("s_setprio 0")
    k(klsig if KLC else "s_barrier")
    T = 40; z2r = [ACC + i for i in range(12)]; z1r = [ACC + 12 + i for i in range(12)]
    k(f"""v_mov_b32 v15, {f32(GC2)}
          v_and_b32 v14, 15, v1
          s_waitcnt vmcnt(0)""")
    for u in range(3): k(f"v_add_f32 v{CS2+u}, v{CS2+u}, v{CS2+3+u}")
    k("s_waitcnt lgkmcnt(0)")
    for i, a in enumerate(z2r): k(f"v_fma_f32 v{a}, -v{MR+i%4}, v{CS2+i//4}, v{a}")
    for i, a in enumerate(z2r): k(f"v_mul_f32 v{a}, v{MR+4+i%4}, v{a}")
    for i, a in enumerate(z2r): k(f"v_mul_f32 v{T+i}, v{a}, v{a}")
    for i, a in enumerate(z2r): k(f"v_fmaak_f32 v{T+i}, v15, v{T+i}, {f32(GC1)}")
    for i, a in enumerate(z2r): k(f"v_mul_f32 v{T+i}, v{T+i}, v{a}")
    for i, a in enumerate(z2r): k(f"v_exp_f32 v{T+i}, v{T+i}")
    for i, a in enumerate(z2r): k(f"v_add_f32 v{T+i}, 1.0, v{T+i}")
    for i, a in enumerate(z2r): k(f"v_rcp_f32 v{T+i}, v{T+i}")
    for i, a in enumerate(z2r): k(f"v_mul_f32 v{a}, v{a}, v{T+i}")
    SQ = 52
    for r in range(4):
        k(f"v_mov_b32 v{SQ+2*r}, v{ACC+8+r}\nv_mul_f32 v{SQ+2*r+1}, v{ACC+8+r}, v{ACC+8+r}")
    k("""s_cmp_eq_u32 s30, 14
         s_cbranch_scc1 L_k4_red""")
    for u in range(2):
        for r in range(4):
            a = ACC + 4*u + r
            k(f"v_add_f32 v{SQ+2*r}, v{SQ+2*r}, v{a}\nv_fmac_f32 v{SQ+2*r+1}, v{a}, v{a}")
    k("s_nop 0\nL_k4_red:")
    for i in range(4): k(f"v_add_f32_dpp v{SQ+i}, v{SQ+i}, v{SQ+i} row_ror:8 row_mask:0xf bank_mask:0x3")
    for i in range(4): k(f"v_add_f32_dpp v{SQ+i}, v{SQ+4+i}, v{SQ+4+i} row_ror:8 row_mask:0xf bank_mask:0xc")
    for m_ in ("row_half_mirror", "quad_perm:[1,0,3,2]", "quad_perm:[2,3,0,1]"):
        for i in range(4): k(f"v_add_f32_dpp v{SQ+i}, v{SQ+i}, v{SQ+i} {m_} row_mask:0xf bank_mask:0xf")
    k(f"""s_mov_b32 s49, -2
          s_lshl_b32 s48, s30, 7
          s_add_u32 s48, s48, s47
          v_lshlrev_b32 v12, 1, v1           ; (l>>3)*16 for lanes l%8==0""")
    for j in range(4): k(f"v_min_u32 v{SQ+j}, s49, v{SQ+j}")
    k(f"""s_mov_b32 s50, 0x01010101
          s_mov_b32 s51, 0x01010101
          s_mov_b64 exec, s[50:51]""")
    hstore(k, f"buffer_store_dwordx4 {vr(SQ)}, v12, s[24:27], s48 offen")
    k("s_mov_b64 exec, -1")
    k.stamp(10)
    k(f"""v_mul_f32 v10, {f32(GC1)}, v9
          v_mul_f32 v11, v9, v9
          v_mul_f32 v11, v11, v9
          v_mul_f32 v11, {f32(GC2)}, v11
          v_rcp_f32 v13, v9""")
    for i in range(12): k(f"v_add_f32 v{CS1+i}, v{CS1+i}, v{CS1+12+i}")
    for i, a in enumerate(z1r): k(f"v_fma_f32 v{a}, -v8, v{CS1+i}, v{a}")
    for i, a in enumerate(z1r): k(f"v_mul_f32 v{T+i}, v{a}, v{a}")
    for i, a in enumerate(z1r): k(f"v_fma_f32 v{T+i}, v{T+i}, v11, v10")
    for i, a in enumerate(z1r): k(f"v_mul_f32 v{T+i}, v{T+i}, v{a}")
    for i, a in enumerate(z1r): k(f"v_exp_f32 v{T+i}, v{T+i}")
    for i, a in enumerate(z1r): k(f"v_fma_f32 v{T+i}, v{T+i}, v13, v13")
    for i, a in enumerate(z1r): k(f"v_rcp_f32 v{T+i}, v{T+i}")
    for i, a in enumerate(z1r): k(f"v_mul_f32 v{a}, v{a}, v{T+i}")
    k(f"""v_lshrrev_b32 v10, 4, v1           ; g
          v_and_b32 v11, 1, v10
          v_lshrrev_b32 v10, 1, v10
          v_lshlrev_b32 v12, 9, v11
          v_lshl_add_u32 v12, v14, 4, v12
          v_lshl_add_u32 v12, v10, 3, v12
          v_lshlrev_b32 v6, 9, v10
          v_lshl_add_u32 v6, v14, 4, v6
          v_lshl_add_u32 v6, v11, 3, v6
          s_lshr_b32 s44, s36, 1
          s_mul_i32 s44, s44, 44
          s_add_u32 s44, s44, s31
          s_lshl_b32 s44, s44, 10
          s_and_b32 s45, s36, 1
          s_lshl_b32 s45, s45, 8
          s_add_u32 s44, s44, s45
          s_add_u32 s44, s44, {Z1}
          s_mov_b32 s54, 0""")
    def zpoll():
        for i in range(4):
            k(f"buffer_load_dwordx2 v[{72+2*i}:{73+2*i}], v7, s[24:27], s47 offen offset:{128*i} sc1")
    zpoll()
    for u in range(3):
        a = ACC + 12 + 4*u; p = 64 + 2*u
        k(f"""v_cvt_pk_bf16_f32 v{p}, v{a}, v{a+1}
              v_cvt_pk_bf16_f32 v{p+1}, v{a+2}, v{a+3}
              buffer_store_dwordx2 v[{p}:{p+1}], v12, s[24:27], s44 offen offset:{1024*u} {ZSC}""")
    k("s_waitcnt vmcnt(3)\ns_branch L_k4_chk\nL_k4_poll:")
    zpoll()
    k(f"""s_waitcnt vmcnt(0)
          L_k4_chk:
          v_max3_u32 v12, v72, v73, v74
          v_max3_u32 v13, v75, v76, v77
          v_max3_u32 v12, v12, v78, v79
          v_max_u32 v12, v12, v13
          v_cmp_eq_u32 vcc, -1, v12
          s_add_u32 s54, s54, 1
          s_cmp_gt_u32 s54, 0x40000
          s_cbranch_scc1 L_k4_go
          s_cbranch_vccz L_k4_go
          s_sleep {SLEEP}
          s_branch L_k4_poll
          L_k4_go:""")
    k.stamp(11)
    k("""v_add_f32 v72, v72, v74
         v_add_f32 v73, v73, v75
         v_add_f32 v76, v76, v78
         v_add_f32 v77, v77, v79
         v_add_f32 v72, v72, v76
         v_add_f32 v73, v73, v77""")
    xhalf_add(k, 72, 12); xhalf_add(k, 73, 13)
    x16_add(k, 72, 12); x16_add(k, 73, 13)
    ln_stats(k, 72, 73, 688, 12)
    k("v_mul_f32 v72, -v72, v73")
    for r in range(4):
        k(f"""v_add_u32 v12, {4*r}, v3
              ds_bpermute_b32 v{MR+r}, v12, v72
              ds_bpermute_b32 v{MR+4+r}, v12, v73""")
    k(f"""s_lshl_b32 s45, s36, 10
          s_add_u32 s45, s45, {Z2F}
          s_waitcnt lgkmcnt(0)""")
    for i, a in enumerate(z2r): k(f"v_fma_f32 v{a}, v{a}, v{MR+4+i%4}, v{MR+i%4}")
    for u in range(3):
        a = ACC + 4*u; p = 80 + 2*u
        k(f"""s_add_u32 s44, s31, {u}
              s_lshr_b32 s46, s44, 1
              s_lshl_b32 s46, s46, 17
              s_and_b32 s44, s44, 1
              s_lshl_b32 s44, s44, 8
              s_add_u32 s44, s44, s46
              s_add_u32 s44, s44, s45
              v_cvt_pk_bf16_f32 v{p}, v{a}, v{a+1}
              v_cvt_pk_bf16_f32 v{p+1}, v{a+2}, v{a+3}
              buffer_store_dwordx2 v[{p}:{p+1}], v6, s[24:27], s44 offen {ZSC}""")
    k("L_z_done:")
    AD, NS, WOL, XS6 = (3, 18, 0, 147456) if DEEP else (3, 6, 73728, 49152)
    ORD = [((p & 14) << 1) + (p & 1) + ((p >> 4) << 1) for p in range(32)] if PROG else list(range(32))
    ACC, BF, A = 16, 48, 80
    k(f"""s_load_dwordx2 s[6:7], s[0:1], 64
          s_load_dwordx2 s[10:11], s[0:1], 80
          s_mul_i32 s34, s57, 3
          s_min_u32 s34, s34, 19
          s_add_u32 s34, s34, s28
          s_lshl_b32 s62, s56, 12
          s_add_u32 s62, s62, {YFLAG}
          s_lshl_b32 s52, s34, 7
          s_add_u32 s52, s52, s62
          s_mul_i32 s53, s61, {11*128}
          s_add_u32 s62, s62, s53
          s_lshl_b32 s40, s34, 17
          s_add_u32 s41, s40, {Z2F}
          s_mov_b32 s40, s41
          s_mov_b32 s45, 0
          s_mul_i32 s39, s56, 88
          s_lshl_b32 s42, s34, 1
          s_add_u32 s39, s39, s42
          s_lshl_b32 s39, s39, 10
          v_and_b32 v15, 31, v1
          v_lshlrev_b32 v12, 1, v15
          s_lshl_b32 s43, s56, 7
          s_waitcnt vmcnt(0) lgkmcnt(0)
          s_barrier""")
    k.stamp(12)
    if os.environ.get("STW"): k.stamp = lambda i, real=False: None if i < 13 else Kern.stamp(k, i, real)
    k(f"""s_cmp_lt_u32 s28, 3
          s_cbranch_scc1 L_k5_comp
          s_cmp_eq_u32 s28, 3
          s_cbranch_scc0 L_k5_idle
          s_lshl_b32 s44, s29, 4
          s_add_u32 s44, s44, s30
          s_lshl_b32 s44, s44, 7
          s_add_u32 s44, s44, {XIDC}""")
    set_flagN(k, "s44", drain=False, fast=False)
    k(f"""s_lshl_b32 s44, s57, 1
          s_min_u32 s44, s44, 12
          s_lshl_b32 s44, s44, 7
          s_add_u32 s44, s44, {XIDC}
          v_and_b32 v15, 7, v1
          v_lshlrev_b32 v15, 12, v15
          v_lshrrev_b32 v12, 3, v1
          v_min_u32 v12, 2, v12
          v_lshl_add_u32 v15, v12, 7, v15""")
    pollN(k, "s44", "z", sl=ZSL, pre=ZPRE)
    k("s_barrier\n" * (6 if PROG else 0) + "s_add_u32 s44, s44, 2048")
    pollN(k, "s44", "z2")
    k(f"""s_mov_b32 s55, {6 if PROG else 0}
          s_branch L_k5_ib
          L_k5_idle:""")
    k(f"""s_mov_b32 s55, 0
          L_k5_ib:
          s_barrier
          s_add_u32 s55, s55, 1""")
    if PTY:
        k(f"""s_cmp_eq_u32 s55, {PTY}
              s_cbranch_scc0 L_k5_i2
              s_cmp_eq_u32 s28, 4
              s_cbranch_scc0 L_k5_i2
              s_sub_u32 s44, s39, 8192
              s_add_u32 s44, s44, {YF}
              s_add_u32 s45, s44, {44*1024}
              s_cmp_eq_u32 s57, 7
              s_cselect_b32 s46, 32, 0
              v_min_u32 v12, 47, v1
              v_max_u32 v12, s46, v12
              v_lshlrev_b32 v12, 7, v12
              buffer_load_dword v127, v12, s[24:27], s44 offen
              buffer_load_dword v127, v12, s[24:27], s45 offen
              L_k5_i2:""")
    k(f"""
          s_cmp_lt_u32 s55, {18 if DEEP else 17}
          s_cbranch_scc1 L_k5_ib
          s_branch L_k6""")
    k("L_k5_comp:")
    srd(k, 20, 6, 7, 4096)
    k(f"""buffer_load_ushort v8, v12, s[20:23], s43 offen
          buffer_load_ushort v9, v12, s[20:23], s43 offen offset:64
          v_lshrrev_b32 v13, 1, v15
          v_and_b32 v13, 7, v13
          v_lshlrev_b32 v12, 7, v15
          v_lshrrev_b32 v10, 5, v1""")
    for qq in range(4):
        k(f"""v_add_u32 v14, {2*qq}, v10
              v_xor_b32 v14, v14, v13
              v_lshl_add_u32 v{4+qq}, v14, 4, v12""")
    k(f"""s_cmp_eq_u32 s34, 21
          s_cselect_b32 s44, {0x3ff & ~256}, -1
          v_and_b32 v3, s44, v2
          s_mov_b32 s55, 0
          s_mov_b32 s54, 49152
          s_waitcnt vmcnt(0)
          v_lshlrev_b32 v8, 16, v8
          v_lshlrev_b32 v9, 16, v9""")
    for r in range(16): k(f"v_mov_b32 v{ACC+r}, v8\nv_mov_b32 v{ACC+16+r}, v9")
    k("s_barrier")
    k.stamp(13 if False else 8)
    for i in range(AD):
        for j in range(4):
            k(f"buffer_load_dwordx4 {vr(A+16*i+4*j)}, v3, s[24:27], s40 offen offset:{1024*j}")
        k(f"s_add_u32 s40, s40, {(ORD[i+1]-ORD[i])*4096}")
    k(f"s_add_u32 s41, s41, 8192\ns_add_u32 s45, s39, {Z1}")
    def breads(half, slotoff):
        for j in range(2):
            for th in range(2):
                k(f"ds_read_b128 {vr(BF+16*half+8*j+4*th)}, v{4+2*half+j} offset:{slotoff+4096*th}")
    def mf(half, slot, ld):
        for j in range(2):
            for th in range(2):
                k(f"v_mfma_f32_32x32x16_bf16 {vr(ACC+16*th,16)}, {vr(A+16*slot+8*half+4*j)}, {vr(BF+16*half+8*j+4*th)}, {vr(ACC+16*th,16)}")
            if ld: ld(2*half + j)
    def ald(slot): return lambda jj: k(f"buffer_load_dwordx4 {vr(A+16*slot+4*jj)}, v3, s[24:27], s40 offen offset:{1024*jj}")
    k("s_barrier")
    breads(0, 0)
    k("L_k5_loop:")
    for i in range(6):
        sl = i % AD
        breads(1, i * 8192)
        k(f"s_waitcnt vmcnt({4*AD-2}) lgkmcnt(4)")
        mf(0, sl, ald(sl))
        if i & 1:
            if DEEP and i == 5:
                k(f"""s_cmp_eq_u32 s55, 3
                      s_cselect_b32 s44, {-98304 & 0xffffffff:#x}, s54""")
                for qq in range(4): k(f"v_add_u32 v{4+qq}, s44, v{4+qq}")
            k(f"s_waitcnt vmcnt({4*AD-2}) lgkmcnt(0)\ns_barrier")
            breads(0, ((i + 1) % 6) * 8192)
        else:
            breads(0, (i + 1) * 8192)
            k(f"s_waitcnt vmcnt({4*AD-2}) lgkmcnt(4)")
        mf(1, sl, ald(sl))
        k(f"s_add_u32 s40, s40, {12288 if i % 2 == 0 else 4096}" if PROG else "s_add_u32 s40, s40, 4096")
        if i == 0 and PROG:
            k(f"""s_cmp_eq_u32 s55, 2
                  s_cselect_b32 s40, s41, s40""")
        if i == 4:
            k(f"""s_add_u32 s55, s55, 1
                  s_cmp_eq_u32 s55, 5
                  s_cselect_b32 s40, s45, s40
                  s_cselect_b32 s44, -1, 0
                  v_and_or_b32 v3, s44, v2, v3""")
    k("""s_cmp_lt_u32 s55, 5
         s_cbranch_scc1 L_k5_loop""")
    k(f"s_add_u32 s43, s39, {Z1 + 44*1024}")
    breads(1, 0)
    k("s_waitcnt vmcnt(10) lgkmcnt(4)")
    mf(0, 0, lambda jj: k(f"buffer_load_dwordx4 {vr(A+4*jj)}, v2, s[24:27], s43 offen offset:{1024*jj}"))
    breads(0, 8192)
    k("s_waitcnt vmcnt(10) lgkmcnt(4)")
    mf(1, 0, None)
    breads(1, 8192)
    k("s_waitcnt vmcnt(8) lgkmcnt(4)")
    mf(0, 1, None)
    k("s_waitcnt vmcnt(6) lgkmcnt(0)")
    mf(1, 1, None)
    k.stamp(9)
    k("""s_cmp_eq_u32 s57, 7
         s_cselect_b32 s44, 2, 0
         s_cmp_lt_u32 s28, s44
         s_cbranch_scc1 L_k6_exit""")
    Zs = [A + 32 + i for i in range(8)] + [A + i for i in range(8)]
    k(f"""s_add_u32 s42, s39, {YF}
          s_add_u32 s43, s42, {44*1024}
          s_waitcnt vmcnt(0)""")
    for i in range(16):
        k(f"""v_lshlrev_b32 v{48+2*i}, 16, v{Zs[i]}
              v_and_b32 v{49+2*i}, 0xffff0000, v{Zs[i]}""")
    for i in range(32): k(f"v_mul_f32 v{ACC+i}, v{ACC+i}, v{48+i}")
    for i in range(16): k(f"v_cvt_pk_bf16_f32 v{A+i}, v{ACC+2*i}, v{ACC+2*i+1}")
    dstore(k, [f"buffer_store_dwordx4 {vr(A+8*th+4*f)}, v2, s[24:27], {'s43' if th else 's42'} offen offset:{1024*f}" for th in range(2) for f in range(2)])
    if DEEP: k("s_barrier")
    set_flagN(k, "s52")
    k.stamp(10)
    k("s_endpgm")
    k(f"""L_k6:
          s_cmp_eq_u32 s28, 3
          s_cbranch_scc1 L_k6_exit
          s_load_dwordx2 s[10:11], s[0:1], 80
          s_lshr_b32 s61, s28, 3           ; kh
          s_sub_u32 s48, s28, 4
          s_lshl_b32 s62, s56, 12
          s_add_u32 s62, s62, {YFLAG}
          s_mul_i32 s53, s61, {11*128}
          s_add_u32 s62, s62, s53""")
    lane_fields(k)
    k(f"""s_lshl_b32 s36, s56, 2
          s_add_u32 s36, s36, s3           ; rb16
          s_lshl_b32 s37, s57, 1
          s_add_u32 s37, s37, s61
          s_lshl_b32 s47, s36, 4
          s_add_u32 s47, s47, s37
          s_lshl_b32 s47, s47, 10
          s_add_u32 s47, s47, {HF}
          buffer_load_dwordx4 v[112:115], v2, s[24:27], s47 offen
          s_mul_i32 s45, s61, {11*1024}
          s_add_u32 s45, s45, {WOL}
          v_add_u32 v4, s45, v2
          v_add_u32 v5, {2*22528}, v4""")
    act32_voff(k, 3, "s32")
    k(f"""s_lshr_b32 s46, s36, 1
          s_mul_i32 s46, s46, {44*1024}
          s_mul_i32 s47, s61, {22*1024}
          s_add_u32 s46, s46, s47
          s_add_u32 s46, s46, {YF}
          s_cmp_eq_u32 s61, 0
          s_cselect_b32 s49, -1, 0
          s_waitcnt lgkmcnt(0)""")
    srd(k, 16, 10, 11, 2048 * 1024)
    for r in range(16): k(f"v_mov_b32 v{16+r}, 0")
    for r in range(4): k(f"v_mov_b32 v{64+40+r}, 0")
    woff = lambda s, u: (4 + (u >> 1), (u & 1) * 22528 + s * 1024)
    if WOT != 'tail' and not DEEP: gemm64_reads(k, 0, woff)
    pollN(k, "s62", "y", 11)
    k.stamp(11)
    for s in range(11):
        if s % 2 == 0: k(f"s_add_u32 s47, s46, {s*2048}")
        if s == 10: k("s_mov_b32 exec_hi, s49")
        k(f"buffer_load_dwordx4 {vr(64+4*s)}, v3, s[24:27], s47 offen offset:{2048*(s&1)}")
    k("s_mov_b32 exec_hi, -1")
    if WOT == 'tail' or DEEP:
        k("s_barrier")
        gemm64_reads(k, 0, woff)
    k.stamp(8)
    if STAMPS: k("s_waitcnt vmcnt(10)")
    k.stamp(7)
    gemm64(k, 11, woff, 64)
    k.stamp(9)
    ksplit_exchange(k, XS6, "s48", tag="c")
    k.stamp(10)
    for i in range(4):
        k(f"""v_lshlrev_b32 v{40+2*i}, 16, v{112+i}
              v_and_b32 v{41+2*i}, 0xffff0000, v{112+i}""")
    for i in range(8): k(f"v_add_f32 v{16+i}, v{16+i}, v{40+i}")
    k(f"""v_and_b32 v12, 15, v1
          v_lshlrev_b32 v12, 10, v12
          v_and_b32 v13, 1, v8
          v_lshl_add_u32 v12, v13, 5, v12
          v_lshl_add_u32 v12, v9, 4, v12
          s_lshl_b32 s46, s36, 14
          s_lshl_b32 s47, s37, 6
          s_add_u32 s46, s46, s47
          s_waitcnt lgkmcnt(0)""")
    for i in range(8): k(f"v_add_f32 v{16+i}, v{16+i}, v{32+i}")
    for i in range(4): k(f"v_cvt_pk_bf16_f32 v{48+i}, v{16+2*i}, v{17+2*i}")
    k("""v_permlane16_swap_b32 v48, v50
         v_permlane16_swap_b32 v49, v51
         buffer_store_dwordx4 v[48:51], v12, s[16:19], s46 offen
         L_k6_exit:
         s_endpgm""")
    k(f"""L_kb_loader:
          s_and_b32 s31, s29, 1
          s_lshl_b32 s31, s31, 3
          s_add_u32 s30, s30, s31          ; g
          s_mul_i32 s31, s30, 3
          s_min_u32 s31, s31, 40           ; u0
          s_lshl_b32 s40, s31, 14
          s_lshl_b32 s38, s3, 12
          s_add_u32 s41, s40, s38
          s_add_u32 s41, s41, {WPK + 43*16384 + 32768}
          s_mul_i32 s38, s3, 9216
          s_add_u32 s40, s40, s38
          s_add_u32 s40, s40, {WPK + 12*1024}
          s_lshl_b32 s42, s3, 15
          s_add_u32 m0, s42, 24576
          s_mul_i32 s38, s3, 5120""")
    k("s_barrier")
    if OLB: k("s_barrier")
    for j in range(4): k(f"buffer_load_dwordx4 v2, s[24:27], s41 offen offset:{1024*j} lds")
    if not P1:
        k("""s_mul_i32 s43, s3, 4096
             s_add_u32 s41, s41, s43
             s_sub_u32 s41, s41, 32768""")
        for h_ in range(2):
            k(f"s_add_u32 m0, s42, {16384 + 4096*h_}")
            for j in range(4): k(f"buffer_load_dwordx4 v2, s[24:27], s41 offen offset:{1024*j} lds")
            k("s_add_u32 s41, s41, 4096")
    k("s_add_u32 m0, s42, 28672")
    for j in range(4): k(f"buffer_load_dwordx4 v2, s[24:27], s40 offen offset:{1024*j} lds")
    k(f"s_add_u32 m0, s38, {128*1024}\ns_add_u32 s40, s40, 4096")
    for j in range(4): k(f"buffer_load_dwordx4 v2, s[24:27], s40 offen offset:{1024*j} lds")
    k(f"s_add_u32 m0, s38, {128*1024+4096}\ns_add_u32 s40, s40, 4096\nbuffer_load_dwordx4 v2, s[24:27], s40 offen lds")
    k.stamp(3)
    k(f"""s_load_dwordx2 s[16:17], s[0:1], 56
          s_lshl_b32 s35, s56, 6
          s_lshl_b32 s36, s3, 4
          s_add_u32 s35, s35, s36
          v_lshrrev_b32 v12, 3, v1
          v_add_u32 v5, s35, v12
          v_lshlrev_b32 v5, 12, v5
          v_and_b32 v13, 7, v1
          v_lshrrev_b32 v14, 4, v1
          v_xor_b32 v14, v13, v14
          v_lshl_add_u32 v5, v14, 4, v5
          v_xor_b32 v6, 64, v5
          v_add_u32 v6, {8*4096}, v6
          s_lshl_b32 s37, s3, 11
          s_lshl_b32 s36, s57, 2
          s_add_u32 s36, s36, s3
          s_mul_i32 s36, s36, 24576
          s_add_u32 s36, s36, {WUP}
          s_mul_i32 s35, s3, 22528
          s_add_u32 s35, s35, {WOL}
          s_mov_b32 s18, {2048*4096}
          s_mov_b32 s19, 0x00020000
          s_waitcnt {'' if OLB else 'vmcnt(0)'} lgkmcnt(0)""")
    k.stamp(4)
    k("s_barrier\ns_barrier")
    if OLB: k("s_waitcnt vmcnt(0)\ns_barrier")
    if KLC:
        k("""v_mov_b32 v12, 66560
             s_mov_b32 s60, 0
             L_ld_kl:
             ds_read_b32 v13, v12
             s_add_u32 s60, s60, 1
             s_waitcnt lgkmcnt(0)
             v_readfirstlane_b32 s43, v13
             s_cmp_gt_u32 s60, 0x400000
             s_cbranch_scc1 L_ld_klok
             s_cmp_ge_u32 s43, 8
             s_cbranch_scc1 L_ld_klok
             s_sleep 2
             s_branch L_ld_kl
             L_ld_klok:
             """)
    else: k("s_barrier")
    q = VQ(k)
    def bi(c):
        q.issue(f"b{c}", 2, lambda: k(f"""s_add_u32 m0, s37, {(c % NS)*8192}
              s_movk_i32 s41, {ORD[c]*128}
              buffer_load_dwordx4 v5, s[16:19], s41 offen lds
              s_add_u32 m0, s37, {(c % NS)*8192 + 1024}
              buffer_load_dwordx4 v6, s[16:19], s41 offen lds"""))
    def wi(c):
        q.issue(f"w{c}", 2, lambda: k(f"""s_add_u32 m0, s35, {c*2048}
              s_add_u32 s39, s36, {c*2048}
              buffer_load_dwordx4 v2, s[24:27], s39 offen lds
              {'s_sleep %d' % WSL2 if WSL2 else ''}
              buffer_load_dwordx4 v2, s[24:27], s39 offen offset:1024 lds
              {'s_sleep %d' % WSL2 if WSL2 else ''}"""))
    if WOT == 'kl':
        for c in range(11): wi(c)
    nxt = 0
    for _ in range(RP): bi(nxt); nxt += 1
    k.stamp(5)
    k("s_barrier")
    while nxt < (DEEP if DEEP else NS): bi(nxt); nxt += 1
    if WOT == 'zb' and not DEEP:
        for c in range(11): wi(c)
    k("s_barrier")
    for b in range(16):
        q.wait(f"b{2*b+1}"); k("s_barrier")
        n_ = 0
        while nxt < 32 and nxt - NS <= 2*b - 1 and (not DEEP or n_ < 1 or nxt < 2*b + 8): bi(nxt); nxt += 1; n_ += 1
    assert nxt == 32
    if DEEP:
        k("s_barrier")
        for c in range(11): wi(c)
    k("s_branch L_k6")
    k(f"L_{k.name}_end:\ns_endpgm")
    return k, (256, 1024, 163840)
```

```python
import sys
import os
from k1 import build_k1
from k2 import build_k2
from k3 import build_k3
from k4 import build_k4
from k5 import build_k5
from k6 import build_k6
from kb import build_kb
if os.environ.get("SPLITC"):
    from kc import build_kc
    builders = [build_k1, build_kb, build_kc]
elif os.environ.get("SPLITA"):
    from kbc import build_kbc
    builders = [build_k1, build_kbc]
else:
    from kall import build_kall
    builders = [build_kall]
hdr = open("sequential_preLN__grouped_kv_mqa__mixer_gmlp__prompt.s.ref").read().split("\n")
hdr = [l for l in hdr if l.startswith(";") and "@launch" not in l and "Override" not in l and "grid=ceil" not in l]
ks = [b() for b in builders]
out = "\n".join(hdr) + "\n"
plain = len(ks) == 1 and (len(sys.argv) < 2 or os.environ.get("PLAIN"))
for k, (g, b, lds) in ks:
    out += f"; @launch {'' if plain else 'kernel=' + k.name + ' '}grid=({g},1,1) block=({b},1,1) lds={lds}\n"
if os.environ.get("DUPC"):
    k, (g_, b_, lds_) = ks[-1]
    out += f"; @launch kernel={k.name} grid=({g_},1,1) block=({b_},1,1) lds={lds_}\n"
out += '.amdgcn_target "amdgcn-amd-amdhsa--gfx950"\n'
for i, (k, _) in enumerate(ks):
    out += k.text(i)
def allsc(t):
    res = []
    for l in t.split("\n"):
        if l.strip().startswith("buffer_load") and "s[24:27]" in l and "sc1" not in l:
            l = l.rstrip()
            l = l[:-4] + " sc1 lds" if l.endswith(" lds") else l + " sc1"
        res.append(l)
    return "\n".join(res)
out = allsc(out)
dst = sys.argv[1] if len(sys.argv) > 1 else "sequential_preLN__grouped_kv_mqa__mixer_gmlp__prompt.s"
open(dst, "w").write(out)
print("wrote", dst, len(out))
```

```python
from common import *
from k3 import *
from g16 import *
from k4 import GC1, GC2
import os
LSC = os.environ.get('LSC', 'sc1')
MAPC = int(os.environ.get('MAPC', 0))
ZSC = os.environ.get('ZSC', 'sc1')
PT = int(os.environ.get('PT', 0))
HW = int(os.environ.get('HW', 6))
PF2 = int(os.environ.get('PF2', 1))
WSL = int(os.environ.get('WSL', 1))
WSL2 = int(os.environ.get('WSL2', 0))
KVROT = int(os.environ.get('KVROT', 1))
WOT = os.environ.get('WOT', 'zb')
RP = int(os.environ.get('RP', 2))
PROG = int(os.environ.get('PROG', 1))
WB = int(os.environ.get('WB', 28))
PRIO = int(os.environ.get('K2_PRIO', 1))
PFQ = int(os.environ.get('PFQ', 1))
TLBW = int(os.environ.get('TLBW', 0))
OLB = int(os.environ.get('OLB', 0))
WPR = int(os.environ.get('WPR', 0))
EPB = int(os.environ.get('EPB', 0))
ZSL = int(os.environ.get('ZSL', 2))
ZPRE = int(os.environ.get('ZPRE', 0))
KSL = int(os.environ.get('KSL', 2))
KSTR = int(os.environ.get('KSTR', 4))
C0 = int(os.environ.get('C0', 0))
SCH = int(os.environ.get('SCH', 0))
SMF = int(os.environ.get('SMF', 3))
P1 = int(os.environ.get('P1', 1))
PFO = int(os.environ.get('PFO', 0))
PTY = int(os.environ.get('PTY', 0))
KLC = int(os.environ.get('KLC', 1))
DEEP = int(os.environ.get('DEEP', 0))
NOM2 = int(os.environ.get('NOM2', 0))
W4 = int(os.environ.get('W4', 1))
KV3 = int(os.environ.get('KV3', 1))
PFM = int(os.environ.get('PFM', 15))
PFSC = os.environ.get('PFSC', '')

FUSEC = int(os.environ.get('FUSEC', 1))
DSC = int(os.environ.get('DSC', 1))
def dstore(k, instrs):
    if not DSC: return hstore(k, instrs)
    for i in ([instrs] if isinstance(instrs, str) else instrs): k(i + " sc1")

def build_kall():
    k = Kern("sequential_preLN__grouped_kv_mqa__mixer_gmlp__prompt_kernel", nvgpr=128)
    NW = 16
    KL, VL, XL = 0, 65536, 131072
    Q = 4; KFR = 8; VFR = [[12, 16], [20, 24]]; P = 28; S = [36, 52]; O = 68; C = 84
    vK, vV = 100, 101
    NCH, NIT = 4, 8
    prologue_ids(k, 256)
    k("""s_load_dwordx8 s[4:11], s[0:1], 0
         s_load_dwordx4 s[12:15], s[0:1], 88""")
    k("""s_and_b32 s29, s2, 7
         s_lshr_b32 s30, s2, 3
         s_lshl_b32 s29, s29, 2
         s_lshr_b32 s31, s30, 3
         s_add_u32 s29, s29, s31          ; rb64
         s_and_b32 s30, s30, 7            ; cg
         s_and_b32 s3, s28, 3
         s_and_b32 s32, s28, 1            ; rh
         s_mov_b32 s56, s29
         s_mov_b32 s57, s30""")
    XL0, WL0, KVL, SX, QL = 0, 65536, 131072, 147456, 131072
    CSX = SX + 1024
    FASTW, CNT = 146 * 1024 + 512, 146 * 1024 + 576
    k("""s_lshl_b32 s46, s31, 1
         s_add_u32 s46, s46, s30
         s_and_b32 s46, s46, 7
         s_lshr_b32 s33, s3, 1            ; ch
         s_mov_b32 s62, 0
         s_mov_b32 s20, 0
         s_mov_b32 s21, 0
         s_mov_b32 s22, 0
         s_mov_b32 s23, 0x00020000
         v_mov_b32 v108, 0
         v_mov_b32 v109, 0
         v_mov_b32 v113, 0
         v_lshlrev_b32 v2, 4, v1""")
    lane_fields(k)
    k(f"""s_cmp_ge_u32 s28, 12
          s_cbranch_scc1 L_p0_st
          s_cmp_ge_u32 s28, 8
          s_cbranch_scc1 L_p0_q
          s_cmp_eq_u32 s28, 2
          s_cbranch_scc1 L_p0_kv
          s_cmp_eq_u32 s28, 3
          s_cbranch_scc1 L_p0_n
          s_cmp_lt_u32 s28, 2
          s_cbranch_scc1 L_p0_pack""")
    def att_ids():
        k(f"""s_and_b32 s38, s28, 7            ; q idx
              s_lshr_b32 s39, s28, 3
              s_lshl_b32 s44, s39, 15          ; half*32768
              s_lshl_b32 s47, s38, 10
              s_add_u32 s47, s47, s44
              v_add_u32 v3, s47, v2""")
    def kvdma(c):
        k(f"""s_add_u32 m0, s47, {KL + 8192*c}
              s_add_u32 s34, s57, {c}
              s_and_b32 s34, s34, {3 if KVROT else 0}
              s_lshl_b32 s34, s34, 13
              s_add_u32 s34, s34, {KF + (0 if KVROT else 8192*c)}
              s_add_u32 s35, s34, {VF - KF}
              buffer_load_dwordx4 v3, s[24:27], s34 offen lds
              s_add_u32 m0, s47, {VL + 8192*c}
              buffer_load_dwordx4 v3, s[24:27], s35 offen lds""")
    def att_init():
        k(f"""s_lshl_b32 s33, s29, 1
              s_add_u32 s33, s33, s32
              s_lshl_b32 s33, s33, 5
              s_lshl_b32 s34, s30, 2
              s_add_u32 s33, s33, s34
              s_lshr_b32 s34, s38, 1
              s_add_u32 s33, s33, s34
              s_lshl_b32 s46, s33, 10
              s_lshl_b32 s34, s38, 10
              s_add_u32 s34, s34, {QL}
              v_add_u32 v102, s34, v2
              v_mov_b32 v112, 0
              s_lshr_b32 s63, s29, 1
              s_lshl_b32 s63, s63, 11
              s_add_u32 s63, s63, {XID}
              v_add_u32 v{vK}, s44, v2
              v_lshrrev_b32 v103, 5, v1
              v_and_b32 v106, 15, v1
              v_lshl_add_u32 v103, v103, 4, v106
              v_lshlrev_b32 v103, 4, v103
              v_add_u32 v103, s44, v103
              v_add_u32 v{vV}, {VL}, v103
              v_mov_b32 v103, {SX + 768}
              s_mov_b32 s40, 0x0000ffff
              s_mov_b32 s41, 0x0000ffff
              v_and_b32 v106, 31, v1
              v_cmp_eq_u32 vcc, 16, v106
              v_mov_b32 v107, 0x3f803f80
              v_cndmask_b32 v107, 0, v107, vcc
              s_mov_b32 s42, 1
              s_mov_b32 s36, 0
              s_movk_i32 s31, {0x56 if PRIO == 3 else 0x52}
              s_cmp_eq_u32 s28, 4
              s_cselect_b32 s31, {0x5e if PRIO == 3 else 0x5a}, s31
              s_cmp_lg_u32 s62, 0
              s_cselect_b32 s31, {0x5e if PRIO == 3 else 0x5a}, s31
              v_mov_b32 v118, {CNT}
              v_mov_b32 v119, 1""")
        for i in range(16): k(f"v_mov_b32 v{12+i}, v107")
        for i in range(16): k(f"v_mov_b32 v{O+i}, 0")
        if SMF:
            k(f"v_mov_b32 v{P}, 0xdddddddd")
            for i in range(8): k(f"v_mov_b32 v{S[1]+8+i}, 0")
        k(f"v_mov_b32 v107, {f32(3500.0)}")
    k(f"""s_lshl_b32 s34, s29, 6
          s_lshl_b32 s35, s3, 4
          s_add_u32 s34, s34, s35
          v_lshrrev_b32 v12, 3, v1
          v_add_u32 v6, s34, v12
          v_lshlrev_b32 v6, 10, v6
          v_and_b32 v13, 7, v1
          v_xor_b32 v14, v13, v8
          v_lshl_add_u32 v6, v14, 4, v6
          v_xor_b32 v7, 64, v6
          v_add_u32 v7, 8192, v7
          s_lshl_b32 s36, s30, 7
          s_lshl_b32 s37, s3, 11
          s_mov_b32 s45, s46""")
    wt_dma_addr(k, 4, 5, "s35", "s36")
    k("s_waitcnt lgkmcnt(0)")
    srd(k, 16, 4, 5, 2048 * 1024); srd(k, 20, 6, 7, 512 * 1024); srd(k, 24, 14, 15, WS_USED)
    q = VQ(k)
    def xi(c):
        q.issue(f"x{c}", 2, lambda: k(f"""s_add_u32 m0, s37, {XL0 + c*8192}
              s_lshl_b32 s38, s46, 7
              s_add_u32 s46, s46, 1
              buffer_load_dwordx4 v6, s[16:19], s38 offen lds
              s_add_u32 m0, s37, {XL0 + c*8192 + 1024}
              s_and_b32 s46, s46, 7
              buffer_load_dwordx4 v7, s[16:19], s38 offen lds"""))
    def wqi(c):
        q.issue(f"w{c}", 2, lambda: k(f"""s_add_u32 m0, s37, {WL0 + c*8192}
              s_lshl_b32 s38, s45, 16
              s_add_u32 s45, s45, 1
              buffer_load_dwordx4 v4, s[20:23], s38 offen lds
              s_add_u32 m0, s37, {WL0 + c*8192 + 1024}
              s_and_b32 s45, s45, 7
              buffer_load_dwordx4 v5, s[20:23], s38 offen lds"""))
    for c in range(6): xi(c)
    k.stamp(2); q.wait("x1"); k.stamp(3); k("s_barrier"); k.stamp(4)
    xi(6); xi(7); wqi(0); wqi(1)
    q.wait("x3"); k("s_barrier")
    wqi(2); wqi(3); wqi(4)
    q.wait("x5"); k("s_barrier")
    wqi(5); wqi(6); wqi(7)
    q.wait("x7"); k.stamp(5); k("s_barrier\ns_barrier")
    for i in range(4):
        q.wait(f"w{2*i+1}"); k("s_barrier")
    k.stamp(6)
    k("s_branch L_att")
    k(f"""L_p0_q:
          v_mov_b32 v64, 0x3f803f80
          v_mov_b32 v65, 0x3f803f80
          v_mov_b32 v66, 0x3f803f80
          v_mov_b32 v67, 0x3f803f80
          v_lshl_add_u32 v6, v9, 3, v10
          v_lshlrev_b32 v6, 7, v6
          v_lshrrev_b32 v12, 1, v10
          v_xor_b32 v12, s33, v12
          v_lshl_add_u32 v6, v12, 6, v6
          v_and_b32 v12, 1, v8
          v_lshl_add_u32 v6, v12, 5, v6
          v_lshl_add_u32 v6, v11, 3, v6
          v_add_u32 v6, {WL0}, v6
          v_and_b32 v12, 31, v1
          s_lshl_b32 s40, s32, 5
          v_add_u32 v12, s40, v12
          v_lshlrev_b32 v76, 3, v12
          v_add_u32 v76, {SX}, v76
          v_lshlrev_b32 v77, 4, v9
          s_lshl_b32 s41, s3, 7
          s_add_u32 s41, s41, {CSX}
          v_add_u32 v77, s41, v77
          v_xor_b32 v78, 128, v77
          v_lshrrev_b32 v13, 1, v12
          v_and_b32 v13, 7, v13
          v_lshlrev_b32 v12, 7, v12""")
    for qq in range(4):
        k(f"""v_add_u32 v14, {2*qq}, v9
              v_xor_b32 v14, v14, v13
              v_lshl_add_u32 v{72+qq}, v14, 4, v12""")
    for r in range(32): k(f"v_mov_b32 v{32+r}, 0")
    k("s_waitcnt lgkmcnt(0)")
    srd(k, 24, 14, 15, WS_USED)
    k("s_barrier\n" * 5)
    k.stamp(4)
    def qreads(c):
        s = c & 1
        for qq in range(4):
            st = 4*c + qq
            k(f"""ds_read_b64_tr_b16 v[{FA(s,qq)}:{FA(s,qq)+1}], v6 offset:{2048*st}
                  ds_read_b64_tr_b16 v[{FA(s,qq)+2}:{FA(s,qq)+3}], v6 offset:{2048*st+512}
                  ds_read_b128 {vr(FB(s,qq))}, v{72+qq} offset:{XL0 + 8192*c}""")
    def qloop(cs):
        def step(c, qq):
            s = c & 1
            k(f"v_mfma_f32_32x32x16_bf16 v[32:47], {vr(FA(s,qq))}, {vr(FB(s,qq))}, v[32:47]")
            if (qq & 1) == cs: k(f"v_mfma_f32_32x32x16_bf16 v[48:63], {vr(FA(s,qq))}, v[64:67], v[48:63]")
        k("s_barrier")
        k.stamp(5)
        qreads(0)
        for c in range(8):
            for qq in range(3):
                k(f"s_waitcnt lgkmcnt({9-3*qq})"); step(c, qq)
            k("s_waitcnt lgkmcnt(0)")
            if c < 7:
                if c & 1: k("s_barrier")
                qreads(c + 1)
            step(c, 3)
    k("""s_cmp_eq_u32 s32, 0
         s_cbranch_scc0 L_p0_qcs""")
    qloop(0)
    k("s_branch L_p0_qfin\nL_p0_qcs:")
    qloop(1)
    k("L_p0_qfin:\ns_nop 7")
    for gq in range(4): k(f"ds_write_b128 v77, {vr(48+4*gq)} offset:{32*gq}")
    k(f"""s_lshl_b32 s34, s33, 12
          s_lshl_b32 s35, s32, 10
          s_add_u32 s34, s34, s35
          s_add_u32 s34, s34, {QL}
          v_add_u32 v70, s34, v2""")
    att_ids()
    k("s_waitcnt lgkmcnt(0)\ns_barrier")
    k.stamp(6)
    k("ds_read_b64 v[68:69], v76")
    for gq in range(4): k(f"ds_read_b128 {vr(80+4*gq)}, v78 offset:{32*gq}")
    if not KV3: kvdma(0)
    k(f"""s_waitcnt lgkmcnt(0)
          v_mul_f32 v69, {f32(0.25*1.4426950408889634)}, v69""")
    for r in range(16): k(f"v_add_f32 v{48+r}, v{48+r}, v{80+r}")
    for r in range(16): k(f"v_fma_f32 v{32+r}, -v68, v{48+r}, v{32+r}")
    for r in range(16): k(f"v_mul_f32 v{32+r}, v69, v{32+r}")
    for r in range(8): k(f"v_cvt_pk_bf16_f32 v{48+r}, v{32+2*r}, v{33+2*r}")
    k("""ds_write_b128 v70, v[48:51]
         ds_write_b128 v70, v[52:55] offset:2048""")
    att_init()
    k("s_branch L_att2")
    k(f"""L_p0_st:
          v_lshrrev_b32 v12, 2, v1
          s_lshl_b32 s34, s3, 4
          v_add_u32 v12, s34, v12           ; row
          v_lshlrev_b32 v7, 3, v12
          v_add_u32 v7, {SX}, v7
          v_lshrrev_b32 v13, 1, v12
          v_and_b32 v13, 7, v13
          v_lshlrev_b32 v12, 7, v12
          v_lshlrev_b32 v14, 1, v11
          v_xor_b32 v14, v14, v13
          v_lshl_add_u32 v4, v14, 4, v12
          v_xor_b32 v5, 16, v4
          v_mov_b32 v64, 0x3f803f80""")
    for i in range(4): k(f"v_mov_b32 v{48+i}, 0")
    k("s_waitcnt lgkmcnt(0)")
    srd(k, 24, 14, 15, WS_USED)
    for gi_ in range(4):
        k("s_barrier")
        for c in range(2):
            k(f"""ds_read_b128 {vr(16+8*c)}, v4 offset:{XL0 + 8192*(2*gi_+c)}
                  ds_read_b128 {vr(20+8*c)}, v5 offset:{XL0 + 8192*(2*gi_+c)}""")
        k("s_waitcnt lgkmcnt(0)")
        for d in range(16):
            k(f"""v_dot2_f32_bf16 v{48+(d&1)}, v{16+d}, v64, v{48+(d&1)}
                  v_dot2_f32_bf16 v{50+(d&1)}, v{16+d}, v{16+d}, v{50+(d&1)}""")
    k("v_add_f32 v48, v48, v49\nv_add_f32 v49, v50, v51")
    for qp in ("[1,0,3,2]", "[2,3,0,1]"):
        for i in range(2): k(f"v_add_f32_dpp v{48+i}, v{48+i}, v{48+i} quad_perm:{qp} row_mask:0xf bank_mask:0xf")
    ln_stats(k, 48, 49, 512, 12)
    k("ds_write_b64 v7, v[48:49]\ns_waitcnt lgkmcnt(0)")
    k("s_barrier\n" * 5 + "s_branch L_att")
    k(f"""L_p0_n:
          v_mov_b32 v20, 0
          s_memrealtime s[58:59]
          s_waitcnt lgkmcnt(0)""")
    srd(k, 24, 14, 15, WS_USED); srd(k, 16, 12, 13, 256)
    if PFQ:
        srd(k, 20, 6, 7, 512 * 1024)
        k(f"""s_lshr_b32 s34, s2, 3
              s_lshl_b32 s34, s34, 14
              s_add_u32 s35, s34, 8192
              v_lshlrev_b32 v24, 7, v1
              buffer_load_dword v25, v24, s[20:23], s34 offen
              buffer_load_dword v25, v24, s[20:23], s35 offen""")
    k(f"""s_mov_b64 exec, 1
          s_cmp_eq_u32 s2, 0
          s_cbranch_scc0 L_p0_n1
          s_or_b32 s59, s59, 0x40000000
          v_mov_b32 v22, s58
          v_mov_b32 v23, s59
          buffer_store_dwordx2 v[22:23], v20, s[16:19], 0 offen sc1
          L_p0_n1:
          s_barrier
          s_barrier
          s_mov_b32 s60, 0
          L_p0_np:
          buffer_load_dwordx2 v[22:23], v20, s[16:19], 0 offen sc1
          s_add_u32 s60, s60, 1
          s_cmp_eq_u32 s60, 1
          s_cbranch_scc0 L_p0_nw
          s_barrier
          s_barrier
          L_p0_nw:
          s_waitcnt vmcnt(0)
          v_cmp_eq_u32 vcc, 0, v23
          s_cmp_gt_u32 s60, 0x40000
          s_cbranch_scc1 L_p0_n2
          s_cbranch_vccnz L_p0_np
          L_p0_n2:
          v_mov_b32 v21, {SX + 768}
          ds_write_b64 v21, v[22:23]
          v_readfirstlane_b32 s58, v22
          v_readfirstlane_b32 s59, v23
          s_mov_b64 exec, -1
          v_lshlrev_b32 v21, 2, v1
          v_add_u32 v21, {FASTW}, v21
          v_cmp_eq_u32 vcc, 0, v1
          v_cndmask_b32 v22, 0, 2, vcc
          ds_write_b32 v21, v22
          v_mov_b32 v21, {SX + 768}
          v_lshlrev_b32 v26, {KSTR}, v1
          s_waitcnt lgkmcnt(0)""")
    k.stamp(4)
    k("s_barrier\n" * (5 - EPB))
    k.stamp(5)
    k(f"""s_mov_b32 s60, 0
          L_p0_gp:""")
    for i in range(4): k(f"s_mov_b32 s34, {KVFLAG + (64 << KSTR) * i}\nbuffer_load_dwordx3 v[{28+4*i}:{30+4*i}], v26, s[24:27], s34 offen sc1")
    if EPB:
        k("s_cmp_eq_u32 s60, 0\ns_cbranch_scc0 L_p0_gw\n" + "s_barrier\n" * EPB + "L_p0_gw:")
    k("s_add_u32 s60, s60, 1\ns_waitcnt vmcnt(0)")
    for i in range(4):
        k(f"v_xor_b32 v{28+4*i}, s58, v{28+4*i}\nv_xor_b32 v{29+4*i}, s59, v{29+4*i}")
    k(f"""v_or3_b32 v28, v28, v29, v32
          v_or3_b32 v33, v33, v36, v37
          v_or3_b32 v28, v28, v40, v41
          v_or_b32 v28, v28, v33
          v_cmp_ne_u32 vcc, 0, v28
          s_cmp_gt_u32 s60, 0x40000
          s_cbranch_scc1 L_p0_g2
          s_cbranch_vccz L_p0_g2
          s_sleep {KSL}
          s_branch L_p0_gp
          L_p0_g2:
          v_max3_f32 v30, v30, v34, v38
          v_max_f32 v30, v30, v42""")
    for sh in (1, 2, 4, 8):
        k(f"v_max_f32_dpp v30, v30, v30 row_ror:{sh} row_mask:0xf bank_mask:0xf")
    k("""v_mov_b32 v31, v30
         v_permlane16_swap_b32 v30, v31
         v_max_f32 v30, v30, v31
         v_mov_b32 v31, v30
         v_permlane32_swap_b32 v30, v31
         v_max_f32 v30, v30, v31
         ds_write_b32 v21, v30 offset:8""")
    if KV3:
        k(f"""s_and_b32 s34, s57, {3 if KVROT else 0}
              s_lshl_b32 s34, s34, 13
              s_add_u32 s34, s34, {KF}""")
        for blk in range(4):
            for h_ in range(2):
                k(f"""s_mov_b32 m0, {blk*32768 + h_*4096}
                      s_add_u32 s35, s34, {blk*32768 + h_*4096}""")
                for j in range(4): k(f"buffer_load_dwordx4 v2, s[24:27], s35 offen offset:{1024*j} lds")
    k("s_branch L_att")
    k(f"""L_p0_kv:
          s_lshr_b32 s40, s30, 2           ; kv
          s_and_b32 s41, s30, 3            ; rq
          s_waitcnt lgkmcnt(0)
          s_cmp_eq_u32 s40, 0
          s_cselect_b32 s20, s8, s10
          s_cselect_b32 s21, s9, s11
          s_mov_b32 s22, 16384
          s_mov_b32 s23, 0x00020000""")
    srd(k, 24, 14, 15, WS_USED)
    for c in range(8):
        k(f"""s_mov_b32 m0, {KVL + 2048*c}
              s_lshl_b32 s38, s46, 11
              s_add_u32 s46, s46, 1
              buffer_load_dwordx4 v2, s[20:23], s38 offen lds
              buffer_load_dwordx4 v2, s[20:23], s38 offen offset:1024 lds
              s_and_b32 s46, s46, 7""")
    k(f"""v_mov_b32 v64, 0x3f803f80
          v_mov_b32 v65, 0x3f803f80
          v_mov_b32 v66, 0x3f803f80
          v_mov_b32 v67, 0x3f803f80
          v_and_b32 v15, 15, v1
          s_lshl_b32 s34, s41, 4
          v_add_u32 v12, s34, v15
          v_lshlrev_b32 v74, 3, v12
          v_add_u32 v74, {SX}, v74
          v_lshl_add_u32 v75, v8, 2, s34
          v_lshlrev_b32 v75, 3, v75
          v_add_u32 v75, {SX}, v75
          v_lshrrev_b32 v13, 1, v12
          v_and_b32 v13, 7, v13
          v_lshlrev_b32 v12, 7, v12
          v_xor_b32 v14, v8, v13
          v_lshl_add_u32 v72, v14, 4, v12
          v_add_u32 v14, 4, v8
          v_xor_b32 v14, v14, v13
          v_lshl_add_u32 v73, v14, 4, v12
          v_lshl_add_u32 v6, v8, 3, v10
          v_lshlrev_b32 v6, 5, v6
          v_lshl_add_u32 v6, v11, 3, v6
          v_add_u32 v6, {KVL}, v6
          s_lshl_b32 s34, s29, 2
          s_add_u32 s34, s34, s41          ; t16
          v_and_b32 v12, 1, v8             ; h
          v_lshrrev_b32 v13, 1, v8         ; piece
          v_mov_b32 v76, {SX + 768}
          s_and_b32 s37, s2, 7
          s_lshl_b32 s37, s37, {5 + KSTR}
          s_lshr_b32 s36, s2, 3
          s_lshl_b32 s36, s36, {KSTR}
          s_add_u32 s37, s37, s36
          s_add_u32 s37, s37, {KVFLAG}""")
    for r in range(8): k(f"v_mov_b32 v{32+r}, 0")
    def kvloop(isv):
        for gi_ in range(4):
            k(f"s_waitcnt vmcnt({4*(3-gi_)})\ns_barrier")
            for s in range(4):
                st = 4*gi_ + s; b = 80 + 8*s
                k(f"""ds_read_b64_tr_b16 v[{b}:{b+1}], v6 offset:{1024*st}
                      ds_read_b64_tr_b16 v[{b+2}:{b+3}], v6 offset:{1024*st+128}
                      ds_read_b128 {vr(b+4)}, v{72+(s&1)} offset:{XL0+8192*(st//2)}""")
            for s in range(4):
                W, X = 80 + 8*s, 84 + 8*s
                k(f"s_waitcnt lgkmcnt({9-3*s})")
                if isv:
                    k(f"""v_mfma_f32_16x16x32_bf16 v[32:35], {vr(X)}, {vr(W)}, v[32:35]
                          v_mfma_f32_16x16x32_bf16 v[36:39], v[64:67], {vr(W)}, v[36:39]""")
                else:
                    k(f"""v_mfma_f32_16x16x32_bf16 v[32:35], {vr(W)}, {vr(X)}, v[32:35]
                          v_mfma_f32_16x16x32_bf16 v[36:39], {vr(W)}, v[64:67], v[36:39]""")
        k("s_barrier\nds_read_b64 v[40:41], v76")
    k("""s_cmp_eq_u32 s40, 0
         s_cbranch_scc0 L_p0_v""")
    kvloop(False)
    k(f"""ds_read_b64 v[68:69], v74
          v_lshlrev_b32 v3, 9, v12
          v_lshl_add_u32 v3, v15, 4, v3
          v_lshl_add_u32 v3, v13, 3, v3
          s_lshr_b32 s35, s34, 1
          s_lshl_b32 s35, s35, 10
          s_and_b32 s36, s34, 1
          s_lshl_b32 s36, s36, 8
          s_add_u32 s35, s35, s36
          s_add_u32 s35, s35, {KF}
          s_waitcnt lgkmcnt(0)""")
    for r in range(4): k(f"v_fma_f32 v{32+r}, -v68, v{36+r}, v{32+r}")
    for r in range(4): k(f"v_mul_f32 v{32+r}, v69, v{32+r}")
    k(f"""v_cvt_pk_bf16_f32 v36, v32, v33
          v_cvt_pk_bf16_f32 v37, v34, v35
          buffer_store_dwordx2 v[36:37], v3, s[24:27], s35 offen sc1
          v_dot2_f32_bf16 v42, v36, v36, 0
          v_dot2_f32_bf16 v42, v37, v37, v42""")
    xhalf_add(k, 42, 12); x16_add(k, 42, 12)
    for sh in (1, 2, 4, 8):
        k(f"v_max_f32_dpp v42, v42, v42 row_ror:{sh} row_mask:0xf bank_mask:0xf")
    k("s_branch L_p0_kvf\nL_p0_v:")
    kvloop(True)
    k(f"""ds_read_b128 v[56:59], v75
          ds_read_b128 v[60:63], v75 offset:16
          v_lshlrev_b32 v3, 8, {'v13' if SMF else 'v12'}
          v_lshl_add_u32 v3, v15, 4, v3
          v_lshl_add_u32 v3, {'v12' if SMF else 'v13'}, 3, v3
          s_lshl_b32 s35, s34, 9
          s_add_u32 s35, s35, {VF}
          v_mov_b32 v42, 0
          s_waitcnt lgkmcnt(0)""")
    for r in range(4): k(f"v_fma_f32 v{32+r}, -v{56+2*r}, v{36+r}, v{32+r}")
    for r in range(4): k(f"v_mul_f32 v{32+r}, v{57+2*r}, v{32+r}")
    k(f"""v_cvt_pk_bf16_f32 v36, v32, v33
          v_cvt_pk_bf16_f32 v37, v34, v35
          buffer_store_dwordx2 v[36:37], v3, s[24:27], s35 offen sc1
          L_p0_kvf:
          v_mov_b32 v43, 0""")
    k.stamp(2)
    k("s_barrier")
    k.stamp(3)
    k("s_waitcnt vmcnt(0)")
    k.stamp(5)
    k(f"""s_mov_b64 exec, 1
          buffer_store_dwordx4 v[40:43], v43, s[24:27], s37 offen sc1
          s_mov_b64 exec, -1""")
    if STAMPS: k("s_waitcnt vmcnt(0)")
    k.stamp(4)
    k("s_barrier\n" * 3 + "s_branch L_att")
    k(f"""L_p0_pack:
          s_load_dwordx2 s[48:49], s[0:1], 48
          s_load_dwordx2 s[50:51], s[0:1], 32
          s_load_dwordx2 s[52:53], s[0:1], 72
          s_lshl_b32 s35, s28, 8
          s_add_u32 s35, s35, s2           ; J
          s_lshl_b32 s36, s28, 13
          s_add_u32 s36, s36, {128*1024}
          s_waitcnt lgkmcnt(0)""")
    srd(k, 24, 14, 15, WS_USED)
    if TLBW:
        k(f"""s_load_dwordx4 s[40:43], s[0:1], 56
              s_load_dwordx2 s[44:45], s[0:1], 80
              v_lshlrev_b32 v20, {TLBW}, v1
              buffer_load_dword v21, v20, s[24:27], 0 offen
              s_mov_b32 s18, {688*1024}
              s_mov_b32 s19, 0x00020000""")
        for lo, sz in ((48, 512*2752), (50, 512*1024), (52, 688*1024)):
            k(f"""s_mov_b32 s16, s{lo}
                  s_mov_b32 s17, s{lo+1}
                  s_mov_b32 s18, {sz}
                  buffer_load_dword v21, v20, s[16:19], 0 offen""")
        k("s_waitcnt lgkmcnt(0)")
        for lo, sz in ((40, 2048*4096), (42, 4096), (44, 2048*1024)):
            k(f"""s_mov_b32 s16, s{lo}
                  s_mov_b32 s17, s{lo+1}
                  s_mov_b32 s18, {sz}
                  buffer_load_dword v21, v20, s[16:19], 0 offen""")
    k(f"""s_cmp_lt_u32 s35, 332
          s_cbranch_scc1 L_pk_job""")
    k("L_pk_done:\n" + "s_barrier\n" * 9 + "s_branch L_att")
    k(f"""L_pk_job:
          s_lshl_b32 s62, s35, 7
          s_add_u32 s62, s62, {PFLAG}
          s_mov_b32 s23, 0x00020000
          s_cmp_lt_u32 s35, 172
          s_cbranch_scc1 L_pk_in
          s_movk_i32 s40, 1024
          s_cmp_lt_u32 s35, 236
          s_cbranch_scc1 L_pk_o
          s_sub_u32 s35, s35, 236
          s_mul_i32 s37, s35, 171
          s_lshr_b32 s37, s37, 9
          s_mul_i32 s38, s37, 3
          s_sub_u32 s38, s35, s38
          s_mov_b32 s20, s52
          s_mov_b32 s21, s53
          s_mov_b32 s22, {688*1024}
          s_mul_i32 s39, s37, 24576
          s_add_u32 s39, s39, {WUP}
          s_branch L_pk_d
          L_pk_o:
          s_sub_u32 s35, s35, 172
          s_lshr_b32 s37, s35, 1
          s_and_b32 s38, s35, 1
          s_mov_b32 s20, s50
          s_mov_b32 s21, s51
          s_mov_b32 s22, {512*1024}
          s_lshl_b32 s39, s37, 14
          s_add_u32 s39, s39, {WOP}
          L_pk_d:
          v_lshrrev_b32 v12, 1, v8
          v_lshlrev_b32 v6, 4, v12
          v_and_b32 v12, 1, v8
          v_lshl_add_u32 v6, v12, 2, v6
          s_movk_i32 s41, 256
          s_mov_b32 s42, 0
          s_branch L_pk_go
          L_pk_in:
          s_movk_i32 s40, 2752
          s_lshr_b32 s37, s35, 1
          s_and_b32 s38, s35, 1
          s_mov_b32 s20, s48
          s_mov_b32 s21, s49
          s_mov_b32 s22, {512*2752}
          s_lshl_b32 s39, s37, 14
          s_add_u32 s39, s39, {WPK}
          v_lshlrev_b32 v6, 2, v8
          s_movk_i32 s41, 512
          s_mov_b32 s42, 1
          L_pk_go:
          v_add_u32 v6, v6, v10
          v_lshlrev_b32 v6, 5, v6
          v_lshl_add_u32 v6, v11, 3, v6
          v_add_u32 v108, s36, v6
          v_add_u32 v109, s41, v108
          s_lshl_b32 s43, s38, 13
          s_add_u32 s48, s39, s43           ; dst
          v_lshrrev_b32 v113, 1, v1
          v_mul_lo_u32 v113, v113, s40
          v_and_b32 v12, 1, v1
          v_lshl_add_u32 v113, v12, 4, v113
          s_lshl_b32 s50, s40, 8
          s_mul_i32 s50, s50, s38
          s_lshl_b32 s44, s37, 5
          s_add_u32 s50, s50, s44           ; src
          s_lshl_b32 s51, s40, 5            ; 32 rows
          s_lshl_b32 s49, s37, 6
          s_add_u32 s49, s49, s43
          s_add_u32 s49, s49, {CSUM}
          s_mul_i32 s49, s49, s42
          s_mov_b32 s45, s36
          s_branch L_pk_done""")
    k("L_att:")
    att_ids(); att_init()
    k.stamp(8)
    k("s_waitcnt lgkmcnt(0)\ns_barrier")
    k.stamp(7)
    if not KV3: kvdma(0)
    k(f"""L_att2:
          s_waitcnt vmcnt(0) lgkmcnt(0)
          s_barrier
          ds_read_b128 {vr(Q)}, v102
          ds_read_b128 v[120:123], v103
          ds_read_b128 {vr(KFR)}, v{vK}""")
    kvdma(1)
    k(f"""s_waitcnt lgkmcnt(0)
          v_readfirstlane_b32 s58, v120
          v_readfirstlane_b32 s59, v121
          v_mov_b32 v104, v122
          v_dot2_f32_bf16 v106, v{Q}, v{Q}, 0
          v_dot2_f32_bf16 v106, v{Q+1}, v{Q+1}, v106
          v_dot2_f32_bf16 v106, v{Q+2}, v{Q+2}, v106
          v_dot2_f32_bf16 v106, v{Q+3}, v{Q+3}, v106""")
    xhalf_add(k, 106, 105)
    k(f"""v_mul_f32 v104, v104, v106
          v_cmp_nle_f32 vcc, v104, v107""")
    kvdma(2); kvdma(3)
    k("s_cbranch_vccnz L_k2_slow")
    k.stamp(1)
    if os.environ.get("STP0"): k.stamp = lambda i, real=False: None if i < 13 else Kern.stamp(k, i, real)
    def att_loop(sfx, cop):
        k(f"""L_k2_start{sfx}:
              s_waitcnt lgkmcnt(0)
              v_mfma_f32_32x32x16_bf16 {vr(S[0],16)}, {vr(KFR)}, {vr(Q)}, {cop}
              ds_read_b128 {vr(KFR)}, v{vK} offset:1024
              s_mov_b64 exec, s[40:41]
              ds_read_b128 {vr(VFR[0][0])}, v{vV}
              ds_read_b128 {vr(VFR[0][1])}, v{vV} offset:512
              s_mov_b64 exec, -1
              s_nop 7
              L_k2_loop{sfx}:
              s_bitcmp1_b32 s31, s36
              s_cbranch_scc1 L_k2_ev
              L_k2_body{sfx}:""")
        for u in range(4):
            s = S[u & 1]; sn = S[(u + 1) & 1]; vf = VFR[u & 1]; vn = VFR[(u + 1) & 1]
            k(f"s_setprio {3-u}")
            for i in range(16):
                if i == 3:
                    k(f"""v_smfmac_f32_32x32x32_bf16 {vr(O,16)}, {vr(vn[1])}, {vr(sn+8,8)}, v{P}
                          s_mov_b64 exec, s[40:41]
                          ds_read_b128 {vr(vn[0])}, v{vV} offset:{1024*(u+1)}
                          ds_read_b128 {vr(vn[1])}, v{vV} offset:{1024*(u+1)+512}
                          s_mov_b64 exec, -1""")
                if i == 8:
                    k(f"""s_waitcnt lgkmcnt(2)
                          v_mfma_f32_32x32x16_bf16 {vr(sn,16)}, {vr(KFR)}, {vr(Q)}, {cop}
                          ds_read_b128 {vr(KFR)}, v{vK} offset:{1024*(u+2)}""")
                if i == 13:
                    k(f"v_smfmac_f32_32x32x32_bf16 {vr(O,16)}, {vr(vf[0])}, {vr(s,8)}, v{P}")
                k(f"v_exp_f32 v{s+i}, v{s+i}")
        k(f"""v_add_u32 v{vK}, 4096, v{vK}
              v_add_u32 v{vV}, 4096, v{vV}
              s_add_u32 s36, s36, 1
              s_cmp_lt_u32 s36, {NIT}
              s_cbranch_scc1 L_k2_loop{sfx}""")
    att_loop("", "0")
    k("L_k2_done:")
    if SMF: k(f"v_smfmac_f32_32x32x32_bf16 {vr(O,16)}, {vr(VFR[1][1])}, {vr(S[1]+8,8)}, v{P}")
    else: k(f"v_mfma_f32_32x32x16_bf16 {vr(O,16)}, {vr(VFR[1][1])}, {vr(P+4)}, {vr(O,16)}")
    k("s_setprio 0\ns_waitcnt lgkmcnt(0)")
    k.stamp(2)
    k(f"""s_mul_i32 s45, s38, 2304
          s_add_u32 s45, s45, {XL}
          v_add_u32 v103, s45, v2
          v_lshlrev_b32 v104, 2, v1
          v_add_u32 v104, s45, v104
          v_mov_b32 v107, {FASTW}
          s_lshl_b32 s35, s38, 2
          s_add_u32 s35, s35, {FASTW + 128}
          v_mov_b32 v102, s35
          s_cmp_eq_u32 s39, 0
          s_cbranch_scc1 L_k2_give
          s_mov_b32 s60, 0
          L_k2_mw:
          ds_read_b32 v105, v102
          ds_read_b32 v106, v107
          ds_read_b128 {vr(S[0])}, v103
          ds_read_b128 {vr(S[0]+4)}, v103 offset:1024
          ds_read_b32 v{S[0]+8}, v104 offset:2048
          s_lshl_b32 s34, s29, 13
          s_add_u32 s34, s34, {OFLAG}
          s_lshl_b32 s35, s32, 12
          s_add_u32 s34, s34, s35
          s_lshl_b32 s35, s30, 9
          s_add_u32 s34, s34, s35
          s_lshr_b32 s35, s38, 1
          s_lshl_b32 s35, s35, 7
          s_add_u32 s34, s34, s35
          s_add_u32 s33, s46, {OF}
          s_add_u32 s60, s60, 1
          s_waitcnt lgkmcnt(0)
          v_readfirstlane_b32 s63, v106
          v_readfirstlane_b32 s35, v105
          s_cmp_gt_u32 s60, 0x400000
          s_cbranch_scc1 L_k2_mok
          s_cmp_eq_u32 s63, 2
          s_cbranch_scc1 L_k2_mw
          s_cmp_eq_u32 s35, 0
          s_cbranch_scc1 L_k2_mw
          L_k2_mok:""")
    k.stamp(3)
    for r in range(9): k(f"v_add_f32 v{O+r}, v{O+r}, v{S[0]+r}")
    k(f"""v_mov_b32 v104, v{O+8}
          v_permlane32_swap_b32 v{O+8}, v104
          v_rcp_f32 v104, v{O+8}""")
    for r in range(8): k(f"v_mul_f32 v{O+r}, v104, v{O+r}")
    for r in range(4): k(f"v_cvt_pk_bf16_f32 v{P+r}, v{O+2*r}, v{O+2*r+1}")
    dstore(k, f"buffer_store_dwordx4 {vr(P)}, v2, s[24:27], s33 offen")
    k.stamp(4)
    if STAMPS: k("s_waitcnt vmcnt(0)")
    k.stamp(5)
    set_flagN(k, "s34")
    k.stamp(6)
    k("""s_cmp_lt_u32 s28, 12
         s_cbranch_scc1 L_kb_loader
         s_endpgm""")
    k(f"""L_k2_ev:
          s_cmp_ge_u32 s36, 6
          s_cbranch_scc1 L_k2_cnt
          s_cmp_eq_u32 s36, 4
          s_cbranch_scc1 L_k2_st4
          s_cmp_eq_u32 s36, 3
          s_cbranch_scc1 L_k2_st3
          s_cmp_eq_u32 s36, 1
          s_cbranch_scc1 L_k2_st1
          s_setprio 2
          s_branch L_k2_ret
          L_k2_st1:
          s_cmp_eq_u32 s42, 1
          s_cbranch_scc0 L_k2_st1c
          s_waitcnt vmcnt(0)
          s_barrier
          L_k2_st1c:
          s_cmp_eq_u32 s62, 0
          s_cbranch_scc1 L_nopk""")
    for i in range(8):
        k(f"""s_add_u32 m0, s45, {1024*i}
              buffer_load_dwordx4 v113, s[20:23], s50 offen lds
              s_add_u32 s50, s50, s51""")
    k(f"""s_branch L_k2_ret
          L_nopk:
          s_lshr_b32 s34, s28, 2
          s_cmp_eq_u32 s34, 1
          s_cbranch_scc0 L_k2_ret
          s_load_dwordx2 s[52:53], s[0:1], 56
          s_lshr_b32 s61, s2, 3
          s_lshl_b32 s61, s61, 2
          s_add_u32 s61, s61, s3
          v_lshlrev_b32 v108, 7, v1
          s_and_b32 s37, s2, 7
          s_lshl_b32 s37, s37, 20
          s_lshl_b32 s61, s61, 13
          s_add_u32 s37, s37, s61
          s_mov_b32 s54, {2048*4096}
          s_mov_b32 s55, 0x00020000
          s_waitcnt lgkmcnt(0)
          buffer_load_dword v120, v108, s[52:55], s37 offen
          s_cmp_eq_u32 s28, 4
          s_cbranch_scc0 L_k2_ret
          s_lshr_b32 s34, s29, 1
          s_lshl_b32 s34, s34, 7
          s_and_b32 s35, s29, 1
          s_lshl_b32 s35, s35, 3
          s_add_u32 s34, s34, s35
          s_add_u32 s34, s34, s30
          s_lshl_b32 s34, s34, 7
          s_add_u32 s34, s34, {ZSTAT}
          v_mov_b32 v112, -1
          v_mov_b32 v113, -1
          v_mov_b32 v114, -1
          v_mov_b32 v115, -1
          v_lshrrev_b32 v116, 3, v1
          v_lshlrev_b32 v116, 11, v116
          v_and_b32 v117, 7, v1
          v_lshl_add_u32 v116, v117, 4, v116
          buffer_store_dwordx4 v[112:115], v116, s[24:27], s34 offen sc1
          s_branch L_k2_ret
          L_k2_cnt:
          {'s_setprio 0' if PRIO == 3 else ''}
          L_k2_cnt2:
          s_waitcnt lgkmcnt(0)
          s_mov_b64 exec, 1
          ds_add_u32 v118, v119
          s_mov_b64 exec, -1
          v_add_u32 v118, 4, v118
          s_branch L_k2_ret
          L_k2_st4:
          {'s_setprio 1' if PRIO == 3 else ''}
          s_cmp_eq_u32 s62, 0
          s_cbranch_scc1 L_k2_cnt2
          v_mov_b32 v112, s58
          v_mov_b32 v113, s59
          v_mov_b32 v114, 0
          s_waitcnt vmcnt(0)
          s_mov_b64 exec, 1
          buffer_store_dwordx2 v[112:113], v114, s[24:27], s62 offen sc1
          s_mov_b64 exec, -1
          s_branch L_k2_cnt2
          L_k2_st3:
          s_waitcnt vmcnt(0)
          s_cmp_lg_u32 s62, 0
          s_cbranch_scc1 L_k2_pk
          s_and_b32 s34, s29, 1
          s_lshl_b32 s34, s34, 3
          s_add_u32 s34, s34, s30
          s_lshl_b32 s34, s34, 7
          s_add_u32 s34, s34, s63
          s_getreg_b32 s60, hwreg(HW_REG_XCC_ID, 0, 4)
          s_add_u32 s60, s60, s59
          v_mov_b32 v108, s58
          v_mov_b32 v109, s60
          v_mov_b32 v110, 0
          s_mov_b64 exec, 1
          buffer_store_dwordx2 v[108:109], v110, s[24:27], s34 offen sc1
          s_mov_b64 exec, -1
          s_branch L_k2_ret
          L_k2_pk:
          s_mov_b32 s34, 0x3f803f80
          s_add_u32 s35, s48, 4096
          v_mov_b32 v110, 0
          v_mov_b32 v111, 0""")
    for h in range(2):
        for i in range(2):
          for i2 in range(2):
            k(f"""ds_read_b64_tr_b16 v[{120+4*i2}:{121+4*i2}], v108 offset:{1024*(4*h+2*i+i2)}
                  ds_read_b64_tr_b16 v[{122+4*i2}:{123+4*i2}], v109 offset:{1024*(4*h+2*i+i2)}""")
          k("s_waitcnt lgkmcnt(0)")
          for i2 in range(2):
            k(f"buffer_store_dwordx4 {vr(120+4*i2)}, v2, s[24:27], {'s35' if h else 's48'} offen offset:{1024*(2*i+i2)} sc1")
          for i3 in range(8): k(f"v_dot2_f32_bf16 v{110+(i3&1)}, v{120+i3}, s34, v{110+(i3&1)}")
    k("""s_cmp_eq_u32 s49, 0
         s_cbranch_scc1 L_k2_ret
         v_add_f32 v110, v110, v111""")
    xhalf_add(k, 110, 111); x16_add(k, 110, 111)
    k(f"""v_lshlrev_b32 v111, 2, v1
          s_mov_b64 exec, 0xffff
          buffer_store_dword v110, v111, s[24:27], s49 offen sc1
          s_mov_b64 exec, -1
          s_branch L_k2_ret""")
    k("""L_k2_ret:
         s_cmp_eq_u32 s42, 1
         s_cbranch_scc1 L_k2_body
         s_branch L_k2_body_s""")
    k("L_k2_slow:")
    k(f"""s_waitcnt vmcnt(0)
          s_barrier
          s_mov_b32 s42, 99
          v_mov_b32 v104, 0xff800000
          v_mov_b32 v103, v2
          s_mov_b32 s37, 0
          L_k2_mx:
          ds_read_b128 {vr(KFR)}, v103
          s_waitcnt lgkmcnt(0)
          v_mfma_f32_32x32x16_bf16 {vr(S[0],16)}, {vr(KFR)}, {vr(Q)}, 0
          v_add_u32 v103, 1024, v103""")
    for i in range(8):
        k(f"v_max3_f32 v104, v{S[0]+2*i}, v{S[0]+2*i+1}, v104")
    k(f"""s_add_u32 s37, s37, 1
          s_cmp_lt_u32 s37, 64
          s_cbranch_scc1 L_k2_mx
          v_mov_b32 v105, v104
          v_permlane32_swap_b32 v104, v105
          v_max_f32 v104, v104, v105""")
    for i in range(16): k(f"v_sub_f32 v{C+i}, 0, v104")
    k(f"ds_read_b128 {vr(KFR)}, v{vK}")
    att_loop("_s", vr(C, 16))
    k("s_nop 1\ns_branch L_k2_done")
    def waitcnt_lds(off, tag):
        k(f"""v_mov_b32 v108, {CNT + off}
              s_mov_b32 s60, 0
              L_cw_{tag}:
              ds_read_b32 v109, v108
              s_add_u32 s60, s60, 1
              s_waitcnt lgkmcnt(0)
              v_readfirstlane_b32 s34, v109
              s_cmp_gt_u32 s60, 0x400000
              s_cbranch_scc1 L_cwok_{tag}
              s_cmp_ge_u32 s34, 16
              s_cbranch_scc1 L_cwok_{tag}
              s_sleep 2
              s_branch L_cw_{tag}
              L_cwok_{tag}:""")
    k(f"""L_k2_give:
          s_load_dwordx2 s[4:5], s[0:1], 0""")
    if PT:
        k(f"""v_and_b32 v110, 7, v1
              v_lshlrev_b32 v110, 7, v110
              s_mov_b64 exec, 0xff
              s_add_u32 s34, s46, {OF}
              buffer_load_dword v117, v110, s[24:27], s34 offen
              s_lshl_b32 s34, s29, 2
              s_add_u32 s34, s34, s3
              s_lshl_b32 s34, s34, 4
              s_lshl_b32 s35, s30, 1
              s_add_u32 s34, s34, s35
              s_lshr_b32 s35, s28, 2
              s_add_u32 s34, s34, s35
              s_lshl_b32 s35, s34, 10
              s_add_u32 s35, s35, {HF}
              buffer_load_dword v117, v110, s[24:27], s35 offen
              s_mov_b64 exec, 1
              s_lshl_b32 s35, s34, 7
              s_add_u32 s35, s35, {HSTAT}
              buffer_load_dword v117, v110, s[24:27], s35 offen
              s_mov_b64 exec, -1""")
    k(f"""s_cmp_eq_u32 s28, 4
          s_cbranch_scc0 L_kb_nochk
          v_and_b32 v110, 15, v1
          v_lshlrev_b32 v110, 7, v110
          s_mov_b32 s60, 0
          L_xc_b:
          buffer_load_dwordx2 v[108:109], v110, s[24:27], s63 offen sc1
          s_add_u32 s60, s60, 1
          s_waitcnt vmcnt(0)
          v_subrev_u32 v109, s59, v109
          v_xor_b32 v108, s58, v108
          v_lshrrev_b32 v106, 4, v109
          v_or_b32 v108, v108, v106
          v_cmp_ne_u32 vcc, 0, v108
          s_cmp_gt_u32 s60, 0x40000
          s_cbranch_scc1 L_xcok_b
          s_cbranch_vccnz L_xc_b
          L_xcok_b:
          v_readfirstlane_b32 s60, v109
          v_cmp_ne_u32 vcc, s60, v109
          s_cmp_eq_u64 vcc, 0
          s_cselect_b32 s60, {FAST}, 0
          v_mov_b32 v106, s60
          ds_write_b32 v107, v106
          L_kb_nochk:
          s_and_b32 s31, s29, 1
          s_lshl_b32 s31, s31, 3
          s_add_u32 s31, s31, s30
          s_mul_i32 s31, s31, 3
          s_min_u32 s31, s31, 40           ; u0
          s_lshl_b32 s34, s31, 1
          s_lshl_b32 s35, s30, 3
          s_add_u32 s35, s35, 172
          s_mul_i32 s37, s30, 12
          s_add_u32 s37, s37, {236-20}
          s_sub_u32 s34, s34, 8
          v_and_b32 v108, 31, v1
          v_add_u32 v109, s35, v108
          v_add_u32 v110, s34, v108
          v_cmp_lt_u32 vcc, 7, v108
          v_cndmask_b32 v109, v109, v110, vcc
          v_add_u32 v110, {86-6}, v110
          v_cmp_lt_u32 vcc, 13, v108
          v_cndmask_b32 v109, v109, v110, vcc
          v_add_u32 v110, s37, v108
          v_cmp_lt_u32 vcc, 19, v108
          v_cndmask_b32 v109, v109, v110, vcc
          v_lshlrev_b32 v15, 7, v109
          s_mov_b32 s37, {PFLAG}
          s_mov_b32 exec_hi, 0""")
    pollN(k, "s37", "p")
    k(f"""s_lshl_b32 s40, s31, 14
          s_add_u32 s40, s40, {WPK}        ; z1 base
          s_cmp_ge_u32 s28, 4
          s_cbranch_scc1 L_gv_pf
          s_mul_i32 s35, s28, 3072
          s_add_u32 m0, s35, {148*1024}
          s_add_u32 s35, s35, s40""")
    for j in range(3): k(f"buffer_load_dwordx4 v2, s[24:27], s35 offen offset:{1024*j} lds")
    k(f"""s_mul_i32 s35, s28, 12288
          s_add_u32 s35, s35, s40
          s_add_u32 s35, s35, {43*16384}
          v_lshlrev_b32 v108, 7, v1
          buffer_load_dword v117, v108, s[24:27], s35 offen
          v_and_b32 v109, 31, v1
          v_lshlrev_b32 v109, 7, v109
          s_add_u32 s35, s35, 8192
          buffer_load_dword v117, v109, s[24:27], s35 offen
          s_mul_i32 s35, s28, 9216
          s_add_u32 s35, s35, s40
          s_add_u32 s35, s35, 12288
          buffer_load_dword v117, v108, s[24:27], s35 offen
          v_and_b32 v109, 7, v1
          v_lshlrev_b32 v109, 7, v109
          s_add_u32 s35, s35, 8192
          buffer_load_dword v117, v109, s[24:27], s35 offen""")
    k(f"""s_branch L_gv_c6
          L_gv_pf:""")
    if PFO:
        k(f"""s_lshl_b32 s35, s30, 2
              s_add_u32 s35, s35, s3
              s_mul_i32 s35, s35, 24576
              s_add_u32 s35, s35, {WUP}
              v_lshlrev_b32 v108, 7, v1""")
        for j in range(3):
            k(f"buffer_load_dword v117, v108, s[24:27], s35 offen\ns_add_u32 s35, s35, 8192")
    k(f"""
          L_gv_c6:""")
    waitcnt_lds(0, "6")
    k(f"""ds_write_b128 v103, {vr(O)}
          ds_write_b128 v103, {vr(O+4)} offset:1024
          ds_write_b32 v104, v{O+8} offset:2048
          ds_write_b32 v102, v119
          s_lshl_b32 s35, s30, 16
          s_lshl_b32 s37, s28, 13
          s_add_u32 s35, s35, s37
          s_add_u32 s35, s35, {WOP}
          s_lshr_b32 s37, s28, 1
          s_lshl_b32 s37, s37, 15
          s_lshl_b32 s41, s32, 13
          s_add_u32 s41, s41, s37
          s_mov_b32 m0, s41""")
    for j in range(4): k(f"buffer_load_dwordx4 v2, s[24:27], s35 offen offset:{1024*j} lds")
    k("s_add_u32 m0, s41, 4096\ns_add_u32 s35, s35, 4096")
    for j in range(4): k(f"buffer_load_dwordx4 v2, s[24:27], s35 offen offset:{1024*j} lds")
    lane_fields(k)
    if P1:
        waitcnt_lds(4, "7")
        k(f"""s_lshl_b32 s35, s28, 12
              s_add_u32 s35, s35, s40
              s_add_u32 s35, s35, {43*16384}
              s_lshl_b32 s41, s32, 12
              s_add_u32 s41, s41, s37
              s_add_u32 m0, s41, 16384""")
        for j in range(4): k(f"buffer_load_dwordx4 v2, s[24:27], s35 offen offset:{1024*j} lds")
    k(f"""s_lshl_b32 s33, s29, 13
          s_add_u32 s33, s33, {OFLAG}
          s_and_b32 s35, s28, 2
          s_lshl_b32 s35, s35, 11
          s_add_u32 s33, s33, s35
          s_and_b32 s35, s28, 4
          s_lshl_b32 s35, s35, 9
          s_add_u32 s33, s33, s35""")
    k(f"""s_lshr_b32 s61, s28, 2           ; kh
          s_lshl_b32 s36, s29, 2
          s_add_u32 s36, s36, s3           ; rb16
          s_lshl_b32 s37, s30, 1
          s_add_u32 s37, s37, s61
          v_and_b32 v14, 15, v1
          v_lshlrev_b32 v3, 10, v14
          v_lshl_add_u32 v3, v8, 3, v3
          s_lshl_b32 s44, s36, 14
          s_lshl_b32 s45, s37, 6
          s_add_u32 s44, s44, s45""")
    srd(k, 16, 4, 5, 2048 * 1024)
    k("""buffer_load_dwordx2 v[96:97], v3, s[16:19], s44 offen
         buffer_load_dwordx2 v[98:99], v3, s[16:19], s44 offen offset:32
         s_lshl_b32 s45, s61, 13
         v_add_u32 v4, s45, v2
         v_add_u32 v5, 65536, v4""")
    act32_voff(k, 3, "s32")
    k(f"""s_lshr_b32 s46, s36, 1
          s_lshl_b32 s46, s46, 15
          s_lshl_b32 s47, s61, 14
          s_add_u32 s46, s46, s47
          s_add_u32 s46, s46, {OF}""")
    for r in range(16): k(f"v_mov_b32 v{16+r}, 0")
    woff = lambda s, u: (4 + (u >> 1), (u & 1) * 32768 + s * 1024)
    k.stamp(3)
    k(f"""s_mov_b32 s60, 0
          L_gv_fw:
          ds_read_b32 v106, v107
          s_add_u32 s60, s60, 1
          s_waitcnt lgkmcnt(0)
          v_readfirstlane_b32 s63, v106
          s_cmp_gt_u32 s60, 0x400000
          s_cbranch_scc1 L_gv_fok
          s_cmp_eq_u32 s63, 2
          s_cbranch_scc1 L_gv_fw
          L_gv_fok:""")
    if NOM2:
        k(f"""s_waitcnt vmcnt(0)
          v_mov_b32 v108, {CNT + 8}
          s_mov_b64 exec, 1
          ds_add_u32 v108, v119
          s_mov_b64 exec, -1
          v_mov_b32 v108, {CNT + 8}
          s_mov_b32 s60, 0
          L_sp_wo:
          ds_read_b32 v109, v108
          s_add_u32 s60, s60, 1
          s_waitcnt lgkmcnt(0)
          v_readfirstlane_b32 s34, v109
          s_cmp_gt_u32 s60, 0x400000
          s_cbranch_scc1 L_spok_wo
          s_cmp_ge_u32 s34, 8
          s_cbranch_scc0 L_sp_wo
          L_spok_wo:
          """)
    else: k("s_waitcnt vmcnt(0)\ns_barrier")
    gemm64_reads(k, 0, woff)
    pollN(k, "s33", "o", 16)
    k.stamp(4)
    for s in range(8):
        if s % 2 == 0: k(f"s_add_u32 s47, s46, {s*2048}")
        k(f"buffer_load_dwordx4 {vr(64+4*s)}, v3, s[24:27], s47 offen offset:{2048*(s&1)} {LSC}")
    if OLB or NOM2: k("s_barrier")
    gemm64(k, 8, woff, 64)
    k.stamp(5)
    k("s_barrier")
    if KLC: k("v_mov_b32 v100, 66560\nv_mov_b32 v102, 0\nv_mov_b32 v103, 0\nds_write_b64 v100, v[102:103]")
    ksplit_exchange(k, 0, "s28", tag="b")
    k(f"""v_lshlrev_b32 v40, 16, v96
          v_and_b32 v41, 0xffff0000, v96
          v_lshlrev_b32 v42, 16, v97
          v_and_b32 v43, 0xffff0000, v97
          v_lshlrev_b32 v44, 16, v98
          v_and_b32 v45, 0xffff0000, v98
          v_lshlrev_b32 v46, 16, v99
          v_and_b32 v47, 0xffff0000, v99
          s_lshl_b32 s47, s36, 4
          s_add_u32 s47, s47, s37
          s_lshl_b32 s46, s47, 7
          s_add_u32 s33, s46, {HFLAG}
          s_add_u32 s46, s46, {HSTAT}
          s_lshl_b32 s47, s47, 10
          s_add_u32 s47, s47, {HF}""")
    for i in range(8): k(f"v_add_f32 v{16+i}, v{16+i}, v{40+i}")
    k("s_waitcnt lgkmcnt(0)")
    for i in range(8): k(f"v_add_f32 v{16+i}, v{16+i}, v{32+i}")
    for i in range(4): k(f"v_cvt_pk_bf16_f32 v{48+i}, v{16+2*i}, v{17+2*i}")
    dstore(k, "buffer_store_dwordx4 v[48:51], v2, s[24:27], s47 offen")
    k("""v_mov_b32 v54, 0x3f803f80
         v_dot2_f32_bf16 v52, v48, v54, 0
         v_dot2_f32_bf16 v53, v48, v48, 0""")
    for i in range(1, 4):
        k(f"""v_dot2_f32_bf16 v52, v{48+i}, v54, v52
              v_dot2_f32_bf16 v53, v{48+i}, v{48+i}, v53""")
    xhalf_add(k, 52, 12); xhalf_add(k, 53, 13)
    x16_add(k, 52, 12); x16_add(k, 53, 13)
    k("""v_lshlrev_b32 v12, 3, v14
         s_mov_b64 exec, 0xffff""")
    dstore(k, "buffer_store_dwordx2 v[52:53], v12, s[24:27], s46 offen")
    k(f"""s_mov_b64 exec, -1
          s_and_b32 s31, s29, 1
          s_lshl_b32 s31, s31, 3
          s_add_u32 s30, s30, s31          ; g
          s_lshr_b32 s29, s29, 1           ; rb128
          s_mul_i32 s31, s30, 3
          s_min_u32 s31, s31, 40           ; u0
          s_lshl_b32 s36, s29, 3
          s_add_u32 s36, s36, s28
          s_lshl_b32 s62, s36, 11
          s_add_u32 s62, s62, {HFLAG}
          s_lshl_b32 s47, s36, 11
          s_add_u32 s47, s47, {ZSTAT}""")
    ACC, WF, H = 16, 40, 64
    k(f"""v_mov_b32 v4, v2
          v_add_u32 v5, 65536, v4
          v_add_u32 v6, 131072, v4
          v_lshlrev_b32 v7, 3, v14
          v_lshl_add_u32 v7, v8, 9, v7      ; n*8 + g*512""")
    set_flagN(k, "s33")
    k.stamp(6)
    if OLB: k("s_barrier")
    k(f"""s_cmp_eq_u32 s30, 15
          s_cbranch_scc0 L_k4_work
          v_mov_b32 v16, 0
          v_mov_b32 v17, 0
          v_lshlrev_b32 v12, 3, v14
          s_add_u32 s47, s47, {15*128}
          buffer_store_dwordx2 v[16:17], v12, s[24:27], s47 offen sc1""")
    k("""v_mov_b32 v12, 66560
         v_mov_b32 v13, 1
         s_mov_b64 exec, 1
         ds_add_u32 v12, v13
         s_mov_b64 exec, -1""" if KLC else "s_barrier")
    k(f"""s_branch L_z_done
          L_k4_work:""")
    def WA(i):
        if i < 32: return (i >> 3) * 32768 + 16384 + (i & 7) * 1024
        if i < 48: return ((i - 32) >> 2) * 32768 + 24576 + (i & 3) * 1024
        if i < 60: return 148 * 1024 + (i - 48) * 1024
        l, j = divmod(i - 60, 9)
        return l * 32768 + 28672 + j * 1024 if j < 4 else 128 * 1024 + (5 * l + j - 4) * 1024
    def wreads(s, half):
        for u in range(3):
            a_ = WA((3*half + u) * 16 + s); f = WF + 12*half + 4*u
            k(f"ds_read_b128 {vr(f)}, v{4 + (a_ >> 16)} offset:{a_ & 0xffff}")
    for r in range(24): k(f"v_mov_b32 v{ACC+r}, 0")
    wreads(0, 0)
    k(f"""s_lshl_b32 s46, s36, 14
          s_add_u32 s46, s46, {HF}
          s_lshl_b32 s45, s36, 11
          s_add_u32 s45, s45, {HSTAT}
          """)
    pollN(k, "s62", "h", 16)
    k.stamp(7)
    q = VQ(k); hl = []
    for s in range(16):
        def f(s=s):
            if s % 4 == 0: k(f"s_add_u32 s44, s46, {s*1024}")
            k(f"buffer_load_dwordx4 {vr(H+4*s)}, v2, s[24:27], s44 offen offset:{1024*(s&3)} {LSC}")
        hl.append(f)
    for s in range(HW): q.issue(f"h{s}", 1, hl[s])
    def sl():
        for i in range(4):
            k(f"buffer_load_dwordx2 v[{8+2*i}:{9+2*i}], v7, s[24:27], s45 offen offset:{128*i} {LSC}")
    CS2, CS1, MR = 64, 72, 96
    for s in range(16):
        if WPR == 1: k(f"s_setprio {3 - (s & 3)}")
        if WPR == 2 and s % 4 == 0: k(f"s_setprio {3 - s // 4}")
        wreads(s, 1)
        q.wait(f"h{s}", extra=" lgkmcnt(3)")
        for u in range(3):
            k(f"v_mfma_f32_16x16x32_bf16 {vr(ACC+4*u)}, {vr(H+4*s)}, {vr(WF+4*u)}, {vr(ACC+4*u)}")
        if s + HW < 16: q.issue(f"h{s+HW}", 1, hl[s+HW])
        if s == 7: q.issue("st", 4, sl)
        if s < 15:
            wreads(s + 1, 0); k("s_waitcnt lgkmcnt(3)")
        else:
            k("s_waitcnt lgkmcnt(0)")
        for u in range(3):
            k(f"v_mfma_f32_16x16x32_bf16 {vr(ACC+12+4*u)}, {vr(WF+12+4*u)}, {vr(H+4*s)}, {vr(ACC+12+4*u)}")
        if s == 6:
            k.stamp(8)
        if s == 8:
            def cs():
                k(f"""v_and_b32 v3, 15, v1
                      v_lshlrev_b32 v3, 2, v3
                      s_lshl_b32 s38, s31, 6
                      s_add_u32 s38, s38, {CSUM}
                      s_add_u32 s39, s38, {688*4}""")
                for p in range(2):
                    for u in range(3):
                        k(f"buffer_load_dword v{CS2+3*p+u}, v3, s[24:27], s39 offen offset:{64*u}")
                    k("s_add_u32 s39, s39, 8192")
                k("v_lshrrev_b32 v3, 4, v1\nv_lshlrev_b32 v3, 4, v3")
                for p in range(2):
                    for u in range(3):
                        k(f"buffer_load_dwordx4 {vr(CS1+12*p+4*u)}, v3, s[24:27], s38 offen offset:{64*u}")
                    k("s_add_u32 s38, s38, 8192")
            q.issue("cs", 12, cs)
        if s == 12:
            q.wait("st")
            k("""v_add_f32 v8, v8, v10
                 v_add_f32 v9, v9, v11
                 v_add_f32 v12, v12, v14
                 v_add_f32 v13, v13, v15
                 v_add_f32 v8, v8, v12
                 v_add_f32 v9, v9, v13""")
            xhalf_add(k, 8, 12); xhalf_add(k, 9, 13)
        if s == 13:
            x16_add(k, 8, 12); x16_add(k, 9, 13)
            ln_stats(k, 8, 9, 512, 12)
        if s == 15:
            for r in range(4):
                k(f"""v_add_u32 v12, {4*r}, v3
                      ds_bpermute_b32 v{MR+r}, v12, v8
                      ds_bpermute_b32 v{MR+4+r}, v12, v9""")
    k.stamp(9)
    klsig = """v_mov_b32 v12, 66560
               v_mov_b32 v13, 1
               s_mov_b64 exec, 1
               ds_add_u32 v12, v13
               s_mov_b64 exec, -1"""
    k("s_setprio 0")
    k(klsig if KLC else "s_barrier")
    T = 40; z2r = [ACC + i for i in range(12)]; z1r = [ACC + 12 + i for i in range(12)]
    k(f"""v_mov_b32 v15, {f32(GC2)}
          v_and_b32 v14, 15, v1
          s_waitcnt vmcnt(0)""")
    for u in range(3): k(f"v_add_f32 v{CS2+u}, v{CS2+u}, v{CS2+3+u}")
    k("s_waitcnt lgkmcnt(0)")
    for i, a in enumerate(z2r): k(f"v_fma_f32 v{a}, -v{MR+i%4}, v{CS2+i//4}, v{a}")
    for i, a in enumerate(z2r): k(f"v_mul_f32 v{a}, v{MR+4+i%4}, v{a}")
    for i, a in enumerate(z2r): k(f"v_mul_f32 v{T+i}, v{a}, v{a}")
    for i, a in enumerate(z2r): k(f"v_fmaak_f32 v{T+i}, v15, v{T+i}, {f32(GC1)}")
    for i, a in enumerate(z2r): k(f"v_mul_f32 v{T+i}, v{T+i}, v{a}")
    for i, a in enumerate(z2r): k(f"v_exp_f32 v{T+i}, v{T+i}")
    for i, a in enumerate(z2r): k(f"v_add_f32 v{T+i}, 1.0, v{T+i}")
    for i, a in enumerate(z2r): k(f"v_rcp_f32 v{T+i}, v{T+i}")
    for i, a in enumerate(z2r): k(f"v_mul_f32 v{a}, v{a}, v{T+i}")
    SQ = 52
    for r in range(4):
        k(f"v_mov_b32 v{SQ+2*r}, v{ACC+8+r}\nv_mul_f32 v{SQ+2*r+1}, v{ACC+8+r}, v{ACC+8+r}")
    k("""s_cmp_eq_u32 s30, 14
         s_cbranch_scc1 L_k4_red""")
    for u in range(2):
        for r in range(4):
            a = ACC + 4*u + r
            k(f"v_add_f32 v{SQ+2*r}, v{SQ+2*r}, v{a}\nv_fmac_f32 v{SQ+2*r+1}, v{a}, v{a}")
    k("s_nop 0\nL_k4_red:")
    for i in range(4): k(f"v_add_f32_dpp v{SQ+i}, v{SQ+i}, v{SQ+i} row_ror:8 row_mask:0xf bank_mask:0x3")
    for i in range(4): k(f"v_add_f32_dpp v{SQ+i}, v{SQ+4+i}, v{SQ+4+i} row_ror:8 row_mask:0xf bank_mask:0xc")
    for m_ in ("row_half_mirror", "quad_perm:[1,0,3,2]", "quad_perm:[2,3,0,1]"):
        for i in range(4): k(f"v_add_f32_dpp v{SQ+i}, v{SQ+i}, v{SQ+i} {m_} row_mask:0xf bank_mask:0xf")
    k(f"""s_mov_b32 s49, -2
          s_lshl_b32 s48, s30, 7
          s_add_u32 s48, s48, s47
          v_lshlrev_b32 v12, 1, v1           ; (l>>3)*16 for lanes l%8==0""")
    for j in range(4): k(f"v_min_u32 v{SQ+j}, s49, v{SQ+j}")
    k(f"""s_mov_b32 s50, 0x01010101
          s_mov_b32 s51, 0x01010101
          s_mov_b64 exec, s[50:51]""")
    hstore(k, f"buffer_store_dwordx4 {vr(SQ)}, v12, s[24:27], s48 offen")
    k("s_mov_b64 exec, -1")
    k.stamp(10)
    k(f"""v_mul_f32 v10, {f32(GC1)}, v9
          v_mul_f32 v11, v9, v9
          v_mul_f32 v11, v11, v9
          v_mul_f32 v11, {f32(GC2)}, v11
          v_rcp_f32 v13, v9""")
    for i in range(12): k(f"v_add_f32 v{CS1+i}, v{CS1+i}, v{CS1+12+i}")
    for i, a in enumerate(z1r): k(f"v_fma_f32 v{a}, -v8, v{CS1+i}, v{a}")
    for i, a in enumerate(z1r): k(f"v_mul_f32 v{T+i}, v{a}, v{a}")
    for i, a in enumerate(z1r): k(f"v_fma_f32 v{T+i}, v{T+i}, v11, v10")
    for i, a in enumerate(z1r): k(f"v_mul_f32 v{T+i}, v{T+i}, v{a}")
    for i, a in enumerate(z1r): k(f"v_exp_f32 v{T+i}, v{T+i}")
    for i, a in enumerate(z1r): k(f"v_fma_f32 v{T+i}, v{T+i}, v13, v13")
    for i, a in enumerate(z1r): k(f"v_rcp_f32 v{T+i}, v{T+i}")
    for i, a in enumerate(z1r): k(f"v_mul_f32 v{a}, v{a}, v{T+i}")
    k(f"""v_lshrrev_b32 v10, 4, v1           ; g
          v_and_b32 v11, 1, v10
          v_lshrrev_b32 v10, 1, v10
          v_lshlrev_b32 v12, 9, v11
          v_lshl_add_u32 v12, v14, 4, v12
          v_lshl_add_u32 v12, v10, 3, v12
          v_lshlrev_b32 v6, 9, v10
          v_lshl_add_u32 v6, v14, 4, v6
          v_lshl_add_u32 v6, v11, 3, v6
          s_lshr_b32 s44, s36, 1
          s_mul_i32 s44, s44, 44
          s_add_u32 s44, s44, s31
          s_lshl_b32 s44, s44, 10
          s_and_b32 s45, s36, 1
          s_lshl_b32 s45, s45, 8
          s_add_u32 s44, s44, s45
          s_add_u32 s44, s44, {Z1}
          s_mov_b32 s54, 0""")
    if W4:
        k(f"""v_lshlrev_b32 v4, 9, v11
              v_lshl_add_u32 v4, v14, 4, v4
              v_lshl_add_u32 v4, v10, 10, v4     ; z1 x4 voffset
              s_bitcmp1_b32 s31, 0
              s_cselect_b32 s45, {131072-256}, 64
              s_cselect_b32 s46, 0, 2
              s_lshl_b32 s45, s45, s46
              v_mul_lo_u32 v5, v11, s45
              v_lshl_add_u32 v5, v10, 9, v5
              v_lshl_add_u32 v5, v14, 4, v5      ; z2 x4 voffset""")
    def zpoll():
        for i in range(4):
            k(f"buffer_load_dwordx2 v[{72+2*i}:{73+2*i}], v7, s[24:27], s47 offen offset:{128*i} sc1")
    zpoll()
    for u in range(3):
        a = ACC + 12 + 4*u; p = 64 + 2*u
        k(f"""v_cvt_pk_bf16_f32 v{p}, v{a}, v{a+1}
              v_cvt_pk_bf16_f32 v{p+1}, v{a+2}, v{a+3}""")
        if not W4 or u == 2: k(f"buffer_store_dwordx2 v[{p}:{p+1}], v12, s[24:27], s44 offen offset:{1024*u} {ZSC}")
    if W4:
        k(f"""v_permlane32_swap_b32 v64, v66
              v_permlane32_swap_b32 v65, v67
              buffer_store_dwordx4 v[64:67], v4, s[24:27], s44 offen {ZSC}""")
    k(f"s_waitcnt vmcnt({2 if W4 else 3})\ns_branch L_k4_chk\nL_k4_poll:")
    zpoll()
    k(f"""s_waitcnt vmcnt(0)
          L_k4_chk:
          v_max3_u32 v12, v72, v73, v74
          v_max3_u32 v13, v75, v76, v77
          v_max3_u32 v12, v12, v78, v79
          v_max_u32 v12, v12, v13
          v_cmp_eq_u32 vcc, -1, v12
          s_add_u32 s54, s54, 1
          s_cmp_gt_u32 s54, 0x40000
          s_cbranch_scc1 L_k4_go
          s_cbranch_vccz L_k4_go
          s_sleep {SLEEP}
          s_branch L_k4_poll
          L_k4_go:""")
    k.stamp(11)
    k("""v_add_f32 v72, v72, v74
         v_add_f32 v73, v73, v75
         v_add_f32 v76, v76, v78
         v_add_f32 v77, v77, v79
         v_add_f32 v72, v72, v76
         v_add_f32 v73, v73, v77""")
    xhalf_add(k, 72, 12); xhalf_add(k, 73, 13)
    x16_add(k, 72, 12); x16_add(k, 73, 13)
    ln_stats(k, 72, 73, 688, 12)
    k("v_mul_f32 v72, -v72, v73")
    for r in range(4):
        k(f"""v_add_u32 v12, {4*r}, v3
              ds_bpermute_b32 v{MR+r}, v12, v72
              ds_bpermute_b32 v{MR+4+r}, v12, v73""")
    k(f"""s_lshl_b32 s45, s36, 10
          s_add_u32 s45, s45, {Z2F}
          s_waitcnt lgkmcnt(0)""")
    for i, a in enumerate(z2r): k(f"v_fma_f32 v{a}, v{a}, v{MR+4+i%4}, v{MR+i%4}")
    for u in range(3):
        a = ACC + 4*u; p = 80 + 2*u
        k(f"""s_add_u32 s44, s31, {u}
              s_lshr_b32 s46, s44, 1
              s_lshl_b32 s46, s46, 17
              s_and_b32 s44, s44, 1
              s_lshl_b32 s44, s44, 8
              s_add_u32 s44, s44, s46
              s_add_u32 s44, s44, s45
              v_cvt_pk_bf16_f32 v{p}, v{a}, v{a+1}
              v_cvt_pk_bf16_f32 v{p+1}, v{a+2}, v{a+3}""")
        if W4 and u == 0: k("s_mov_b32 s38, s44")
        if W4 and u == 1:
            k(f"""v_permlane16_swap_b32 v80, v82
                  v_permlane16_swap_b32 v81, v83
                  buffer_store_dwordx4 v[80:83], v5, s[24:27], s38 offen {ZSC}""")
        if not W4 or u == 2: k(f"buffer_store_dwordx2 v[{p}:{p+1}], v6, s[24:27], s44 offen {ZSC}")
    k("L_z_done:")
    AD, NS, WOL, XS6 = (3, 18, 0, 147456) if DEEP else (3, 6, 73728, 49152)
    ORD = [((p & 14) << 1) + (p & 1) + ((p >> 4) << 1) for p in range(32)] if PROG else list(range(32))
    ACC, BF, A = 16, 48, 80
    k(f"""s_load_dwordx2 s[6:7], s[0:1], 64
          s_load_dwordx2 s[10:11], s[0:1], 80
          s_mul_i32 s34, s57, 3
          s_min_u32 s34, s34, 19
          s_add_u32 s34, s34, s28
          s_lshl_b32 s62, s56, 12
          s_add_u32 s62, s62, {YFLAG}
          s_lshl_b32 s52, s34, 7
          s_add_u32 s52, s52, s62
          s_mul_i32 s53, s61, {11*128}
          s_add_u32 s62, s62, s53
          s_lshl_b32 s40, s34, 17
          s_add_u32 s41, s40, {Z2F}
          s_mov_b32 s40, s41
          s_mov_b32 s45, 0
          s_mul_i32 s39, s56, 88
          s_lshl_b32 s42, s34, 1
          s_add_u32 s39, s39, s42
          s_lshl_b32 s39, s39, 10
          v_and_b32 v15, 31, v1
          v_lshlrev_b32 v12, 1, v15
          s_lshl_b32 s43, s56, 7
          s_waitcnt vmcnt(0) lgkmcnt(0)
          s_barrier""")
    k.stamp(12)
    if os.environ.get("STW"): k.stamp = lambda i, real=False: None if i < 13 else Kern.stamp(k, i, real)
    k(f"""s_cmp_lt_u32 s28, 3
          s_cbranch_scc1 L_k5_comp
          s_cmp_eq_u32 s28, 3
          s_cbranch_scc0 L_k5_idle
          s_lshl_b32 s44, s29, 4
          s_add_u32 s44, s44, s30
          s_lshl_b32 s44, s44, 7
          s_add_u32 s44, s44, {XIDC}""")
    set_flagN(k, "s44", drain=False, fast=False)
    k(f"""s_lshl_b32 s44, s57, 1
          s_min_u32 s44, s44, 12
          s_lshl_b32 s44, s44, 7
          s_add_u32 s44, s44, {XIDC}
          v_and_b32 v15, 7, v1
          v_lshlrev_b32 v15, 12, v15
          v_lshrrev_b32 v12, 3, v1
          v_min_u32 v12, 2, v12
          v_lshl_add_u32 v15, v12, 7, v15""")
    pollN(k, "s44", "z", sl=ZSL, pre=ZPRE)
    k("s_barrier\n" * (6 if PROG else 0) + "s_add_u32 s44, s44, 2048")
    pollN(k, "s44", "z2")
    k(f"""s_mov_b32 s55, {6 if PROG else 0}
          s_branch L_k5_ib
          L_k5_idle:""")
    k(f"""s_mov_b32 s55, 0
          L_k5_ib:
          s_barrier
          s_add_u32 s55, s55, 1""")
    if PTY:
        k(f"""s_cmp_eq_u32 s55, {PTY}
              s_cbranch_scc0 L_k5_i2
              s_cmp_eq_u32 s28, 4
              s_cbranch_scc0 L_k5_i2
              s_sub_u32 s44, s39, 8192
              s_add_u32 s44, s44, {YF}
              s_add_u32 s45, s44, {44*1024}
              s_cmp_eq_u32 s57, 7
              s_cselect_b32 s46, 32, 0
              v_min_u32 v12, 47, v1
              v_max_u32 v12, s46, v12
              v_lshlrev_b32 v12, 7, v12
              buffer_load_dword v127, v12, s[24:27], s44 offen
              buffer_load_dword v127, v12, s[24:27], s45 offen
              L_k5_i2:""")
    k(f"""
          s_cmp_lt_u32 s55, {18 if DEEP else 17}
          s_cbranch_scc1 L_k5_ib
          s_branch L_k6""")
    k("L_k5_comp:")
    srd(k, 20, 6, 7, 4096)
    k(f"""buffer_load_ushort v8, v12, s[20:23], s43 offen
          buffer_load_ushort v9, v12, s[20:23], s43 offen offset:64
          v_lshrrev_b32 v13, 1, v15
          v_and_b32 v13, 7, v13
          v_lshlrev_b32 v12, 7, v15
          v_lshrrev_b32 v10, 5, v1""")
    for qq in range(4):
        k(f"""v_add_u32 v14, {2*qq}, v10
              v_xor_b32 v14, v14, v13
              v_lshl_add_u32 v{4+qq}, v14, 4, v12""")
    k(f"""s_cmp_eq_u32 s34, 21
          s_cselect_b32 s44, {0x3ff & ~256}, -1
          v_and_b32 v3, s44, v2
          s_mov_b32 s55, 0
          s_mov_b32 s54, 49152
          s_waitcnt vmcnt(0)
          v_lshlrev_b32 v8, 16, v8
          v_lshlrev_b32 v9, 16, v9""")
    for r in range(16): k(f"v_mov_b32 v{ACC+r}, v8\nv_mov_b32 v{ACC+16+r}, v9")
    k("s_barrier")
    k.stamp(13 if False else 8)
    for i in range(AD):
        for j in range(4):
            k(f"buffer_load_dwordx4 {vr(A+16*i+4*j)}, v3, s[24:27], s40 offen offset:{1024*j}")
        k(f"s_add_u32 s40, s40, {(ORD[i+1]-ORD[i])*4096}")
    k(f"s_add_u32 s41, s41, 8192\ns_add_u32 s45, s39, {Z1}")
    def breads(half, slotoff):
        for j in range(2):
            for th in range(2):
                k(f"ds_read_b128 {vr(BF+16*half+8*j+4*th)}, v{4+2*half+j} offset:{slotoff+4096*th}")
    def mf(half, slot, ld):
        for j in range(2):
            for th in range(2):
                k(f"v_mfma_f32_32x32x16_bf16 {vr(ACC+16*th,16)}, {vr(A+16*slot+8*half+4*j)}, {vr(BF+16*half+8*j+4*th)}, {vr(ACC+16*th,16)}")
            if ld: ld(2*half + j)
    def ald(slot): return lambda jj: k(f"buffer_load_dwordx4 {vr(A+16*slot+4*jj)}, v3, s[24:27], s40 offen offset:{1024*jj}")
    k("s_barrier")
    breads(0, 0)
    k("L_k5_loop:")
    for i in range(6):
        sl = i % AD
        breads(1, i * 8192)
        k(f"s_waitcnt vmcnt({4*AD-2}) lgkmcnt(4)")
        mf(0, sl, ald(sl))
        if i & 1:
            if DEEP and i == 5:
                k(f"""s_cmp_eq_u32 s55, 3
                      s_cselect_b32 s44, {-98304 & 0xffffffff:#x}, s54""")
                for qq in range(4): k(f"v_add_u32 v{4+qq}, s44, v{4+qq}")
            k(f"s_waitcnt vmcnt({4*AD-2}) lgkmcnt(0)\ns_barrier")
            breads(0, ((i + 1) % 6) * 8192)
        else:
            breads(0, (i + 1) * 8192)
            k(f"s_waitcnt vmcnt({4*AD-2}) lgkmcnt(4)")
        mf(1, sl, ald(sl))
        k(f"s_add_u32 s40, s40, {12288 if i % 2 == 0 else 4096}" if PROG else "s_add_u32 s40, s40, 4096")
        if i == 0 and PROG:
            k(f"""s_cmp_eq_u32 s55, 2
                  s_cselect_b32 s40, s41, s40""")
        if i == 4:
            k(f"""s_add_u32 s55, s55, 1
                  s_cmp_eq_u32 s55, 5
                  s_cselect_b32 s40, s45, s40
                  s_cselect_b32 s44, -1, 0
                  v_and_or_b32 v3, s44, v2, v3""")
    k("""s_cmp_lt_u32 s55, 5
         s_cbranch_scc1 L_k5_loop""")
    k(f"s_add_u32 s43, s39, {Z1 + 44*1024}")
    breads(1, 0)
    k("s_waitcnt vmcnt(10) lgkmcnt(4)")
    mf(0, 0, lambda jj: k(f"buffer_load_dwordx4 {vr(A+4*jj)}, v2, s[24:27], s43 offen offset:{1024*jj}"))
    breads(0, 8192)
    k("s_waitcnt vmcnt(10) lgkmcnt(4)")
    mf(1, 0, None)
    breads(1, 8192)
    k("s_waitcnt vmcnt(8) lgkmcnt(4)")
    mf(0, 1, None)
    k("s_waitcnt vmcnt(6) lgkmcnt(0)")
    mf(1, 1, None)
    k.stamp(9)
    k("""s_cmp_eq_u32 s57, 7
         s_cselect_b32 s44, 2, 0
         s_cmp_lt_u32 s28, s44
         s_cbranch_scc1 L_k6_exit""")
    Zs = [A + 32 + i for i in range(8)] + [A + i for i in range(8)]
    k(f"""s_add_u32 s42, s39, {YF}
          s_add_u32 s43, s42, {44*1024}
          s_waitcnt vmcnt(0)""")
    for i in range(16):
        k(f"""v_lshlrev_b32 v{48+2*i}, 16, v{Zs[i]}
              v_and_b32 v{49+2*i}, 0xffff0000, v{Zs[i]}""")
    for i in range(32): k(f"v_mul_f32 v{ACC+i}, v{ACC+i}, v{48+i}")
    for i in range(16): k(f"v_cvt_pk_bf16_f32 v{A+i}, v{ACC+2*i}, v{ACC+2*i+1}")
    dstore(k, [f"buffer_store_dwordx4 {vr(A+8*th+4*f)}, v2, s[24:27], {'s43' if th else 's42'} offen offset:{1024*f}" for th in range(2) for f in range(2)])
    if DEEP: k("s_barrier")
    set_flagN(k, "s52")
    k.stamp(10)
    k("s_endpgm")
    k(f"""L_k6:
          s_cmp_eq_u32 s28, 3
          s_cbranch_scc1 L_k6_exit
          s_load_dwordx2 s[10:11], s[0:1], 80
          s_lshr_b32 s61, s28, 3           ; kh
          s_sub_u32 s48, s28, 4
          s_lshl_b32 s62, s56, 12
          s_add_u32 s62, s62, {YFLAG}
          s_mul_i32 s53, s61, {11*128}
          s_add_u32 s62, s62, s53""")
    lane_fields(k)
    k(f"""s_lshl_b32 s36, s56, 2
          s_add_u32 s36, s36, s3           ; rb16
          s_lshl_b32 s37, s57, 1
          s_add_u32 s37, s37, s61
          s_lshl_b32 s47, s36, 4
          s_add_u32 s47, s47, s37
          s_lshl_b32 s47, s47, 10
          s_add_u32 s47, s47, {HF}
          buffer_load_dwordx4 v[112:115], v2, s[24:27], s47 offen
          s_mul_i32 s45, s61, {11*1024}
          s_add_u32 s45, s45, {WOL}
          v_add_u32 v4, s45, v2
          v_add_u32 v5, {2*22528}, v4""")
    act32_voff(k, 3, "s32")
    k(f"""s_lshr_b32 s46, s36, 1
          s_mul_i32 s46, s46, {44*1024}
          s_mul_i32 s47, s61, {22*1024}
          s_add_u32 s46, s46, s47
          s_add_u32 s46, s46, {YF}
          s_cmp_eq_u32 s61, 0
          s_cselect_b32 s49, -1, 0
          s_waitcnt lgkmcnt(0)""")
    srd(k, 16, 10, 11, 2048 * 1024)
    for r in range(16): k(f"v_mov_b32 v{16+r}, 0")
    for r in range(4): k(f"v_mov_b32 v{64+40+r}, 0")
    woff = lambda s, u: (4 + (u >> 1), (u & 1) * 22528 + s * 1024)
    if WOT != 'tail' and not DEEP: gemm64_reads(k, 0, woff)
    pollN(k, "s62", "y", 11)
    k.stamp(11)
    for s in range(11):
        if s % 2 == 0: k(f"s_add_u32 s47, s46, {s*2048}")
        if s == 10: k("s_mov_b32 exec_hi, s49")
        k(f"buffer_load_dwordx4 {vr(64+4*s)}, v3, s[24:27], s47 offen offset:{2048*(s&1)}")
    k("s_mov_b32 exec_hi, -1")
    if WOT == 'tail' or DEEP:
        k("s_barrier")
        gemm64_reads(k, 0, woff)
    k.stamp(8)
    if STAMPS: k("s_waitcnt vmcnt(10)")
    k.stamp(7)
    gemm64(k, 11, woff, 64)
    k.stamp(9)
    ksplit_exchange(k, XS6, "s48", tag="c")
    k.stamp(10)
    for i in range(4):
        k(f"""v_lshlrev_b32 v{40+2*i}, 16, v{112+i}
              v_and_b32 v{41+2*i}, 0xffff0000, v{112+i}""")
    for i in range(8): k(f"v_add_f32 v{16+i}, v{16+i}, v{40+i}")
    k(f"""v_and_b32 v12, 15, v1
          v_lshlrev_b32 v12, 10, v12
          v_and_b32 v13, 1, v8
          v_lshl_add_u32 v12, v13, 5, v12
          v_lshl_add_u32 v12, v9, 4, v12
          s_lshl_b32 s46, s36, 14
          s_lshl_b32 s47, s37, 6
          s_add_u32 s46, s46, s47
          s_waitcnt lgkmcnt(0)""")
    for i in range(8): k(f"v_add_f32 v{16+i}, v{16+i}, v{32+i}")
    for i in range(4): k(f"v_cvt_pk_bf16_f32 v{48+i}, v{16+2*i}, v{17+2*i}")
    k("""v_permlane16_swap_b32 v48, v50
         v_permlane16_swap_b32 v49, v51
         buffer_store_dwordx4 v[48:51], v12, s[16:19], s46 offen
         L_k6_exit:
         s_endpgm""")
    k(f"""L_kb_loader:
          s_and_b32 s31, s29, 1
          s_lshl_b32 s31, s31, 3
          s_add_u32 s30, s30, s31          ; g
          s_mul_i32 s31, s30, 3
          s_min_u32 s31, s31, 40           ; u0
          s_lshl_b32 s40, s31, 14
          s_lshl_b32 s38, s3, 12
          s_add_u32 s41, s40, s38
          s_add_u32 s41, s41, {WPK + 43*16384 + 32768}
          s_mul_i32 s38, s3, 9216
          s_add_u32 s40, s40, s38
          s_add_u32 s40, s40, {WPK + 12*1024}
          s_lshl_b32 s42, s3, 15
          s_add_u32 m0, s42, 24576
          s_mul_i32 s38, s3, 5120""")
    k("s_barrier")
    if OLB: k("s_barrier")
    for j in range(4): k(f"buffer_load_dwordx4 v2, s[24:27], s41 offen offset:{1024*j} lds")
    if not P1:
        k("""s_mul_i32 s43, s3, 4096
             s_add_u32 s41, s41, s43
             s_sub_u32 s41, s41, 32768""")
        for h_ in range(2):
            k(f"s_add_u32 m0, s42, {16384 + 4096*h_}")
            for j in range(4): k(f"buffer_load_dwordx4 v2, s[24:27], s41 offen offset:{1024*j} lds")
            k("s_add_u32 s41, s41, 4096")
    k("s_add_u32 m0, s42, 28672")
    for j in range(4): k(f"buffer_load_dwordx4 v2, s[24:27], s40 offen offset:{1024*j} lds")
    k(f"s_add_u32 m0, s38, {128*1024}\ns_add_u32 s40, s40, 4096")
    for j in range(4): k(f"buffer_load_dwordx4 v2, s[24:27], s40 offen offset:{1024*j} lds")
    k(f"s_add_u32 m0, s38, {128*1024+4096}\ns_add_u32 s40, s40, 4096\nbuffer_load_dwordx4 v2, s[24:27], s40 offen lds")
    k.stamp(3)
    k(f"""s_load_dwordx2 s[16:17], s[0:1], 56
          s_lshl_b32 s35, s56, 6
          s_lshl_b32 s36, s3, 4
          s_add_u32 s35, s35, s36
          v_lshrrev_b32 v12, 3, v1
          v_add_u32 v5, s35, v12
          v_lshlrev_b32 v5, 12, v5
          v_and_b32 v13, 7, v1
          v_lshrrev_b32 v14, 4, v1
          v_xor_b32 v14, v13, v14
          v_lshl_add_u32 v5, v14, 4, v5
          v_xor_b32 v6, 64, v5
          v_add_u32 v6, {8*4096}, v6
          s_lshl_b32 s37, s3, 11
          s_lshl_b32 s36, s57, 2
          s_add_u32 s36, s36, s3
          s_mul_i32 s36, s36, 24576
          s_add_u32 s36, s36, {WUP}
          s_mul_i32 s35, s3, 22528
          s_add_u32 s35, s35, {WOL}
          s_mov_b32 s18, {2048*4096}
          s_mov_b32 s19, 0x00020000
          s_waitcnt {'' if OLB else 'vmcnt(0)'} lgkmcnt(0)""")
    k.stamp(4)
    k("s_barrier\ns_barrier")
    if OLB: k("s_waitcnt vmcnt(0)\ns_barrier")
    if KLC:
        k("""v_mov_b32 v12, 66560
             s_mov_b32 s60, 0
             L_ld_kl:
             ds_read_b32 v13, v12
             s_add_u32 s60, s60, 1
             s_waitcnt lgkmcnt(0)
             v_readfirstlane_b32 s43, v13
             s_cmp_gt_u32 s60, 0x400000
             s_cbranch_scc1 L_ld_klok
             s_cmp_ge_u32 s43, 8
             s_cbranch_scc1 L_ld_klok
             s_sleep 2
             s_branch L_ld_kl
             L_ld_klok:
             """)
    else: k("s_barrier")
    q = VQ(k)
    def bi(c):
        q.issue(f"b{c}", 2, lambda: k(f"""s_add_u32 m0, s37, {(c % NS)*8192}
              s_movk_i32 s41, {ORD[c]*128}
              buffer_load_dwordx4 v5, s[16:19], s41 offen lds
              s_add_u32 m0, s37, {(c % NS)*8192 + 1024}
              buffer_load_dwordx4 v6, s[16:19], s41 offen lds"""))
    def wi(c):
        q.issue(f"w{c}", 2, lambda: k(f"""s_add_u32 m0, s35, {c*2048}
              s_add_u32 s39, s36, {c*2048}
              buffer_load_dwordx4 v2, s[24:27], s39 offen lds
              {'s_sleep %d' % WSL2 if WSL2 else ''}
              buffer_load_dwordx4 v2, s[24:27], s39 offen offset:1024 lds
              {'s_sleep %d' % WSL2 if WSL2 else ''}"""))
    if WOT == 'kl':
        for c in range(11): wi(c)
    nxt = 0
    for _ in range(RP): bi(nxt); nxt += 1
    k.stamp(5)
    k("s_barrier")
    while nxt < (DEEP if DEEP else NS): bi(nxt); nxt += 1
    if WOT == 'zb' and not DEEP:
        for c in range(11): wi(c)
    k("s_barrier")
    for b in range(16):
        q.wait(f"b{2*b+1}"); k("s_barrier")
        n_ = 0
        while nxt < 32 and nxt - NS <= 2*b - 1 and (not DEEP or n_ < 1 or nxt < 2*b + 8): bi(nxt); nxt += 1; n_ += 1
    assert nxt == 32
    if DEEP:
        k("s_barrier")
        for c in range(11): wi(c)
    k("s_branch L_k6")
    k(f"L_{k.name}_end:\ns_endpgm")
    return k, (256, 1024, 163840)
```

```python
from common import *

def w128_dma_voff(k, vdst, t1, t2):
    k(f"""v_lshrrev_b32 v{vdst}, 3, v1
          v_lshlrev_b32 v{vdst}, 10, v{vdst}
          v_lshrrev_b32 v{t1}, 4, v1
          v_lshlrev_b32 v{t1}, 1, v{t1}
          v_and_b32 v{t2}, 7, v1
          v_xor_b32 v{t1}, v{t1}, v{t2}
          v_lshl_add_u32 v{vdst}, v{t1}, 4, v{vdst}""")

def w128_tr_bases(k, vb, base):
    k(f"""v_lshrrev_b32 v12, 1, v8
          v_lshlrev_b32 v{vb}, 4, v12
          v_and_b32 v13, 1, v8
          v_lshl_add_u32 v{vb}, v13, 2, v{vb}
          v_add_u32 v{vb}, v{vb}, v10
          v_lshlrev_b32 v{vb}, 7, v{vb}
          v_lshl_add_u32 v{vb}, v11, 3, v{vb}
          v_lshrrev_b32 v12, 1, v10
          v_lshl_add_u32 v12, v13, 1, v12      ; f = 2*(g&1)+(r>>1)
          v_lshl_add_u32 v{vb}, v12, 5, v{vb}
          v_add_u32 v{vb}, {base}, v{vb}""")
    for u in range(1, 4):
        k(f"v_xor_b32 v{vb+u}, {32*u}, v{vb}")

def act32_voff(k, vdst, srh16):
    k(f"""v_lshrrev_b32 v12, 1, v8
          v_lshlrev_b32 v{vdst}, 10, v12
          v_and_b32 v12, 1, v8
          v_lshl_add_u32 v{vdst}, v12, 9, v{vdst}
          v_and_b32 v12, 15, v1
          v_lshl_add_u32 v{vdst}, v12, 4, v{vdst}
          s_lshl_b32 s60, {srh16}, 8
          v_add_u32 v{vdst}, s60, v{vdst}""")

def gemm64_reads(k, s, woff, WF=32):
    b = WF + 16 * (s & 1)
    for u in range(4):
        vb, o = woff(s, u)
        k(f"ds_read_b128 {vr(b+4*u)}, v{vb} offset:{o}")

def gemm64(k, nsteps, woff, ACT, ACC=16, WF=32, vleft=0):
    if int(os.environ.get("ILV", 1)):
        gemm64_reads(k, 1, woff, WF)
        for s in range(nsteps):
            b = WF + 16 * (s & 1)
            for u in range(4):
                left = (7 if s + 2 < nsteps else (7 - u if s + 1 < nsteps else 3 - u))
                k(f"s_waitcnt vmcnt({nsteps-1-s+vleft}) lgkmcnt({left})" if u == 0 else f"s_waitcnt lgkmcnt({left})")
                k(f"v_mfma_f32_16x16x32_bf16 {vr(ACC+4*u)}, {vr(b+4*u)}, {vr(ACT+4*s)}, {vr(ACC+4*u)}")
                if s + 2 < nsteps:
                    vb, o = woff(s + 2, u)
                    k(f"ds_read_b128 {vr(b+4*u)}, v{vb} offset:{o}")
        return
    for s in range(nsteps):
        if s + 1 < nsteps:
            gemm64_reads(k, s + 1, woff, WF)
            k(f"s_waitcnt vmcnt({nsteps-1-s+vleft}) lgkmcnt(4)")
        else:
            k(f"s_waitcnt vmcnt({vleft}) lgkmcnt(0)")
        b = WF + 16 * (s & 1)
        for u in range(4):
            k(f"v_mfma_f32_16x16x32_bf16 {vr(ACC+4*u)}, {vr(b+4*u)}, {vr(ACT+4*s)}, {vr(ACC+4*u)}")

def ksplit_exchange(k, xbase, swave, ACC=16, T=32, tag="x"):
    k(f"""s_lshl_b32 s60, {swave}, 11
          s_add_u32 s60, s60, {xbase}
          v_add_u32 v12, s60, v2
          s_xor_b32 s60, s60, 8192
          v_add_u32 v13, s60, v2
          s_cmp_eq_u32 s61, 0
          s_cbranch_scc0 L_ex1_{tag}
          ds_write_b128 v12, {vr(ACC+8)}
          ds_write_b128 v12, {vr(ACC+12)} offset:1024
          s_branch L_ex2_{tag}
          L_ex1_{tag}:
          ds_write_b128 v12, {vr(ACC)}
          ds_write_b128 v12, {vr(ACC+4)} offset:1024""")
    for i in range(8): k(f"v_mov_b32 v{ACC+i}, v{ACC+8+i}")
    k(f"""L_ex2_{tag}:
          s_waitcnt lgkmcnt(0)
          s_barrier
          ds_read_b128 {vr(T)}, v13
          ds_read_b128 {vr(T+4)}, v13 offset:1024""")

def gemm64x2(k, nsteps, woff, ald, ACT, R, ACC=16, WF=48, pre=0):
    q = VQ(k)
    for s in range(min(R, nsteps)):
        for rt in range(2): q.issue(f"a{s}_{rt}", 1, lambda: ald(s, rt))
    for s in range(nsteps):
        if s + 1 < nsteps:
            gemm64_reads(k, s + 1, woff, WF)
            q.wait(f"a{s}_1", extra=" lgkmcnt(4)")
        else:
            q.wait(f"a{s}_1", extra=" lgkmcnt(0)")
        b = WF + 16 * (s & 1); n_ = s - 1 + R
        for rt in range(2):
            for u in range(4):
                a = ACC + 16*rt + 4*u
                k(f"v_mfma_f32_16x16x32_bf16 {vr(a)}, {vr(b+4*u)}, {vr(ACT+8*(s%R)+4*rt)}, {vr(a)}")
                if u == 1 and s >= 1 and n_ < nsteps: q.issue(f"a{n_}_{rt}", 1, lambda: ald(n_, rt))

def ksplit_exchange2(k, xbase, ACC=16, T=48, tag="x"):
    k(f"""s_lshl_b32 s60, s3, 12
          s_add_u32 s60, s60, {xbase}
          v_add_u32 v12, s60, v2
          s_xor_b32 s60, s60, 8192
          v_add_u32 v13, s60, v2
          s_cmp_eq_u32 s61, 0
          s_cbranch_scc0 L_ex1_{tag}""")
    for rt in range(2):
        for j in range(2): k(f"ds_write_b128 v12, {vr(ACC+16*rt+8+4*j)} offset:{2048*rt+1024*j}")
    k(f"s_branch L_ex2_{tag}\nL_ex1_{tag}:")
    for rt in range(2):
        for j in range(2): k(f"ds_write_b128 v12, {vr(ACC+16*rt+4*j)} offset:{2048*rt+1024*j}")
    for rt in range(2):
        for i in range(8): k(f"v_mov_b32 v{ACC+16*rt+i}, v{ACC+16*rt+8+i}")
    k(f"""L_ex2_{tag}:
          s_waitcnt lgkmcnt(0)
          s_barrier""")
    for j in range(4): k(f"ds_read_b128 {vr(T+4*j)}, v13 offset:{1024*j}")
```

```python
from common import *
from k3 import *
from g16 import *
from k4 import GC1, GC2
import os
LSC = os.environ.get('LSC', 'sc1')
MAPC = int(os.environ.get('MAPC', 0))
ZSC = os.environ.get('ZSC', 'sc1')
PT = int(os.environ.get('PT', 0))
HW = int(os.environ.get('HW', 6))
PF2 = int(os.environ.get('PF2', 1))
WSL = int(os.environ.get('WSL', 1))
WSL2 = int(os.environ.get('WSL2', 0))
KVROT = int(os.environ.get('KVROT', 1))
WOT = os.environ.get('WOT', 'zb')
RP = int(os.environ.get('RP', 2))
PROG = int(os.environ.get('PROG', 1))
WB = int(os.environ.get('WB', 28))
PRIO = int(os.environ.get('K2_PRIO', 1))
PFQ = int(os.environ.get('PFQ', 1))
TLBW = int(os.environ.get('TLBW', 0))
OLB = int(os.environ.get('OLB', 0))
WPR = int(os.environ.get('WPR', 0))
EPB = int(os.environ.get('EPB', 0))
ZSL = int(os.environ.get('ZSL', 2))
ZPRE = int(os.environ.get('ZPRE', 0))
KSL = int(os.environ.get('KSL', 2))
KSTR = int(os.environ.get('KSTR', 4))
C0 = int(os.environ.get('C0', 0))
SCH = int(os.environ.get('SCH', 0))
SMF = int(os.environ.get('SMF', 3))
P1 = int(os.environ.get('P1', 1))
PFO = int(os.environ.get('PFO', 0))
PTY = int(os.environ.get('PTY', 0))
KLC = int(os.environ.get('KLC', 1))
DEEP = int(os.environ.get('DEEP', 0))
NOM2 = int(os.environ.get('NOM2', 0))
W4 = int(os.environ.get('W4', 1))
KV3 = int(os.environ.get('KV3', 1))
ILV = int(os.environ.get('ILV', 1))
PFM = int(os.environ.get('PFM', 15))
PFSC = os.environ.get('PFSC', '')

FUSEC = int(os.environ.get('FUSEC', 1))
DSC = int(os.environ.get('DSC', 1))
def dstore(k, instrs):
    if not DSC: return hstore(k, instrs)
    for i in ([instrs] if isinstance(instrs, str) else instrs): k(i + " sc1")

def build_kall():
    k = Kern("sequential_preLN__grouped_kv_mqa__mixer_gmlp__prompt_kernel", nvgpr=128)
    NW = 16
    KL, VL, XL = 0, 65536, 131072
    Q = 4; KFR = 8; VFR = [[12, 16], [20, 24]]; P = 28; S = [36, 52]; O = 68; C = 84
    vK, vV = 100, 101
    NCH, NIT = 4, 8
    prologue_ids(k, 256)
    k("""s_load_dwordx8 s[4:11], s[0:1], 0
         s_load_dwordx4 s[12:15], s[0:1], 88""")
    k("""s_and_b32 s29, s2, 7
         s_lshr_b32 s30, s2, 3
         s_lshl_b32 s29, s29, 2
         s_lshr_b32 s31, s30, 3
         s_add_u32 s29, s29, s31          ; rb64
         s_and_b32 s30, s30, 7            ; cg
         s_and_b32 s3, s28, 3
         s_and_b32 s32, s28, 1            ; rh
         s_mov_b32 s56, s29
         s_mov_b32 s57, s30""")
    XL0, WL0, KVL, SX, QL = 0, 65536, 131072, 147456, 131072
    CSX = SX + 1024
    FASTW, CNT = 146 * 1024 + 512, 146 * 1024 + 576
    k("""s_lshl_b32 s46, s31, 1
         s_add_u32 s46, s46, s30
         s_and_b32 s46, s46, 7
         s_lshr_b32 s33, s3, 1            ; ch
         s_mov_b32 s62, 0
         s_mov_b32 s20, 0
         s_mov_b32 s21, 0
         s_mov_b32 s22, 0
         s_mov_b32 s23, 0x00020000
         v_mov_b32 v108, 0
         v_mov_b32 v109, 0
         v_mov_b32 v113, 0
         v_lshlrev_b32 v2, 4, v1""")
    lane_fields(k)
    k(f"""s_cmp_ge_u32 s28, 12
          s_cbranch_scc1 L_p0_st
          s_cmp_ge_u32 s28, 8
          s_cbranch_scc1 L_p0_q
          s_cmp_eq_u32 s28, 2
          s_cbranch_scc1 L_p0_kv
          s_cmp_eq_u32 s28, 3
          s_cbranch_scc1 L_p0_n
          s_cmp_lt_u32 s28, 2
          s_cbranch_scc1 L_p0_pack""")
    def att_ids():
        k(f"""s_and_b32 s38, s28, 7            ; q idx
              s_lshr_b32 s39, s28, 3
              s_lshl_b32 s44, s39, 15          ; half*32768
              s_lshl_b32 s47, s38, 10
              s_add_u32 s47, s47, s44
              v_add_u32 v3, s47, v2""")
    def kvdma(c):
        k(f"""s_add_u32 m0, s47, {KL + 8192*c}
              s_add_u32 s34, s57, {c}
              s_and_b32 s34, s34, {3 if KVROT else 0}
              s_lshl_b32 s34, s34, 13
              s_add_u32 s34, s34, {KF + (0 if KVROT else 8192*c)}
              s_add_u32 s35, s34, {VF - KF}
              buffer_load_dwordx4 v3, s[24:27], s34 offen lds
              s_add_u32 m0, s47, {VL + 8192*c}
              buffer_load_dwordx4 v3, s[24:27], s35 offen lds""")
    def att_init():
        k(f"""s_lshl_b32 s33, s29, 1
              s_add_u32 s33, s33, s32
              s_lshl_b32 s33, s33, 5
              s_lshl_b32 s34, s30, 2
              s_add_u32 s33, s33, s34
              s_lshr_b32 s34, s38, 1
              s_add_u32 s33, s33, s34
              s_lshl_b32 s46, s33, 10
              s_lshl_b32 s34, s38, 10
              s_add_u32 s34, s34, {QL}
              v_add_u32 v102, s34, v2
              v_mov_b32 v112, 0
              s_lshr_b32 s63, s29, 1
              s_lshl_b32 s63, s63, 11
              s_add_u32 s63, s63, {XID}
              v_add_u32 v{vK}, s44, v2
              v_lshrrev_b32 v103, 5, v1
              v_and_b32 v106, 15, v1
              v_lshl_add_u32 v103, v103, 4, v106
              v_lshlrev_b32 v103, 4, v103
              v_add_u32 v103, s44, v103
              v_add_u32 v{vV}, {VL}, v103
              v_mov_b32 v103, {SX + 768}
              s_mov_b32 s40, 0x0000ffff
              s_mov_b32 s41, 0x0000ffff
              v_and_b32 v106, 31, v1
              v_cmp_eq_u32 vcc, 16, v106
              v_mov_b32 v107, 0x3f803f80
              v_cndmask_b32 v107, 0, v107, vcc
              s_mov_b32 s42, 1
              s_mov_b32 s36, 0
              s_movk_i32 s31, {0x56 if PRIO == 3 else 0x52}
              s_cmp_eq_u32 s28, 4
              s_cselect_b32 s31, {0x5e if PRIO == 3 else 0x5a}, s31
              s_cmp_lg_u32 s62, 0
              s_cselect_b32 s31, {0x5e if PRIO == 3 else 0x5a}, s31
              v_mov_b32 v118, {CNT}
              v_mov_b32 v119, 1""")
        for i in range(16): k(f"v_mov_b32 v{12+i}, v107")
        for i in range(16): k(f"v_mov_b32 v{O+i}, 0")
        if SMF:
            k(f"v_mov_b32 v{P}, 0xdddddddd")
            for i in range(8): k(f"v_mov_b32 v{S[1]+8+i}, 0")
        k(f"v_mov_b32 v107, {f32(3500.0)}")
    k(f"""s_lshl_b32 s34, s29, 6
          s_lshl_b32 s35, s3, 4
          s_add_u32 s34, s34, s35
          v_lshrrev_b32 v12, 3, v1
          v_add_u32 v6, s34, v12
          v_lshlrev_b32 v6, 10, v6
          v_and_b32 v13, 7, v1
          v_xor_b32 v14, v13, v8
          v_lshl_add_u32 v6, v14, 4, v6
          v_xor_b32 v7, 64, v6
          v_add_u32 v7, 8192, v7
          s_lshl_b32 s36, s30, 7
          s_lshl_b32 s37, s3, 11
          s_mov_b32 s45, s46""")
    wt_dma_addr(k, 4, 5, "s35", "s36")
    k("s_waitcnt lgkmcnt(0)")
    srd(k, 16, 4, 5, 2048 * 1024); srd(k, 20, 6, 7, 512 * 1024); srd(k, 24, 14, 15, WS_USED)
    q = VQ(k)
    def xi(c):
        q.issue(f"x{c}", 2, lambda: k(f"""s_add_u32 m0, s37, {XL0 + c*8192}
              s_lshl_b32 s38, s46, 7
              s_add_u32 s46, s46, 1
              buffer_load_dwordx4 v6, s[16:19], s38 offen lds
              s_add_u32 m0, s37, {XL0 + c*8192 + 1024}
              s_and_b32 s46, s46, 7
              buffer_load_dwordx4 v7, s[16:19], s38 offen lds"""))
    def wqi(c):
        q.issue(f"w{c}", 2, lambda: k(f"""s_add_u32 m0, s37, {WL0 + c*8192}
              s_lshl_b32 s38, s45, 16
              s_add_u32 s45, s45, 1
              buffer_load_dwordx4 v4, s[20:23], s38 offen lds
              s_add_u32 m0, s37, {WL0 + c*8192 + 1024}
              s_and_b32 s45, s45, 7
              buffer_load_dwordx4 v5, s[20:23], s38 offen lds"""))
    for c in range(6): xi(c)
    k.stamp(2); q.wait("x1"); k.stamp(3); k("s_barrier"); k.stamp(4)
    xi(6); xi(7); wqi(0); wqi(1)
    q.wait("x3"); k("s_barrier")
    wqi(2); wqi(3); wqi(4)
    q.wait("x5"); k("s_barrier")
    wqi(5); wqi(6); wqi(7)
    q.wait("x7"); k.stamp(5); k("s_barrier\ns_barrier")
    for i in range(4):
        q.wait(f"w{2*i+1}"); k("s_barrier")
    k.stamp(6)
    k("s_branch L_att")
    k(f"""L_p0_q:
          v_mov_b32 v64, 0x3f803f80
          v_mov_b32 v65, 0x3f803f80
          v_mov_b32 v66, 0x3f803f80
          v_mov_b32 v67, 0x3f803f80
          v_lshl_add_u32 v6, v9, 3, v10
          v_lshlrev_b32 v6, 7, v6
          v_lshrrev_b32 v12, 1, v10
          v_xor_b32 v12, s33, v12
          v_lshl_add_u32 v6, v12, 6, v6
          v_and_b32 v12, 1, v8
          v_lshl_add_u32 v6, v12, 5, v6
          v_lshl_add_u32 v6, v11, 3, v6
          v_add_u32 v6, {WL0}, v6
          v_and_b32 v12, 31, v1
          s_lshl_b32 s40, s32, 5
          v_add_u32 v12, s40, v12
          v_lshlrev_b32 v76, 3, v12
          v_add_u32 v76, {SX}, v76
          v_lshlrev_b32 v77, 4, v9
          s_lshl_b32 s41, s3, 7
          s_add_u32 s41, s41, {CSX}
          v_add_u32 v77, s41, v77
          v_xor_b32 v78, 128, v77
          v_lshrrev_b32 v13, 1, v12
          v_and_b32 v13, 7, v13
          v_lshlrev_b32 v12, 7, v12""")
    for qq in range(4):
        k(f"""v_add_u32 v14, {2*qq}, v9
              v_xor_b32 v14, v14, v13
              v_lshl_add_u32 v{72+qq}, v14, 4, v12""")
    for r in range(32): k(f"v_mov_b32 v{32+r}, 0")
    k("s_waitcnt lgkmcnt(0)")
    srd(k, 24, 14, 15, WS_USED)
    k("s_barrier\n" * 5)
    k.stamp(4)
    def qreads(c):
        s = c & 1
        for qq in range(4):
            st = 4*c + qq
            k(f"""ds_read_b64_tr_b16 v[{FA(s,qq)}:{FA(s,qq)+1}], v6 offset:{2048*st}
                  ds_read_b64_tr_b16 v[{FA(s,qq)+2}:{FA(s,qq)+3}], v6 offset:{2048*st+512}
                  ds_read_b128 {vr(FB(s,qq))}, v{72+qq} offset:{XL0 + 8192*c}""")
    def qloop(cs):
        def step(c, qq):
            s = c & 1
            k(f"v_mfma_f32_32x32x16_bf16 v[32:47], {vr(FA(s,qq))}, {vr(FB(s,qq))}, v[32:47]")
            if (qq & 1) == cs: k(f"v_mfma_f32_32x32x16_bf16 v[48:63], {vr(FA(s,qq))}, v[64:67], v[48:63]")
        k("s_barrier")
        k.stamp(5)
        qreads(0)
        for c in range(8):
            for qq in range(3):
                k(f"s_waitcnt lgkmcnt({9-3*qq})"); step(c, qq)
            k("s_waitcnt lgkmcnt(0)")
            if c < 7:
                if c & 1: k("s_barrier")
                qreads(c + 1)
            step(c, 3)
    k("""s_cmp_eq_u32 s32, 0
         s_cbranch_scc0 L_p0_qcs""")
    qloop(0)
    k("s_branch L_p0_qfin\nL_p0_qcs:")
    qloop(1)
    k("L_p0_qfin:\ns_nop 7")
    for gq in range(4): k(f"ds_write_b128 v77, {vr(48+4*gq)} offset:{32*gq}")
    k(f"""s_lshl_b32 s34, s33, 12
          s_lshl_b32 s35, s32, 10
          s_add_u32 s34, s34, s35
          s_add_u32 s34, s34, {QL}
          v_add_u32 v70, s34, v2""")
    att_ids()
    k("s_waitcnt lgkmcnt(0)\ns_barrier")
    k.stamp(6)
    k("ds_read_b64 v[68:69], v76")
    for gq in range(4): k(f"ds_read_b128 {vr(80+4*gq)}, v78 offset:{32*gq}")
    if not KV3: kvdma(0)
    k(f"""s_waitcnt lgkmcnt(0)
          v_mul_f32 v69, {f32(0.25*1.4426950408889634)}, v69""")
    for r in range(16): k(f"v_add_f32 v{48+r}, v{48+r}, v{80+r}")
    for r in range(16): k(f"v_fma_f32 v{32+r}, -v68, v{48+r}, v{32+r}")
    for r in range(16): k(f"v_mul_f32 v{32+r}, v69, v{32+r}")
    for r in range(8): k(f"v_cvt_pk_bf16_f32 v{48+r}, v{32+2*r}, v{33+2*r}")
    k("""ds_write_b128 v70, v[48:51]
         ds_write_b128 v70, v[52:55] offset:2048""")
    att_init()
    k("s_branch L_att2")
    k(f"""L_p0_st:
          v_lshrrev_b32 v12, 2, v1
          s_lshl_b32 s34, s3, 4
          v_add_u32 v12, s34, v12           ; row
          v_lshlrev_b32 v7, 3, v12
          v_add_u32 v7, {SX}, v7
          v_lshrrev_b32 v13, 1, v12
          v_and_b32 v13, 7, v13
          v_lshlrev_b32 v12, 7, v12
          v_lshlrev_b32 v14, 1, v11
          v_xor_b32 v14, v14, v13
          v_lshl_add_u32 v4, v14, 4, v12
          v_xor_b32 v5, 16, v4
          v_mov_b32 v64, 0x3f803f80""")
    for i in range(4): k(f"v_mov_b32 v{48+i}, 0")
    k("s_waitcnt lgkmcnt(0)")
    srd(k, 24, 14, 15, WS_USED)
    for gi_ in range(4):
        k("s_barrier")
        for c in range(2):
            k(f"""ds_read_b128 {vr(16+8*c)}, v4 offset:{XL0 + 8192*(2*gi_+c)}
                  ds_read_b128 {vr(20+8*c)}, v5 offset:{XL0 + 8192*(2*gi_+c)}""")
        k("s_waitcnt lgkmcnt(0)")
        for d in range(16):
            k(f"""v_dot2_f32_bf16 v{48+(d&1)}, v{16+d}, v64, v{48+(d&1)}
                  v_dot2_f32_bf16 v{50+(d&1)}, v{16+d}, v{16+d}, v{50+(d&1)}""")
    k("v_add_f32 v48, v48, v49\nv_add_f32 v49, v50, v51")
    for qp in ("[1,0,3,2]", "[2,3,0,1]"):
        for i in range(2): k(f"v_add_f32_dpp v{48+i}, v{48+i}, v{48+i} quad_perm:{qp} row_mask:0xf bank_mask:0xf")
    ln_stats(k, 48, 49, 512, 12)
    k("ds_write_b64 v7, v[48:49]\ns_waitcnt lgkmcnt(0)")
    k("s_barrier\n" * 5 + "s_branch L_att")
    k(f"""L_p0_n:
          v_mov_b32 v20, 0
          s_memrealtime s[58:59]
          s_waitcnt lgkmcnt(0)""")
    srd(k, 24, 14, 15, WS_USED); srd(k, 16, 12, 13, 256)
    if PFQ:
        srd(k, 20, 6, 7, 512 * 1024)
        k(f"""s_lshr_b32 s34, s2, 3
              s_lshl_b32 s34, s34, 14
              s_add_u32 s35, s34, 8192
              v_lshlrev_b32 v24, 7, v1
              buffer_load_dword v25, v24, s[20:23], s34 offen
              buffer_load_dword v25, v24, s[20:23], s35 offen""")
    k(f"""s_mov_b64 exec, 1
          s_cmp_eq_u32 s2, 0
          s_cbranch_scc0 L_p0_n1
          s_or_b32 s59, s59, 0x40000000
          v_mov_b32 v22, s58
          v_mov_b32 v23, s59
          buffer_store_dwordx2 v[22:23], v20, s[16:19], 0 offen sc1
          L_p0_n1:
          s_barrier
          s_barrier
          s_mov_b32 s60, 0
          L_p0_np:
          buffer_load_dwordx2 v[22:23], v20, s[16:19], 0 offen sc1
          s_add_u32 s60, s60, 1
          s_cmp_eq_u32 s60, 1
          s_cbranch_scc0 L_p0_nw
          s_barrier
          s_barrier
          L_p0_nw:
          s_waitcnt vmcnt(0)
          v_cmp_eq_u32 vcc, 0, v23
          s_cmp_gt_u32 s60, 0x40000
          s_cbranch_scc1 L_p0_n2
          s_cbranch_vccnz L_p0_np
          L_p0_n2:
          v_mov_b32 v21, {SX + 768}
          ds_write_b64 v21, v[22:23]
          v_readfirstlane_b32 s58, v22
          v_readfirstlane_b32 s59, v23
          s_mov_b64 exec, -1
          v_lshlrev_b32 v21, 2, v1
          v_add_u32 v21, {FASTW}, v21
          v_cmp_eq_u32 vcc, 0, v1
          v_cndmask_b32 v22, 0, 2, vcc
          ds_write_b32 v21, v22
          v_mov_b32 v21, {SX + 768}
          v_lshlrev_b32 v26, {KSTR}, v1
          s_waitcnt lgkmcnt(0)""")
    k.stamp(4)
    k("s_barrier\n" * (5 - EPB))
    k.stamp(5)
    k(f"""s_mov_b32 s60, 0
          L_p0_gp:""")
    for i in range(4): k(f"s_mov_b32 s34, {KVFLAG + (64 << KSTR) * i}\nbuffer_load_dwordx3 v[{28+4*i}:{30+4*i}], v26, s[24:27], s34 offen sc1")
    if EPB:
        k("s_cmp_eq_u32 s60, 0\ns_cbranch_scc0 L_p0_gw\n" + "s_barrier\n" * EPB + "L_p0_gw:")
    k("s_add_u32 s60, s60, 1\ns_waitcnt vmcnt(0)")
    for i in range(4):
        k(f"v_xor_b32 v{28+4*i}, s58, v{28+4*i}\nv_xor_b32 v{29+4*i}, s59, v{29+4*i}")
    k(f"""v_or3_b32 v28, v28, v29, v32
          v_or3_b32 v33, v33, v36, v37
          v_or3_b32 v28, v28, v40, v41
          v_or_b32 v28, v28, v33
          v_cmp_ne_u32 vcc, 0, v28
          s_cmp_gt_u32 s60, 0x40000
          s_cbranch_scc1 L_p0_g2
          s_cbranch_vccz L_p0_g2
          s_sleep {KSL}
          s_branch L_p0_gp
          L_p0_g2:
          v_max3_f32 v30, v30, v34, v38
          v_max_f32 v30, v30, v42""")
    for sh in (1, 2, 4, 8):
        k(f"v_max_f32_dpp v30, v30, v30 row_ror:{sh} row_mask:0xf bank_mask:0xf")
    k("""v_mov_b32 v31, v30
         v_permlane16_swap_b32 v30, v31
         v_max_f32 v30, v30, v31
         v_mov_b32 v31, v30
         v_permlane32_swap_b32 v30, v31
         v_max_f32 v30, v30, v31
         ds_write_b32 v21, v30 offset:8""")
    if KV3:
        k(f"""s_and_b32 s34, s57, {3 if KVROT else 0}
              s_lshl_b32 s34, s34, 13
              s_add_u32 s34, s34, {KF}""")
        for blk in range(4):
            for h_ in range(2):
                k(f"""s_mov_b32 m0, {blk*32768 + h_*4096}
                      s_add_u32 s35, s34, {blk*32768 + h_*4096}""")
                for j in range(4): k(f"buffer_load_dwordx4 v2, s[24:27], s35 offen offset:{1024*j} lds")
    k("s_branch L_att")
    k(f"""L_p0_kv:
          s_lshr_b32 s40, s30, 2           ; kv
          s_and_b32 s41, s30, 3            ; rq
          s_waitcnt lgkmcnt(0)
          s_cmp_eq_u32 s40, 0
          s_cselect_b32 s20, s8, s10
          s_cselect_b32 s21, s9, s11
          s_mov_b32 s22, 16384
          s_mov_b32 s23, 0x00020000""")
    srd(k, 24, 14, 15, WS_USED)
    for c in range(8):
        k(f"""s_mov_b32 m0, {KVL + 2048*c}
              s_lshl_b32 s38, s46, 11
              s_add_u32 s46, s46, 1
              buffer_load_dwordx4 v2, s[20:23], s38 offen lds
              buffer_load_dwordx4 v2, s[20:23], s38 offen offset:1024 lds
              s_and_b32 s46, s46, 7""")
    k(f"""v_mov_b32 v64, 0x3f803f80
          v_mov_b32 v65, 0x3f803f80
          v_mov_b32 v66, 0x3f803f80
          v_mov_b32 v67, 0x3f803f80
          v_and_b32 v15, 15, v1
          s_lshl_b32 s34, s41, 4
          v_add_u32 v12, s34, v15
          v_lshlrev_b32 v74, 3, v12
          v_add_u32 v74, {SX}, v74
          v_lshl_add_u32 v75, v8, 2, s34
          v_lshlrev_b32 v75, 3, v75
          v_add_u32 v75, {SX}, v75
          v_lshrrev_b32 v13, 1, v12
          v_and_b32 v13, 7, v13
          v_lshlrev_b32 v12, 7, v12
          v_xor_b32 v14, v8, v13
          v_lshl_add_u32 v72, v14, 4, v12
          v_add_u32 v14, 4, v8
          v_xor_b32 v14, v14, v13
          v_lshl_add_u32 v73, v14, 4, v12
          v_lshl_add_u32 v6, v8, 3, v10
          v_lshlrev_b32 v6, 5, v6
          v_lshl_add_u32 v6, v11, 3, v6
          v_add_u32 v6, {KVL}, v6
          s_lshl_b32 s34, s29, 2
          s_add_u32 s34, s34, s41          ; t16
          v_and_b32 v12, 1, v8             ; h
          v_lshrrev_b32 v13, 1, v8         ; piece
          v_mov_b32 v76, {SX + 768}
          s_and_b32 s37, s2, 7
          s_lshl_b32 s37, s37, {5 + KSTR}
          s_lshr_b32 s36, s2, 3
          s_lshl_b32 s36, s36, {KSTR}
          s_add_u32 s37, s37, s36
          s_add_u32 s37, s37, {KVFLAG}""")
    for r in range(8): k(f"v_mov_b32 v{32+r}, 0")
    def kvloop(isv):
        for gi_ in range(4):
            k(f"s_waitcnt vmcnt({4*(3-gi_)})\ns_barrier")
            for s in range(4):
                st = 4*gi_ + s; b = 80 + 8*s
                k(f"""ds_read_b64_tr_b16 v[{b}:{b+1}], v6 offset:{1024*st}
                      ds_read_b64_tr_b16 v[{b+2}:{b+3}], v6 offset:{1024*st+128}
                      ds_read_b128 {vr(b+4)}, v{72+(s&1)} offset:{XL0+8192*(st//2)}""")
            for s in range(4):
                W, X = 80 + 8*s, 84 + 8*s
                k(f"s_waitcnt lgkmcnt({9-3*s})")
                if isv:
                    k(f"""v_mfma_f32_16x16x32_bf16 v[32:35], {vr(X)}, {vr(W)}, v[32:35]
                          v_mfma_f32_16x16x32_bf16 v[36:39], v[64:67], {vr(W)}, v[36:39]""")
                else:
                    k(f"""v_mfma_f32_16x16x32_bf16 v[32:35], {vr(W)}, {vr(X)}, v[32:35]
                          v_mfma_f32_16x16x32_bf16 v[36:39], {vr(W)}, v[64:67], v[36:39]""")
        k("s_barrier\nds_read_b64 v[40:41], v76")
    k("""s_cmp_eq_u32 s40, 0
         s_cbranch_scc0 L_p0_v""")
    kvloop(False)
    k(f"""ds_read_b64 v[68:69], v74
          v_lshlrev_b32 v3, 9, v12
          v_lshl_add_u32 v3, v15, 4, v3
          v_lshl_add_u32 v3, v13, 3, v3
          s_lshr_b32 s35, s34, 1
          s_lshl_b32 s35, s35, 10
          s_and_b32 s36, s34, 1
          s_lshl_b32 s36, s36, 8
          s_add_u32 s35, s35, s36
          s_add_u32 s35, s35, {KF}
          s_waitcnt lgkmcnt(0)""")
    for r in range(4): k(f"v_fma_f32 v{32+r}, -v68, v{36+r}, v{32+r}")
    for r in range(4): k(f"v_mul_f32 v{32+r}, v69, v{32+r}")
    k(f"""v_cvt_pk_bf16_f32 v36, v32, v33
          v_cvt_pk_bf16_f32 v37, v34, v35
          buffer_store_dwordx2 v[36:37], v3, s[24:27], s35 offen sc1
          v_dot2_f32_bf16 v42, v36, v36, 0
          v_dot2_f32_bf16 v42, v37, v37, v42""")
    xhalf_add(k, 42, 12); x16_add(k, 42, 12)
    for sh in (1, 2, 4, 8):
        k(f"v_max_f32_dpp v42, v42, v42 row_ror:{sh} row_mask:0xf bank_mask:0xf")
    k("s_branch L_p0_kvf\nL_p0_v:")
    kvloop(True)
    k(f"""ds_read_b128 v[56:59], v75
          ds_read_b128 v[60:63], v75 offset:16
          v_lshlrev_b32 v3, 8, {'v13' if SMF else 'v12'}
          v_lshl_add_u32 v3, v15, 4, v3
          v_lshl_add_u32 v3, {'v12' if SMF else 'v13'}, 3, v3
          s_lshl_b32 s35, s34, 9
          s_add_u32 s35, s35, {VF}
          v_mov_b32 v42, 0
          s_waitcnt lgkmcnt(0)""")
    for r in range(4): k(f"v_fma_f32 v{32+r}, -v{56+2*r}, v{36+r}, v{32+r}")
    for r in range(4): k(f"v_mul_f32 v{32+r}, v{57+2*r}, v{32+r}")
    k(f"""v_cvt_pk_bf16_f32 v36, v32, v33
          v_cvt_pk_bf16_f32 v37, v34, v35
          buffer_store_dwordx2 v[36:37], v3, s[24:27], s35 offen sc1
          L_p0_kvf:
          v_mov_b32 v43, 0""")
    k.stamp(2)
    k("s_barrier")
    k.stamp(3)
    k("s_waitcnt vmcnt(0)")
    k.stamp(5)
    k(f"""s_mov_b64 exec, 1
          buffer_store_dwordx4 v[40:43], v43, s[24:27], s37 offen sc1
          s_mov_b64 exec, -1""")
    if STAMPS: k("s_waitcnt vmcnt(0)")
    k.stamp(4)
    k("s_barrier\n" * 3 + "s_branch L_att")
    k(f"""L_p0_pack:
          s_load_dwordx2 s[48:49], s[0:1], 48
          s_load_dwordx2 s[50:51], s[0:1], 32
          s_load_dwordx2 s[52:53], s[0:1], 72
          s_lshl_b32 s35, s28, 8
          s_add_u32 s35, s35, s2           ; J
          s_lshl_b32 s36, s28, 13
          s_add_u32 s36, s36, {128*1024}
          s_waitcnt lgkmcnt(0)""")
    srd(k, 24, 14, 15, WS_USED)
    if TLBW:
        k(f"""s_load_dwordx4 s[40:43], s[0:1], 56
              s_load_dwordx2 s[44:45], s[0:1], 80
              v_lshlrev_b32 v20, {TLBW}, v1
              buffer_load_dword v21, v20, s[24:27], 0 offen
              s_mov_b32 s18, {688*1024}
              s_mov_b32 s19, 0x00020000""")
        for lo, sz in ((48, 512*2752), (50, 512*1024), (52, 688*1024)):
            k(f"""s_mov_b32 s16, s{lo}
                  s_mov_b32 s17, s{lo+1}
                  s_mov_b32 s18, {sz}
                  buffer_load_dword v21, v20, s[16:19], 0 offen""")
        k("s_waitcnt lgkmcnt(0)")
        for lo, sz in ((40, 2048*4096), (42, 4096), (44, 2048*1024)):
            k(f"""s_mov_b32 s16, s{lo}
                  s_mov_b32 s17, s{lo+1}
                  s_mov_b32 s18, {sz}
                  buffer_load_dword v21, v20, s[16:19], 0 offen""")
    k(f"""s_cmp_lt_u32 s35, 332
          s_cbranch_scc1 L_pk_job""")
    k("L_pk_done:\n" + "s_barrier\n" * 9 + "s_branch L_att")
    k(f"""L_pk_job:
          s_lshl_b32 s62, s35, 7
          s_add_u32 s62, s62, {PFLAG}
          s_mov_b32 s23, 0x00020000
          s_cmp_lt_u32 s35, 172
          s_cbranch_scc1 L_pk_in
          s_movk_i32 s40, 1024
          s_cmp_lt_u32 s35, 236
          s_cbranch_scc1 L_pk_o
          s_sub_u32 s35, s35, 236
          s_mul_i32 s37, s35, 171
          s_lshr_b32 s37, s37, 9
          s_mul_i32 s38, s37, 3
          s_sub_u32 s38, s35, s38
          s_mov_b32 s20, s52
          s_mov_b32 s21, s53
          s_mov_b32 s22, {688*1024}
          s_mul_i32 s39, s37, 24576
          s_add_u32 s39, s39, {WUP}
          s_branch L_pk_d
          L_pk_o:
          s_sub_u32 s35, s35, 172
          s_lshr_b32 s37, s35, 1
          s_and_b32 s38, s35, 1
          s_mov_b32 s20, s50
          s_mov_b32 s21, s51
          s_mov_b32 s22, {512*1024}
          s_lshl_b32 s39, s37, 14
          s_add_u32 s39, s39, {WOP}
          L_pk_d:
          v_lshrrev_b32 v12, 1, v8
          v_lshlrev_b32 v6, 4, v12
          v_and_b32 v12, 1, v8
          v_lshl_add_u32 v6, v12, 2, v6
          s_movk_i32 s41, 256
          s_mov_b32 s42, 0
          s_branch L_pk_go
          L_pk_in:
          s_movk_i32 s40, 2752
          s_lshr_b32 s37, s35, 1
          s_and_b32 s38, s35, 1
          s_mov_b32 s20, s48
          s_mov_b32 s21, s49
          s_mov_b32 s22, {512*2752}
          s_lshl_b32 s39, s37, 14
          s_add_u32 s39, s39, {WPK}
          v_lshlrev_b32 v6, 2, v8
          s_movk_i32 s41, 512
          s_mov_b32 s42, 1
          L_pk_go:
          v_add_u32 v6, v6, v10
          v_lshlrev_b32 v6, 5, v6
          v_lshl_add_u32 v6, v11, 3, v6
          v_add_u32 v108, s36, v6
          v_add_u32 v109, s41, v108
          s_lshl_b32 s43, s38, 13
          s_add_u32 s48, s39, s43           ; dst
          v_lshrrev_b32 v113, 1, v1
          v_mul_lo_u32 v113, v113, s40
          v_and_b32 v12, 1, v1
          v_lshl_add_u32 v113, v12, 4, v113
          s_lshl_b32 s50, s40, 8
          s_mul_i32 s50, s50, s38
          s_lshl_b32 s44, s37, 5
          s_add_u32 s50, s50, s44           ; src
          s_lshl_b32 s51, s40, 5            ; 32 rows
          s_lshl_b32 s49, s37, 6
          s_add_u32 s49, s49, s43
          s_add_u32 s49, s49, {CSUM}
          s_mul_i32 s49, s49, s42
          s_mov_b32 s45, s36
          s_branch L_pk_done""")
    k("L_att:")
    att_ids(); att_init()
    k.stamp(8)
    k("s_waitcnt lgkmcnt(0)\ns_barrier")
    k.stamp(7)
    if not KV3: kvdma(0)
    k(f"""L_att2:
          s_waitcnt vmcnt(0) lgkmcnt(0)
          s_barrier
          ds_read_b128 {vr(Q)}, v102
          ds_read_b128 v[120:123], v103
          ds_read_b128 {vr(KFR)}, v{vK}""")
    kvdma(1)
    k(f"""s_waitcnt lgkmcnt(0)
          v_readfirstlane_b32 s58, v120
          v_readfirstlane_b32 s59, v121
          v_mov_b32 v104, v122
          v_dot2_f32_bf16 v106, v{Q}, v{Q}, 0
          v_dot2_f32_bf16 v106, v{Q+1}, v{Q+1}, v106
          v_dot2_f32_bf16 v106, v{Q+2}, v{Q+2}, v106
          v_dot2_f32_bf16 v106, v{Q+3}, v{Q+3}, v106""")
    xhalf_add(k, 106, 105)
    k(f"""v_mul_f32 v104, v104, v106
          v_cmp_nle_f32 vcc, v104, v107""")
    kvdma(2); kvdma(3)
    k("s_cbranch_vccnz L_k2_slow")
    k.stamp(1)
    if os.environ.get("STP0"): k.stamp = lambda i, real=False: None if i < 13 else Kern.stamp(k, i, real)
    def att_loop(sfx, cop):
        k(f"""L_k2_start{sfx}:
              s_waitcnt lgkmcnt(0)
              v_mfma_f32_32x32x16_bf16 {vr(S[0],16)}, {vr(KFR)}, {vr(Q)}, {cop}
              ds_read_b128 {vr(KFR)}, v{vK} offset:1024
              s_mov_b64 exec, s[40:41]
              ds_read_b128 {vr(VFR[0][0])}, v{vV}
              ds_read_b128 {vr(VFR[0][1])}, v{vV} offset:512
              s_mov_b64 exec, -1
              s_nop 7
              L_k2_loop{sfx}:
              s_bitcmp1_b32 s31, s36
              s_cbranch_scc1 L_k2_ev
              L_k2_body{sfx}:""")
        for u in range(4):
            s = S[u & 1]; sn = S[(u + 1) & 1]; vf = VFR[u & 1]; vn = VFR[(u + 1) & 1]
            k(f"s_setprio {3-u}")
            for i in range(16):
                if i == 3:
                    k(f"""v_smfmac_f32_32x32x32_bf16 {vr(O,16)}, {vr(vn[1])}, {vr(sn+8,8)}, v{P}
                          s_mov_b64 exec, s[40:41]
                          ds_read_b128 {vr(vn[0])}, v{vV} offset:{1024*(u+1)}
                          ds_read_b128 {vr(vn[1])}, v{vV} offset:{1024*(u+1)+512}
                          s_mov_b64 exec, -1""")
                if i == 8:
                    k(f"""s_waitcnt lgkmcnt(2)
                          v_mfma_f32_32x32x16_bf16 {vr(sn,16)}, {vr(KFR)}, {vr(Q)}, {cop}
                          ds_read_b128 {vr(KFR)}, v{vK} offset:{1024*(u+2)}""")
                if i == 13:
                    k(f"v_smfmac_f32_32x32x32_bf16 {vr(O,16)}, {vr(vf[0])}, {vr(s,8)}, v{P}")
                k(f"v_exp_f32 v{s+i}, v{s+i}")
        k(f"""v_add_u32 v{vK}, 4096, v{vK}
              v_add_u32 v{vV}, 4096, v{vV}
              s_add_u32 s36, s36, 1
              s_cmp_lt_u32 s36, {NIT}
              s_cbranch_scc1 L_k2_loop{sfx}""")
    att_loop("", "0")
    k("L_k2_done:")
    if SMF: k(f"v_smfmac_f32_32x32x32_bf16 {vr(O,16)}, {vr(VFR[1][1])}, {vr(S[1]+8,8)}, v{P}")
    else: k(f"v_mfma_f32_32x32x16_bf16 {vr(O,16)}, {vr(VFR[1][1])}, {vr(P+4)}, {vr(O,16)}")
    k("s_setprio 0\ns_waitcnt lgkmcnt(0)")
    k.stamp(2)
    k(f"""s_mul_i32 s45, s38, 2304
          s_add_u32 s45, s45, {XL}
          v_add_u32 v103, s45, v2
          v_lshlrev_b32 v104, 2, v1
          v_add_u32 v104, s45, v104
          v_mov_b32 v107, {FASTW}
          s_lshl_b32 s35, s38, 2
          s_add_u32 s35, s35, {FASTW + 128}
          v_mov_b32 v102, s35
          s_cmp_eq_u32 s39, 0
          s_cbranch_scc1 L_k2_give
          s_mov_b32 s60, 0
          L_k2_mw:
          ds_read_b32 v105, v102
          ds_read_b32 v106, v107
          ds_read_b128 {vr(S[0])}, v103
          ds_read_b128 {vr(S[0]+4)}, v103 offset:1024
          ds_read_b32 v{S[0]+8}, v104 offset:2048
          s_lshl_b32 s34, s29, 13
          s_add_u32 s34, s34, {OFLAG}
          s_lshl_b32 s35, s32, 12
          s_add_u32 s34, s34, s35
          s_lshl_b32 s35, s30, 9
          s_add_u32 s34, s34, s35
          s_lshr_b32 s35, s38, 1
          s_lshl_b32 s35, s35, 7
          s_add_u32 s34, s34, s35
          s_add_u32 s33, s46, {OF}
          s_add_u32 s60, s60, 1
          s_waitcnt lgkmcnt(0)
          v_readfirstlane_b32 s63, v106
          v_readfirstlane_b32 s35, v105
          s_cmp_gt_u32 s60, 0x400000
          s_cbranch_scc1 L_k2_mok
          s_cmp_eq_u32 s63, 2
          s_cbranch_scc1 L_k2_mw
          s_cmp_eq_u32 s35, 0
          s_cbranch_scc1 L_k2_mw
          L_k2_mok:""")
    k.stamp(3)
    for r in range(9): k(f"v_add_f32 v{O+r}, v{O+r}, v{S[0]+r}")
    k(f"""v_mov_b32 v104, v{O+8}
          v_permlane32_swap_b32 v{O+8}, v104
          v_rcp_f32 v104, v{O+8}""")
    for r in range(8): k(f"v_mul_f32 v{O+r}, v104, v{O+r}")
    for r in range(4): k(f"v_cvt_pk_bf16_f32 v{P+r}, v{O+2*r}, v{O+2*r+1}")
    dstore(k, f"buffer_store_dwordx4 {vr(P)}, v2, s[24:27], s33 offen")
    k.stamp(4)
    if STAMPS: k("s_waitcnt vmcnt(0)")
    k.stamp(5)
    set_flagN(k, "s34")
    k.stamp(6)
    k("""s_cmp_lt_u32 s28, 12
         s_cbranch_scc1 L_kb_loader
         s_endpgm""")
    k(f"""L_k2_ev:
          s_cmp_ge_u32 s36, 6
          s_cbranch_scc1 L_k2_cnt
          s_cmp_eq_u32 s36, 4
          s_cbranch_scc1 L_k2_st4
          s_cmp_eq_u32 s36, 3
          s_cbranch_scc1 L_k2_st3
          s_cmp_eq_u32 s36, 1
          s_cbranch_scc1 L_k2_st1
          s_setprio 2
          s_branch L_k2_ret
          L_k2_st1:
          s_cmp_eq_u32 s42, 1
          s_cbranch_scc0 L_k2_st1c
          s_waitcnt vmcnt(0)
          s_barrier
          L_k2_st1c:
          s_cmp_eq_u32 s62, 0
          s_cbranch_scc1 L_nopk""")
    for i in range(8):
        k(f"""s_add_u32 m0, s45, {1024*i}
              buffer_load_dwordx4 v113, s[20:23], s50 offen lds
              s_add_u32 s50, s50, s51""")
    k(f"""s_branch L_k2_ret
          L_nopk:
          s_lshr_b32 s34, s28, 2
          s_cmp_eq_u32 s34, 1
          s_cbranch_scc0 L_k2_ret
          s_load_dwordx2 s[52:53], s[0:1], 56
          s_lshr_b32 s61, s2, 3
          s_lshl_b32 s61, s61, 2
          s_add_u32 s61, s61, s3
          v_lshlrev_b32 v108, 7, v1
          s_and_b32 s37, s2, 7
          s_lshl_b32 s37, s37, 20
          s_lshl_b32 s61, s61, 13
          s_add_u32 s37, s37, s61
          s_mov_b32 s54, {2048*4096}
          s_mov_b32 s55, 0x00020000
          s_waitcnt lgkmcnt(0)
          buffer_load_dword v120, v108, s[52:55], s37 offen
          s_cmp_eq_u32 s28, 4
          s_cbranch_scc0 L_k2_ret
          s_lshr_b32 s34, s29, 1
          s_lshl_b32 s34, s34, 7
          s_and_b32 s35, s29, 1
          s_lshl_b32 s35, s35, 3
          s_add_u32 s34, s34, s35
          s_add_u32 s34, s34, s30
          s_lshl_b32 s34, s34, 7
          s_add_u32 s34, s34, {ZSTAT}
          v_mov_b32 v112, -1
          v_mov_b32 v113, -1
          v_mov_b32 v114, -1
          v_mov_b32 v115, -1
          v_lshrrev_b32 v116, 3, v1
          v_lshlrev_b32 v116, 11, v116
          v_and_b32 v117, 7, v1
          v_lshl_add_u32 v116, v117, 4, v116
          buffer_store_dwordx4 v[112:115], v116, s[24:27], s34 offen sc1
          s_branch L_k2_ret
          L_k2_cnt:
          {'s_setprio 0' if PRIO == 3 else ''}
          L_k2_cnt2:
          s_waitcnt lgkmcnt(0)
          s_mov_b64 exec, 1
          ds_add_u32 v118, v119
          s_mov_b64 exec, -1
          v_add_u32 v118, 4, v118
          s_branch L_k2_ret
          L_k2_st4:
          {'s_setprio 1' if PRIO == 3 else ''}
          s_cmp_eq_u32 s62, 0
          s_cbranch_scc1 L_k2_cnt2
          v_mov_b32 v112, s58
          v_mov_b32 v113, s59
          v_mov_b32 v114, 0
          s_waitcnt vmcnt(0)
          s_mov_b64 exec, 1
          buffer_store_dwordx2 v[112:113], v114, s[24:27], s62 offen sc1
          s_mov_b64 exec, -1
          s_branch L_k2_cnt2
          L_k2_st3:
          s_waitcnt vmcnt(0)
          s_cmp_lg_u32 s62, 0
          s_cbranch_scc1 L_k2_pk
          s_and_b32 s34, s29, 1
          s_lshl_b32 s34, s34, 3
          s_add_u32 s34, s34, s30
          s_lshl_b32 s34, s34, 7
          s_add_u32 s34, s34, s63
          s_getreg_b32 s60, hwreg(HW_REG_XCC_ID, 0, 4)
          s_add_u32 s60, s60, s59
          v_mov_b32 v108, s58
          v_mov_b32 v109, s60
          v_mov_b32 v110, 0
          s_mov_b64 exec, 1
          buffer_store_dwordx2 v[108:109], v110, s[24:27], s34 offen sc1
          s_mov_b64 exec, -1
          s_branch L_k2_ret
          L_k2_pk:
          s_mov_b32 s34, 0x3f803f80
          s_add_u32 s35, s48, 4096
          v_mov_b32 v110, 0
          v_mov_b32 v111, 0""")
    for h in range(2):
        for i in range(2):
          for i2 in range(2):
            k(f"""ds_read_b64_tr_b16 v[{120+4*i2}:{121+4*i2}], v108 offset:{1024*(4*h+2*i+i2)}
                  ds_read_b64_tr_b16 v[{122+4*i2}:{123+4*i2}], v109 offset:{1024*(4*h+2*i+i2)}""")
          k("s_waitcnt lgkmcnt(0)")
          for i2 in range(2):
            k(f"buffer_store_dwordx4 {vr(120+4*i2)}, v2, s[24:27], {'s35' if h else 's48'} offen offset:{1024*(2*i+i2)} sc1")
          for i3 in range(8): k(f"v_dot2_f32_bf16 v{110+(i3&1)}, v{120+i3}, s34, v{110+(i3&1)}")
    k("""s_cmp_eq_u32 s49, 0
         s_cbranch_scc1 L_k2_ret
         v_add_f32 v110, v110, v111""")
    xhalf_add(k, 110, 111); x16_add(k, 110, 111)
    k(f"""v_lshlrev_b32 v111, 2, v1
          s_mov_b64 exec, 0xffff
          buffer_store_dword v110, v111, s[24:27], s49 offen sc1
          s_mov_b64 exec, -1
          s_branch L_k2_ret""")
    k("""L_k2_ret:
         s_cmp_eq_u32 s42, 1
         s_cbranch_scc1 L_k2_body
         s_branch L_k2_body_s""")
    k("L_k2_slow:")
    k(f"""s_waitcnt vmcnt(0)
          s_barrier
          s_mov_b32 s42, 99
          v_mov_b32 v104, 0xff800000
          v_mov_b32 v103, v2
          s_mov_b32 s37, 0
          L_k2_mx:
          ds_read_b128 {vr(KFR)}, v103
          s_waitcnt lgkmcnt(0)
          v_mfma_f32_32x32x16_bf16 {vr(S[0],16)}, {vr(KFR)}, {vr(Q)}, 0
          v_add_u32 v103, 1024, v103""")
    for i in range(8):
        k(f"v_max3_f32 v104, v{S[0]+2*i}, v{S[0]+2*i+1}, v104")
    k(f"""s_add_u32 s37, s37, 1
          s_cmp_lt_u32 s37, 64
          s_cbranch_scc1 L_k2_mx
          v_mov_b32 v105, v104
          v_permlane32_swap_b32 v104, v105
          v_max_f32 v104, v104, v105""")
    for i in range(16): k(f"v_sub_f32 v{C+i}, 0, v104")
    k(f"ds_read_b128 {vr(KFR)}, v{vK}")
    att_loop("_s", vr(C, 16))
    k("s_nop 1\ns_branch L_k2_done")
    def waitcnt_lds(off, tag):
        k(f"""v_mov_b32 v108, {CNT + off}
              s_mov_b32 s60, 0
              L_cw_{tag}:
              ds_read_b32 v109, v108
              s_add_u32 s60, s60, 1
              s_waitcnt lgkmcnt(0)
              v_readfirstlane_b32 s34, v109
              s_cmp_gt_u32 s60, 0x400000
              s_cbranch_scc1 L_cwok_{tag}
              s_cmp_ge_u32 s34, 16
              s_cbranch_scc1 L_cwok_{tag}
              s_sleep 2
              s_branch L_cw_{tag}
              L_cwok_{tag}:""")
    k(f"""L_k2_give:
          s_load_dwordx2 s[4:5], s[0:1], 0""")
    if PT:
        k(f"""v_and_b32 v110, 7, v1
              v_lshlrev_b32 v110, 7, v110
              s_mov_b64 exec, 0xff
              s_add_u32 s34, s46, {OF}
              buffer_load_dword v117, v110, s[24:27], s34 offen
              s_lshl_b32 s34, s29, 2
              s_add_u32 s34, s34, s3
              s_lshl_b32 s34, s34, 4
              s_lshl_b32 s35, s30, 1
              s_add_u32 s34, s34, s35
              s_lshr_b32 s35, s28, 2
              s_add_u32 s34, s34, s35
              s_lshl_b32 s35, s34, 10
              s_add_u32 s35, s35, {HF}
              buffer_load_dword v117, v110, s[24:27], s35 offen
              s_mov_b64 exec, 1
              s_lshl_b32 s35, s34, 7
              s_add_u32 s35, s35, {HSTAT}
              buffer_load_dword v117, v110, s[24:27], s35 offen
              s_mov_b64 exec, -1""")
    k(f"""s_cmp_eq_u32 s28, 4
          s_cbranch_scc0 L_kb_nochk
          v_and_b32 v110, 15, v1
          v_lshlrev_b32 v110, 7, v110
          s_mov_b32 s60, 0
          L_xc_b:
          buffer_load_dwordx2 v[108:109], v110, s[24:27], s63 offen sc1
          s_add_u32 s60, s60, 1
          s_waitcnt vmcnt(0)
          v_subrev_u32 v109, s59, v109
          v_xor_b32 v108, s58, v108
          v_lshrrev_b32 v106, 4, v109
          v_or_b32 v108, v108, v106
          v_cmp_ne_u32 vcc, 0, v108
          s_cmp_gt_u32 s60, 0x40000
          s_cbranch_scc1 L_xcok_b
          s_cbranch_vccnz L_xc_b
          L_xcok_b:
          v_readfirstlane_b32 s60, v109
          v_cmp_ne_u32 vcc, s60, v109
          s_cmp_eq_u64 vcc, 0
          s_cselect_b32 s60, {FAST}, 0
          v_mov_b32 v106, s60
          ds_write_b32 v107, v106
          L_kb_nochk:
          s_and_b32 s31, s29, 1
          s_lshl_b32 s31, s31, 3
          s_add_u32 s31, s31, s30
          s_mul_i32 s31, s31, 3
          s_min_u32 s31, s31, 40           ; u0
          s_lshl_b32 s34, s31, 1
          s_lshl_b32 s35, s30, 3
          s_add_u32 s35, s35, 172
          s_mul_i32 s37, s30, 12
          s_add_u32 s37, s37, {236-20}
          s_sub_u32 s34, s34, 8
          v_and_b32 v108, 31, v1
          v_add_u32 v109, s35, v108
          v_add_u32 v110, s34, v108
          v_cmp_lt_u32 vcc, 7, v108
          v_cndmask_b32 v109, v109, v110, vcc
          v_add_u32 v110, {86-6}, v110
          v_cmp_lt_u32 vcc, 13, v108
          v_cndmask_b32 v109, v109, v110, vcc
          v_add_u32 v110, s37, v108
          v_cmp_lt_u32 vcc, 19, v108
          v_cndmask_b32 v109, v109, v110, vcc
          v_lshlrev_b32 v15, 7, v109
          s_mov_b32 s37, {PFLAG}
          s_mov_b32 exec_hi, 0""")
    pollN(k, "s37", "p")
    k(f"""s_lshl_b32 s40, s31, 14
          s_add_u32 s40, s40, {WPK}        ; z1 base
          s_cmp_ge_u32 s28, 4
          s_cbranch_scc1 L_gv_pf
          s_mul_i32 s35, s28, 3072
          s_add_u32 m0, s35, {148*1024}
          s_add_u32 s35, s35, s40""")
    for j in range(3): k(f"buffer_load_dwordx4 v2, s[24:27], s35 offen offset:{1024*j} lds")
    k(f"""s_mul_i32 s35, s28, 12288
          s_add_u32 s35, s35, s40
          s_add_u32 s35, s35, {43*16384}
          v_lshlrev_b32 v108, 7, v1
          buffer_load_dword v117, v108, s[24:27], s35 offen
          v_and_b32 v109, 31, v1
          v_lshlrev_b32 v109, 7, v109
          s_add_u32 s35, s35, 8192
          buffer_load_dword v117, v109, s[24:27], s35 offen
          s_mul_i32 s35, s28, 9216
          s_add_u32 s35, s35, s40
          s_add_u32 s35, s35, 12288
          buffer_load_dword v117, v108, s[24:27], s35 offen
          v_and_b32 v109, 7, v1
          v_lshlrev_b32 v109, 7, v109
          s_add_u32 s35, s35, 8192
          buffer_load_dword v117, v109, s[24:27], s35 offen""")
    k(f"""s_branch L_gv_c6
          L_gv_pf:""")
    if PFO:
        k(f"""s_lshl_b32 s35, s30, 2
              s_add_u32 s35, s35, s3
              s_mul_i32 s35, s35, 24576
              s_add_u32 s35, s35, {WUP}
              v_lshlrev_b32 v108, 7, v1""")
        for j in range(3):
            k(f"buffer_load_dword v117, v108, s[24:27], s35 offen\ns_add_u32 s35, s35, 8192")
    k(f"""
          L_gv_c6:""")
    waitcnt_lds(0, "6")
    k(f"""ds_write_b128 v103, {vr(O)}
          ds_write_b128 v103, {vr(O+4)} offset:1024
          ds_write_b32 v104, v{O+8} offset:2048
          ds_write_b32 v102, v119
          s_lshl_b32 s35, s30, 16
          s_lshl_b32 s37, s28, 13
          s_add_u32 s35, s35, s37
          s_add_u32 s35, s35, {WOP}
          s_lshr_b32 s37, s28, 1
          s_lshl_b32 s37, s37, 15
          s_lshl_b32 s41, s32, 13
          s_add_u32 s41, s41, s37
          s_mov_b32 m0, s41""")
    for j in range(4): k(f"buffer_load_dwordx4 v2, s[24:27], s35 offen offset:{1024*j} lds")
    k("s_add_u32 m0, s41, 4096\ns_add_u32 s35, s35, 4096")
    for j in range(4): k(f"buffer_load_dwordx4 v2, s[24:27], s35 offen offset:{1024*j} lds")
    lane_fields(k)
    if P1:
        waitcnt_lds(4, "7")
        k(f"""s_lshl_b32 s35, s28, 12
              s_add_u32 s35, s35, s40
              s_add_u32 s35, s35, {43*16384}
              s_lshl_b32 s41, s32, 12
              s_add_u32 s41, s41, s37
              s_add_u32 m0, s41, 16384""")
        for j in range(4): k(f"buffer_load_dwordx4 v2, s[24:27], s35 offen offset:{1024*j} lds")
    k(f"""s_lshl_b32 s33, s29, 13
          s_add_u32 s33, s33, {OFLAG}
          s_and_b32 s35, s28, 2
          s_lshl_b32 s35, s35, 11
          s_add_u32 s33, s33, s35
          s_and_b32 s35, s28, 4
          s_lshl_b32 s35, s35, 9
          s_add_u32 s33, s33, s35""")
    k(f"""s_lshr_b32 s61, s28, 2           ; kh
          s_lshl_b32 s36, s29, 2
          s_add_u32 s36, s36, s3           ; rb16
          s_lshl_b32 s37, s30, 1
          s_add_u32 s37, s37, s61
          v_and_b32 v14, 15, v1
          v_lshlrev_b32 v3, 10, v14
          v_lshl_add_u32 v3, v8, 3, v3
          s_lshl_b32 s44, s36, 14
          s_lshl_b32 s45, s37, 6
          s_add_u32 s44, s44, s45""")
    srd(k, 16, 4, 5, 2048 * 1024)
    k("""buffer_load_dwordx2 v[96:97], v3, s[16:19], s44 offen
         buffer_load_dwordx2 v[98:99], v3, s[16:19], s44 offen offset:32
         s_lshl_b32 s45, s61, 13
         v_add_u32 v4, s45, v2
         v_add_u32 v5, 65536, v4""")
    act32_voff(k, 3, "s32")
    k(f"""s_lshr_b32 s46, s36, 1
          s_lshl_b32 s46, s46, 15
          s_lshl_b32 s47, s61, 14
          s_add_u32 s46, s46, s47
          s_add_u32 s46, s46, {OF}""")
    for r in range(16): k(f"v_mov_b32 v{16+r}, 0")
    woff = lambda s, u: (4 + (u >> 1), (u & 1) * 32768 + s * 1024)
    k.stamp(3)
    k(f"""s_mov_b32 s60, 0
          L_gv_fw:
          ds_read_b32 v106, v107
          s_add_u32 s60, s60, 1
          s_waitcnt lgkmcnt(0)
          v_readfirstlane_b32 s63, v106
          s_cmp_gt_u32 s60, 0x400000
          s_cbranch_scc1 L_gv_fok
          s_cmp_eq_u32 s63, 2
          s_cbranch_scc1 L_gv_fw
          L_gv_fok:""")
    if NOM2:
        k(f"""s_waitcnt vmcnt(0)
          v_mov_b32 v108, {CNT + 8}
          s_mov_b64 exec, 1
          ds_add_u32 v108, v119
          s_mov_b64 exec, -1
          v_mov_b32 v108, {CNT + 8}
          s_mov_b32 s60, 0
          L_sp_wo:
          ds_read_b32 v109, v108
          s_add_u32 s60, s60, 1
          s_waitcnt lgkmcnt(0)
          v_readfirstlane_b32 s34, v109
          s_cmp_gt_u32 s60, 0x400000
          s_cbranch_scc1 L_spok_wo
          s_cmp_ge_u32 s34, 8
          s_cbranch_scc0 L_sp_wo
          L_spok_wo:
          """)
    else: k("s_waitcnt vmcnt(0)\ns_barrier")
    gemm64_reads(k, 0, woff)
    pollN(k, "s33", "o", 16)
    k.stamp(4)
    for s in range(8):
        if s % 2 == 0: k(f"s_add_u32 s47, s46, {s*2048}")
        k(f"buffer_load_dwordx4 {vr(64+4*s)}, v3, s[24:27], s47 offen offset:{2048*(s&1)} {LSC}")
    if OLB or NOM2: k("s_barrier")
    gemm64(k, 8, woff, 64)
    k.stamp(5)
    k("s_barrier")
    if KLC: k("v_mov_b32 v100, 66560\nv_mov_b32 v102, 0\nv_mov_b32 v103, 0\nds_write_b64 v100, v[102:103]")
    ksplit_exchange(k, 0, "s28", tag="b")
    k(f"""v_lshlrev_b32 v40, 16, v96
          v_and_b32 v41, 0xffff0000, v96
          v_lshlrev_b32 v42, 16, v97
          v_and_b32 v43, 0xffff0000, v97
          v_lshlrev_b32 v44, 16, v98
          v_and_b32 v45, 0xffff0000, v98
          v_lshlrev_b32 v46, 16, v99
          v_and_b32 v47, 0xffff0000, v99
          s_lshl_b32 s47, s36, 4
          s_add_u32 s47, s47, s37
          s_lshl_b32 s46, s47, 7
          s_add_u32 s33, s46, {HFLAG}
          s_add_u32 s46, s46, {HSTAT}
          s_lshl_b32 s47, s47, 10
          s_add_u32 s47, s47, {HF}""")
    for i in range(8): k(f"v_add_f32 v{16+i}, v{16+i}, v{40+i}")
    k("s_waitcnt lgkmcnt(0)")
    for i in range(8): k(f"v_add_f32 v{16+i}, v{16+i}, v{32+i}")
    for i in range(4): k(f"v_cvt_pk_bf16_f32 v{48+i}, v{16+2*i}, v{17+2*i}")
    dstore(k, "buffer_store_dwordx4 v[48:51], v2, s[24:27], s47 offen")
    k("""v_mov_b32 v54, 0x3f803f80
         v_dot2_f32_bf16 v52, v48, v54, 0
         v_dot2_f32_bf16 v53, v48, v48, 0""")
    for i in range(1, 4):
        k(f"""v_dot2_f32_bf16 v52, v{48+i}, v54, v52
              v_dot2_f32_bf16 v53, v{48+i}, v{48+i}, v53""")
    xhalf_add(k, 52, 12); xhalf_add(k, 53, 13)
    x16_add(k, 52, 12); x16_add(k, 53, 13)
    k("""v_lshlrev_b32 v12, 3, v14
         s_mov_b64 exec, 0xffff""")
    dstore(k, "buffer_store_dwordx2 v[52:53], v12, s[24:27], s46 offen")
    k(f"""s_mov_b64 exec, -1
          s_and_b32 s31, s29, 1
          s_lshl_b32 s31, s31, 3
          s_add_u32 s30, s30, s31          ; g
          s_lshr_b32 s29, s29, 1           ; rb128
          s_mul_i32 s31, s30, 3
          s_min_u32 s31, s31, 40           ; u0
          s_lshl_b32 s36, s29, 3
          s_add_u32 s36, s36, s28
          s_lshl_b32 s62, s36, 11
          s_add_u32 s62, s62, {HFLAG}
          s_lshl_b32 s47, s36, 11
          s_add_u32 s47, s47, {ZSTAT}""")
    ACC, WF, H = 16, 40, 64
    k(f"""v_mov_b32 v4, v2
          v_add_u32 v5, 65536, v4
          v_add_u32 v6, 131072, v4
          v_lshlrev_b32 v7, 3, v14
          v_lshl_add_u32 v7, v8, 9, v7      ; n*8 + g*512""")
    set_flagN(k, "s33")
    k.stamp(6)
    if OLB: k("s_barrier")
    k(f"""s_cmp_eq_u32 s30, 15
          s_cbranch_scc0 L_k4_work
          v_mov_b32 v16, 0
          v_mov_b32 v17, 0
          v_lshlrev_b32 v12, 3, v14
          s_add_u32 s47, s47, {15*128}
          buffer_store_dwordx2 v[16:17], v12, s[24:27], s47 offen sc1""")
    k("""v_mov_b32 v12, 66560
         v_mov_b32 v13, 1
         s_mov_b64 exec, 1
         ds_add_u32 v12, v13
         s_mov_b64 exec, -1""" if KLC else "s_barrier")
    k(f"""s_branch L_z_done
          L_k4_work:""")
    def WA(i):
        if i < 32: return (i >> 3) * 32768 + 16384 + (i & 7) * 1024
        if i < 48: return ((i - 32) >> 2) * 32768 + 24576 + (i & 3) * 1024
        if i < 60: return 148 * 1024 + (i - 48) * 1024
        l, j = divmod(i - 60, 9)
        return l * 32768 + 28672 + j * 1024 if j < 4 else 128 * 1024 + (5 * l + j - 4) * 1024
    def wreads(s, half):
        for u in range(3):
            a_ = WA((3*half + u) * 16 + s); f = WF + 12*half + 4*u
            k(f"ds_read_b128 {vr(f)}, v{4 + (a_ >> 16)} offset:{a_ & 0xffff}")
    for r in range(24): k(f"v_mov_b32 v{ACC+r}, 0")
    wreads(0, 0)
    if ILV: wreads(0, 1)
    k(f"""s_lshl_b32 s46, s36, 14
          s_add_u32 s46, s46, {HF}
          s_lshl_b32 s45, s36, 11
          s_add_u32 s45, s45, {HSTAT}
          """)
    pollN(k, "s62", "h", 16)
    k.stamp(7)
    q = VQ(k); hl = []
    for s in range(16):
        def f(s=s):
            if s % 4 == 0: k(f"s_add_u32 s44, s46, {s*1024}")
            k(f"buffer_load_dwordx4 {vr(H+4*s)}, v2, s[24:27], s44 offen offset:{1024*(s&3)} {LSC}")
        hl.append(f)
    for s in range(HW): q.issue(f"h{s}", 1, hl[s])
    def sl():
        for i in range(4):
            k(f"buffer_load_dwordx2 v[{8+2*i}:{9+2*i}], v7, s[24:27], s45 offen offset:{128*i} {LSC}")
    CS2, CS1, MR = 64, 72, 96
    for s in range(16):
        if WPR == 1: k(f"s_setprio {3 - (s & 3)}")
        if WPR == 2 and s % 4 == 0: k(f"s_setprio {3 - s // 4}")
        if ILV:
            for i in range(6):
                lg = f" lgkmcnt({5 if s < 15 else 5 - i})"
                if i == 0: q.wait(f"h{s}", extra=lg)
                else: k("s_waitcnt" + lg)
                A_, B_ = (vr(H+4*s), vr(WF+4*i)) if i < 3 else (vr(WF+4*i), vr(H+4*s))
                k(f"v_mfma_f32_16x16x32_bf16 {vr(ACC+4*i)}, {A_}, {B_}, {vr(ACC+4*i)}")
                if s < 15:
                    a_ = WA(i * 16 + s + 1)
                    k(f"ds_read_b128 {vr(WF+4*i)}, v{4 + (a_ >> 16)} offset:{a_ & 0xffff}")
                if i == 2 and s + HW < 16: q.issue(f"h{s+HW}", 1, hl[s+HW])
                if i == 2 and s == 7: q.issue("st", 4, sl)
        else:
            wreads(s, 1)
            q.wait(f"h{s}", extra=" lgkmcnt(3)")
            for u in range(3):
                k(f"v_mfma_f32_16x16x32_bf16 {vr(ACC+4*u)}, {vr(H+4*s)}, {vr(WF+4*u)}, {vr(ACC+4*u)}")
            if s + HW < 16: q.issue(f"h{s+HW}", 1, hl[s+HW])
            if s == 7: q.issue("st", 4, sl)
            if s < 15:
                wreads(s + 1, 0); k("s_waitcnt lgkmcnt(3)")
            else:
                k("s_waitcnt lgkmcnt(0)")
            for u in range(3):
                k(f"v_mfma_f32_16x16x32_bf16 {vr(ACC+12+4*u)}, {vr(WF+12+4*u)}, {vr(H+4*s)}, {vr(ACC+12+4*u)}")
        if s == 6:
            k.stamp(8)
        if s == 8:
            def cs():
                k(f"""v_and_b32 v3, 15, v1
                      v_lshlrev_b32 v3, 2, v3
                      s_lshl_b32 s38, s31, 6
                      s_add_u32 s38, s38, {CSUM}
                      s_add_u32 s39, s38, {688*4}""")
                for p in range(2):
                    for u in range(3):
                        k(f"buffer_load_dword v{CS2+3*p+u}, v3, s[24:27], s39 offen offset:{64*u}")
                    k("s_add_u32 s39, s39, 8192")
                k("v_lshrrev_b32 v3, 4, v1\nv_lshlrev_b32 v3, 4, v3")
                for p in range(2):
                    for u in range(3):
                        k(f"buffer_load_dwordx4 {vr(CS1+12*p+4*u)}, v3, s[24:27], s38 offen offset:{64*u}")
                    k("s_add_u32 s38, s38, 8192")
            q.issue("cs", 12, cs)
        if s == 12:
            q.wait("st")
            k("""v_add_f32 v8, v8, v10
                 v_add_f32 v9, v9, v11
                 v_add_f32 v12, v12, v14
                 v_add_f32 v13, v13, v15
                 v_add_f32 v8, v8, v12
                 v_add_f32 v9, v9, v13""")
            xhalf_add(k, 8, 12); xhalf_add(k, 9, 13)
        if s == 13:
            x16_add(k, 8, 12); x16_add(k, 9, 13)
            ln_stats(k, 8, 9, 512, 12)
        if s == 15:
            for r in range(4):
                k(f"""v_add_u32 v12, {4*r}, v3
                      ds_bpermute_b32 v{MR+r}, v12, v8
                      ds_bpermute_b32 v{MR+4+r}, v12, v9""")
    k.stamp(9)
    klsig = """v_mov_b32 v12, 66560
               v_mov_b32 v13, 1
               s_mov_b64 exec, 1
               ds_add_u32 v12, v13
               s_mov_b64 exec, -1"""
    k("s_setprio 0")
    k(klsig if KLC else "s_barrier")
    T = 40; z2r = [ACC + i for i in range(12)]; z1r = [ACC + 12 + i for i in range(12)]
    k(f"""v_mov_b32 v15, {f32(GC2)}
          v_and_b32 v14, 15, v1
          s_waitcnt vmcnt(0)""")
    for u in range(3): k(f"v_add_f32 v{CS2+u}, v{CS2+u}, v{CS2+3+u}")
    k("s_waitcnt lgkmcnt(0)")
    for i, a in enumerate(z2r): k(f"v_fma_f32 v{a}, -v{MR+i%4}, v{CS2+i//4}, v{a}")
    for i, a in enumerate(z2r): k(f"v_mul_f32 v{a}, v{MR+4+i%4}, v{a}")
    for i, a in enumerate(z2r): k(f"v_mul_f32 v{T+i}, v{a}, v{a}")
    for i, a in enumerate(z2r): k(f"v_fmaak_f32 v{T+i}, v15, v{T+i}, {f32(GC1)}")
    for i, a in enumerate(z2r): k(f"v_mul_f32 v{T+i}, v{T+i}, v{a}")
    for i, a in enumerate(z2r): k(f"v_exp_f32 v{T+i}, v{T+i}")
    for i, a in enumerate(z2r): k(f"v_add_f32 v{T+i}, 1.0, v{T+i}")
    for i, a in enumerate(z2r): k(f"v_rcp_f32 v{T+i}, v{T+i}")
    for i, a in enumerate(z2r): k(f"v_mul_f32 v{a}, v{a}, v{T+i}")
    SQ = 52
    for r in range(4):
        k(f"v_mov_b32 v{SQ+2*r}, v{ACC+8+r}\nv_mul_f32 v{SQ+2*r+1}, v{ACC+8+r}, v{ACC+8+r}")
    k("""s_cmp_eq_u32 s30, 14
         s_cbranch_scc1 L_k4_red""")
    for u in range(2):
        for r in range(4):
            a = ACC + 4*u + r
            k(f"v_add_f32 v{SQ+2*r}, v{SQ+2*r}, v{a}\nv_fmac_f32 v{SQ+2*r+1}, v{a}, v{a}")
    k("s_nop 0\nL_k4_red:")
    for i in range(4): k(f"v_add_f32_dpp v{SQ+i}, v{SQ+i}, v{SQ+i} row_ror:8 row_mask:0xf bank_mask:0x3")
    for i in range(4): k(f"v_add_f32_dpp v{SQ+i}, v{SQ+4+i}, v{SQ+4+i} row_ror:8 row_mask:0xf bank_mask:0xc")
    for m_ in ("row_half_mirror", "quad_perm:[1,0,3,2]", "quad_perm:[2,3,0,1]"):
        for i in range(4): k(f"v_add_f32_dpp v{SQ+i}, v{SQ+i}, v{SQ+i} {m_} row_mask:0xf bank_mask:0xf")
    k(f"""s_mov_b32 s49, -2
          s_lshl_b32 s48, s30, 7
          s_add_u32 s48, s48, s47
          v_lshlrev_b32 v12, 1, v1           ; (l>>3)*16 for lanes l%8==0""")
    for j in range(4): k(f"v_min_u32 v{SQ+j}, s49, v{SQ+j}")
    k(f"""s_mov_b32 s50, 0x01010101
          s_mov_b32 s51, 0x01010101
          s_mov_b64 exec, s[50:51]""")
    hstore(k, f"buffer_store_dwordx4 {vr(SQ)}, v12, s[24:27], s48 offen")
    k("s_mov_b64 exec, -1")
    k.stamp(10)
    k(f"""v_mul_f32 v10, {f32(GC1)}, v9
          v_mul_f32 v11, v9, v9
          v_mul_f32 v11, v11, v9
          v_mul_f32 v11, {f32(GC2)}, v11
          v_rcp_f32 v13, v9""")
    for i in range(12): k(f"v_add_f32 v{CS1+i}, v{CS1+i}, v{CS1+12+i}")
    for i, a in enumerate(z1r): k(f"v_fma_f32 v{a}, -v8, v{CS1+i}, v{a}")
    for i, a in enumerate(z1r): k(f"v_mul_f32 v{T+i}, v{a}, v{a}")
    for i, a in enumerate(z1r): k(f"v_fma_f32 v{T+i}, v{T+i}, v11, v10")
    for i, a in enumerate(z1r): k(f"v_mul_f32 v{T+i}, v{T+i}, v{a}")
    for i, a in enumerate(z1r): k(f"v_exp_f32 v{T+i}, v{T+i}")
    for i, a in enumerate(z1r): k(f"v_fma_f32 v{T+i}, v{T+i}, v13, v13")
    for i, a in enumerate(z1r): k(f"v_rcp_f32 v{T+i}, v{T+i}")
    for i, a in enumerate(z1r): k(f"v_mul_f32 v{a}, v{a}, v{T+i}")
    k(f"""v_lshrrev_b32 v10, 4, v1           ; g
          v_and_b32 v11, 1, v10
          v_lshrrev_b32 v10, 1, v10
          v_lshlrev_b32 v12, 9, v11
          v_lshl_add_u32 v12, v14, 4, v12
          v_lshl_add_u32 v12, v10, 3, v12
          v_lshlrev_b32 v6, 9, v10
          v_lshl_add_u32 v6, v14, 4, v6
          v_lshl_add_u32 v6, v11, 3, v6
          s_lshr_b32 s44, s36, 1
          s_mul_i32 s44, s44, 44
          s_add_u32 s44, s44, s31
          s_lshl_b32 s44, s44, 10
          s_and_b32 s45, s36, 1
          s_lshl_b32 s45, s45, 8
          s_add_u32 s44, s44, s45
          s_add_u32 s44, s44, {Z1}
          s_mov_b32 s54, 0""")
    if W4:
        k(f"""v_lshlrev_b32 v4, 9, v11
              v_lshl_add_u32 v4, v14, 4, v4
              v_lshl_add_u32 v4, v10, 10, v4     ; z1 x4 voffset
              s_bitcmp1_b32 s31, 0
              s_cselect_b32 s45, {131072-256}, 64
              s_cselect_b32 s46, 0, 2
              s_lshl_b32 s45, s45, s46
              v_mul_lo_u32 v5, v11, s45
              v_lshl_add_u32 v5, v10, 9, v5
              v_lshl_add_u32 v5, v14, 4, v5      ; z2 x4 voffset""")
    def zpoll():
        for i in range(4):
            k(f"buffer_load_dwordx2 v[{72+2*i}:{73+2*i}], v7, s[24:27], s47 offen offset:{128*i} sc1")
    zpoll()
    for u in range(3):
        a = ACC + 12 + 4*u; p = 64 + 2*u
        k(f"""v_cvt_pk_bf16_f32 v{p}, v{a}, v{a+1}
              v_cvt_pk_bf16_f32 v{p+1}, v{a+2}, v{a+3}""")
        if not W4 or u == 2: k(f"buffer_store_dwordx2 v[{p}:{p+1}], v12, s[24:27], s44 offen offset:{1024*u} {ZSC}")
    if W4:
        k(f"""v_permlane32_swap_b32 v64, v66
              v_permlane32_swap_b32 v65, v67
              buffer_store_dwordx4 v[64:67], v4, s[24:27], s44 offen {ZSC}""")
    k(f"s_waitcnt vmcnt({2 if W4 else 3})\ns_branch L_k4_chk\nL_k4_poll:")
    zpoll()
    k(f"""s_waitcnt vmcnt(0)
          L_k4_chk:
          v_max3_u32 v12, v72, v73, v74
          v_max3_u32 v13, v75, v76, v77
          v_max3_u32 v12, v12, v78, v79
          v_max_u32 v12, v12, v13
          v_cmp_eq_u32 vcc, -1, v12
          s_add_u32 s54, s54, 1
          s_cmp_gt_u32 s54, 0x40000
          s_cbranch_scc1 L_k4_go
          s_cbranch_vccz L_k4_go
          s_sleep {SLEEP}
          s_branch L_k4_poll
          L_k4_go:""")
    k.stamp(11)
    k("""v_add_f32 v72, v72, v74
         v_add_f32 v73, v73, v75
         v_add_f32 v76, v76, v78
         v_add_f32 v77, v77, v79
         v_add_f32 v72, v72, v76
         v_add_f32 v73, v73, v77""")
    xhalf_add(k, 72, 12); xhalf_add(k, 73, 13)
    x16_add(k, 72, 12); x16_add(k, 73, 13)
    ln_stats(k, 72, 73, 688, 12)
    k("v_mul_f32 v72, -v72, v73")
    for r in range(4):
        k(f"""v_add_u32 v12, {4*r}, v3
              ds_bpermute_b32 v{MR+r}, v12, v72
              ds_bpermute_b32 v{MR+4+r}, v12, v73""")
    k(f"""s_lshl_b32 s45, s36, 10
          s_add_u32 s45, s45, {Z2F}
          s_waitcnt lgkmcnt(0)""")
    for i, a in enumerate(z2r): k(f"v_fma_f32 v{a}, v{a}, v{MR+4+i%4}, v{MR+i%4}")
    for u in range(3):
        a = ACC + 4*u; p = 80 + 2*u
        k(f"""s_add_u32 s44, s31, {u}
              s_lshr_b32 s46, s44, 1
              s_lshl_b32 s46, s46, 17
              s_and_b32 s44, s44, 1
              s_lshl_b32 s44, s44, 8
              s_add_u32 s44, s44, s46
              s_add_u32 s44, s44, s45
              v_cvt_pk_bf16_f32 v{p}, v{a}, v{a+1}
              v_cvt_pk_bf16_f32 v{p+1}, v{a+2}, v{a+3}""")
        if W4 and u == 0: k("s_mov_b32 s38, s44")
        if W4 and u == 1:
            k(f"""v_permlane16_swap_b32 v80, v82
                  v_permlane16_swap_b32 v81, v83
                  buffer_store_dwordx4 v[80:83], v5, s[24:27], s38 offen {ZSC}""")
        if not W4 or u == 2: k(f"buffer_store_dwordx2 v[{p}:{p+1}], v6, s[24:27], s44 offen {ZSC}")
    k("L_z_done:")
    AD, NS, WOL, XS6 = (3, 18, 0, 147456) if DEEP else (3, 6, 73728, 49152)
    ORD = [((p & 14) << 1) + (p & 1) + ((p >> 4) << 1) for p in range(32)] if PROG else list(range(32))
    ACC, BF, A = 16, 48, 80
    k(f"""s_load_dwordx2 s[6:7], s[0:1], 64
          s_load_dwordx2 s[10:11], s[0:1], 80
          s_mul_i32 s34, s57, 3
          s_min_u32 s34, s34, 19
          s_add_u32 s34, s34, s28
          s_lshl_b32 s62, s56, 12
          s_add_u32 s62, s62, {YFLAG}
          s_lshl_b32 s52, s34, 7
          s_add_u32 s52, s52, s62
          s_mul_i32 s53, s61, {11*128}
          s_add_u32 s62, s62, s53
          s_lshl_b32 s40, s34, 17
          s_add_u32 s41, s40, {Z2F}
          s_mov_b32 s40, s41
          s_mov_b32 s45, 0
          s_mul_i32 s39, s56, 88
          s_lshl_b32 s42, s34, 1
          s_add_u32 s39, s39, s42
          s_lshl_b32 s39, s39, 10
          v_and_b32 v15, 31, v1
          v_lshlrev_b32 v12, 1, v15
          s_lshl_b32 s43, s56, 7
          s_waitcnt vmcnt(0) lgkmcnt(0)
          s_barrier""")
    k.stamp(12)
    if os.environ.get("STW"): k.stamp = lambda i, real=False: None if i < 13 else Kern.stamp(k, i, real)
    k(f"""s_cmp_lt_u32 s28, 3
          s_cbranch_scc1 L_k5_comp
          s_cmp_eq_u32 s28, 3
          s_cbranch_scc0 L_k5_idle
          s_lshl_b32 s44, s29, 4
          s_add_u32 s44, s44, s30
          s_lshl_b32 s44, s44, 7
          s_add_u32 s44, s44, {XIDC}""")
    set_flagN(k, "s44", drain=False, fast=False)
    k(f"""s_lshl_b32 s44, s57, 1
          s_min_u32 s44, s44, 12
          s_lshl_b32 s44, s44, 7
          s_add_u32 s44, s44, {XIDC}
          v_and_b32 v15, 7, v1
          v_lshlrev_b32 v15, 12, v15
          v_lshrrev_b32 v12, 3, v1
          v_min_u32 v12, 2, v12
          v_lshl_add_u32 v15, v12, 7, v15""")
    pollN(k, "s44", "z", sl=ZSL, pre=ZPRE)
    k("s_barrier\n" * (6 if PROG else 0) + "s_add_u32 s44, s44, 2048")
    pollN(k, "s44", "z2")
    k(f"""s_mov_b32 s55, {6 if PROG else 0}
          s_branch L_k5_ib
          L_k5_idle:""")
    k(f"""s_mov_b32 s55, 0
          L_k5_ib:
          s_barrier
          s_add_u32 s55, s55, 1""")
    if PTY:
        k(f"""s_cmp_eq_u32 s55, {PTY}
              s_cbranch_scc0 L_k5_i2
              s_cmp_eq_u32 s28, 4
              s_cbranch_scc0 L_k5_i2
              s_sub_u32 s44, s39, 8192
              s_add_u32 s44, s44, {YF}
              s_add_u32 s45, s44, {44*1024}
              s_cmp_eq_u32 s57, 7
              s_cselect_b32 s46, 32, 0
              v_min_u32 v12, 47, v1
              v_max_u32 v12, s46, v12
              v_lshlrev_b32 v12, 7, v12
              buffer_load_dword v127, v12, s[24:27], s44 offen
              buffer_load_dword v127, v12, s[24:27], s45 offen
              L_k5_i2:""")
    k(f"""
          s_cmp_lt_u32 s55, {18 if DEEP else 17}
          s_cbranch_scc1 L_k5_ib
          s_branch L_k6""")
    k("L_k5_comp:")
    srd(k, 20, 6, 7, 4096)
    k(f"""buffer_load_ushort v8, v12, s[20:23], s43 offen
          buffer_load_ushort v9, v12, s[20:23], s43 offen offset:64
          v_lshrrev_b32 v13, 1, v15
          v_and_b32 v13, 7, v13
          v_lshlrev_b32 v12, 7, v15
          v_lshrrev_b32 v10, 5, v1""")
    for qq in range(4):
        k(f"""v_add_u32 v14, {2*qq}, v10
              v_xor_b32 v14, v14, v13
              v_lshl_add_u32 v{4+qq}, v14, 4, v12""")
    k(f"""s_cmp_eq_u32 s34, 21
          s_cselect_b32 s44, {0x3ff & ~256}, -1
          v_and_b32 v3, s44, v2
          s_mov_b32 s55, 0
          s_mov_b32 s54, 49152
          s_waitcnt vmcnt(0)
          v_lshlrev_b32 v8, 16, v8
          v_lshlrev_b32 v9, 16, v9""")
    for r in range(16): k(f"v_mov_b32 v{ACC+r}, v8\nv_mov_b32 v{ACC+16+r}, v9")
    k("s_barrier")
    k.stamp(13 if False else 8)
    for i in range(AD):
        for j in range(4):
            k(f"buffer_load_dwordx4 {vr(A+16*i+4*j)}, v3, s[24:27], s40 offen offset:{1024*j}")
        k(f"s_add_u32 s40, s40, {(ORD[i+1]-ORD[i])*4096}")
    k(f"s_add_u32 s41, s41, 8192\ns_add_u32 s45, s39, {Z1}")
    def breads(half, slotoff):
        for j in range(2):
            for th in range(2):
                k(f"ds_read_b128 {vr(BF+16*half+8*j+4*th)}, v{4+2*half+j} offset:{slotoff+4096*th}")
    def mf(half, slot, ld):
        for j in range(2):
            for th in range(2):
                k(f"v_mfma_f32_32x32x16_bf16 {vr(ACC+16*th,16)}, {vr(A+16*slot+8*half+4*j)}, {vr(BF+16*half+8*j+4*th)}, {vr(ACC+16*th,16)}")
            if ld: ld(2*half + j)
    def ald(slot): return lambda jj: k(f"buffer_load_dwordx4 {vr(A+16*slot+4*jj)}, v3, s[24:27], s40 offen offset:{1024*jj}")
    k("s_barrier")
    breads(0, 0)
    k("L_k5_loop:")
    for i in range(6):
        sl = i % AD
        breads(1, i * 8192)
        k(f"s_waitcnt vmcnt({4*AD-2}) lgkmcnt(4)")
        mf(0, sl, ald(sl))
        if i & 1:
            if DEEP and i == 5:
                k(f"""s_cmp_eq_u32 s55, 3
                      s_cselect_b32 s44, {-98304 & 0xffffffff:#x}, s54""")
                for qq in range(4): k(f"v_add_u32 v{4+qq}, s44, v{4+qq}")
            k(f"s_waitcnt vmcnt({4*AD-2}) lgkmcnt(0)\ns_barrier")
            breads(0, ((i + 1) % 6) * 8192)
        else:
            breads(0, (i + 1) * 8192)
            k(f"s_waitcnt vmcnt({4*AD-2}) lgkmcnt(4)")
        mf(1, sl, ald(sl))
        k(f"s_add_u32 s40, s40, {12288 if i % 2 == 0 else 4096}" if PROG else "s_add_u32 s40, s40, 4096")
        if i == 0 and PROG:
            k(f"""s_cmp_eq_u32 s55, 2
                  s_cselect_b32 s40, s41, s40""")
        if i == 4:
            k(f"""s_add_u32 s55, s55, 1
                  s_cmp_eq_u32 s55, 5
                  s_cselect_b32 s40, s45, s40
                  s_cselect_b32 s44, -1, 0
                  v_and_or_b32 v3, s44, v2, v3""")
    k("""s_cmp_lt_u32 s55, 5
         s_cbranch_scc1 L_k5_loop""")
    k(f"s_add_u32 s43, s39, {Z1 + 44*1024}")
    breads(1, 0)
    k("s_waitcnt vmcnt(10) lgkmcnt(4)")
    mf(0, 0, lambda jj: k(f"buffer_load_dwordx4 {vr(A+4*jj)}, v2, s[24:27], s43 offen offset:{1024*jj}"))
    breads(0, 8192)
    k("s_waitcnt vmcnt(10) lgkmcnt(4)")
    mf(1, 0, None)
    breads(1, 8192)
    k("s_waitcnt vmcnt(8) lgkmcnt(4)")
    mf(0, 1, None)
    k("s_waitcnt vmcnt(6) lgkmcnt(0)")
    mf(1, 1, None)
    k.stamp(9)
    k("""s_cmp_eq_u32 s57, 7
         s_cselect_b32 s44, 2, 0
         s_cmp_lt_u32 s28, s44
         s_cbranch_scc1 L_k6_exit""")
    Zs = [A + 32 + i for i in range(8)] + [A + i for i in range(8)]
    k(f"""s_add_u32 s42, s39, {YF}
          s_add_u32 s43, s42, {44*1024}
          s_waitcnt vmcnt(0)""")
    for i in range(16):
        k(f"""v_lshlrev_b32 v{48+2*i}, 16, v{Zs[i]}
              v_and_b32 v{49+2*i}, 0xffff0000, v{Zs[i]}""")
    for i in range(32): k(f"v_mul_f32 v{ACC+i}, v{ACC+i}, v{48+i}")
    for i in range(16): k(f"v_cvt_pk_bf16_f32 v{A+i}, v{ACC+2*i}, v{ACC+2*i+1}")
    dstore(k, [f"buffer_store_dwordx4 {vr(A+8*th+4*f)}, v2, s[24:27], {'s43' if th else 's42'} offen offset:{1024*f}" for th in range(2) for f in range(2)])
    if DEEP: k("s_barrier")
    set_flagN(k, "s52")
    k.stamp(10)
    k("s_endpgm")
    k(f"""L_k6:
          s_cmp_eq_u32 s28, 3
          s_cbranch_scc1 L_k6_exit
          s_load_dwordx2 s[10:11], s[0:1], 80
          s_lshr_b32 s61, s28, 3           ; kh
          s_sub_u32 s48, s28, 4
          s_lshl_b32 s62, s56, 12
          s_add_u32 s62, s62, {YFLAG}
          s_mul_i32 s53, s61, {11*128}
          s_add_u32 s62, s62, s53""")
    lane_fields(k)
    k(f"""s_lshl_b32 s36, s56, 2
          s_add_u32 s36, s36, s3           ; rb16
          s_lshl_b32 s37, s57, 1
          s_add_u32 s37, s37, s61
          s_lshl_b32 s47, s36, 4
          s_add_u32 s47, s47, s37
          s_lshl_b32 s47, s47, 10
          s_add_u32 s47, s47, {HF}
          buffer_load_dwordx4 v[112:115], v2, s[24:27], s47 offen
          s_mul_i32 s45, s61, {11*1024}
          s_add_u32 s45, s45, {WOL}
          v_add_u32 v4, s45, v2
          v_add_u32 v5, {2*22528}, v4""")
    act32_voff(k, 3, "s32")
    k(f"""s_lshr_b32 s46, s36, 1
          s_mul_i32 s46, s46, {44*1024}
          s_mul_i32 s47, s61, {22*1024}
          s_add_u32 s46, s46, s47
          s_add_u32 s46, s46, {YF}
          s_cmp_eq_u32 s61, 0
          s_cselect_b32 s49, -1, 0
          s_waitcnt lgkmcnt(0)""")
    srd(k, 16, 10, 11, 2048 * 1024)
    for r in range(16): k(f"v_mov_b32 v{16+r}, 0")
    for r in range(4): k(f"v_mov_b32 v{64+40+r}, 0")
    woff = lambda s, u: (4 + (u >> 1), (u & 1) * 22528 + s * 1024)
    if WOT != 'tail' and not DEEP: gemm64_reads(k, 0, woff)
    pollN(k, "s62", "y", 11)
    k.stamp(11)
    for s in range(11):
        if s % 2 == 0: k(f"s_add_u32 s47, s46, {s*2048}")
        if s == 10: k("s_mov_b32 exec_hi, s49")
        k(f"buffer_load_dwordx4 {vr(64+4*s)}, v3, s[24:27], s47 offen offset:{2048*(s&1)}")
    k("s_mov_b32 exec_hi, -1")
    if WOT == 'tail' or DEEP:
        k("s_barrier")
        gemm64_reads(k, 0, woff)
    k.stamp(8)
    if STAMPS: k("s_waitcnt vmcnt(10)")
    k.stamp(7)
    gemm64(k, 11, woff, 64)
    k.stamp(9)
    ksplit_exchange(k, XS6, "s48", tag="c")
    k.stamp(10)
    for i in range(4):
        k(f"""v_lshlrev_b32 v{40+2*i}, 16, v{112+i}
              v_and_b32 v{41+2*i}, 0xffff0000, v{112+i}""")
    for i in range(8): k(f"v_add_f32 v{16+i}, v{16+i}, v{40+i}")
    k(f"""v_and_b32 v12, 15, v1
          v_lshlrev_b32 v12, 10, v12
          v_and_b32 v13, 1, v8
          v_lshl_add_u32 v12, v13, 5, v12
          v_lshl_add_u32 v12, v9, 4, v12
          s_lshl_b32 s46, s36, 14
          s_lshl_b32 s47, s37, 6
          s_add_u32 s46, s46, s47
          s_waitcnt lgkmcnt(0)""")
    for i in range(8): k(f"v_add_f32 v{16+i}, v{16+i}, v{32+i}")
    for i in range(4): k(f"v_cvt_pk_bf16_f32 v{48+i}, v{16+2*i}, v{17+2*i}")
    k("""v_permlane16_swap_b32 v48, v50
         v_permlane16_swap_b32 v49, v51
         buffer_store_dwordx4 v[48:51], v12, s[16:19], s46 offen
         L_k6_exit:
         s_endpgm""")
    k(f"""L_kb_loader:
          s_and_b32 s31, s29, 1
          s_lshl_b32 s31, s31, 3
          s_add_u32 s30, s30, s31          ; g
          s_mul_i32 s31, s30, 3
          s_min_u32 s31, s31, 40           ; u0
          s_lshl_b32 s40, s31, 14
          s_lshl_b32 s38, s3, 12
          s_add_u32 s41, s40, s38
          s_add_u32 s41, s41, {WPK + 43*16384 + 32768}
          s_mul_i32 s38, s3, 9216
          s_add_u32 s40, s40, s38
          s_add_u32 s40, s40, {WPK + 12*1024}
          s_lshl_b32 s42, s3, 15
          s_add_u32 m0, s42, 24576
          s_mul_i32 s38, s3, 5120""")
    k("s_barrier")
    if OLB: k("s_barrier")
    for j in range(4): k(f"buffer_load_dwordx4 v2, s[24:27], s41 offen offset:{1024*j} lds")
    if not P1:
        k("""s_mul_i32 s43, s3, 4096
             s_add_u32 s41, s41, s43
             s_sub_u32 s41, s41, 32768""")
        for h_ in range(2):
            k(f"s_add_u32 m0, s42, {16384 + 4096*h_}")
            for j in range(4): k(f"buffer_load_dwordx4 v2, s[24:27], s41 offen offset:{1024*j} lds")
            k("s_add_u32 s41, s41, 4096")
    k("s_add_u32 m0, s42, 28672")
    for j in range(4): k(f"buffer_load_dwordx4 v2, s[24:27], s40 offen offset:{1024*j} lds")
    k(f"s_add_u32 m0, s38, {128*1024}\ns_add_u32 s40, s40, 4096")
    for j in range(4): k(f"buffer_load_dwordx4 v2, s[24:27], s40 offen offset:{1024*j} lds")
    k(f"s_add_u32 m0, s38, {128*1024+4096}\ns_add_u32 s40, s40, 4096\nbuffer_load_dwordx4 v2, s[24:27], s40 offen lds")
    k.stamp(3)
    k(f"""s_load_dwordx2 s[16:17], s[0:1], 56
          s_lshl_b32 s35, s56, 6
          s_lshl_b32 s36, s3, 4
          s_add_u32 s35, s35, s36
          v_lshrrev_b32 v12, 3, v1
          v_add_u32 v5, s35, v12
          v_lshlrev_b32 v5, 12, v5
          v_and_b32 v13, 7, v1
          v_lshrrev_b32 v14, 4, v1
          v_xor_b32 v14, v13, v14
          v_lshl_add_u32 v5, v14, 4, v5
          v_xor_b32 v6, 64, v5
          v_add_u32 v6, {8*4096}, v6
          s_lshl_b32 s37, s3, 11
          s_lshl_b32 s36, s57, 2
          s_add_u32 s36, s36, s3
          s_mul_i32 s36, s36, 24576
          s_add_u32 s36, s36, {WUP}
          s_mul_i32 s35, s3, 22528
          s_add_u32 s35, s35, {WOL}
          s_mov_b32 s18, {2048*4096}
          s_mov_b32 s19, 0x00020000
          s_waitcnt {'' if OLB else 'vmcnt(0)'} lgkmcnt(0)""")
    k.stamp(4)
    k("s_barrier\ns_barrier")
    if OLB: k("s_waitcnt vmcnt(0)\ns_barrier")
    if KLC:
        k("""v_mov_b32 v12, 66560
             s_mov_b32 s60, 0
             L_ld_kl:
             ds_read_b32 v13, v12
             s_add_u32 s60, s60, 1
             s_waitcnt lgkmcnt(0)
             v_readfirstlane_b32 s43, v13
             s_cmp_gt_u32 s60, 0x400000
             s_cbranch_scc1 L_ld_klok
             s_cmp_ge_u32 s43, 8
             s_cbranch_scc1 L_ld_klok
             s_sleep 2
             s_branch L_ld_kl
             L_ld_klok:
             """)
    else: k("s_barrier")
    q = VQ(k)
    def bi(c):
        q.issue(f"b{c}", 2, lambda: k(f"""s_add_u32 m0, s37, {(c % NS)*8192}
              s_movk_i32 s41, {ORD[c]*128}
              buffer_load_dwordx4 v5, s[16:19], s41 offen lds
              s_add_u32 m0, s37, {(c % NS)*8192 + 1024}
              buffer_load_dwordx4 v6, s[16:19], s41 offen lds"""))
    def wi(c):
        q.issue(f"w{c}", 2, lambda: k(f"""s_add_u32 m0, s35, {c*2048}
              s_add_u32 s39, s36, {c*2048}
              buffer_load_dwordx4 v2, s[24:27], s39 offen lds
              {'s_sleep %d' % WSL2 if WSL2 else ''}
              buffer_load_dwordx4 v2, s[24:27], s39 offen offset:1024 lds
              {'s_sleep %d' % WSL2 if WSL2 else ''}"""))
    if WOT == 'kl':
        for c in range(11): wi(c)
    nxt = 0
    for _ in range(RP): bi(nxt); nxt += 1
    k.stamp(5)
    k("s_barrier")
    while nxt < (DEEP if DEEP else NS): bi(nxt); nxt += 1
    if WOT == 'zb' and not DEEP:
        for c in range(11): wi(c)
    k("s_barrier")
    for b in range(16):
        q.wait(f"b{2*b+1}"); k("s_barrier")
        n_ = 0
        while nxt < 32 and nxt - NS <= 2*b - 1 and (not DEEP or n_ < 1 or nxt < 2*b + 8): bi(nxt); nxt += 1; n_ += 1
    assert nxt == 32
    if DEEP:
        k("s_barrier")
        for c in range(11): wi(c)
    k("s_branch L_k6")
    k(f"L_{k.name}_end:\ns_endpgm")
    return k, (256, 1024, 163840)
```
